```python
import torch

def _softmax(x, axis=-1):
    return torch.softmax(x, dim=axis)
def _gelu(x):
    return torch.nn.functional.gelu(x, approximate="tanh")
def _silu(x):
    return torch.nn.functional.silu(x)
def _sigmoid(x):
    return torch.sigmoid(x)
def _layernorm(x, axis=-1, eps=1e-5):
    m = x.mean(dim=axis, keepdim=True)
    v = x.var(dim=axis, keepdim=True, unbiased=False)
    return (x - m) / torch.sqrt(v + eps)
def _scatter_add(tgt, idx, src, axis=0):
    return tgt.clone().index_add_(axis, idx, src)
def _segment_sum(src, seg, n):
    out = torch.zeros((n,) + src.shape[1:], dtype=src.dtype)
    return out.index_add_(0, seg, src)
def _pad(x, pw):
    flat = tuple(v for pair in reversed(pw) for v in pair)
    return torch.nn.functional.pad(x, flat)

kernel_name = 'gated_mix__grouped_kv_mqa__moe_arch_mod__prompt'

def setup_inputs():

    _w = (lambda a: (lambda t: t.to(torch.bfloat16) if t.is_floating_point() else t)(torch.as_tensor(a)))
    def _A_setup():
        B, S, D, H = 1, 2048, 576, 32
        Dh = D // H
        return {
            "x": _w((lambda *s: torch.randn(*s, dtype=torch.bfloat16) * 0.05)(B, S, D)),
            "wq": _w((lambda *s: torch.randn(*s, dtype=torch.bfloat16) * 0.8)(D, H * Dh)),
            "wk": _w((lambda *s: torch.randn(*s, dtype=torch.bfloat16) * 0.8)(D, Dh)),
            "wv": _w((lambda *s: torch.randn(*s, dtype=torch.bfloat16) * 0.2)(D, Dh)),
            "wo": _w((lambda *s: torch.randn(*s, dtype=torch.bfloat16) * 0.2)(H * Dh, D)),
        }
    _A_in = _A_setup()

    def _B_setup():
        B, S, D, F, C = 1, 2048, 576, 4608, 2
        return {
            "x": _w((lambda *s: torch.randn(*s, dtype=torch.bfloat16) * 0.05)(B, S, D)),
            "w_r": _w((lambda *s: torch.randn(*s, dtype=torch.bfloat16) * 1.6)(D)),
            "w_gate": _w((lambda *s: torch.randn(*s, dtype=torch.bfloat16) * 0.1)(D, F)),
            "w_up": _w((lambda *s: torch.randn(*s, dtype=torch.bfloat16) * 0.1)(D, F)),
            "w_down": _w((lambda *s: torch.randn(*s, dtype=torch.bfloat16) * 0.1)(F, D)),
        }
    _B_in = _B_setup()

    return {
        "A_x": _A_in["x"],
        "A_wq": _A_in["wq"],
        "A_wk": _A_in["wk"],
        "A_wv": _A_in["wv"],
        "A_wo": _A_in["wo"],
        "B_x": _B_in["x"],
        "B_w_r": _B_in["w_r"],
        "B_w_gate": _B_in["w_gate"],
        "B_w_up": _B_in["w_up"],
        "B_w_down": _B_in["w_down"],
        "gate_w": _w((lambda *s: torch.randn(*s, dtype=torch.bfloat16) * 0.05)(576) * 16.0),
    }

def reference(A_x, A_wq, A_wk, A_wv, A_wo, B_x, B_w_r, B_w_gate, B_w_up, B_w_down, gate_w):
    def _A_ref(x, wq, wk, wv, wo):
        B, S, D = x.shape
        H = 32
        Dh = D // H
        q = (lambda x, *d: x.permute(*d))((x @ wq).reshape(B, S, H, Dh), 0, 2, 1, 3)
        k = x @ wk
        v = x @ wv
        scores = torch.einsum("bhqd,bkd->bhqk", q, k) * (Dh ** -0.5)
        p = _softmax(scores, axis=-1)
        o = torch.einsum("bhqk,bkd->bhqd", p, v)
        return (lambda x, *d: x.permute(*d))(o, 0, 2, 1, 3).reshape(B, S, H * Dh) @ wo

    def _B_ref(x, w_r, w_gate, w_up, w_down):
        B, S, D = x.shape
        C = 2
        r = x @ w_r
        idx = torch.argsort(-r, axis=-1)[:, :C]
        idx_e = (lambda x, n, axis: torch.repeat_interleave(x, n, dim=axis))(idx.reshape(B, C, 1), D, axis=2)
        x_sel = (lambda x, i, axis: torch.take_along_dim(x, i, dim=axis))(x, idx_e, axis=1)
        g = _silu(x_sel @ w_gate)
        u = x_sel @ w_up
        y = (g * u) @ w_down
        r_sel = _sigmoid((lambda x, i, axis: torch.take_along_dim(x, i, dim=axis))(r, idx, axis=1))
        y = y * r_sel.reshape(B, C, 1)
        b_off = (torch.arange(B) * S).reshape(B, 1)
        flat_idx = (idx + b_off).reshape(B * C)
        zero = (x * 0.0).reshape(B * S, D)
        upd = _scatter_add(zero, flat_idx, y.reshape(B * C, D), axis=0)
        return x + upd.reshape(B, S, D)

    x = A_x
    g = _sigmoid((x * gate_w).sum(-1, keepdims=True))
    a = _A_ref(x, A_wq, A_wk, A_wv, A_wo)
    b = _B_ref(x, B_w_r, B_w_gate, B_w_up, B_w_down)
    return g * a + (1 - g) * b
```

```python
import re

def v(i): return f"v{i}"
def vr(i, n): return f"v[{i}:{i+n-1}]" if n > 1 else f"v{i}"
def a(i): return f"a{i}"
def ar(i, n): return f"a[{i}:{i+n-1}]" if n > 1 else f"a{i}"
def s(i): return f"s{i}"
def sr(i, n): return f"s[{i}:{i+n-1}]" if n > 1 else f"s{i}"

_REG = re.compile(r"^(v|a|s)(\d+)$")
_RNG = re.compile(r"^(v|a|s)\[(\d+):(\d+)\]$")

def regs_of(op):
    op = op.strip()
    if op.startswith("-"): op = op[1:]
    if op.startswith("abs(") or op.startswith("neg("): op = op[4:-1]
    if op.startswith("|") and op.endswith("|"): op = op[1:-1]
    m = _REG.match(op)
    if m: return {(m.group(1), int(m.group(2)))}
    m = _RNG.match(op)
    if m: return {(m.group(1), i) for i in range(int(m.group(2)), int(m.group(3)) + 1)}
    if op == "vcc": return {("s", "vcc_lo"), ("s", "vcc_hi")}
    if op in ("vcc_lo", "vcc_hi"): return {("s", op)}
    if op == "exec": return {("s", "exec")}
    if op == "m0": return {("s", "m0")}
    return set()

TRANS = ("v_exp_f32", "v_log_f32", "v_rcp_f32", "v_rsq_f32", "v_sqrt_f32", "v_sin_f32", "v_cos_f32",
         "v_exp_f16", "v_rcp_iflag_f32", "v_rcp_f16", "v_log_f16")

def mfma_passes(mn):
    if "32x32x16" in mn or "32x32x8" in mn: return 8
    if "16x16x32" in mn or "16x16x16" in mn: return 4
    raise ValueError(mn)

class Ins:
    __slots__ = ("text", "mn", "ops", "defs", "uses", "kind", "mods")
    def __init__(self, text):
        self.text = text
        t = text.split(";")[0].strip()
        parts = t.split(None, 1)
        self.mn = parts[0]
        rest = parts[1] if len(parts) > 1 else ""
        ops = []; depth = 0; cur = ""
        for ch in rest:
            if ch in "[(": depth += 1
            if ch in "])": depth -= 1
            if ch == "," and depth == 0:
                ops.append(cur.strip()); cur = ""
            else: cur += ch
        if cur.strip(): ops.append(cur.strip())
        mods = ""
        if ops:
            last = ops[-1].split(None, 1)
            if len(last) > 1 and not last[0].endswith(","):
                ops[-1] = last[0]; mods = last[1]
        self.ops = ops; self.mods = mods
        self.classify()
    def classify(self):
        mn = self.mn; ops = self.ops
        R = regs_of
        defs = set(); uses = set()
        if mn.startswith("v_mfma"):
            self.kind = "mfma"
            defs = R(ops[0]); uses = R(ops[1]) | R(ops[2]) | R(ops[3])
        elif mn.startswith("v_"):
            self.kind = "valu"
            base = mn.replace("_e32", "").replace("_e64", "").replace("_dpp", "").replace("_sdwa", "")
            if base.startswith("v_cmp"):
                defs = R(ops[0]);
                for o in ops[1:]: uses |= R(o)
                if base.startswith("v_cmpx"): defs |= R("exec")
            elif base in ("v_readfirstlane_b32", "v_readlane_b32"):
                defs = R(ops[0])
                for o in ops[1:]: uses |= R(o)
            elif base.startswith("v_permlane") and "swap" in base:
                defs = R(ops[0]) | R(ops[1]); uses = set(defs)
            elif base in ("v_add_co_u32", "v_sub_co_u32", "v_subrev_co_u32"):
                defs = R(ops[0]) | R(ops[1])
                for o in ops[2:]: uses |= R(o)
            elif base in ("v_addc_co_u32", "v_subb_co_u32"):
                defs = R(ops[0]) | R(ops[1])
                for o in ops[2:]: uses |= R(o)
            else:
                defs = R(ops[0])
                for o in ops[1:]: uses |= R(o)
                if base.startswith("v_fmac") or base.startswith("v_dot2c") or base in ("v_writelane_b32",) or "UNUSED_PRESERVE" in self.mods or "_dpp" in mn or base.startswith("v_mac") or base.startswith("v_pk_fmac") or base.startswith("v_accvgpr_write") and False:
                    uses |= R(ops[0])
                if base == "v_cndmask_b32" and len(ops) == 3: uses |= R("vcc")
        elif mn.startswith("ds_"):
            self.kind = "ds"
            if mn.startswith("ds_read") or mn.startswith("ds_bpermute") or mn.startswith("ds_permute") or mn.startswith("ds_swizzle") or "_rtn_" in mn:
                defs = R(ops[0])
                for o in ops[1:]: uses |= R(o)
                if "d16" in mn: uses |= R(ops[0])
            else:
                for o in ops: uses |= R(o)
        elif mn.startswith("buffer_") or mn.startswith("global_") or mn.startswith("flat_"):
            self.kind = "vmem"
            if mn in ("buffer_inv", "buffer_wbl2"):
                pass
            elif "lds" in self.mods.split() or mn.startswith("global_load_lds"):
                for o in ops: uses |= R(o)
                uses |= R("m0")
            elif "load" in mn:
                defs = R(ops[0])
                for o in ops[1:]: uses |= R(o)
                if "d16" in mn: uses |= R(ops[0])
            elif "atomic" in mn and "sc0" in self.mods.split():
                if mn.startswith("global"):
                    defs = R(ops[0])
                    for o in ops[1:]: uses |= R(o)
                else:
                    defs = R(ops[0])
                    for o in ops: uses |= R(o)
            else:
                for o in ops: uses |= R(o)
        elif mn.startswith("s_"):
            self.kind = "salu"
            if mn in ("s_waitcnt", "s_nop", "s_barrier", "s_endpgm", "s_sleep", "s_setprio", "s_branch") or mn.startswith("s_cbranch"):
                self.kind = "sctl"
            elif mn.startswith("s_cmp") or mn.startswith("s_bitcmp"):
                for o in ops: uses |= R(o)
            elif mn.startswith("s_load") or mn.startswith("s_buffer_load") or mn.startswith("s_memtime") or mn.startswith("s_memrealtime"):
                self.kind = "smem"
                defs = R(ops[0])
                for o in ops[1:]: uses |= R(o)
            else:
                defs = R(ops[0])
                for o in ops[1:]: uses |= R(o)
                if "saveexec" in mn: defs |= R("exec"); uses |= R("exec")
                if mn in ("s_addk_i32", "s_mulk_i32"): uses |= R(ops[0])
        else:
            raise ValueError("unknown instr: " + self.text)
        self.defs = defs; self.uses = uses
    def is_trans(self):
        return self.mn.replace("_e32", "").replace("_e64", "").replace("_sdwa", "") in TRANS
    def states(self):
        if self.mn == "s_nop": return int(self.ops[0], 0) + 1
        return 1

def vg(rs): return {r for r in rs if r[0] in ("v", "a")}
def sg(rs): return {r for r in rs if r[0] == "s"}

def required_wait(p, c):
    need = 0
    pm, cm = p.mn, c.mn
    if p.kind == "valu":
        dv = vg(p.defs); ds_ = sg(p.defs)
        if c.kind == "mfma" and dv & c.uses: need = max(need, 2)
        if c.kind == "valu":
            if p.is_trans() and not c.is_trans() and dv & c.uses: need = max(need, 1)
            if ("_dpp" in cm) and dv & c.uses: need = max(need, 2)
            if "permlane" in cm and dv & c.uses: need = max(need, 2)
            if cm.startswith("v_readfirstlane") or cm.startswith("v_readlane"):
                if dv & c.uses: need = max(need, 1)
                if ds_ & c.uses: need = max(need, 4)
            elif ds_ & c.uses: need = max(need, 2)
            if cm.startswith("v_cndmask") and ds_ & c.uses: need = max(need, 2)
            if ("_sdwa" in pm or "op_sel" in p.mods) and not pm.startswith("v_pk") and dv & c.uses: need = max(need, 1)
            if ("s", "exec") in p.defs: need = max(need, 5 if "_dpp" in cm else 4)
        if c.kind == "mfma" and ("s", "exec") in p.defs: need = max(need, 4)
        if c.kind == "vmem" and ds_ & c.uses: need = max(need, 5)
        if c.kind in ("vmem", "ds") and p.is_trans() and dv & c.uses: need = max(need, 1)
        if c.kind == "salu" and ds_ & c.uses: need = max(need, 1)
    if p.kind == "mfma":
        n = mfma_passes(pm)
        d = p.defs
        tab_ab = {4: 8, 8: 12}[n]; tab_c = {4: 6, 8: 10}[n]; tab_war = {4: 3, 8: 7}[n]
        if c.kind == "mfma":
            cC = regs_of(c.ops[3]); cAB = regs_of(c.ops[1]) | regs_of(c.ops[2])
            if d & cAB: need = max(need, tab_ab)
            if d & cC:
                if not (cC == d and mfma_passes(cm) == n): need = max(need, tab_c)
            if d & c.defs and mfma_passes(cm) != n: need = max(need, tab_ab)
        elif c.kind in ("valu", "vmem", "ds"):
            if d & (c.uses | c.defs): need = max(need, tab_ab)
            if c.kind == "valu":
                pC = regs_of(p.ops[3])
                if pC & c.defs: need = max(need, tab_war)
    if p.kind == "vmem" and ("store" in pm or "atomic" in pm) and ("x3" in pm or "x4" in pm):
        data = regs_of(p.ops[0]) if pm.startswith("buffer") else regs_of(p.ops[1])
        if data & vg(c.defs): need = max(need, 2)
    if p.kind == "ds" and pm.startswith("ds_write") and ("b128" in pm or "b96" in pm):
        data = regs_of(p.ops[1])
        if data & vg(c.defs) and c.kind in ("valu", "mfma"): need = max(need, 2)
    if p.kind == "salu" and ("s", "m0") in p.defs:
        if ("s", "m0") in c.uses: need = max(need, 1)
    return need

class Asm:
    def __init__(self):
        self.out = []
        self.strict = False
    def __call__(self, text):
        for line in text.split("\n"):
            t = line.strip()
            if not t: continue
            self.out.append(t)
    def label(self, name): self.out.append(name + ":")
    def newlabel(self, base):
        Asm._n = getattr(Asm, "_n", 0) + 1
        return f"L_{base}_{Asm._n}"
    def comment(self, c): self.out.append("; " + c)
    def raw(self, t): self.out.append("\x00" + t)
    def finish(self, report=None):
        res = []; window = []
        nins = 0
        for idx, t in enumerate(self.out):
            if t.startswith("\x00"):
                res.append(t[1:]); continue
            if t.startswith(";") or t.startswith("."):
                res.append(t if t.startswith(".") and not t.startswith(".L") else "    " + t); continue
            if t.endswith(":") and " " not in t:
                res.append(t); continue
            ins = Ins(t)
            need = 0; why = None
            for p, age in window:
                r = required_wait(p, ins)
                if r - age > need: need = r - age; why = p
            if need > 0:
                k = need
                while k > 0:
                    n = min(k, 16)
                    res.append(f"    s_nop {n-1}"); k -= n
                nins += 1
                if report is not None: report.append((need, why.text, t))
                for w in window: w[1] += need
            res.append("    " + t)
            st = ins.states()
            for w in window: w[1] += st
            window = [w for w in window if w[1] < 24]
            window.append([ins, 0])
        return "\n".join(res) + "\n"
```

```python
from asmlib import *

NAME = "gated_mix__grouped_kv_mqa__moe_arch_mod__prompt"
S_TOK = 2048; D = 576; H = 32; DH = 18; F = 4608
ROWB = D * 2
WS_Q    = 0
WS_O    = WS_Q + S_TOK * ROWB
WS_KV   = WS_O + S_TOK * ROWB
KV_KMAIN = 0
KV_KEXT  = 65536
KV_V     = 65536 + 8192
VROWS    = 19
V_TILE   = 2 * 2 * VROWS * 16
KV_BYTES = KV_V + 64 * V_TILE
WS_G    = WS_KV + KV_BYTES
WS_KEYS = WS_G + S_TOK * 4
WS_KN   = WS_KEYS + S_TOK * 4
WS_YACC = WS_KN + 512
Y_REP   = 8
WS_SEL  = WS_YACC + Y_REP * 2 * D * 4
WS_END  = WS_SEL + 64
WS_SIZE = (WS_END + 4095) // 4096 * 4096

LOG2E = 1.4426950408889634
import struct
def f32(x): return "0x%08x" % struct.unpack("<I", struct.pack("<f", x))[0]

S_X, S_WQ, S_WK, S_WV = 4, 6, 8, 10
S_WO, S_BX, S_WR, S_WG = 12, 14, 16, 18
S_WU, S_WD = 20, 22
S_GW, S_OUT, S_DBG, S_WS = 24, 26, 28, 30

def load_kernargs(A):
    A("s_load_dwordx8 s[4:11], s[0:1], 0")
    A("s_load_dwordx8 s[12:19], s[0:1], 32")
    A("s_load_dwordx4 s[20:23], s[0:1], 64")
    A("s_load_dwordx8 s[24:31], s[0:1], 80")

def mk_srd(A, dst, ptr, nbytes, add=0):
    if add:
        A(f"s_add_u32 s{dst}, s{ptr}, {add}")
        A(f"s_addc_u32 s{dst+1}, s{ptr+1}, 0")
        A(f"s_and_b32 s{dst+1}, s{dst+1}, 0xffff")
    else:
        A(f"s_mov_b32 s{dst}, s{ptr}")
        A(f"s_and_b32 s{dst+1}, s{ptr+1}, 0xffff")
    A(f"s_mov_b32 s{dst+2}, {nbytes}")
    A(f"s_mov_b32 s{dst+3}, 0x20000")

def kernel_header(name):
    return (f".text\n.globl {name}\n.p2align 8\n.type {name},@function\n{name}:\n")

def kernel_desc(name, nvgpr, nsgpr=100, accum=None):
    if accum is None: accum = min(256, (nvgpr + 3) // 4 * 4)
    return f""".section .rodata,"a"
.p2align 6
.amdhsa_kernel {name}
  .amdhsa_next_free_vgpr {nvgpr}
  .amdhsa_next_free_sgpr {nsgpr}
  .amdhsa_accum_offset {accum}
  .amdhsa_group_segment_fixed_size 0
  .amdhsa_kernarg_size 112
  .amdhsa_user_sgpr_count 2
  .amdhsa_user_sgpr_kernarg_segment_ptr 1
  .amdhsa_system_sgpr_workgroup_id_x 1
  .amdhsa_float_denorm_mode_32 3
.end_amdhsa_kernel
"""

class VmTrack:
    def __init__(self): self.ops = []
    def issue(self, tag, n=1): self.ops += [tag] * n
    def after(self, tag):
        last = max(i for i, t in enumerate(self.ops) if t == tag)
        return len(self.ops) - 1 - last

import os
STAMPS = os.environ.get("STAMPS", "") != ""
WS_STAMP = 8 << 20
S_ST = 78
def stamp(A, i):
    if not STAMPS: return
    A(f"s_memrealtime s[94:95]")
    A("s_waitcnt lgkmcnt(0)")
    A(f"s_mov_b32 s{S_ST+i}, s94")
def cstamp(A, i):
    if not STAMPS: return
    A(f"s_memtime s[94:95]")
    A("s_waitcnt lgkmcnt(0)")
    A(f"s_mov_b32 s{S_ST+i}, s94")
def pstamp(A, i):
    if not STAMPS: return
    A(f"s_memrealtime s[94:95]")
    A(f"s_memtime s[96:97]")
    A("s_waitcnt lgkmcnt(0)")
    A(f"s_mov_b32 s{S_ST+i}, s94")
    A(f"s_mov_b32 s{S_ST+8+i}, s96")
def stamp_init(A):
    if not STAMPS: return
    for i in range(16): A(f"s_mov_b32 s{S_ST+i}, 0")
def stamp_flush(A, kidx, s_wave, s_ws, vtmp):
    if not STAMPS: return
    A(f"s_lshl_b32 s94, s2, 4")
    A(f"s_add_u32 s94, s94, s{s_wave}")
    A(f"s_lshl_b32 s94, s94, 6")
    A(f"s_add_u32 s94, s94, {WS_STAMP + kidx * (1 << 18)}")
    A(f"s_add_u32 s94, s{s_ws}, s94")
    A(f"s_addc_u32 s95, s{s_ws+1}, 0")
    A(f"s_mov_b64 exec, -1")
    for i in range(16):
        A(f"v_writelane_b32 v{vtmp}, s{S_ST+i}, {i}")
    A(f"v_mbcnt_lo_u32_b32 v{vtmp+1}, -1, 0")
    A(f"v_lshlrev_b32 v{vtmp+1}, 2, v{vtmp+1}")
    A(f"s_mov_b64 exec, 0xffff")
    A(f"global_store_dword v{vtmp+1}, v{vtmp}, s[94:95]")
```

```python
from common import *

W_STEP = 32 * 160
W_LDS  = 18 * W_STEP
E2_BASE = W_LDS
E2_LDS = 576 * 32

V_LANE = 1
V_T = 2
V_G = 3
V_XOFF = 4
V_TMP = 5
V_AW0, V_AW1, V_AW2, V_AW3 = 12, 13, 14, 15
V_AE0, V_AE1 = 16, 17
V_DA = 20
V_ACC = 32
V_XF = 64
V_AF = 136
S_WAVE = 33; S_TB = 34; S_HG = 35; S_T0 = 36; S_SOFF = 37; S_TMP = 38; S_TMP2 = 39
S_MASK = 40
SRD_X = 52; SRD_W = 56

def wg_decode(A):
    A(f"v_lshrrev_b32 v{V_TMP}, 6, v0")
    A(f"v_and_b32 v{V_LANE}, 63, v0")
    A(f"v_readfirstlane_b32 s{S_WAVE}, v{V_TMP}")
    A(f"s_and_b32 s{S_TMP}, s2, 7")
    A(f"s_lshr_b32 s{S_TMP2}, s2, 3")
    A(f"s_and_b32 s{S_HG}, s{S_TMP2}, 7")
    A(f"s_lshr_b32 s{S_TMP2}, s{S_TMP2}, 3")
    A(f"s_lshl_b32 s{S_TMP}, s{S_TMP}, 2")
    A(f"s_add_u32 s{S_TB}, s{S_TMP}, s{S_TMP2}")
    A(f"s_lshl_b32 s{S_T0}, s{S_TB}, 6")
    A(f"s_lshl_b32 s{S_TMP}, s{S_WAVE}, 4")
    A(f"s_add_u32 s{S_T0}, s{S_T0}, s{S_TMP}")
    A(f"v_and_b32 v{V_T}, 15, v{V_LANE}")
    A(f"v_lshrrev_b32 v{V_G}, 4, v{V_LANE}")
    A(f"v_add_u32 v{V_TMP}, s{S_T0}, v{V_T}")
    A(f"v_mul_u32_u24 v{V_XOFF}, {ROWB}, v{V_TMP}")
    A(f"v_lshl_add_u32 v{V_XOFF}, v{V_G}, 4, v{V_XOFF}")

def dma_patterns(A, masked):
    for i in range(5):
        n, P, c = V_TMP, V_TMP + 1, V_TMP + 2
        A(f"v_add_u32 v{n}, {64*i}, v{V_LANE}")
        A(f"v_mul_u32_u24 v{P}, 6554, v{n}")
        A(f"v_lshrrev_b32 v{P}, 16, v{P}")
        A(f"v_mul_u32_u24 v{c}, 10, v{P}")
        A(f"v_sub_u32 v{c}, v{n}, v{c}")
        A(f"v_lshrrev_b32 v{n}, 1, v{P}")
        A(f"v_and_b32 v{n}, 4, v{n}")
        A(f"v_xor_b32 v{P}, v{P}, v{n}")
        A(f"v_mul_u32_u24 v{P}, {ROWB}, v{P}")
        A(f"v_lshl_add_u32 v{V_DA+i}, v{c}, 4, v{P}")
        if masked:
            A(f"v_cmp_ne_u32 s[{S_MASK+2*i}:{S_MASK+2*i+1}], 9, v{c}")

def tr_addresses(A, with_e2):
    G, r, c4, t = V_TMP, V_TMP + 1, V_TMP + 2, V_TMP + 3
    A(f"v_lshrrev_b32 v{G}, 4, v{V_LANE}")
    A(f"v_bfe_u32 v{r}, v{V_LANE}, 2, 2")
    A(f"v_and_b32 v{c4}, 3, v{V_LANE}")
    A(f"v_lshl_add_u32 v{r}, v{G}, 3, v{r}")
    A(f"v_and_b32 v{G}, 1, v{G}")
    A(f"v_lshl_add_u32 v{t}, v{G}, 2, v{r}")
    A(f"v_xor_b32 v{G}, 1, v{G}")
    A(f"v_lshl_add_u32 v{r}, v{G}, 2, v{r}")
    A(f"v_lshlrev_b32 v{c4}, 3, v{c4}")
    A(f"v_mul_u32_u24 v{V_AW0}, 160, v{t}")
    A(f"v_mul_u32_u24 v{V_AW1}, 160, v{r}")
    A(f"v_add_u32 v{V_AW0}, v{V_AW0}, v{c4}")
    A(f"v_add_u32 v{V_AW1}, v{V_AW1}, v{c4}")
    A(f"v_add_u32 v{V_AW2}, {12*W_STEP}, v{V_AW0}")
    A(f"v_add_u32 v{V_AW3}, {12*W_STEP}, v{V_AW1}")
    if with_e2:
        A(f"v_lshl_add_u32 v{V_AE0}, v{t}, 5, v{c4}")
        A(f"v_lshl_add_u32 v{V_AE1}, v{r}, 5, v{c4}")
        A(f"v_add_u32 v{V_AE0}, {E2_BASE}, v{V_AE0}")
        A(f"v_add_u32 v{V_AE1}, {E2_BASE}, v{V_AE1}")

STAGES = [list(range(4*q, min(4*q+4, 18))) for q in range(5)]

def issue_loads(A, vm, masked):
    for q, steps in enumerate(STAGES):
        for s_ in steps:
            A(f"buffer_load_dwordx4 {vr(V_XF+4*s_,4)}, v{V_XOFF}, s[{SRD_X}:{SRD_X+3}], 0 offen offset:{64*s_}")
            vm.issue(f"x{q}")
        skip = None
        if q == 4:
            skip = A.newlabel("dma4skip")
            A(f"s_cmp_ge_u32 s{S_WAVE}, 2")
            A(f"s_cbranch_scc1 {skip}")
        A(f"s_add_u32 s{S_TMP}, s{S_WAVE}, {4*q}")
        A(f"s_mul_i32 s{S_SOFF}, s{S_TMP}, {32*ROWB}")
        A(f"s_mul_i32 s{S_TMP2}, s{S_HG}, 144")
        A(f"s_add_u32 s{S_SOFF}, s{S_SOFF}, s{S_TMP2}")
        A(f"s_mul_i32 s{S_TMP}, s{S_TMP}, {W_STEP}")
        for i in range(5):
            A(f"s_add_u32 m0, s{S_TMP}, {1024*i}")
            if masked: A(f"s_mov_b64 exec, s[{S_MASK+2*i}:{S_MASK+2*i+1}]")
            else: A("s_nop 0")
            A(f"buffer_load_dwordx4 v{V_DA+i}, s[{SRD_W}:{SRD_W+3}], s{S_SOFF} offen lds")
            if q < 4: vm.issue(f"d{q}")
        if masked: A("s_mov_b64 exec, -1")
        if skip: A.label(skip)

def wait_stage(A, vm, q, extra_after=0):
    if q == 4:
        A(f"s_waitcnt vmcnt({extra_after})")
        return
    n = vm.after(f"d{q}")
    lo = A.newlabel("wlo"); done = A.newlabel("wdone")
    A(f"s_cmp_ge_u32 s{S_WAVE}, 2")
    A(f"s_cbranch_scc1 {lo}")
    A(f"s_waitcnt vmcnt({min(63, n+5)})")
    A(f"s_branch {done}")
    A.label(lo)
    A(f"s_waitcnt vmcnt({min(63, n)})")
    A.label(done)

def read_frags(A, s_, ntiles, buf):
    base = V_AF + 24 * buf
    for ft in range(ntiles):
        for q in range(2):
            d = base + 4 * ft + 2 * q
            if ft < 5:
                if s_ < 12: areg = V_AW0 + q; off = s_ * W_STEP + ft * 32
                else: areg = V_AW2 + q; off = (s_ - 12) * W_STEP + ft * 32
            else:
                areg = V_AE0 + q; off = s_ * 1024
            A(f"ds_read_b64_tr_b16 {vr(d,2)}, v{areg} offset:{off}")

def mfmas(A, s_, ntiles, buf):
    base = V_AF + 24 * buf
    for ft in range(ntiles):
        c = "0" if s_ == 0 else vr(V_ACC + 4 * ft, 4)
        A(f"v_mfma_f32_16x16x32_bf16 {vr(V_ACC+4*ft,4)}, {vr(base+4*ft,4)}, {vr(V_XF+4*s_,4)}, {c}")

def main_loop(A, vm, ntiles, pre_barrier0=None, extra_after=0):
    for q, steps in enumerate(STAGES):
        wait_stage(A, vm, q, extra_after)
        if q == 0 and pre_barrier0: pre_barrier0()
        A("s_waitcnt lgkmcnt(0)")
        A("s_barrier")
        stamp(A, 4 + q)
        read_frags(A, steps[0], ntiles, steps[0] & 1)
        for j, s_ in enumerate(steps):
            nr = 0
            if j + 1 < len(steps):
                read_frags(A, steps[j + 1], ntiles, steps[j + 1] & 1); nr = 2 * ntiles
            A(f"s_waitcnt lgkmcnt({min(15, nr)})")
            mfmas(A, s_, ntiles, s_ & 1)
```

```python
from common import *
from gemm import *

SRD_E = 60; SRD_BX = 64; SRD_WR = 68; SRD_WS = 72
V_RB = 184
V_RW = 196
V_E = 208
V_RK = 28
QSCALE = LOG2E / (DH ** 0.5)

def e_loads(A, vm, duty):
    t = V_TMP
    for rd in range(3):
        skip = None
        if rd == 2:
            skip = A.newlabel("eskip")
            A(f"s_cmp_lg_u32 s{S_WAVE}, 0"); A(f"s_cbranch_scc1 {skip}")
        A(f"v_add_u32 v{t}, {256*rd}, v0")
        if duty == "kv":
            A(f"v_mul_u32_u24 v{t}, 36, v{t}")
            A(f"buffer_load_dwordx4 {vr(V_E+10*rd,4)}, v{t}, s[{SRD_E}:{SRD_E+3}], 0 offen")
            A(f"buffer_load_dwordx4 {vr(V_E+10*rd+4,4)}, v{t}, s[{SRD_E}:{SRD_E+3}], 0 offen offset:16")
            A(f"buffer_load_dword v{V_E+10*rd+8}, v{t}, s[{SRD_E}:{SRD_E+3}], 0 offen offset:32")
        else:
            A(f"v_lshlrev_b32 v{t}, 1, v{t}")
            A(f"buffer_load_ushort v{V_E+10*rd+8}, v{t}, s[{SRD_E}:{SRD_E+3}], 0 offen")
            A(f"buffer_load_ushort v{V_E+10*rd+9}, v{t}, s[{SRD_WR}:{SRD_WR+3}], 0 offen")
        if skip: A.label(skip)
    vm.issue("e")

def e_writes(A, duty):
    t = V_TMP
    for rd in range(3):
        skip = None
        if rd == 2:
            skip = A.newlabel("ewskip")
            A(f"s_cmp_lg_u32 s{S_WAVE}, 0"); A(f"s_cbranch_scc1 {skip}")
        A(f"v_add_u32 v{t}, {256*rd}, v0")
        A(f"v_lshrrev_b32 v{t+1}, 1, v{t}")
        A(f"v_and_b32 v{t+1}, 4, v{t+1}")
        A(f"v_xor_b32 v{t}, v{t}, v{t+1}")
        A(f"v_mul_u32_u24 v{t+1}, 160, v{t}")
        if duty == "kv":
            A(f"v_lshlrev_b32 v{t}, 5, v{t}")
            A(f"v_add_u32 v{t}, {E2_BASE}, v{t}")
            A(f"ds_write_b128 v{t}, {vr(V_E+10*rd,4)}")
            A(f"ds_write_b128 v{t}, {vr(V_E+10*rd+4,4)} offset:16")
            A(f"ds_write_b32 v{t+1}, v{V_E+10*rd+8} offset:144")
        else:
            A(f"v_lshl_or_b32 v{V_E+10*rd+8}, v{V_E+10*rd+9}, 16, v{V_E+10*rd+8}")
            A(f"ds_write_b32 v{t+1}, v{V_E+10*rd+8} offset:144")
        if skip: A.label(skip)

def q_epilogue(A):
    t = V_TMP
    A(f"s_mov_b32 s{S_TMP}, {f32(QSCALE)}")
    A(f"v_add_u32 v{t}, s{S_T0}, v{V_T}")
    A(f"v_mul_u32_u24 v{t}, {ROWB}, v{t}")
    A(f"s_mul_i32 s{S_TMP2}, s{S_HG}, 144")
    A(f"v_lshl_add_u32 v{t}, v{V_G}, 3, v{t}")
    A(f"v_add_u32 v{t}, s{S_TMP2}, v{t}")
    for ft in range(5):
        a_ = V_ACC + 4 * ft; d = V_AF + 2 * ft
        for r in range(4): A(f"v_mul_f32 v{t+2+r}, s{S_TMP}, v{a_+r}")
        A(f"v_cvt_pk_bf16_f32 v{d}, v{t+2}, v{t+3}")
        A(f"v_cvt_pk_bf16_f32 v{d+1}, v{t+4}, v{t+5}")
        if ft == 4:
            A(f"v_cmp_gt_u32 vcc, 2, v{V_G}")
            A(f"s_and_saveexec_b64 s[50:51], vcc")
        A(f"buffer_store_dwordx2 {vr(d,2)}, v{t}, s[{SRD_WS}:{SRD_WS+3}], 0 offen offset:{WS_Q + 32*ft}")
        if ft == 4: A("s_mov_b64 exec, s[50:51]")

def k_epilogue(A):
    t = V_TMP; T5 = V_ACC + 20; T4 = V_ACC + 16; d = V_AF + 12
    A(f"v_add_u32 v{t}, s{S_T0}, v{V_T}")
    A(f"v_lshrrev_b32 v{t+1}, 5, v{t}")
    A(f"v_and_b32 v{t+2}, 31, v{t}")
    A(f"v_lshrrev_b32 v{t+3}, 1, v{V_G}")
    A(f"v_lshl_add_u32 v{t+3}, v{t+3}, 5, v{t+2}")
    A(f"v_lshlrev_b32 v{t+3}, 4, v{t+3}")
    A(f"v_lshl_add_u32 v{t+3}, v{t+1}, 10, v{t+3}")
    A(f"v_and_b32 v{t+4}, 1, v{V_G}")
    A(f"v_lshl_add_u32 v{t+3}, v{t+4}, 3, v{t+3}")
    A(f"v_cvt_pk_bf16_f32 v{d}, v{T5}, v{T5+1}")
    A(f"v_cvt_pk_bf16_f32 v{d+1}, v{T5+2}, v{T5+3}")
    A(f"buffer_store_dwordx2 {vr(d,2)}, v{t+3}, s[{SRD_WS}:{SRD_WS+3}], 0 offen offset:0", ) if False else None
    A(f"v_add_u32 v{t+3}, {WS_KV+KV_KMAIN}, v{t+3}")
    A(f"buffer_store_dwordx2 {vr(d,2)}, v{t+3}, s[{SRD_WS}:{SRD_WS+3}], 0 offen")
    A(f"v_lshrrev_b32 v{t+4}, 2, v{t+1}")
    A(f"v_lshlrev_b32 v{t+4}, 9, v{t+4}")
    A(f"v_lshl_add_u32 v{t+4}, v{t+2}, 4, v{t+4}")
    A(f"v_and_b32 v{t+5}, 3, v{t+1}")
    A(f"v_lshl_add_u32 v{t+4}, v{t+5}, 2, v{t+4}")
    A(f"v_add_u32 v{t+4}, {WS_KV+KV_KEXT}, v{t+4}")
    A(f"v_cvt_pk_bf16_f32 v{d+2}, v{T4}, v{T4+1}")
    A(f"v_cmp_eq_u32 vcc, 2, v{V_G}")
    A(f"s_and_saveexec_b64 s[50:51], vcc")
    A(f"buffer_store_dword v{d+2}, v{t+4}, s[{SRD_WS}:{SRD_WS+3}], 0 offen")
    A("s_mov_b64 exec, s[50:51]")
    n = t + 5
    A(f"v_mul_f32 v{n}, v{T5}, v{T5}")
    for r in range(1, 4): A(f"v_fma_f32 v{n}, v{T5+r}, v{T5+r}, v{n}")
    A(f"v_mul_f32 v{n+1}, v{T4}, v{T4}")
    A(f"v_fma_f32 v{n+1}, v{T4+1}, v{T4+1}, v{n+1}")
    A(f"v_cndmask_b32 v{n+1}, 0, v{n+1}, vcc")
    A(f"v_add_f32 v{n}, v{n}, v{n+1}")
    A(f"ds_swizzle_b32 v{n+1}, v{n} offset:0x401F")
    A("s_waitcnt lgkmcnt(0)")
    A(f"v_add_f32 v{n}, v{n}, v{n+1}")
    A(f"v_mov_b32 v{n+1}, v{n}")
    A(f"v_permlane32_swap_b32 v{n}, v{n+1}")
    A(f"v_add_f32 v{n}, v{n}, v{n+1}")
    for sh in (1, 2, 4, 8):
        A(f"v_max_f32_dpp v{n}, v{n}, v{n} row_ror:{sh} row_mask:0xf bank_mask:0xf")
    A(f"v_mul_f32 v{n}, {f32(1.02)}, v{n}")
    A(f"s_lshr_b32 s{S_TMP}, s{S_T0}, 4")
    A(f"s_lshl_b32 s{S_TMP}, s{S_TMP}, 2")
    A(f"s_add_u32 s{S_TMP}, s{S_TMP}, {WS_KN}")
    A(f"v_mov_b32 v{n+1}, s{S_TMP}")
    A(f"v_cmp_eq_u32 vcc, 0, v{V_LANE}")
    A(f"s_and_saveexec_b64 s[50:51], vcc")
    A(f"buffer_store_dword v{n}, v{n+1}, s[{SRD_WS}:{SRD_WS+3}], 0 offen")
    A("s_mov_b64 exec, s[50:51]")

def v_epilogue(A):
    t = V_TMP; T5 = V_ACC + 20; T4 = V_ACC + 16; d = V_AF + 12
    A(f"v_add_u32 v{t}, s{S_T0}, v{V_T}")
    A(f"v_lshrrev_b32 v{t+1}, 5, v{t}")
    A(f"v_mul_u32_u24 v{t+1}, {V_TILE}, v{t+1}")
    A(f"v_bfe_u32 v{t+2}, v{t}, 4, 1")
    A(f"v_bfe_u32 v{t+3}, v{t}, 2, 1")
    A(f"v_lshl_add_u32 v{t+2}, v{t+2}, 1, v{t+3}")
    A(f"v_mul_u32_u24 v{t+2}, {VROWS*16}, v{t+2}")
    A(f"v_add_u32 v{t+1}, v{t+1}, v{t+2}")
    A(f"v_bfe_u32 v{t+2}, v{t}, 3, 1")
    A(f"v_and_b32 v{t+3}, 3, v{t}")
    A(f"v_lshl_add_u32 v{t+2}, v{t+2}, 2, v{t+3}")
    A(f"v_lshl_add_u32 v{t+1}, v{t+2}, 1, v{t+1}")
    A(f"v_add_u32 v{t+1}, {WS_KV+KV_V}, v{t+1}")
    A(f"v_and_b32 v{t+2}, 1, v{V_G}")
    A(f"v_lshrrev_b32 v{t+3}, 1, v{V_G}")
    A(f"v_lshl_add_u32 v{t+2}, v{t+2}, 1, v{t+3}")
    A(f"v_lshl_add_u32 v{t+2}, v{t+2}, 6, v{t+1}")
    A(f"v_cvt_pk_bf16_f32 v{d}, v{T5}, v{T5+1}")
    A(f"v_cvt_pk_bf16_f32 v{d+1}, v{T5+2}, v{T5+3}")
    A(f"v_cvt_pk_bf16_f32 v{d+2}, v{T4}, v{T4+1}")
    S = f"s[{SRD_WS}:{SRD_WS+3}]"
    A(f"buffer_store_short v{d}, v{t+2}, {S}, 0 offen")
    A(f"buffer_store_short_d16_hi v{d}, v{t+2}, {S}, 0 offen offset:16")
    A(f"buffer_store_short v{d+1}, v{t+2}, {S}, 0 offen offset:32")
    A(f"buffer_store_short_d16_hi v{d+1}, v{t+2}, {S}, 0 offen offset:48")
    A(f"v_mov_b32 v{d+3}, 0x3f80")
    A(f"v_cmp_eq_u32 vcc, 2, v{V_G}")
    A(f"s_and_saveexec_b64 s[50:51], vcc")
    A(f"buffer_store_short v{d+2}, v{t+1}, {S}, 0 offen offset:{16*16}")
    A(f"buffer_store_short_d16_hi v{d+2}, v{t+1}, {S}, 0 offen offset:{17*16}")
    A(f"buffer_store_short v{d+3}, v{t+1}, {S}, 0 offen offset:{18*16}")
    A("s_mov_b64 exec, s[50:51]")

def g_epilogue(A):
    t = V_TMP; T4 = V_ACC + 16
    A(f"v_cvt_pk_bf16_f32 v{t}, v{T4}, v{T4}")
    A(f"v_and_b32 v{t}, 0xffff0000, v{t}")
    A(f"v_mul_f32 v{t}, {f32(-LOG2E)}, v{t}")
    A(f"v_exp_f32 v{t}, v{t}")
    A(f"v_add_f32 v{t}, 1.0, v{t}")
    A(f"v_rcp_f32 v{t}, v{t}")
    A(f"v_cvt_pk_bf16_f32 v{t}, v{t}, v{t}")
    A(f"v_and_b32 v{t}, 0xffff0000, v{t}")
    A(f"v_add_u32 v{t+1}, s{S_T0}, v{V_T}")
    A(f"v_lshlrev_b32 v{t+1}, 2, v{t+1}")
    A(f"v_add_u32 v{t+1}, {WS_G}, v{t+1}")
    A(f"v_cmp_eq_u32 vcc, 2, v{V_G}")
    A(f"s_and_saveexec_b64 s[50:51], vcc")
    A(f"buffer_store_dword v{t}, v{t+1}, s[{SRD_WS}:{SRD_WS+3}], 0 offen")
    A("s_mov_b64 exec, s[50:51]")
    k = t; k2 = t + 1; u = t + 2
    A(f"v_cvt_pk_bf16_f32 v{k}, v{T4+1}, v{T4+1}")
    A(f"v_and_b32 v{k}, 0xffff, v{k}")
    A(f"v_xor_b32 v{k2}, 0x8000, v{k}")
    A(f"v_xor_b32 v{u}, 0xffff, v{k}")
    A(f"v_cmp_lt_u32 vcc, 0x7fff, v{k}")
    A(f"v_cndmask_b32 v{k}, v{k2}, v{u}, vcc")
    A(f"v_add_u32 v{k2}, s{S_T0}, v{V_T}")
    A(f"v_sub_u32 v{k2}, 0xffff, v{k2}")
    A(f"v_lshl_or_b32 v{k}, v{k}, 16, v{k2}")
    A(f"v_mov_b32 v{k2}, v{k}")
    for sh in (1, 2, 4, 8):
        A(f"v_max_u32_dpp v{k2}, v{k2}, v{k2} row_ror:{sh} row_mask:0xf bank_mask:0xf")
    A(f"v_cmp_eq_u32 vcc, v{k}, v{k2}")
    A(f"v_mov_b32 v{u}, 0")
    A(f"v_cndmask_b32 v{k}, v{k}, v{u}, vcc")
    for sh in (1, 2, 4, 8):
        A(f"v_max_u32_dpp v{k}, v{k}, v{k} row_ror:{sh} row_mask:0xf bank_mask:0xf")
    A(f"s_lshr_b32 s{S_TMP}, s{S_T0}, 4")
    A(f"s_lshl_b32 s{S_TMP}, s{S_TMP}, 3")
    A(f"s_add_u32 s{S_TMP}, s{S_TMP}, {WS_KEYS}")
    A(f"v_mov_b32 v{u}, s{S_TMP}")
    A(f"v_mov_b32 v{t+4}, v{k2}"); A(f"v_mov_b32 v{t+5}, v{k}")
    A(f"v_cmp_eq_u32 vcc, 32, v{V_LANE}")
    A(f"s_and_saveexec_b64 s[50:51], vcc")
    A(f"buffer_store_dwordx2 v[{t+3+1}:{t+5}], v{u}, s[{SRD_WS}:{SRD_WS+3}], 0 offen".replace(f"v[{t+4}:{t+5}]", vr(t+4, 2)) if (t+4) % 2 == 0 else "s_nop 0")
    if (t + 4) % 2 == 1:
        A(f"buffer_store_dword v{t+4}, v{u}, s[{SRD_WS}:{SRD_WS+3}], 0 offen")
        A(f"buffer_store_dword v{t+5}, v{u}, s[{SRD_WS}:{SRD_WS+3}], 0 offen offset:4")
    A("s_mov_b64 exec, s[50:51]")

def body(A, duty):
    vm = VmTrack()
    masked = duty in ("kv", "gate")
    ntiles = 6 if duty == "kv" else 5
    if duty == "kv":
        A(f"s_cmp_eq_u32 s{S_HG}, 0")
        A(f"s_cselect_b32 s{SRD_E}, s{S_WK}, s{S_WV}")
        A(f"s_cselect_b32 s{SRD_E+1}, s{S_WK+1}, s{S_WV+1}")
        A(f"s_and_b32 s{SRD_E+1}, s{SRD_E+1}, 0xffff")
        A(f"s_mov_b32 s{SRD_E+2}, {576*36}")
        A(f"s_mov_b32 s{SRD_E+3}, 0x20000")
    elif duty == "gate":
        mk_srd(A, SRD_E, S_GW, 1152)
    if masked: e_loads(A, vm, duty)
    dma_patterns(A, masked)
    issue_loads(A, vm, masked)
    tr_addresses(A, duty == "kv")
    stamp(A, 2)
    def pre0():
        pass
    if masked:
        n = vm.after("e")
        lo = A.newlabel("elo"); done = A.newlabel("edone")
        A(f"s_cmp_ge_u32 s{S_WAVE}, 2"); A(f"s_cbranch_scc1 {lo}")
        A(f"s_waitcnt vmcnt({min(63,n+5)})"); A(f"s_branch {done}")
        A.label(lo); A(f"s_waitcnt vmcnt({min(63,n)})"); A.label(done)
        e_writes(A, duty)
    stamp(A, 3)
    main_loop(A, vm, ntiles)
    stamp(A, 9)
    A("s_nop 7")
    q_epilogue(A)
    if duty == "kv":
        lv = A.newlabel("vepi"); le = A.newlabel("kvend")
        A(f"s_cmp_lg_u32 s{S_HG}, 0"); A(f"s_cbranch_scc1 {lv}")
        k_epilogue(A); A(f"s_branch {le}")
        A.label(lv); v_epilogue(A)
        A.label(le)
    elif duty == "gate":
        g_epilogue(A)
    stamp(A, 10)
    if STAMPS: A("s_waitcnt vmcnt(0)")
    stamp(A, 11)
    stamp_flush(A, 0, S_WAVE, S_WS, V_TMP)
    A("s_endpgm")

def gen_k1(name):
    A = Asm()
    end = "L_k1_end"
    A("s_cmp_ge_u32 s2, 256"); A(f"s_cbranch_scc1 {end}")
    stamp_init(A); stamp(A, 0)
    load_kernargs(A)
    wg_decode(A)
    A("s_waitcnt lgkmcnt(0)")
    stamp(A, 1)
    mk_srd(A, SRD_X, S_X, S_TOK * ROWB)
    mk_srd(A, SRD_W, S_WQ, D * ROWB)
    mk_srd(A, SRD_WR, S_WR, ROWB)
    mk_srd(A, SRD_WS, S_WS, WS_SIZE)
    A(f"s_mul_i32 s{S_TMP}, s2, 144")
    A(f"s_add_u32 s{S_TMP}, s{S_TMP}, {WS_YACC}")
    A(f"v_lshlrev_b32 v{V_TMP}, 2, v0")
    A(f"v_add_u32 v{V_TMP}, s{S_TMP}, v{V_TMP}")
    A(f"v_mov_b32 v{V_TMP+1}, 0")
    A("v_cmp_gt_u32 vcc, 36, v0")
    A("s_and_saveexec_b64 s[50:51], vcc")
    lz = A.newlabel("zskip")
    A(f"s_cbranch_execz {lz}")
    A(f"buffer_store_dword v{V_TMP+1}, v{V_TMP}, s[{SRD_WS}:{SRD_WS+3}], 0 offen")
    A.label(lz)
    A("s_mov_b64 exec, s[50:51]")
    lkv = A.newlabel("kv"); lg = A.newlabel("gate")
    A(f"s_cmp_lt_u32 s{S_HG}, 2"); A(f"s_cbranch_scc1 {lkv}")
    A(f"s_cmp_eq_u32 s{S_HG}, 2"); A(f"s_cbranch_scc1 {lg}")
    body(A, "none")
    A.label(lkv); body(A, "kv")
    A.label(lg); body(A, "gate")
    A.label(end); A("s_endpgm")
    return A, 240, W_LDS + E2_LDS
```

```python
from common import *
import os

S0, S1 = 0, 16
P = 32
OA, OB = 40, 56
QA, QEA = 72, 76
QB, QEB = 80, 84
K, KE = 88, 92
V0, V1 = 96, 100
A_K, A_KE, A_V = 104, 105, 106
V_LANE, V_I, V_H = 107, 108, 109
T = 110
NEGM = 112
S_WAVE, S_P, S_KH, S_TOKA = 33, 34, 35, 36
S_TMP, S_TMP2, S_W1024 = 37, 38, 39
SRD_WS, SRD_KV = 40, 44
S_QN, S_KN = 48, 49
T_SAFE = 60.0
ZERO_V = os.environ.get('ZERO_V', '1') == '1'
ZERO_KE = os.environ.get('ZERO_KE', '1') == '1'
LDS_BYTES = 163840

def M(d, a, b, c):
    cs = "0" if c is None else vr(c, 16)
    return f"v_mfma_f32_32x32x16_bf16 {vr(d,16)}, {vr(a,4)}, {vr(b,4)}, {cs}"
def M8(d, a, b, c):
    return f"v_mfma_f32_32x32x8bf16_1k {vr(d,16)}, {vr(a,2)}, {vr(b,2)}, {vr(c,16)}"
def E(r): return f"v_exp_f32 v{r}, v{r}"
def C(d, a): return f"v_cvt_pk_bf16_f32 v{d}, v{a}, v{a+1}"

def dma_rounds():
    st0 = [KV_KMAIN, KV_KMAIN + 32768, KV_KEXT, KV_V, KV_V + 38 * 1024]
    st1 = [KV_KMAIN + 8192 * a for a in (1, 5, 2, 6, 3, 7)]
    st1 += [KV_V + 1024 * a for a in (8, 46, 16, 54, 24, 62, 30, 68)]
    order = [st1[0], st1[1], st1[6], st1[7], st1[2], st1[3], st1[8], st1[9], st1[4], st1[5], st1[10], st1[11], st1[12], st1[13]]
    return st0, order

def dma_issue(A, rounds):
    for base in rounds:
        A(f"s_mov_b32 s{S_TMP}, {base}")
        A(f"s_add_u32 m0, s{S_TMP}, s{S_W1024}")
        A("s_nop 0")
        A(f"buffer_load_dwordx4 v{T}, s[{SRD_KV}:{SRD_KV+3}], s{S_TMP} offen lds")

EXPT = os.environ.get('EXPT', '')
class Filt:
    def __init__(self, A): self.A = A
    def __call__(self, t):
        if 'noext' in EXPT and '32x32x8' in t: return
        if 'nopv' in EXPT and 'mfma' in t and (t.split()[1].startswith('v[40:') or t.split()[1].startswith('v[56:')): return
        if 'nocvt' in EXPT and 'cvt_pk' in t: return
        if 'noexp' in EXPT and 'v_exp' in t: return
        self.A(t)
def sub_step(A, Scur, Snxt, Qn, QEn, e, Oprev, Ocur, first_prev, first_cur, do_qk, wait_pre, loads):
    A = Filt(A)
    return sub_step_(A, Scur, Snxt, Qn, QEn, e, Oprev, Ocur, first_prev, first_cur, do_qk, wait_pre, loads)
def sub_step_(A, Scur, Snxt, Qn, QEn, e, Oprev, Ocur, first_prev, first_cur, do_qk, wait_pre, loads):
    if wait_pre is not None: A(f"s_waitcnt lgkmcnt({wait_pre})")
    if do_qk: A(M(Snxt, K, Qn, None))
    for x in loads.get(0, []): A(x)
    for r in range(0, 4): A(E(Scur + r))
    A(C(P + 0, Scur + 0)); A(C(P + 1, Scur + 2))
    if not first_prev: A(M(Oprev, V1, P + 4, Oprev))
    for x in loads.get(1, []): A(x)
    for r in range(4, 8): A(E(Scur + r))
    A(C(P + 2, Scur + 4)); A(C(P + 3, Scur + 6))
    for x in loads.get(4, []): A(x)
    if do_qk: A(M8(Snxt, KE + 2 * (e // 2), QEn + 2 * (e % 2), Snxt))
    for x in loads.get(2, []): A(x)
    for r in range(8, 12): A(E(Scur + r))
    A(M(Ocur, V0, P, None if first_cur else Ocur))
    for x in loads.get(3, []): A(x)
    A(C(P + 4, Scur + 8)); A(C(P + 5, Scur + 10))
    for r in range(12, 16): A(E(Scur + r))
    A(C(P + 6, Scur + 12)); A(C(P + 7, Scur + 14))

def rdK(j): return f"ds_read_b128 {vr(K,4)}, v{A_K} offset:{j*1024}"
def rdKE(g): return f"ds_read_b128 {vr(KE,4)}, v{A_KE} offset:{g*512}"
def rdV(reg, j, m): return f"ds_read_b128 {vr(reg,4)}, v{A_V} offset:{j*V_TILE + m*(V_TILE//2)}"

def fast_path(A, NK=32):
    A(rdK(0)); A(rdKE(0)); A(rdV(V0, 0, 0))
    A("s_waitcnt lgkmcnt(1)")
    A(M(S0, K, QA, None))
    A(M8(S0, KE, QEA, S0))
    A("s_nop 7"); A("s_nop 3")
    for j in range(NK):
        if j == 4:
            A("s_waitcnt vmcnt(0)")
            A("s_barrier")
        if j in (4, 11, 18, 25): pstamp(A, {4: 2, 11: 3, 18: 4, 25: 5}[j])
        e = j % 4
        last = j == NK - 1
        ld = {0: [] if last else [rdK(j + 1)], 1: [rdV(V1, j, 1)]}
        if e == 3 and not last: ld[2] = [rdKE((j + 1) // 4)]
        sub_step(A, S0, S1, QB, QEB, e, OB, OA, j == 0, j == 0, True, 0 if j else None, ld)
        ld = {3: [] if last else [rdV(V0, j + 1, 0)]}
        sub_step(A, S1, S0, QA, QEA, (j + 1) % 4, OA, OB, False, j == 0, not last, 0, ld)
    A(M(OB, V1, P + 4, OB))

def fallback_path(A):
    A("s_waitcnt vmcnt(0)")
    A("s_barrier")
    A(f"v_mov_b32 v{KE+1}, 0")
    for (Q, QE, O, tag) in ((QA, QEA, OA, "a"), (QB, QEB, OB, "b")):
        mx = T
        A(f"v_mov_b32 v{mx}, 0xff800000")
        A(f"v_lshlrev_b32 v{T+1}, 4, v{V_LANE}")
        A(f"v_lshlrev_b32 v{K+8+8}, 4, v{V_I}") if False else None
        A(f"v_lshlrev_b32 v{P}, 4, v{V_I}")
        A(f"v_add_u32 v{P}, {KV_KEXT}, v{P}")
        A(f"s_mov_b32 s{S_TMP}, 0")
        l1 = A.newlabel("fb1" + tag)
        A.label(l1)
        A(f"ds_read_b128 {vr(K,4)}, v{T+1}")
        A(f"ds_read_b32 v{KE}, v{P}")
        A("s_waitcnt lgkmcnt(0)")
        A(M(S0, K, Q, None))
        A(M8(S0, KE, QE, S0))
        A("s_nop 7"); A("s_nop 7")
        for r in range(0, 16, 2): A(f"v_max3_f32 v{mx}, v{S0+r}, v{S0+r+1}, v{mx}")
        A(f"v_add_u32 v{T+1}, 1024, v{T+1}")
        A(f"s_add_u32 s{S_TMP}, s{S_TMP}, 1")
        A(f"s_and_b32 s{S_TMP2}, s{S_TMP}, 3")
        A(f"s_cmp_eq_u32 s{S_TMP2}, 0")
        A(f"s_cselect_b32 s{S_TMP2}, {512-12}, 4")
        A(f"v_add_u32 v{P}, s{S_TMP2}, v{P}")
        A(f"s_cmp_lt_u32 s{S_TMP}, 64")
        A(f"s_cbranch_scc1 {l1}")
        A(f"v_mov_b32 v{T+1}, v{mx}")
        A(f"v_permlane32_swap_b32 v{mx}, v{T+1}")
        A(f"v_max_f32 v{mx}, v{mx}, v{T+1}")
        A(f"v_sub_f32 v{mx}, 0, v{mx}")
        for r in range(16): A(f"v_mov_b32 v{NEGM+r}, v{mx}") if NEGM + r != mx else None
        AKr, AKEr, AVr = P + 1, P + 2, P + 3
        A(f"s_mov_b32 s{S_TMP}, 0")
        for r in range(16): A(f"v_mov_b32 v{O+r}, 0")
        l2 = A.newlabel("fb2" + tag)
        A.label(l2)
        A(f"s_lshl_b32 s{S_TMP2}, s{S_TMP}, 10")
        A(f"v_add_u32 v{S1}, s{S_TMP2}, v{A_K}")
        A(f"s_lshr_b32 s{S_TMP2}, s{S_TMP}, 2")
        A(f"s_lshl_b32 s{S_TMP2}, s{S_TMP2}, 9")
        A(f"s_and_b32 s50, s{S_TMP}, 3")
        A(f"s_lshl_b32 s50, s50, 2")
        A(f"s_add_u32 s{S_TMP2}, s{S_TMP2}, s50")
        A(f"v_add_u32 v{S1+1}, s{S_TMP2}, v{A_KE}")
        A(f"s_mul_i32 s{S_TMP2}, s{S_TMP}, {V_TILE}")
        A(f"v_add_u32 v{S1+2}, s{S_TMP2}, v{A_V}")
        A(f"ds_read_b128 {vr(K,4)}, v{S1}")
        A(f"ds_read_b32 v{KE}, v{S1+1}")
        A(f"ds_read_b128 {vr(V0,4)}, v{S1+2}")
        A(f"ds_read_b128 {vr(V1,4)}, v{S1+2} offset:{V_TILE//2}")
        A("s_waitcnt lgkmcnt(0)")
        A(M(S0, K, Q, NEGM))
        A(M8(S0, KE, QE, S0))
        A("s_nop 7"); A("s_nop 7")
        for r in range(16): A(E(S0 + r))
        A("s_nop 0")
        for r in range(8): A(C(P + r, S0 + 2 * r))
        A("s_nop 1")
        A(M(O, V0, P, O)); A(M(O, V1, P + 4, O))
        A(f"s_add_u32 s{S_TMP}, s{S_TMP}, 1")
        A(f"s_cmp_lt_u32 s{S_TMP}, 32")
        A(f"s_cbranch_scc1 {l2}")
        A("s_nop 7"); A("s_nop 7")

def epilogue(A):
    A("s_nop 7"); A("s_nop 3")
    pstamp(A, 6)
    A("s_barrier")
    lsw = A.newlabel("sw"); ld = A.newlabel("swd")
    A(f"s_lshl_b32 s{S_TMP}, s{S_WAVE}, 12")
    A(f"v_lshlrev_b32 v{T}, 4, v{V_LANE}")
    A(f"v_add_u32 v{T+1}, s{S_TMP}, v{T}")
    A(f"s_xor_b32 s{S_TMP}, s{S_WAVE}, 4")
    A(f"s_lshl_b32 s{S_TMP}, s{S_TMP}, 12")
    A(f"v_add_u32 v{T+2}, s{S_TMP}, v{T}")
    A(f"s_cmp_eq_u32 s{S_KH}, 0"); A(f"s_cbranch_scc0 {lsw}")
    for q in range(3): A(f"ds_write_b128 v{T+1}, {vr(OB+4*q,4)} offset:{1024*q}")
    A(f"s_branch {ld}")
    A.label(lsw)
    for q in range(3): A(f"ds_write_b128 v{T+1}, {vr(OA+4*q,4)} offset:{1024*q}")
    A("s_nop 1")
    for r in range(12): A(f"v_mov_b32 v{OA+r}, v{OB+r}")
    A(f"s_add_u32 s{S_TOKA}, s{S_TOKA}, 1")
    A.label(ld)
    A("s_waitcnt lgkmcnt(0)")
    A("s_barrier")
    for q in range(3): A(f"ds_read_b128 {vr(S0+4*q,4)}, v{T+2} offset:{1024*q}")
    A("s_waitcnt lgkmcnt(0)")
    for r in range(11): A(f"v_add_f32 v{OA+r}, v{OA+r}, v{S0+r}")
    A(f"v_mov_b32 v{T}, v{OA+10}")
    A(f"v_permlane32_swap_b32 v{OA+10}, v{T}")
    A(f"v_rcp_f32 v{T}, v{OA+10}")
    A("s_nop 0")
    for r in range(10): A(f"v_mul_f32 v{OA+r}, v{OA+r}, v{T}")
    for r in range(5): A(C(P + r, OA + 2 * r))
    A(f"s_mul_i32 s{S_TMP}, s{S_TOKA}, {ROWB}")
    A(f"s_add_u32 s{S_TMP}, s{S_TMP}, {WS_O}")
    A(f"v_mul_u32_u24 v{T}, 36, v{V_I}")
    A(f"v_lshl_add_u32 v{T}, v{V_H}, 4, v{T}")
    A(f"buffer_store_dwordx4 {vr(P,4)}, v{T}, s[{SRD_WS}:{SRD_WS+3}], s{S_TMP} offen")
    A(f"v_cmp_eq_u32 vcc, 0, v{V_H}")
    A("s_and_saveexec_b64 s[50:51], vcc")
    A(f"buffer_store_dword v{P+4}, v{T}, s[{SRD_WS}:{SRD_WS+3}], s{S_TMP} offen offset:32")
    A("s_mov_b64 exec, s[50:51]")
    if STAMPS: A("s_waitcnt vmcnt(0)")
    pstamp(A, 7)
    stamp_flush(A, 1, S_WAVE, S_WS, T)
    A("s_endpgm")

def attention_wave(A):
    st0, st1 = dma_rounds()
    A(f"s_lshl_b32 s{S_W1024}, s{S_WAVE}, 10")
    A(f"v_lshlrev_b32 v{T}, 4, v{V_LANE}")
    A(f"v_add_u32 v{T}, s{S_W1024}, v{T}")
    A(f"s_and_b32 s{S_P}, s{S_WAVE}, 3")
    A(f"s_lshr_b32 s{S_KH}, s{S_WAVE}, 2")
    A(f"s_lshl_b32 s{S_TOKA}, s2, 3")
    A(f"s_lshl_b32 s{S_TMP}, s{S_P}, 1")
    A(f"s_add_u32 s{S_TOKA}, s{S_TOKA}, s{S_TMP}")
    A(f"v_mul_u32_u24 v{T+1}, 36, v{V_I}")
    A(f"v_lshl_add_u32 v{T+2}, v{V_H}, 4, v{T+1}")
    A(f"v_add_u32 v{T+1}, 32, v{T+1}")
    A(f"v_mov_b32 v{T+3}, 0x7fff0000")
    A(f"v_cmp_eq_u32 vcc, 0, v{V_H}")
    A(f"v_cndmask_b32 v{T+1}, v{T+3}, v{T+1}, vcc")
    A(f"s_mul_i32 s{S_TMP}, s{S_TOKA}, {ROWB}")
    A(f"s_add_u32 s{S_TMP2}, s{S_TMP}, {ROWB}")
    W = f"s[{SRD_WS}:{SRD_WS+3}]"
    A(f"buffer_load_dwordx4 {vr(QA,4)}, v{T+2}, {W}, s{S_TMP} offen offset:{WS_Q}")
    A(f"buffer_load_dword v{QEA}, v{T+1}, {W}, s{S_TMP} offen offset:{WS_Q}")
    A(f"buffer_load_dwordx4 {vr(QB,4)}, v{T+2}, {W}, s{S_TMP2} offen offset:{WS_Q}")
    A(f"buffer_load_dword v{QEB}, v{T+1}, {W}, s{S_TMP2} offen offset:{WS_Q}")
    A(f"v_lshlrev_b32 v{T+4}, 3, v{V_LANE}")
    A(f"v_add_u32 v{T+4}, {WS_KN}, v{T+4}")
    A(f"buffer_load_dwordx2 {vr(T+6,2)}, v{T+4}, {W}, 0 offen")
    dma_issue(A, st0)
    dma_issue(A, st1)
    n0 = len(st0); n1 = len(st1)
    A(f"s_lshl_b32 s{S_TMP}, s{S_KH}, 15")
    A(f"v_lshlrev_b32 v{A_K}, 4, v{V_LANE}")
    A(f"v_add_u32 v{A_K}, s{S_TMP}, v{A_K}")
    A(f"s_lshl_b32 s{S_TMP}, s{S_KH}, 12")
    A(f"s_add_u32 s{S_TMP}, s{S_TMP}, {KV_KEXT}")
    A(f"v_lshlrev_b32 v{A_KE}, 4, v{V_I}")
    A(f"v_add_u32 v{A_KE}, s{S_TMP}, v{A_KE}")
    A(f"v_mul_u32_u24 v{T+2}, {VROWS}, v{V_H}")
    A(f"v_add_u32 v{T+1}, v{V_I}, v{T+2}")
    A(f"s_mul_i32 s{S_TMP}, s{S_KH}, {32*V_TILE}")
    A(f"s_add_u32 s{S_TMP}, s{S_TMP}, {KV_V}")
    A(f"v_lshlrev_b32 v{A_V}, 4, v{T+1}")
    A(f"v_add_u32 v{A_V}, s{S_TMP}, v{A_V}")
    if ZERO_V:
        A(f"v_mov_b32 v{T+2}, 0x30000")
        A(f"v_cmp_lt_u32 vcc, 18, v{V_I}")
        A(f"v_cndmask_b32 v{A_V}, v{A_V}, v{T+2}, vcc")
    else:
        A(f"v_cmp_lt_u32 vcc, 18, v{V_I}")
        A(f"v_lshlrev_b32 v{T+2}, 4, v{V_H}")
        A(f"v_mul_u32_u24 v{T+2}, {VROWS}, v{T+2}")
        A(f"v_add_u32 v{T+2}, s{S_TMP}, v{T+2}")
        A(f"v_cndmask_b32 v{A_V}, v{A_V}, v{T+2}, vcc")
    if ZERO_KE:
        A(f"v_mov_b32 v{T+2}, 0x30000")
        A(f"v_cmp_eq_u32 vcc, 1, v{V_H}")
        A(f"v_cndmask_b32 v{A_KE}, v{A_KE}, v{T+2}, vcc")
    A(f"s_waitcnt vmcnt({n0+n1})")
    for (Q, QE) in ((QA, QEA), (QB, QEB)):
        A(f"v_mov_b32 v{QE+1}, 0"); A(f"v_mov_b32 v{QE+2}, 0"); A(f"v_mov_b32 v{QE+3}, v{QE}")
    for k_, (Q, QE) in enumerate(((QA, QEA), (QB, QEB))):
        n = T + 8 + k_
        A(f"v_dot2_f32_bf16 v{n}, v{Q}, v{Q}, 0")
        for r in range(1, 4): A(f"v_dot2_f32_bf16 v{n}, v{Q+r}, v{Q+r}, v{n}")
        A(f"v_dot2_f32_bf16 v{n}, v{QE}, v{QE}, v{n}")
    A("s_nop 2")
    for k_ in range(2):
        n = T + 8 + k_
        A(f"v_mov_b32 v{T+10}, v{n}")
        A(f"v_permlane32_swap_b32 v{n}, v{T+10}")
        A(f"v_add_f32 v{n}, v{n}, v{T+10}")
    A(f"v_max_f32 v{T+8}, v{T+8}, v{T+9}")
    A(f"v_max_f32 v{T+6}, v{T+6}, v{T+7}")
    for sh in (1, 2, 4, 8):
        A(f"v_max_f32_dpp v{T+8}, v{T+8}, v{T+8} row_ror:{sh} row_mask:0xf bank_mask:0xf")
        A(f"v_max_f32_dpp v{T+6}, v{T+6}, v{T+6} row_ror:{sh} row_mask:0xf bank_mask:0xf")
    A(f"v_readlane_b32 s{S_QN}, v{T+8}, 0")
    A(f"v_readlane_b32 s{S_TMP}, v{T+8}, 16")
    A(f"s_max_u32 s{S_QN}, s{S_QN}, s{S_TMP}")
    A(f"v_readlane_b32 s{S_KN}, v{T+6}, 0")
    for ln in (16, 32, 48):
        A(f"v_readlane_b32 s{S_TMP}, v{T+6}, {ln}")
        A(f"s_max_u32 s{S_KN}, s{S_KN}, s{S_TMP}")
    A(f"v_mov_b32 v{T+8}, s{S_QN}")
    A(f"v_mul_f32 v{T+8}, s{S_KN}, v{T+8}")
    A(f"v_cmp_le_f32 vcc, v{T+8}, v{T+9}") if False else None
    A(f"v_mov_b32 v{T+9}, {f32(T_SAFE*T_SAFE)}")
    A(f"v_cmp_le_f32 vcc, v{T+8}, v{T+9}")
    A(f"s_waitcnt vmcnt({n1})")
    A("s_barrier")
    pstamp(A, 1)
    lf = A.newlabel("fallback"); le = A.newlabel("epi")
    A(f"s_cbranch_vccz {lf}")
    fast_path(A)
    A(f"s_branch {le}")
    A.label(lf)
    fallback_path(A)
    A.label(le)
    epilogue(A)

def gen_k2(name):
    A = Asm()
    end = "L_k2_end"
    A("s_cmp_ge_u32 s2, 256"); A(f"s_cbranch_scc1 {end}")
    stamp_init(A); pstamp(A, 0)
    load_kernargs(A)
    A(f"v_lshrrev_b32 v{T}, 6, v0")
    A(f"v_and_b32 v{V_LANE}, 63, v0")
    A(f"v_readfirstlane_b32 s{S_WAVE}, v{T}")
    A(f"v_and_b32 v{V_I}, 31, v0")
    A(f"v_bfe_u32 v{V_H}, v0, 5, 1")
    A("s_waitcnt lgkmcnt(0)")
    mk_srd(A, SRD_WS, S_WS, WS_SIZE)
    mk_srd(A, SRD_KV, S_WS, KV_BYTES, add=WS_KV)
    attention_wave(A)
    A.label(end); A("s_endpgm")
    return A, 128, LDS_BYTES, 512
```

```python
from common import *
from gemm import *

SRD_WS = 72; SRD_BX = 64; SRD_OUT = 68
V_BXV = 184
V_GATE = 196
V_Y = 200

def outp_body(A):
    vm = VmTrack()
    t = V_TMP
    A(f"v_add_u32 v{t}, s{S_T0}, v{V_T}")
    A(f"v_lshlrev_b32 v{t+1}, 2, v{t}")
    A(f"v_add_u32 v{t+1}, {WS_G}, v{t+1}")
    A(f"buffer_load_dword v{V_GATE}, v{t+1}, s[{SRD_WS}:{SRD_WS+3}], 0 offen")
    A(f"v_mul_u32_u24 v{V_GATE+1}, {ROWB}, v{t}")
    A(f"s_mul_i32 s{S_TMP2}, s{S_HG}, 144")
    A(f"v_lshl_add_u32 v{V_GATE+1}, v{V_G}, 3, v{V_GATE+1}")
    A(f"v_add_u32 v{V_GATE+1}, s{S_TMP2}, v{V_GATE+1}")
    for ft in range(5):
        A(f"buffer_load_dwordx2 {vr(V_BXV+2*ft,2)}, v{V_GATE+1}, s[{SRD_BX}:{SRD_BX+3}], 0 offen offset:{32*ft}")
    A(f"s_add_u32 s76, s{S_WS}, {WS_SEL}")
    A(f"s_addc_u32 s77, s{S_WS+1}, 0")
    A(f"s_load_dwordx4 s[80:83], s[76:77], 0")
    vm.issue("pre")
    dma_patterns(A, False)
    issue_loads(A, vm, False)
    tr_addresses(A, False)
    main_loop(A, vm, 5)
    A("s_nop 7")
    g = V_GATE; og = V_GATE + 2
    A(f"v_sub_f32 v{og}, 1.0, v{g}")
    A(f"v_cvt_pk_bf16_f32 v{og}, v{og}, v{og}")
    A(f"v_and_b32 v{og}, 0xffff0000, v{og}")
    for ft in range(5):
        for q in range(2):
            src = V_BXV + 2 * ft + q; d = V_XF + 4 * ft + 2 * q
            A(f"v_lshlrev_b32 v{d}, 16, v{src}")
            A(f"v_and_b32 v{d+1}, 0xffff0000, v{src}")
    for j in range(2):
        skip = A.newlabel("nort")
        A(f"s_sub_u32 s{S_TMP}, s{80+j}, s{S_T0}")
        A(f"s_cmp_lt_u32 s{S_TMP}, 16")
        A(f"s_cbranch_scc0 {skip}")
        A(f"s_mul_i32 s{S_TMP2}, s{S_HG}, 288")
        A(f"s_add_u32 s{S_TMP2}, s{S_TMP2}, {WS_YACC + j*D*4}")
        A(f"v_lshlrev_b32 v{t}, 4, v{V_G}")
        A(f"v_add_u32 v{t}, s{S_TMP2}, v{t}")
        for ft in range(5):
            for rp in range(Y_REP):
                A(f"s_mov_b32 s{S_TMP2}, {rp*2*D*4}")
                A(f"buffer_load_dwordx4 {vr(V_AF+4*rp,4)}, v{t}, s[{SRD_WS}:{SRD_WS+3}], s{S_TMP2} offen offset:{64*ft}")
            A("s_waitcnt vmcnt(0)")
            for rp in range(1, Y_REP):
                for r in range(4): A(f"v_add_f32 v{V_AF+r}, v{V_AF+r}, v{V_AF+4*rp+r}")
            A(f"v_cmp_eq_u32 vcc, s{S_TMP}, v{V_T}")
            for r in range(4):
                y = V_AF + r; x = V_XF + 4 * ft + r
                A(f"v_cvt_pk_bf16_f32 v{y}, v{y}, v{y}")
                A(f"v_and_b32 v{y}, 0xffff0000, v{y}")
                A(f"v_mul_f32 v{y}, s{82+j}, v{y}")
                A(f"v_cvt_pk_bf16_f32 v{y}, v{y}, v{y}")
                A(f"v_and_b32 v{y}, 0xffff0000, v{y}")
                A(f"v_add_f32 v{y}, v{x}, v{y}")
                A(f"v_cvt_pk_bf16_f32 v{y}, v{y}, v{y}")
                A(f"v_and_b32 v{y}, 0xffff0000, v{y}")
                A(f"v_cndmask_b32 v{x}, v{x}, v{y}, vcc")
        A.label(skip)
    for ft in range(5):
        a_ = V_ACC + 4 * ft; x = V_XF + 4 * ft; d = V_AF + 40 + 2 * (ft % 2)
        for r in range(4):
            A(f"v_mul_f32 v{x+r}, v{og}, v{x+r}")
            A(f"v_fma_f32 v{x+r}, v{g}, v{a_+r}, v{x+r}")
        A(f"v_cvt_pk_bf16_f32 v{d}, v{x}, v{x+1}")
        A(f"v_cvt_pk_bf16_f32 v{d+1}, v{x+2}, v{x+3}")
        if ft == 4:
            A(f"v_cmp_gt_u32 vcc, 2, v{V_G}")
            A(f"s_and_saveexec_b64 s[50:51], vcc")
        A(f"buffer_store_dwordx2 {vr(d,2)}, v{V_GATE+1}, s[{SRD_OUT}:{SRD_OUT+3}], 0 offen offset:{32*ft}")
    A("s_endpgm")

def gen_outp(name):
    A = Asm()
    end = "L_k3_end"
    A("s_cmp_ge_u32 s2, 256"); A(f"s_cbranch_scc1 {end}")
    load_kernargs(A)
    wg_decode(A)
    A("s_waitcnt lgkmcnt(0)")
    mk_srd(A, SRD_WS, S_WS, WS_SIZE)
    mk_srd(A, SRD_X, S_WS, S_TOK * ROWB, add=WS_O)
    mk_srd(A, SRD_W, S_WO, D * ROWB)
    mk_srd(A, SRD_BX, S_X, S_TOK * ROWB)
    mk_srd(A, SRD_OUT, S_OUT, S_TOK * ROWB)
    outp_body(A)
    A.label(end); A("s_endpgm")
    return A, 240, W_LDS

F_LANE, F_T, F_G, F_TMP = 1, 2, 3, 4
F_KEY = 16
F_W = 48
F_X = 120
F_D = 156
F_A = 192
F_ACC = 200
F_ACC2 = 208
FS_WAVE, FS_M, FS_KH, FS_T, FS_T2, FS_I0, FS_I1, FS_SL = 33, 34, 35, 36, 37, 38, 39, 40
FSRD_W, FSRD_X, FSRD_D, FSRD_WS = 44, 48, 52, 56
FL_STG = 0
FL_RED = 12288
FL_H = 20480
FFN_LDS = 20480 + 256

def ffn_body(A):
    t = F_TMP
    WS = f"s[{FSRD_WS}:{FSRD_WS+3}]"
    A(f"v_lshlrev_b32 v{t}, 4, v{F_LANE}")
    A(f"s_mov_b32 s{FS_T}, {WS_KEYS}")
    A(f"buffer_load_dwordx4 {vr(F_KEY,4)}, v{t}, {WS}, s{FS_T} offen")
    A(f"v_lshrrev_b32 v{t}, 2, v{F_LANE}")
    A(f"v_mul_u32_u24 v{t}, {F*2}, v{t}")
    A(f"v_and_b32 v{t+1}, 3, v{F_LANE}")
    A(f"v_lshl_add_u32 v{t}, v{t+1}, 4, v{t}")
    A(f"s_mul_i32 s{FS_T}, s{FS_KH}, {9*32*F*2}")
    A(f"s_lshl_b32 s{FS_T2}, s{FS_SL}, 6")
    A(f"s_add_u32 s{FS_T}, s{FS_T}, s{FS_T2}")
    for s_ in range(9):
        for hf in range(2):
            A(f"buffer_load_dwordx4 {vr(F_W+8*s_+4*hf,4)}, v{t}, s[{FSRD_W}:{FSRD_W+3}], s{FS_T} offen")
            A(f"s_add_u32 s{FS_T}, s{FS_T}, {16*F*2}")
    for q in range(9):
        q3, i = divmod(q, 3)
        A(f"v_add_u32 v{t}, {64*i}, v{F_LANE}")
        A(f"v_mul_u32_u24 v{t+1}, 10923, v{t}")
        A(f"v_lshrrev_b32 v{t+1}, 16, v{t+1}")
        A(f"v_mul_u32_u24 v{t+2}, 6, v{t+1}")
        A(f"v_sub_u32 v{t+2}, v{t}, v{t+2}")
        A(f"v_mul_u32_u24 v{t+1}, {ROWB}, v{t+1}")
        A(f"v_lshl_add_u32 v{t+1}, v{t+2}, 4, v{t+1}")
        A(f"s_mul_i32 s{FS_T}, s{FS_SL}, {32*ROWB}")
        A(f"s_mul_i32 s{FS_T2}, s{FS_WAVE}, 288")
        A(f"s_add_u32 s{FS_T}, s{FS_T}, s{FS_T2}")
        A(f"buffer_load_dwordx4 {vr(F_D+4*q,4)}, v{t+1}, s[{FSRD_D}:{FSRD_D+3}], s{FS_T} offen offset:{96*q3}")
    A("s_waitcnt vmcnt(27)")
    m1, m2 = t, t + 1
    A(f"v_max_u32 v{m1}, v{F_KEY}, v{F_KEY+1}")
    A(f"v_min_u32 v{m2}, v{F_KEY}, v{F_KEY+1}")
    for i in range(2, 4):
        A(f"v_med3_u32 v{m2}, v{m1}, v{m2}, v{F_KEY+i}")
        A(f"v_max_u32 v{m1}, v{m1}, v{F_KEY+i}")
    def wave_max(reg, sdst):
        A(f"v_mov_b32 v{t+2}, v{reg}")
        for sh in (1, 2, 4, 8):
            A(f"v_max_u32_dpp v{t+2}, v{t+2}, v{t+2} row_ror:{sh} row_mask:0xf bank_mask:0xf")
        A(f"v_readlane_b32 s{sdst}, v{t+2}, 0")
        for ln in (16, 32, 48):
            A(f"v_readlane_b32 s{FS_T}, v{t+2}, {ln}")
            A(f"s_max_u32 s{sdst}, s{sdst}, s{FS_T}")
    wave_max(m1, 60)
    A(f"v_cmp_eq_u32 vcc, s60, v{m1}")
    A(f"v_cndmask_b32 v{m1}, v{m1}, v{m2}, vcc")
    wave_max(m1, 61)
    for j in range(2):
        A(f"s_and_b32 s{FS_T}, s{60+j}, 0xffff")
        A(f"s_sub_u32 s{FS_I0+j}, 0xffff, s{FS_T}")
        A(f"s_min_u32 s{FS_I0+j}, s{FS_I0+j}, {S_TOK-1}")
    A(f"v_mov_b32 v{t}, s{FS_I0}")
    A(f"v_mov_b32 v{t+1}, s{FS_I1}")
    A(f"v_cmp_eq_u32 vcc, 1, v{F_T}")
    A(f"v_cndmask_b32 v{t}, v{t}, v{t+1}, vcc")
    A(f"v_mul_u32_u24 v{t}, {ROWB}, v{t}")
    A(f"v_lshl_add_u32 v{t}, v{F_G}, 4, v{t}")
    A(f"s_mul_i32 s{FS_T}, s{FS_KH}, {9*64}")
    for s_ in range(9):
        A(f"buffer_load_dwordx4 {vr(F_X+4*s_,4)}, v{t}, s[{FSRD_X}:{FSRD_X+3}], s{FS_T} offen offset:{64*s_}")
    nosel = A.newlabel("nosel")
    A(f"s_or_b32 s{FS_T}, s2, s{FS_WAVE}")
    A(f"s_cmp_lg_u32 s{FS_T}, 0"); A(f"s_cbranch_scc1 {nosel}")
    A(f"v_mov_b32 v{t}, s60"); A(f"v_mov_b32 v{t+1}, s61")
    A(f"v_cmp_eq_u32 vcc, 1, v{F_LANE}")
    A(f"v_cndmask_b32 v{t}, v{t}, v{t+1}, vcc")
    A(f"v_lshrrev_b32 v{t+1}, 16, v{t}")
    A(f"v_xor_b32 v{t+2}, 0x8000, v{t+1}")
    A(f"v_xor_b32 v{t+3}, 0xffff, v{t+1}")
    A(f"v_cmp_lt_u32 vcc, 0x7fff, v{t+1}")
    A(f"v_cndmask_b32 v{t+1}, v{t+3}, v{t+2}, vcc")
    A(f"v_lshlrev_b32 v{t+1}, 16, v{t+1}")
    A(f"v_mul_f32 v{t+1}, {f32(-LOG2E)}, v{t+1}")
    A(f"v_exp_f32 v{t+1}, v{t+1}")
    A(f"v_add_f32 v{t+1}, 1.0, v{t+1}")
    A(f"v_rcp_f32 v{t+1}, v{t+1}")
    A(f"v_cvt_pk_bf16_f32 v{t+1}, v{t+1}, v{t+1}")
    A(f"v_and_b32 v{t+1}, 0xffff0000, v{t+1}")
    A(f"v_and_b32 v{t}, 0xffff, v{t}")
    A(f"v_sub_u32 v{t}, 0xffff, v{t}")
    A(f"v_lshlrev_b32 v{t+2}, 2, v{F_LANE}")
    A(f"v_add_u32 v{t+2}, {WS_SEL}, v{t+2}")
    A(f"v_cmp_gt_u32 vcc, 2, v{F_LANE}")
    A("s_and_saveexec_b64 s[62:63], vcc")
    A(f"buffer_store_dword v{t}, v{t+2}, {WS}, 0 offen")
    A(f"buffer_store_dword v{t+1}, v{t+2}, {WS}, 0 offen offset:8")
    A("s_mov_b64 exec, s[62:63]")
    A.label(nosel)
    A(f"s_mul_i32 s{FS_T}, s{FS_WAVE}, 3072")
    A(f"v_lshlrev_b32 v{t}, 4, v{F_LANE}")
    A(f"v_add_u32 v{t}, s{FS_T}, v{t}")
    A(f"v_lshrrev_b32 v{t+1}, 4, v{F_LANE}")
    A(f"v_bfe_u32 v{t+2}, v{F_LANE}, 2, 2")
    A(f"v_lshl_add_u32 v{t+1}, v{t+1}, 3, v{t+2}")
    A(f"v_and_b32 v{t+2}, 3, v{F_LANE}")
    A(f"v_lshlrev_b32 v{t+2}, 3, v{t+2}")
    A(f"v_lshl_add_u32 v{t+3}, v{t+1}, 6, v{t+2}")
    A(f"v_add_u32 v{t+3}, s{FS_T}, v{t+3}")
    A(f"v_mul_u32_u24 v{t+4}, 96, v{t+1}")
    A(f"v_add_u32 v{t+4}, v{t+4}, v{t+2}")
    A(f"v_add_u32 v{t+4}, s{FS_T}, v{t+4}")
    A("s_waitcnt vmcnt(0)")
    for s_ in range(9):
        A(f"ds_write_b128 v{t}, {vr(F_W+8*s_,4)}")
        A(f"ds_write_b128 v{t}, {vr(F_W+8*s_+4,4)} offset:1024")
        A("s_waitcnt lgkmcnt(0)")
        for tile in range(2):
            for q in range(2):
                A(f"ds_read_b64_tr_b16 {vr(F_A+4*tile+2*q,2)}, v{t+3} offset:{32*tile + 256*q}")
        A("s_waitcnt lgkmcnt(0)")
        for tile in range(2):
            c = "0" if s_ == 0 else vr(F_ACC + 4 * tile, 4)
            A(f"v_mfma_f32_16x16x32_bf16 {vr(F_ACC+4*tile,4)}, {vr(F_A+4*tile,4)}, {vr(F_X+4*s_,4)}, {c}")
    A("s_nop 7")
    A(f"s_lshl_b32 s{FS_T}, s{FS_WAVE}, 11")
    A(f"s_add_u32 s{FS_T}, s{FS_T}, {FL_RED}")
    A(f"v_lshlrev_b32 v{t+5}, 4, v{F_LANE}")
    A(f"v_add_u32 v{t+5}, s{FS_T}, v{t+5}")
    A(f"ds_write_b128 v{t+5}, {vr(F_ACC,4)}")
    A(f"ds_write_b128 v{t+5}, {vr(F_ACC+4,4)} offset:1024")
    A("s_waitcnt lgkmcnt(0)")
    A("s_barrier")
    noh = A.newlabel("noh")
    A(f"s_cmp_lg_u32 s{FS_WAVE}, 0"); A(f"s_cbranch_scc1 {noh}")
    A(f"v_lshlrev_b32 v{t+5}, 4, v{F_LANE}")
    A(f"v_add_u32 v{t+5}, {FL_RED}, v{t+5}")
    for tile in range(2):
        b = F_W + 16 * tile
        for w in range(4):
            A(f"ds_read_b128 {vr(b+4*w,4)}, v{t+5} offset:{2048*w + 1024*tile}")
    A("s_waitcnt lgkmcnt(0)")
    for tile in range(2):
        b = F_W + 16 * tile
        for r in range(4):
            gq = b + r; uq = b + 4 + r
            A(f"v_add_f32 v{gq}, v{gq}, v{b+8+r}")
            A(f"v_add_f32 v{uq}, v{uq}, v{b+12+r}")
            A(f"v_cvt_pk_bf16_f32 v{gq}, v{gq}, v{uq}")
            A(f"v_and_b32 v{uq}, 0xffff0000, v{gq}")
            A(f"v_lshlrev_b32 v{gq}, 16, v{gq}")
            A(f"v_mul_f32 v{b+8+r}, {f32(-LOG2E)}, v{gq}")
            A(f"v_exp_f32 v{b+8+r}, v{b+8+r}")
            A(f"v_add_f32 v{b+8+r}, 1.0, v{b+8+r}")
            A(f"v_rcp_f32 v{b+8+r}, v{b+8+r}")
            A(f"v_mul_f32 v{gq}, v{gq}, v{b+8+r}")
            A(f"v_cvt_pk_bf16_f32 v{gq}, v{gq}, v{gq}")
            A(f"v_and_b32 v{gq}, 0xffff0000, v{gq}")
            A(f"v_mul_f32 v{gq}, v{gq}, v{uq}")
        A(f"v_cvt_pk_bf16_f32 v{b}, v{b}, v{b+1}")
        A(f"v_cvt_pk_bf16_f32 v{b+1}, v{b+2}, v{b+3}")
    A(f"v_lshlrev_b32 v{t+5}, 6, v{F_T}")
    A(f"v_lshl_add_u32 v{t+5}, v{F_G}, 3, v{t+5}")
    A(f"v_add_u32 v{t+5}, {FL_H}, v{t+5}")
    A(f"v_cmp_gt_u32 vcc, 2, v{F_T}")
    A("s_and_saveexec_b64 s[62:63], vcc")
    A(f"ds_write_b64 v{t+5}, {vr(F_W,2)}")
    A(f"ds_write_b64 v{t+5}, {vr(F_W+16,2)} offset:32")
    A("s_mov_b64 exec, s[62:63]")
    A.label(noh)
    A("s_waitcnt lgkmcnt(0)")
    A("s_barrier")
    A(f"v_and_b32 v{t+5}, 1, v{F_T}")
    A(f"v_lshlrev_b32 v{t+5}, 6, v{t+5}")
    A(f"v_lshl_add_u32 v{t+5}, v{F_G}, 4, v{t+5}")
    A(f"v_add_u32 v{t+5}, {FL_H}, v{t+5}")
    A(f"ds_read_b128 {vr(F_X,4)}, v{t+5}")
    for q3 in range(3):
        for i in range(3):
            A(f"ds_write_b128 v{t}, {vr(F_D+12*q3+4*i,4)} offset:{1024*i}")
        A("s_waitcnt lgkmcnt(0)")
        for tile in range(3):
            for q in range(2):
                d = F_W + 4 * tile + 2 * q
                A(f"ds_read_b64_tr_b16 {vr(d,2)}, v{t+4} offset:{32*tile + 4*96*q}")
        A("s_waitcnt lgkmcnt(0)")
        for tile in range(3):
            A(f"v_mfma_f32_16x16x32_bf16 {vr(F_ACC2+4*(3*q3+tile),4)}, {vr(F_W+4*tile,4)}, {vr(F_X,4)}, 0")
    A("s_nop 7")
    A(f"s_and_b32 s{FS_T}, s2, {Y_REP-1}")
    A(f"s_mul_i32 s{FS_T}, s{FS_T}, {2*D*4}")
    A(f"s_mul_i32 s{FS_T2}, s{FS_WAVE}, {144*4}")
    A(f"s_add_u32 s{FS_T}, s{FS_T}, s{FS_T2}")
    A(f"s_add_u32 s{FS_T}, s{FS_T}, {WS_YACC}")
    A(f"v_mul_u32_u24 v{t+5}, {D*4}, v{F_T}")
    A(f"v_lshl_add_u32 v{t+5}, v{F_G}, 4, v{t+5}")
    A(f"v_cmp_gt_u32 vcc, 2, v{F_T}")
    A("s_and_saveexec_b64 s[62:63], vcc")
    for tile in range(9):
        for r in range(4):
            A(f"buffer_atomic_add_f32 v{F_ACC2+4*tile+r}, v{t+5}, {WS}, s{FS_T} offen offset:{64*tile+4*r}")
    A("s_endpgm")

def gen_ffn(name):
    A = Asm()
    end = "L_ffn_end"
    A("s_cmp_ge_u32 s2, 144"); A(f"s_cbranch_scc1 {end}")
    load_kernargs(A)
    A(f"v_lshrrev_b32 v{F_TMP}, 6, v0")
    A(f"v_and_b32 v{F_LANE}, 63, v0")
    A(f"v_readfirstlane_b32 s{FS_WAVE}, v{F_TMP}")
    A(f"v_and_b32 v{F_T}, 15, v{F_LANE}")
    A(f"v_lshrrev_b32 v{F_G}, 4, v{F_LANE}")
    A(f"s_and_b32 s{FS_M}, s{FS_WAVE}, 1")
    A(f"s_lshr_b32 s{FS_KH}, s{FS_WAVE}, 1")
    A(f"s_mov_b32 s{FS_SL}, s2")
    A("s_waitcnt lgkmcnt(0)")
    mk_srd(A, FSRD_WS, S_WS, WS_SIZE)
    mk_srd(A, FSRD_X, S_X, S_TOK * ROWB)
    mk_srd(A, FSRD_D, S_WD, F * ROWB)
    A(f"s_cmp_eq_u32 s{FS_M}, 0")
    A(f"s_cselect_b32 s{FSRD_W}, s{S_WG}, s{S_WU}")
    A(f"s_cselect_b32 s{FSRD_W+1}, s{S_WG+1}, s{S_WU+1}")
    A(f"s_and_b32 s{FSRD_W+1}, s{FSRD_W+1}, 0xffff")
    A(f"s_mov_b32 s{FSRD_W+2}, {D*F*2}")
    A(f"s_mov_b32 s{FSRD_W+3}, 0x20000")
    ffn_body(A)
    A.label(end); A("s_endpgm")
    return A, 248, FFN_LDS

def gen_k3():
    Af, nvf, ldsf = gen_ffn("ffn_kernel")
    Ao, nvo, ldso = gen_outp("outp_kernel")
    return [("ffn_kernel", Af, nvf, 144, 256, ldsf), ("outp_kernel", Ao, nvo, 256, 256, ldso)]
```

```python
import sys, importlib
from common import *
import k1
def build(stage, out):
    kernels = []
    A1, nv1, lds1 = k1.gen_k1("proj_kernel")
    kernels.append(("proj_kernel", A1, nv1, 256, 256, lds1))
    if stage >= 2:
        import k2
        A2, nv2, lds2, blk2 = k2.gen_k2("attn_kernel")
        kernels.append(("attn_kernel", A2, nv2, 256, blk2, lds2))
    if stage >= 3:
        import k3
        for kk in k3.gen_k3(): kernels.append(kk)
    hdr = open("cdna_kernels/" + NAME + ".s.ref").read().split("; Override launch")[0]
    txt = hdr
    for (n, A, nv, grid, blk, lds) in kernels:
        txt += f"; @launch kernel={n} grid=({grid},1,1) block=({blk},1,1) lds={lds}\n"
    txt += '.amdgcn_target "amdgcn-amd-amdhsa--gfx950"\n'
    for (n, A, nv, grid, blk, lds) in kernels:
        rep = []
        body = A.finish(rep)
        if rep and "-v" in sys.argv:
            print(f"[{n}] {len(rep)} nop insertions")
            for r in rep[:40]: print("   ", r)
        txt += kernel_header(n) + body
    for (n, A, nv, grid, blk, lds) in kernels:
        txt += kernel_desc(n, nv)
    open(out, "w").write(txt)
    print("wrote", out, len(txt), "bytes")
if __name__ == "__main__":
    build(int(sys.argv[1]), sys.argv[2])
```

```python
from asmlib import *

NAME = "gated_mix__grouped_kv_mqa__moe_arch_mod__prompt"
S_TOK = 2048; D = 576; H = 32; DH = 18; F = 4608
ROWB = D * 2
WS_Q    = 0
WS_O    = WS_Q + S_TOK * ROWB
WS_KV   = WS_O + S_TOK * ROWB
KV_KMAIN = 0
KV_KEXT  = 65536
KV_V     = 65536 + 8192
VROWS    = 19
V_TILE   = 2 * 2 * VROWS * 16
KV_BYTES = KV_V + 64 * V_TILE
WS_G    = WS_KV + KV_BYTES
WS_KEYS = WS_G + S_TOK * 4
WS_KN   = WS_KEYS + S_TOK * 4
WS_YACC = WS_KN + 512
Y_REP   = 8
WS_SEL  = WS_YACC + Y_REP * 2 * D * 4
WS_END  = WS_SEL + 64
WS_SIZE = (WS_END + 4095) // 4096 * 4096

LOG2E = 1.4426950408889634
import struct
def f32(x): return "0x%08x" % struct.unpack("<I", struct.pack("<f", x))[0]

S_X, S_WQ, S_WK, S_WV = 4, 6, 8, 10
S_WO, S_BX, S_WR, S_WG = 12, 14, 16, 18
S_WU, S_WD = 20, 22
S_GW, S_OUT, S_DBG, S_WS = 24, 26, 28, 30

def load_kernargs(A):
    A("s_load_dwordx8 s[4:11], s[0:1], 0")
    A("s_load_dwordx8 s[12:19], s[0:1], 32")
    A("s_load_dwordx4 s[20:23], s[0:1], 64")
    A("s_load_dwordx8 s[24:31], s[0:1], 80")

def mk_srd(A, dst, ptr, nbytes, add=0):
    if add:
        A(f"s_add_u32 s{dst}, s{ptr}, {add}")
        A(f"s_addc_u32 s{dst+1}, s{ptr+1}, 0")
        A(f"s_and_b32 s{dst+1}, s{dst+1}, 0xffff")
    else:
        A(f"s_mov_b32 s{dst}, s{ptr}")
        A(f"s_and_b32 s{dst+1}, s{ptr+1}, 0xffff")
    A(f"s_mov_b32 s{dst+2}, {nbytes}")
    A(f"s_mov_b32 s{dst+3}, 0x20000")

def kernel_header(name):
    return (f".text\n.globl {name}\n.p2align 8\n.type {name},@function\n{name}:\n")

def kernel_desc(name, nvgpr, nsgpr=100, accum=None):
    if accum is None: accum = min(256, (nvgpr + 3) // 4 * 4)
    return f""".section .rodata,"a"
.p2align 6
.amdhsa_kernel {name}
  .amdhsa_next_free_vgpr {nvgpr}
  .amdhsa_next_free_sgpr {nsgpr}
  .amdhsa_accum_offset {accum}
  .amdhsa_group_segment_fixed_size 0
  .amdhsa_kernarg_size 112
  .amdhsa_user_sgpr_count 2
  .amdhsa_user_sgpr_kernarg_segment_ptr 1
  .amdhsa_system_sgpr_workgroup_id_x 1
  .amdhsa_float_denorm_mode_32 3
.end_amdhsa_kernel
"""

class VmTrack:
    def __init__(self): self.ops = []
    def issue(self, tag, n=1): self.ops += [tag] * n
    def after(self, tag):
        last = max(i for i, t in enumerate(self.ops) if t == tag)
        return len(self.ops) - 1 - last

import os
STAMPS = os.environ.get("STAMPS", "") != ""
WS_STAMP = 8 << 20
S_ST = 78
def stamp(A, i):
    if not STAMPS: return
    A(f"s_memrealtime s[94:95]")
    A("s_waitcnt lgkmcnt(0)")
    A(f"s_mov_b32 s{S_ST+i}, s94")
def cstamp(A, i):
    if not STAMPS: return
    A(f"s_memtime s[94:95]")
    A("s_waitcnt lgkmcnt(0)")
    A(f"s_mov_b32 s{S_ST+i}, s94")
V_ST = 140
STAMP_SET = os.environ.get("STAMPS", "")
def pstamp(A, i, which="1"):
    if not STAMPS: return
    if which != STAMP_SET and i != 0: return
    A(f"s_memrealtime s[94:95]")
    A(f"s_memtime s[96:97]")
    A("s_waitcnt lgkmcnt(0)")
    A(f"v_writelane_b32 v{V_ST}, s94, {i}")
    A(f"v_writelane_b32 v{V_ST}, s96, {8+i}")
def pstamp_init(A):
    if STAMPS: A(f"v_mov_b32 v{V_ST}, 0")
def pstamp_flush(A, s_wave, s_ws, off, vtmp):
    if not STAMPS: return
    A(f"s_lshl_b32 s94, s2, 4")
    A(f"s_add_u32 s94, s94, s{s_wave}")
    A(f"s_lshl_b32 s94, s94, 6")
    A(f"s_add_u32 s94, s94, {off}")
    A(f"s_add_u32 s94, s{s_ws}, s94")
    A(f"s_addc_u32 s95, s{s_ws+1}, 0")
    A(f"s_mov_b64 exec, -1")
    A(f"v_mbcnt_lo_u32_b32 v{vtmp}, -1, 0")
    A(f"v_lshlrev_b32 v{vtmp}, 2, v{vtmp}")
    A(f"s_mov_b64 exec, 0xffff")
    A(f"global_store_dword v{vtmp}, v{V_ST}, s[94:95]")
def stamp_init(A):
    if not STAMPS: return
    for i in range(16): A(f"s_mov_b32 s{S_ST+i}, 0")
def stamp_flush(A, kidx, s_wave, s_ws, vtmp):
    if not STAMPS: return
    A(f"s_lshl_b32 s94, s2, 4")
    A(f"s_add_u32 s94, s94, s{s_wave}")
    A(f"s_lshl_b32 s94, s94, 6")
    A(f"s_add_u32 s94, s94, {WS_STAMP + kidx * (1 << 18)}")
    A(f"s_add_u32 s94, s{s_ws}, s94")
    A(f"s_addc_u32 s95, s{s_ws+1}, 0")
    A(f"s_mov_b64 exec, -1")
    for i in range(16):
        A(f"v_writelane_b32 v{vtmp}, s{S_ST+i}, {i}")
    A(f"v_mbcnt_lo_u32_b32 v{vtmp+1}, -1, 0")
    A(f"v_lshlrev_b32 v{vtmp+1}, 2, v{vtmp+1}")
    A(f"s_mov_b64 exec, 0xffff")
    A(f"global_store_dword v{vtmp+1}, v{vtmp}, s[94:95]")
```

```python
from fcommon import *
from f_gemm import V_LANE, V_I, V_H, GATE, V_T, V_G

S0, S1 = 0, 16
P = 32
OA, OB = 40, 56
QA, QEA = 72, 76
QB, QEB = 80, 84
K, KE = 88, 92
V0, V1 = 96, 100
A_K, A_KE, A_V = 104, 105, 106
T = 110
NEGM = 112
S_QN, S_KN = 78, 79
T_SAFE = 60.0
HALF = 16 * TB_BYTES
BUMP = 8 * TB_BYTES

def M(d, a, b, c):
    cs = "0" if c is None else vr(c, 16)
    return f"v_mfma_f32_32x32x16_bf16 {vr(d,16)}, {vr(a,4)}, {vr(b,4)}, {cs}"
def M8(d, a, b, c):
    return f"v_mfma_f32_32x32x8bf16_1k {vr(d,16)}, {vr(a,2)}, {vr(b,2)}, {vr(c,16)}"
def E(r): return f"v_exp_f32 v{r}, v{r}"
def C(d, a): return f"v_cvt_pk_bf16_f32 v{d}, v{a}, v{a+1}"

def q_fragments(A):
    t = T
    A(f"s_mul_i32 s{S_T}, s{S_TG}, 36")
    A(f"s_add_u32 s{S_T}, s{S_T}, {QS}")
    A(f"v_mul_u32_u24 v{t}, 144, v{V_I}")
    A(f"v_add_u32 v{t}, s{S_T}, v{t}")
    A(f"v_lshl_add_u32 v{t+1}, v{V_H}, 4, v{t}")
    A(f"v_add_u32 v{t+2}, {32*144}, v{t+1}")
    A(f"v_add_u32 v{t}, 32, v{t}")
    A(f"v_mov_b32 v{t+3}, {OOR}")
    A(f"v_cmp_eq_u32 vcc, 0, v{V_H}")
    A(f"v_cndmask_b32 v{t}, v{t+3}, v{t}, vcc")
    for (Q, QE, ad, off) in ((QA, QEA, t + 1, 0), (QB, QEB, t + 2, 32 * 144)):
        A(f"ds_read2_b32 {vr(Q,2)}, v{ad} offset0:0 offset1:1")
        A(f"ds_read2_b32 {vr(Q+2,2)}, v{ad} offset0:2 offset1:3")
        A(f"ds_read_b32 v{QE}, v{t} offset:{off}")
    A("s_waitcnt lgkmcnt(0)")
    for QE in (QEA, QEB):
        A(f"v_mov_b32 v{QE+1}, 0"); A(f"v_mov_b32 v{QE+2}, 0"); A(f"v_mov_b32 v{QE+3}, v{QE}")

def lds_addresses(A):
    A(f"s_mul_i32 s{S_T}, s{S_FH}, {HALF}")
    A(f"v_lshlrev_b32 v{A_K}, 4, v{V_LANE}")
    A(f"v_add_u32 v{A_K}, s{S_T}, v{A_K}")
    A(f"s_add_u32 s{S_T2}, s{S_T}, {TB_KEXT}")
    A(f"v_lshlrev_b32 v{A_KE}, 3, v{V_I}")
    A(f"v_add_u32 v{A_KE}, s{S_T2}, v{A_KE}")
    A(f"v_mul_u32_u24 v{T+2}, {VROWS}, v{V_H}")
    A(f"v_add_u32 v{T+1}, v{V_I}, v{T+2}")
    A(f"s_add_u32 s{S_T2}, s{S_T}, {TB_V}")
    A(f"v_lshlrev_b32 v{A_V}, 4, v{T+1}")
    A(f"v_add_u32 v{A_V}, s{S_T2}, v{A_V}")
    A(f"v_mov_b32 v{T+2}, {OOR}")
    A(f"v_cmp_lt_u32 vcc, 18, v{V_I}")
    A(f"v_cndmask_b32 v{A_V}, v{A_V}, v{T+2}, vcc")
    A(f"v_cmp_eq_u32 vcc, 1, v{V_H}")
    A(f"v_cndmask_b32 v{A_KE}, v{A_KE}, v{T+2}, vcc")

def range_check(A):
    for k_, (Q, QE) in enumerate(((QA, QEA), (QB, QEB))):
        n = T + 8 + k_
        A(f"v_dot2_f32_bf16 v{n}, v{Q}, v{Q}, 0")
        for r in range(1, 4): A(f"v_dot2_f32_bf16 v{n}, v{Q+r}, v{Q+r}, v{n}")
        A(f"v_dot2_f32_bf16 v{n}, v{QE}, v{QE}, v{n}")
    A("s_nop 2")
    for k_ in range(2):
        n = T + 8 + k_
        A(f"v_mov_b32 v{T+10}, v{n}")
        A(f"v_permlane32_swap_b32 v{n}, v{T+10}")
        A(f"v_add_f32 v{n}, v{n}, v{T+10}")
    A(f"v_max_f32 v{T+8}, v{T+8}, v{T+9}")
    for sh in (1, 2, 4, 8):
        A(f"v_max_f32_dpp v{T+8}, v{T+8}, v{T+8} row_ror:{sh} row_mask:0xf bank_mask:0xf")
        A(f"v_max_f32_dpp v{T+6}, v{T+6}, v{T+6} row_ror:{sh} row_mask:0xf bank_mask:0xf")
    A(f"v_readlane_b32 s{S_QN}, v{T+8}, 0")
    A(f"v_readlane_b32 s{S_T}, v{T+8}, 16")
    A(f"s_max_u32 s{S_QN}, s{S_QN}, s{S_T}")
    A(f"v_readlane_b32 s{S_KN}, v{T+6}, 0")
    A(f"v_readlane_b32 s{S_T}, v{T+6}, 16")
    A(f"s_max_u32 s{S_KN}, s{S_KN}, s{S_T}")
    A(f"v_mov_b32 v{T+8}, s{S_QN}")
    A(f"v_mul_f32 v{T+8}, s{S_KN}, v{T+8}")
    A(f"v_mov_b32 v{T+9}, {f32(T_SAFE*T_SAFE)}")
    A(f"v_cmp_le_f32 vcc, v{T+8}, v{T+9}")

class Streams:
    def __init__(self): self.bumped = set()
    def off(self, reg, j, L):
        if j >= 16 and reg not in self.bumped:
            L.append(f"v_add_u32 v{reg}, {BUMP}, v{reg}"); self.bumped.add(reg)
        return ((j - 16) if j >= 16 else j)
    def K(self, j):
        L = []; jj = self.off(A_K, j, L)
        return L + [f"ds_read_b128 {vr(K,4)}, v{A_K} offset:{(jj>>1)*TB_BYTES + (jj&1)*1024}"]
    def KE(self, j):
        L = []; jj = self.off(A_KE, j, L)
        return L + [f"ds_read_b64 {vr(KE,2)}, v{A_KE} offset:{(jj>>1)*TB_BYTES}"]
    def V(self, reg, j, m):
        L = []; jj = self.off(A_V, j, L)
        return L + [f"ds_read_b128 {vr(reg,4)}, v{A_V} offset:{(jj>>1)*TB_BYTES + (jj&1)*V_TILE + m*(V_TILE//2)}"]

def sub_step(A, Scur, Snxt, Qn, QEn, e, Oprev, Ocur, first_prev, first_cur, do_qk, wait_pre, loads):
    if wait_pre is not None: A(f"s_waitcnt lgkmcnt({wait_pre})")
    if do_qk: A(M(Snxt, K, Qn, None))
    for x in loads.get(0, []): A(x)
    for r in range(0, 4): A(E(Scur + r))
    A(C(P + 0, Scur + 0)); A(C(P + 1, Scur + 2))
    if not first_prev: A(M(Oprev, V1, P + 4, Oprev))
    for x in loads.get(1, []): A(x)
    for r in range(4, 8): A(E(Scur + r))
    A(C(P + 2, Scur + 4)); A(C(P + 3, Scur + 6))
    if do_qk: A(M8(Snxt, KE, QEn + 2 * e, Snxt))
    for x in loads.get(2, []): A(x)
    for r in range(8, 12): A(E(Scur + r))
    A(M(Ocur, V0, P, None if first_cur else Ocur))
    for x in loads.get(3, []): A(x)
    A(C(P + 4, Scur + 8)); A(C(P + 5, Scur + 10))
    for r in range(12, 16): A(E(Scur + r))
    A(C(P + 6, Scur + 12)); A(C(P + 7, Scur + 14))

def fast_path(A, R, NK=32):
    st = Streams()
    for x in st.K(0) + st.KE(0) + st.V(V0, 0, 0): A(x)
    A("s_waitcnt lgkmcnt(1)")
    A(M(S0, K, QA, None))
    A(M8(S0, KE, QEA, S0))
    A("s_nop 7"); A("s_nop 3")
    for j in range(NK):
        if j == 4: R.bar("B1")
        if j in (4, 11, 18, 25): pstamp(A, {4: 3, 11: 4, 18: 5, 25: 5}[j]) if j != 25 else None
        e = j % 2
        last = j == NK - 1
        ld = {0: [] if last else st.K(j + 1), 1: st.V(V1, j, 1)}
        if e == 1 and not last: ld[2] = st.KE(j + 1)
        sub_step(A, S0, S1, QB, QEB, e, OB, OA, j == 0, j == 0, True, 0 if j else None, ld)
        ld = {3: [] if last else st.V(V0, j + 1, 0)}
        sub_step(A, S1, S0, QA, QEA, (j + 1) % 2, OA, OB, False, j == 0, not last, 0, ld)
    A(M(OB, V1, P + 4, OB))

def fallback_path(A, R):
    R.bar("B1")
    A(f"v_mov_b32 v{KE+1}, 0")
    for (Q, QE, O, tag) in ((QA, QEA, OA, "a"), (QB, QEB, OB, "b")):
        mx = T
        A(f"v_mov_b32 v{mx}, 0xff800000")
        A(f"s_mov_b32 s{S_T}, 0")
        l1 = A.newlabel("fb1" + tag)
        A.label(l1)
        A(f"s_lshr_b32 s{S_T2}, s{S_T}, 1"); A(f"s_mul_i32 s{S_T2}, s{S_T2}, {TB_BYTES}")
        A(f"s_and_b32 s{S_T3}, s{S_T}, 1")
        A(f"v_lshlrev_b32 v{T+1}, 4, v{V_LANE}")
        A(f"v_add_u32 v{T+1}, s{S_T2}, v{T+1}")
        A(f"s_lshl_b32 s80, s{S_T3}, 10")
        A(f"v_add_u32 v{T+1}, s80, v{T+1}")
        A(f"v_lshlrev_b32 v{P}, 3, v{V_I}")
        A(f"s_lshl_b32 s80, s{S_T3}, 2"); A(f"s_add_u32 s80, s80, s{S_T2}"); A(f"s_add_u32 s80, s80, {TB_KEXT}")
        A(f"v_add_u32 v{P}, s80, v{P}")
        A(f"ds_read_b128 {vr(K,4)}, v{T+1}")
        A(f"ds_read_b32 v{KE}, v{P}")
        A("s_waitcnt lgkmcnt(0)")
        A(M(S0, K, Q, None))
        A(M8(S0, KE, QE, S0))
        A("s_nop 7"); A("s_nop 7")
        for r in range(0, 16, 2): A(f"v_max3_f32 v{mx}, v{S0+r}, v{S0+r+1}, v{mx}")
        A(f"s_add_u32 s{S_T}, s{S_T}, 1")
        A(f"s_cmp_lt_u32 s{S_T}, 64")
        A(f"s_cbranch_scc1 {l1}")
        A(f"v_mov_b32 v{T+1}, v{mx}")
        A(f"v_permlane32_swap_b32 v{mx}, v{T+1}")
        A(f"v_max_f32 v{mx}, v{mx}, v{T+1}")
        A(f"v_sub_f32 v{mx}, 0, v{mx}")
        for r in range(16): A(f"v_mov_b32 v{NEGM+r}, v{mx}")
        A(f"s_mov_b32 s{S_T}, 0")
        for r in range(16): A(f"v_mov_b32 v{O+r}, 0")
        l2 = A.newlabel("fb2" + tag)
        A.label(l2)
        A(f"s_lshr_b32 s{S_T2}, s{S_T}, 1"); A(f"s_mul_i32 s{S_T2}, s{S_T2}, {TB_BYTES}")
        A(f"s_and_b32 s{S_T3}, s{S_T}, 1")
        A(f"s_lshl_b32 s80, s{S_T3}, 10"); A(f"s_add_u32 s80, s80, s{S_T2}")
        A(f"v_add_u32 v{S1}, s80, v{A_K}")
        A(f"s_lshl_b32 s80, s{S_T3}, 2"); A(f"s_add_u32 s80, s80, s{S_T2}")
        A(f"v_add_u32 v{S1+1}, s80, v{A_KE}")
        A(f"s_mul_i32 s80, s{S_T3}, {V_TILE}"); A(f"s_add_u32 s80, s80, s{S_T2}")
        A(f"v_add_u32 v{S1+2}, s80, v{A_V}")
        A(f"ds_read_b128 {vr(K,4)}, v{S1}")
        A(f"ds_read_b32 v{KE}, v{S1+1}")
        A(f"ds_read_b128 {vr(V0,4)}, v{S1+2}")
        A(f"ds_read_b128 {vr(V1,4)}, v{S1+2} offset:{V_TILE//2}")
        A("s_waitcnt lgkmcnt(0)")
        A(M(S0, K, Q, NEGM))
        A(M8(S0, KE, QE, S0))
        A("s_nop 7"); A("s_nop 7")
        for r in range(16): A(E(S0 + r))
        A("s_nop 0")
        for r in range(8): A(C(P + r, S0 + 2 * r))
        A("s_nop 1")
        A(M(O, V0, P, O)); A(M(O, V1, P + 4, O))
        A(f"s_add_u32 s{S_T}, s{S_T}, 1")
        A(f"s_cmp_lt_u32 s{S_T}, 32")
        A(f"s_cbranch_scc1 {l2}")
        A("s_nop 7"); A("s_nop 7")

def finish(A, R):
    A("s_nop 7"); A("s_nop 3")
    pstamp(A, 6)
    R.bar("B2")
    lsw = A.newlabel("sw"); ld = A.newlabel("swd")
    A(f"s_lshl_b32 s{S_T}, s{S_WAVE}, 12")
    A(f"v_lshlrev_b32 v{T}, 4, v{V_LANE}")
    A(f"v_add_u32 v{T+1}, s{S_T}, v{T}")
    A(f"s_xor_b32 s{S_T}, s{S_WAVE}, 4")
    A(f"s_lshl_b32 s{S_T}, s{S_T}, 12")
    A(f"v_add_u32 v{T+2}, s{S_T}, v{T}")
    A(f"s_cmp_eq_u32 s{S_FH}, 0"); A(f"s_cbranch_scc0 {lsw}")
    for q in range(3): A(f"ds_write_b128 v{T+1}, {vr(OB+4*q,4)} offset:{1024*q}")
    A(f"s_branch {ld}")
    A.label(lsw)
    for q in range(3): A(f"ds_write_b128 v{T+1}, {vr(OA+4*q,4)} offset:{1024*q}")
    A("s_nop 1")
    for r in range(12): A(f"v_mov_b32 v{OA+r}, v{OB+r}")
    A.label(ld)
    A("s_waitcnt lgkmcnt(0)")
    R.bar("B3")
    for q in range(3): A(f"ds_read_b128 {vr(S0+4*q,4)}, v{T+2} offset:{1024*q}")
    A("s_waitcnt lgkmcnt(0)")
    for r in range(11): A(f"v_add_f32 v{OA+r}, v{OA+r}, v{S0+r}")
    A(f"v_mov_b32 v{T}, v{OA+10}")
    A(f"v_permlane32_swap_b32 v{OA+10}, v{T}")
    A(f"v_rcp_f32 v{T}, v{OA+10}")
    A("s_nop 0")
    for r in range(10): A(f"v_mul_f32 v{OA+r}, v{OA+r}, v{T}")
    for r in range(5): A(C(P + r, OA + 2 * r))
    A(f"s_lshl_b32 s{S_T}, s{S_FH}, 5")
    A(f"v_add_u32 v{T}, s{S_T}, v{V_I}")
    A(f"v_mul_u32_u24 v{T}, 144, v{T}")
    A(f"s_mul_i32 s{S_T}, s{S_TG}, 36"); A(f"s_add_u32 s{S_T}, s{S_T}, {OSTG}")
    A(f"v_add_u32 v{T}, s{S_T}, v{T}")
    A(f"v_lshl_add_u32 v{T+1}, v{V_H}, 4, v{T}")
    A(f"ds_write2_b32 v{T+1}, v{P}, v{P+1} offset0:0 offset1:1")
    A(f"ds_write2_b32 v{T+1}, v{P+2}, v{P+3} offset0:2 offset1:3")
    A(f"v_cmp_eq_u32 vcc, 0, v{V_H}")
    A(f"s_and_saveexec_b64 s[{S_EX}:{S_EX+1}], vcc")
    A(f"ds_write_b32 v{T}, v{P+4} offset:32")
    A(f"s_mov_b64 exec, s[{S_EX}:{S_EX+1}]")
    A("s_waitcnt lgkmcnt(0)")
    R.bar("B4")

def store_rows(A, srd_i, sbase_fn, sc1):
    t = T
    for u8 in (0, 1):
        skip = None
        if u8:
            skip = A.newlabel("st8")
            A(f"s_cmp_lg_u32 s{S_WAVE}, 0"); A(f"s_cbranch_scc1 {skip}")
            A(f"v_add_u32 v{t}, 512, v{V_LANE}")
        else:
            A(f"s_lshl_b32 s{S_T}, s{S_WAVE}, 6")
            A(f"v_add_u32 v{t}, s{S_T}, v{V_LANE}")
        A(f"v_lshlrev_b32 v{t+1}, 4, v{t}")
        A(f"v_add_u32 v{t+1}, {OSTG}, v{t+1}")
        d = S0 + 4 * u8
        A(f"ds_read_b128 {vr(d,4)}, v{t+1}")
        A(f"v_mul_u32_u24 v{t+2}, 7282, v{t}")
        A(f"v_lshrrev_b32 v{t+2}, 16, v{t+2}")
        A(f"v_mul_u32_u24 v{t+3}, 9, v{t+2}")
        A(f"v_sub_u32 v{t+3}, v{t}, v{t+3}")
        A(f"v_mul_u32_u24 v{t+2}, {ROWB}, v{t+2}")
        A(f"v_lshl_add_u32 v{t+2}, v{t+3}, 4, v{t+2}")
        sbase_fn(A)
        A("s_waitcnt lgkmcnt(0)")
        A(f"buffer_store_dwordx4 {vr(d,4)}, v{t+2}, {srd(srd_i)}, s{S_T} offen" + (" sc1" if sc1 else ""))
        if skip: A.label(skip)
```

```python
from fcommon import *

ACC, DACC, AF, BF = 0, 12, 16, 40
AW0, AW1, AX0, AX1, AE0, AE1, AE3 = 48, 49, 50, 51, 52, 53, 54
EL = 56
GT = 72
V_LANE, V_I, V_H = 107, 108, 109
XRES, GATE, V_T, V_G = 128, 134, 135, 136
QSCALE = LOG2E / (DH ** 0.5)

def lane_setup(A):
    A(f"v_and_b32 v{V_T}, 15, v{V_LANE}")
    A(f"v_lshrrev_b32 v{V_G}, 4, v{V_LANE}")
    A(f"v_and_b32 v{V_I}, 31, v{V_LANE}")
    A(f"v_lshrrev_b32 v{V_H}, 5, v{V_LANE}")

def gemm_addresses(A):
    t = GT
    A(f"s_lshl_b32 s{S_T}, s{S_TG}, 4")
    A(f"v_add_u32 v{t}, s{S_T}, v{V_T}")
    A(f"v_lshlrev_b32 v{t}, 7, v{t}")
    A(f"v_lshrrev_b32 v{t+1}, 1, v{V_T}")
    A(f"v_xor_b32 v{t+1}, v{t+1}, v{V_G}")
    A(f"v_lshl_add_u32 v{AX0}, v{t+1}, 4, v{t}")
    A(f"v_xor_b32 v{AX1}, 64, v{AX0}")
    A(f"v_bfe_u32 v{t}, v{V_LANE}, 2, 2")
    A(f"v_lshlrev_b32 v{t}, 1, v{t}")
    A(f"v_lshl_add_u32 v{t}, v{V_G}, 3, v{t}")
    A(f"v_mul_u32_u24 v{t}, 144, v{t}")
    A(f"v_and_b32 v{t+1}, 3, v{V_LANE}")
    A(f"v_lshl_add_u32 v{t}, v{t+1}, 3, v{t}")
    A(f"s_mul_i32 s{S_T}, s{S_FH}, 96")
    A(f"s_add_u32 s{S_T}, s{S_T}, {WB}")
    A(f"v_add_u32 v{AW0}, s{S_T}, v{t}")
    A(f"v_add_u32 v{AW1}, {9*W_STEP}, v{AW0}")

def rd_b(A, s):
    reg = AX0 + (s & 1); cc = s >> 1
    off = cc * 8192 if cc < 8 else 7 * 8192
    if s == 16:
        A(f"v_add_u32 v{AX0}, 8192, v{AX0}"); A(f"v_add_u32 v{AX1}, 8192, v{AX1}")
    A(f"ds_read_b128 {vr(BF+4*(s&1),4)}, v{reg} offset:{off}")

def rd_a(A, s, nt):
    base = AF + 12 * (s & 1)
    reg = AW0 if s < 9 else AW1
    for j in range(nt):
        for q in range(2):
            A(f"ds_read_b64_tr_b16 {vr(base+4*j+2*q,2)}, v{reg} offset:{(s%9)*W_STEP + 144*q + 32*j}")

def gemm_steps(A, steps, nt, first_zero):
    rd_b(A, steps[0]); rd_a(A, steps[0], nt)
    for n, s in enumerate(steps):
        nr = 0
        if n + 1 < len(steps):
            rd_b(A, steps[n + 1]); rd_a(A, steps[n + 1], nt); nr = 1 + 2 * nt
        A(f"s_waitcnt lgkmcnt({nr})")
        for j in range(nt):
            c = "0" if (s == 0 and first_zero) else vr(ACC + 4 * j, 4)
            A(f"v_mfma_f32_16x16x32_bf16 {vr(ACC+4*j,4)}, {vr(AF+12*(s&1)+4*j,4)}, {vr(BF+4*(s&1),4)}, {c}")

def restore_x_addresses(A):
    A(f"v_subrev_u32 v{AX0}, 8192, v{AX0}"); A(f"v_subrev_u32 v{AX1}, 8192, v{AX1}")

def duty_loads(A, duty):
    t = GT
    if duty in ("k", "v"):
        for rd in range(4):
            skip = None
            if rd == 3:
                skip = A.newlabel("elskip")
                A(f"s_cmp_ge_u32 s{S_WAVE}, 3"); A(f"s_cbranch_scc1 {skip}")
            A(f"s_lshl_b32 s{S_T}, s{S_WAVE}, 6")
            A(f"s_add_u32 s{S_T}, s{S_T}, {512*rd}")
            A(f"v_add_u32 v{t}, s{S_T}, v{V_LANE}")
            A(f"v_mul_u32_u24 v{t}, 12, v{t}")
            A(f"buffer_load_dwordx3 {vr(EL+3*rd+ (rd&1),3)}, v{t}, {srd(SRD_E)}, 0 offen" if False else
              f"buffer_load_dwordx3 v[{ELR(rd)}:{ELR(rd)+2}], v{t}, {srd(SRD_E)}, 0 offen")
            if skip: A.label(skip)
    else:
        for rd in range(2):
            skip = None
            if rd == 1:
                skip = A.newlabel("elskip")
                A(f"s_cmp_lg_u32 s{S_WAVE}, 0"); A(f"s_cbranch_scc1 {skip}")
            A(f"s_lshl_b32 s{S_T}, s{S_WAVE}, 6")
            A(f"s_add_u32 s{S_T}, s{S_T}, {512*rd}")
            A(f"v_add_u32 v{t}, s{S_T}, v{V_LANE}")
            A(f"v_lshlrev_b32 v{t}, 1, v{t}")
            A(f"buffer_load_ushort v{ELR(rd)}, v{t}, {srd(SRD_E)}, 0 offen")
            A(f"buffer_load_ushort v{ELR(rd)+1}, v{t}, {srd(SRD_F)}, 0 offen")
            if skip: A.label(skip)

def ELR(rd): return EL + 4 * rd

def duty_writes(A, duty):
    t = GT + 4
    A("s_waitcnt vmcnt(0)")
    if duty in ("k", "v"):
        for rd in range(4):
            skip = None
            if rd == 3:
                skip = A.newlabel("ewskip")
                A(f"s_cmp_ge_u32 s{S_WAVE}, 3"); A(f"s_cbranch_scc1 {skip}")
            A(f"s_lshl_b32 s{S_T}, s{S_WAVE}, 6")
            A(f"s_add_u32 s{S_T}, s{S_T}, {512*rd}")
            A(f"v_add_u32 v{t}, s{S_T}, v{V_LANE}")
            A(f"v_mul_u32_u24 v{t+1}, 21846, v{t}")
            A(f"v_lshrrev_b32 v{t+1}, 16, v{t+1}")
            A(f"v_mul_u32_u24 v{t+2}, 3, v{t+1}")
            A(f"v_sub_u32 v{t+2}, v{t}, v{t+2}")
            A(f"v_lshrrev_b32 v{t+3}, 1, v{t+1}")
            A(f"v_and_b32 v{t+3}, 4, v{t+3}")
            A(f"v_xor_b32 v{t+3}, v{t+1}, v{t+3}")
            A(f"v_lshlrev_b32 v{t+3}, 5, v{t+3}")
            A(f"v_mul_u32_u24 v{t+4}, 12, v{t+2}")
            A(f"v_add3_u32 v{t+3}, v{t+3}, v{t+4}, s{S_T3}") if False else None
            A(f"v_add_u32 v{t+3}, v{t+3}, v{t+4}")
            A(f"v_add_u32 v{t+3}, {E2B}, v{t+3}")
            A(f"v_lshlrev_b32 v{t+4}, 3, v{t+1}")
            A(f"v_add_u32 v{t+4}, {E3B}, v{t+4}")
            A(f"v_add_u32 v{t+5}, 8, v{t+3}")
            A(f"v_cmp_eq_u32 vcc, 2, v{t+2}")
            A(f"v_cndmask_b32 v{t+4}, v{t+5}, v{t+4}, vcc")
            A(f"ds_write2_b32 v{t+3}, v{ELR(rd)}, v{ELR(rd)+1} offset0:0 offset1:1")
            A(f"ds_write_b32 v{t+4}, v{ELR(rd)+2}")
            if skip: A.label(skip)
    else:
        for rd in range(2):
            skip = None
            if rd == 1:
                skip = A.newlabel("ewskip")
                A(f"s_cmp_lg_u32 s{S_WAVE}, 0"); A(f"s_cbranch_scc1 {skip}")
            A(f"s_lshl_b32 s{S_T}, s{S_WAVE}, 6")
            A(f"s_add_u32 s{S_T}, s{S_T}, {512*rd}")
            A(f"v_add_u32 v{t}, s{S_T}, v{V_LANE}")
            A(f"v_lshlrev_b32 v{t}, 3, v{t}")
            A(f"v_add_u32 v{t}, {E3B}, v{t}")
            A(f"v_lshl_or_b32 v{ELR(rd)}, v{ELR(rd)+1}, 16, v{ELR(rd)}")
            A(f"ds_write_b32 v{t}, v{ELR(rd)}")
            if skip: A.label(skip)

def duty_addresses(A):
    t = GT
    A(f"v_bfe_u32 v{t}, v{V_LANE}, 2, 2")
    A(f"v_lshl_add_u32 v{t}, v{V_G}, 3, v{t}")
    A(f"v_and_b32 v{t+1}, 1, v{V_G}")
    A(f"v_lshl_add_u32 v{t+2}, v{t+1}, 2, v{t}")
    A(f"v_xor_b32 v{t+1}, 1, v{t+1}")
    A(f"v_lshl_add_u32 v{t+3}, v{t+1}, 2, v{t}")
    A(f"v_and_b32 v{t+1}, 3, v{V_LANE}")
    A(f"v_lshlrev_b32 v{t+1}, 3, v{t+1}")
    A(f"v_lshl_add_u32 v{AE0}, v{t+2}, 5, v{t+1}")
    A(f"v_lshl_add_u32 v{AE1}, v{t+3}, 5, v{t+1}")
    A(f"v_add_u32 v{AE0}, {E2B}, v{AE0}")
    A(f"v_add_u32 v{AE1}, {E2B}, v{AE1}")
    A(f"v_lshlrev_b32 v{AE3}, 3, v{t}")
    A(f"v_add_u32 v{AE3}, {E3B}, v{AE3}")

def duty_gemm(A, which):
    def rd(s):
        b = AF + 4 * (s & 1)
        rd_b(A, s)
        for q in range(2):
            if which == 2: A(f"ds_read_b64_tr_b16 {vr(b+2*q,2)}, v{AE0+q} offset:{s*1024}")
            else: A(f"ds_read_b64_tr_b16 {vr(b+2*q,2)}, v{AE3} offset:{s*256 + 32*q}")
    rd(0)
    for s in range(18):
        nr = 0
        if s + 1 < 18: rd(s + 1); nr = 3
        A(f"s_waitcnt lgkmcnt({nr})")
        c = "0" if s == 0 else vr(DACC, 4)
        A(f"v_mfma_f32_16x16x32_bf16 {vr(DACC,4)}, {vr(AF+4*(s&1),4)}, {vr(BF+4*(s&1),4)}, {c}")
    restore_x_addresses(A)
    A("s_nop 7")

def k_stage(A):
    t = GT; d = GT + 10
    l1 = A.newlabel("k1"); le = A.newlabel("ke")
    A(f"s_and_b32 s{S_T}, s{S_TG}, 1"); A(f"s_lshl_b32 s{S_T}, s{S_T}, 4")
    A(f"v_add_u32 v{t}, s{S_T}, v{V_T}")
    A(f"s_lshr_b32 s{S_T2}, s{S_TG}, 1")
    A(f"s_cmp_eq_u32 s{S_FH}, 0"); A(f"s_cbranch_scc0 {l1}")
    duty_gemm(A, 2)
    A(f"v_lshrrev_b32 v{t+1}, 1, v{V_G}")
    A(f"v_lshl_add_u32 v{t+1}, v{t+1}, 5, v{t}")
    A(f"v_lshlrev_b32 v{t+1}, 4, v{t+1}")
    A(f"v_and_b32 v{t+2}, 1, v{V_G}")
    A(f"v_lshl_add_u32 v{t+1}, v{t+2}, 3, v{t+1}")
    A(f"s_lshl_b32 s{S_T}, s{S_T2}, 10"); A(f"s_add_u32 s{S_T}, s{S_T}, {STG}")
    A(f"v_add_u32 v{t+1}, s{S_T}, v{t+1}")
    A(f"v_cvt_pk_bf16_f32 v{d}, v{DACC}, v{DACC+1}")
    A(f"v_cvt_pk_bf16_f32 v{d+1}, v{DACC+2}, v{DACC+3}")
    A(f"ds_write_b64 v{t+1}, {vr(d,2)}")
    n = t + 3
    A(f"v_mul_f32 v{n}, v{DACC}, v{DACC}")
    for r in range(1, 4): A(f"v_fma_f32 v{n}, v{DACC+r}, v{DACC+r}, v{n}")
    A(f"ds_swizzle_b32 v{n+1}, v{n} offset:0x401F")
    A("s_waitcnt lgkmcnt(0)")
    A(f"v_add_f32 v{n}, v{n}, v{n+1}")
    A(f"v_mov_b32 v{n+1}, v{n}")
    A(f"v_permlane32_swap_b32 v{n}, v{n+1}")
    A(f"v_add_f32 v{n}, v{n}, v{n+1}")
    A(f"s_lshl_b32 s{S_T}, s{S_TG}, 2"); A(f"s_add_u32 s{S_T}, s{S_T}, {STG_N}")
    A(f"s_branch {le}")
    A.label(l1)
    duty_gemm(A, 3)
    A(f"v_lshlrev_b32 v{t+1}, 3, v{t}")
    A(f"s_lshl_b32 s{S_T}, s{S_T2}, 2"); A(f"s_add_u32 s{S_T}, s{S_T}, {STG+TB_KEXT}")
    A(f"v_add_u32 v{t+1}, s{S_T}, v{t+1}")
    A(f"v_cvt_pk_bf16_f32 v{d}, v{DACC}, v{DACC+1}")
    n = t + 3
    A(f"v_mul_f32 v{n}, v{DACC}, v{DACC}")
    A(f"v_fma_f32 v{n}, v{DACC+1}, v{DACC+1}, v{n}")
    A(f"v_cmp_eq_u32 vcc, 0, v{V_G}")
    A(f"s_and_saveexec_b64 s[{S_EX}:{S_EX+1}], vcc")
    A(f"ds_write_b32 v{t+1}, v{d}")
    A(f"s_mov_b64 exec, s[{S_EX}:{S_EX+1}]")
    A(f"s_lshl_b32 s{S_T}, s{S_TG}, 2"); A(f"s_add_u32 s{S_T}, s{S_T}, {STG_N+16}")
    A.label(le)
    n = t + 3
    for sh in (1, 2, 4, 8):
        A(f"v_max_f32_dpp v{n}, v{n}, v{n} row_ror:{sh} row_mask:0xf bank_mask:0xf")
    A(f"v_mov_b32 v{n+1}, s{S_T}")
    A(f"v_cmp_eq_u32 vcc, 0, v{V_LANE}")
    A(f"s_and_saveexec_b64 s[{S_EX}:{S_EX+1}], vcc")
    A(f"ds_write_b32 v{n+1}, v{n}")
    A(f"s_mov_b64 exec, s[{S_EX}:{S_EX+1}]")

def v_stage(A):
    t = GT; d = GT + 10
    l1 = A.newlabel("v1"); le = A.newlabel("ve")
    A(f"s_lshr_b32 s{S_T}, s{S_TG}, 1"); A(f"s_mul_i32 s{S_T}, s{S_T}, {V_TILE}")
    A(f"s_and_b32 s{S_T2}, s{S_TG}, 1"); A(f"s_mul_i32 s{S_T2}, s{S_T2}, {2*VROWS*16}")
    A(f"s_add_u32 s{S_T}, s{S_T}, s{S_T2}"); A(f"s_add_u32 s{S_T3}, s{S_T}, {STG}")
    A(f"v_bfe_u32 v{t}, v{V_T}, 2, 1")
    A(f"v_mul_u32_u24 v{t}, {VROWS*16}, v{t}")
    A(f"v_lshrrev_b32 v{t+1}, 3, v{V_T}")
    A(f"v_and_b32 v{t+2}, 3, v{V_T}")
    A(f"v_lshl_add_u32 v{t+1}, v{t+1}, 2, v{t+2}")
    A(f"v_lshl_add_u32 v{t}, v{t+1}, 1, v{t}")
    A(f"v_add_u32 v{t}, s{S_T3}, v{t}")
    A(f"s_cmp_eq_u32 s{S_FH}, 0"); A(f"s_cbranch_scc0 {l1}")
    duty_gemm(A, 2)
    A(f"v_and_b32 v{t+1}, 1, v{V_G}")
    A(f"v_lshrrev_b32 v{t+2}, 1, v{V_G}")
    A(f"v_lshl_add_u32 v{t+1}, v{t+1}, 1, v{t+2}")
    A(f"v_lshl_add_u32 v{t+1}, v{t+1}, 6, v{t}")
    A(f"v_cvt_pk_bf16_f32 v{d}, v{DACC}, v{DACC+1}")
    A(f"v_cvt_pk_bf16_f32 v{d+1}, v{DACC+2}, v{DACC+3}")
    A(f"ds_write_b16 v{t+1}, v{d}")
    A(f"ds_write_b16_d16_hi v{t+1}, v{d} offset:16")
    A(f"ds_write_b16 v{t+1}, v{d+1} offset:32")
    A(f"ds_write_b16_d16_hi v{t+1}, v{d+1} offset:48")
    A(f"s_branch {le}")
    A.label(l1)
    duty_gemm(A, 3)
    A(f"v_cvt_pk_bf16_f32 v{d}, v{DACC}, v{DACC+1}")
    A(f"v_mov_b32 v{d+1}, 0x3f80")
    A(f"v_cmp_eq_u32 vcc, 0, v{V_G}")
    A(f"s_and_saveexec_b64 s[{S_EX}:{S_EX+1}], vcc")
    A(f"ds_write_b16 v{t}, v{d} offset:{16*16}")
    A(f"ds_write_b16_d16_hi v{t}, v{d} offset:{17*16}")
    A(f"ds_write_b16 v{t}, v{d+1} offset:{18*16}")
    A(f"s_mov_b64 exec, s[{S_EX}:{S_EX+1}]")
    A.label(le)

def g_stage(A):
    t = GT
    le = A.newlabel("ge")
    A(f"s_cmp_eq_u32 s{S_FH}, 0"); A(f"s_cbranch_scc1 {le}")
    duty_gemm(A, 3)
    A(f"v_cvt_pk_bf16_f32 v{t}, v{DACC}, v{DACC}")
    A(f"v_and_b32 v{t}, 0xffff0000, v{t}")
    A(f"v_mul_f32 v{t}, {f32(-LOG2E)}, v{t}")
    A(f"v_exp_f32 v{t}, v{t}")
    A(f"v_add_f32 v{t}, 1.0, v{t}")
    A(f"v_rcp_f32 v{t}, v{t}")
    A(f"v_cvt_pk_bf16_f32 v{t}, v{t}, v{t}")
    A(f"v_and_b32 v{t}, 0xffff0000, v{t}")
    A(f"s_lshl_b32 s{S_T}, s{S_TG}, 4")
    A(f"v_add_u32 v{t+1}, s{S_T}, v{V_T}")
    A(f"v_lshlrev_b32 v{t+2}, 2, v{t+1}")
    A(f"v_add_u32 v{t+2}, {STG}, v{t+2}")
    k = t + 3; k2 = t + 4; u = t + 5
    A(f"v_cvt_pk_bf16_f32 v{k}, v{DACC+1}, v{DACC+1}")
    A(f"v_and_b32 v{k}, 0xffff, v{k}")
    A(f"v_xor_b32 v{k2}, 0x8000, v{k}")
    A(f"v_xor_b32 v{u}, 0xffff, v{k}")
    A(f"v_cmp_lt_u32 vcc, 0x7fff, v{k}")
    A(f"v_cndmask_b32 v{k}, v{k2}, v{u}, vcc")
    A(f"v_add_u32 v{k2}, s{S_ROW0}, v{t+1}")
    A(f"v_sub_u32 v{k2}, 0xffff, v{k2}")
    A(f"v_lshl_or_b32 v{k}, v{k}, 16, v{k2}")
    A(f"v_mov_b32 v{k2}, v{k}")
    for sh in (1, 2, 4, 8):
        A(f"v_max_u32_dpp v{k2}, v{k2}, v{k2} row_ror:{sh} row_mask:0xf bank_mask:0xf")
    A(f"v_cmp_eq_u32 vcc, v{k}, v{k2}")
    A(f"v_mov_b32 v{u}, 0")
    A(f"v_cndmask_b32 v{k}, v{k}, v{u}, vcc")
    for sh in (1, 2, 4, 8):
        A(f"v_max_u32_dpp v{k}, v{k}, v{k} row_ror:{sh} row_mask:0xf bank_mask:0xf")
    A(f"s_lshl_b32 s{S_T}, s{S_TG}, 3"); A(f"s_add_u32 s{S_T}, s{S_T}, {STG+256}")
    A(f"v_mov_b32 v{u}, s{S_T}")
    A(f"v_cmp_eq_u32 vcc, 0, v{V_G}")
    A(f"s_and_saveexec_b64 s[{S_EX}:{S_EX+1}], vcc")
    A(f"ds_write_b32 v{t+2}, v{t}")
    A(f"v_cmp_eq_u32 vcc, 0, v{V_LANE}")
    A(f"s_and_b64 exec, exec, vcc")
    A(f"ds_write2_b32 v{u}, v{k2}, v{k} offset0:0 offset1:1")
    A(f"s_mov_b64 exec, s[{S_EX}:{S_EX+1}]")
    A.label(le)

def publish(A, duty):
    t = GT; WS = srd(SRD_WS)
    A(f"v_lshlrev_b32 v{t}, 4, v{V_LANE}")
    if duty in ("k", "v"):
        nbytes = TB_V if duty == "k" else TB_BYTES - TB_V
        A(f"s_mul_i32 s{S_T}, s{S_TB}, {TB_BYTES}")
        A(f"s_add_u32 s{S_T}, s{S_T}, {FW_KV + (0 if duty == 'k' else TB_V)}")
        A(f"v_add_u32 v{t+1}, {STG}, v{t}")
        for u in range(3):
            A(f"ds_read_b128 {vr(AF+4*u,4)}, v{t+1} offset:{1024*u}")
        if duty == "k":
            A(f"v_mov_b32 v{t+2}, {STG_N}")
            A(f"ds_read_b128 {vr(AF+12,4)}, v{t+2}")
            A(f"ds_read_b128 {vr(AF+16,4)}, v{t+2} offset:16")
        A("s_waitcnt lgkmcnt(0)")
        A(f"buffer_store_dwordx4 {vr(AF,4)}, v{t}, {WS}, s{S_T} offen sc1")
        A(f"buffer_store_dwordx4 {vr(AF+4,4)}, v{t}, {WS}, s{S_T} offen offset:1024 sc1")
        A(f"v_cmp_gt_u32 vcc, {(nbytes-2048)//16}, v{V_LANE}")
        A(f"s_and_saveexec_b64 s[{S_EX}:{S_EX+1}], vcc")
        A(f"buffer_store_dwordx4 {vr(AF+8,4)}, v{t}, {WS}, s{S_T} offen offset:2048 sc1")
        A(f"s_mov_b64 exec, s[{S_EX}:{S_EX+1}]")
        if duty == "k":
            a_ = AF + 12; b_ = AF + 16
            A(f"v_max3_f32 v{a_}, v{a_}, v{a_+1}, v{a_+2}"); A(f"v_max_f32 v{a_}, v{a_}, v{a_+3}")
            A(f"v_max3_f32 v{b_}, v{b_}, v{b_+1}, v{b_+2}"); A(f"v_max_f32 v{b_}, v{b_}, v{b_+3}")
            A(f"v_add_f32 v{a_}, v{a_}, v{b_}")
            A(f"v_mul_f32 v{a_}, {f32(1.02)}, v{a_}")
            A(f"s_lshl_b32 s{S_T}, s{S_TB}, 2"); A(f"s_add_u32 s{S_T}, s{S_T}, {FW_KN}")
            A(f"v_mov_b32 v{t+2}, 0")
            A(f"v_cmp_eq_u32 vcc, 0, v{V_LANE}")
            A(f"s_and_saveexec_b64 s[{S_EX}:{S_EX+1}], vcc")
            A(f"buffer_store_dword v{a_}, v{t+2}, {WS}, s{S_T} offen sc1")
            A(f"s_mov_b64 exec, s[{S_EX}:{S_EX+1}]")
    else:
        A(f"v_lshlrev_b32 v{t+1}, 2, v{V_LANE}")
        A(f"v_add_u32 v{t+2}, {STG}, v{t+1}")
        A(f"ds_read_b32 v{AF}, v{t+2}")
        A(f"ds_read_b32 v{AF+1}, v{t+2} offset:256")
        for r in range(4): A(f"v_mov_b32 v{AF+4+r}, 0")
        A("s_waitcnt lgkmcnt(0)")
        A(f"s_lshl_b32 s{S_T}, s{S_ROW0}, 2"); A(f"s_add_u32 s{S_T}, s{S_T}, {FW_G}")
        A(f"buffer_store_dword v{AF}, v{t+1}, {WS}, s{S_T} offen sc1")
        A(f"s_mul_i32 s{S_T}, s{S_TB}, 1152"); A(f"s_add_u32 s{S_T}, s{S_T}, {FW_YACC}")
        A(f"buffer_store_dwordx4 {vr(AF+4,4)}, v{t}, {WS}, s{S_T} offen sc1")
        A(f"v_cmp_gt_u32 vcc, 8, v{V_LANE}")
        A(f"s_and_saveexec_b64 s[{S_EX}:{S_EX+1}], vcc")
        A(f"buffer_store_dwordx4 {vr(AF+4,4)}, v{t}, {WS}, s{S_T} offen offset:1024 sc1")
        A(f"s_lshl_b32 s{S_T}, s{S_TB}, 5"); A(f"s_add_u32 s{S_T}, s{S_T}, {FW_KEYS}")
        A(f"buffer_store_dword v{AF+1}, v{t+1}, {WS}, s{S_T} offen sc1")
        A(f"s_mov_b64 exec, s[{S_EX}:{S_EX+1}]")

def raise_flag(A, duty):
    t = GT
    base = {"k": DBG_K, "v": DBG_V, "g": DBG_G}[duty]
    A("s_waitcnt vmcnt(0)")
    A(f"s_add_u32 s{S_T}, s{S_TB}, {base}")
    A(f"v_mov_b32 v{t}, s{S_T}")
    A(f"v_mov_b32 v{t+1}, 1")
    A(f"v_cmp_eq_u32 vcc, 0, v{V_LANE}")
    A(f"s_and_saveexec_b64 s[{S_EX}:{S_EX+1}], vcc")
    A(f"buffer_store_byte v{t+1}, v{t}, {srd(SRD_DBG)}, 0 offen sc1")
    A(f"s_mov_b64 exec, s[{S_EX}:{S_EX+1}]")

def residual_x(A):
    t = GT
    A(f"s_mul_i32 s{S_T}, s{S_HG}, 144")
    A(f"s_mul_i32 s{S_T2}, s{S_FH}, 96")
    A(f"s_add_u32 s{S_T}, s{S_T}, s{S_T2}")
    A(f"s_lshl_b32 s{S_T2}, s{S_TG}, 4")
    A(f"v_add_u32 v{t}, s{S_T2}, v{V_T}")
    A(f"v_lshlrev_b32 v{t}, 7, v{t}")
    A(f"v_lshrrev_b32 v{t+1}, 1, v{V_T}")
    for j in range(3):
        A(f"v_lshlrev_b32 v{t+2}, 3, v{V_G}")
        A(f"v_add_u32 v{t+2}, s{S_T}, v{t+2}")
        if j: A(f"v_add_u32 v{t+2}, {32*j}, v{t+2}")
        A(f"v_lshrrev_b32 v{t+3}, 7, v{t+2}")
        A(f"v_lshl_add_u32 v{t+3}, v{t+3}, 13, v{t}")
        A(f"v_bfe_u32 v{t+4}, v{t+2}, 4, 3")
        A(f"v_xor_b32 v{t+4}, v{t+4}, v{t+1}")
        A(f"v_lshl_add_u32 v{t+3}, v{t+4}, 4, v{t+3}")
        A(f"v_and_b32 v{t+2}, 8, v{t+2}")
        A(f"v_add_u32 v{t+3}, v{t+3}, v{t+2}")
        A(f"ds_read_b64 {vr(XRES+2*j,2)}, v{t+3}")

def stage_rows(A, base, vals):
    t = GT + 8
    A(f"s_lshl_b32 s{S_T}, s{S_TG}, 4")
    A(f"v_add_u32 v{t}, s{S_T}, v{V_T}")
    A(f"v_mul_u32_u24 v{t}, 144, v{t}")
    A(f"v_lshl_add_u32 v{t}, v{V_G}, 3, v{t}")
    A(f"s_mul_i32 s{S_T}, s{S_FH}, 96")
    A(f"s_add_u32 s{S_T}, s{S_T}, {base}")
    A(f"v_add_u32 v{t}, s{S_T}, v{t}")
    return t

def q_epilogue(A, nt):
    ad = stage_rows(A, QS, None)
    A(f"s_mov_b32 s{S_T}, {f32(QSCALE)}")
    t = GT
    for j in range(nt):
        a_ = ACC + 4 * j; d = AF + 2 * j
        for r in range(4): A(f"v_mul_f32 v{t+r}, s{S_T}, v{a_+r}")
        A(f"v_cvt_pk_bf16_f32 v{d}, v{t}, v{t+1}")
        A(f"v_cvt_pk_bf16_f32 v{d+1}, v{t+2}, v{t+3}")
        last = (nt == 2 and j == 1)
        if last:
            A(f"v_cmp_gt_u32 vcc, 2, v{V_G}")
            A(f"s_and_saveexec_b64 s[{S_EX}:{S_EX+1}], vcc")
        A(f"ds_write_b64 v{ad}, {vr(d,2)} offset:{32*j}")
        if last: A(f"s_mov_b64 exec, s[{S_EX}:{S_EX+1}]")
```

```python
from fcommon import *

V_LANE = 0
VX0, VX1, VW, VL16 = 1, 2, 3, 6
HT = 8
S_H = 39

def setup(A):
    t = HT
    A(f"v_lshrrev_b32 v{t}, 3, v{V_LANE}")
    A(f"v_mul_u32_u24 v{t}, {ROWB}, v{t}")
    A(f"v_and_b32 v{t+1}, 7, v{V_LANE}")
    A(f"v_lshrrev_b32 v{t+2}, 4, v{V_LANE}")
    A(f"v_xor_b32 v{t+1}, v{t+1}, v{t+2}")
    A(f"v_lshl_add_u32 v{VX0}, v{t+1}, 4, v{t}")
    A(f"v_xor_b32 v{VX1}, 64, v{VX0}")
    for k in range(3):
        if k < 2:
            A(f"s_lshl_b32 s{S_T}, s{S_H}, 7"); A(f"s_add_u32 s{S_T}, s{S_T}, {64*k}")
            A(f"v_add_u32 v{t}, s{S_T}, v{V_LANE}")
        else:
            A(f"v_add_u32 v{t}, 512, v{V_LANE}")
        A(f"v_mul_u32_u24 v{t+1}, 7282, v{t}")
        A(f"v_lshrrev_b32 v{t+1}, 16, v{t+1}")
        A(f"v_mul_u32_u24 v{t+2}, 9, v{t+1}")
        A(f"v_sub_u32 v{t+2}, v{t}, v{t+2}")
        A(f"v_and_b32 v{t+3}, 0x38, v{t+1}")
        A(f"v_and_b32 v{t+4}, 1, v{t+1}")
        A(f"v_lshl_add_u32 v{t+3}, v{t+4}, 2, v{t+3}")
        A(f"v_bfe_u32 v{t+4}, v{t+1}, 1, 2")
        A(f"v_add_u32 v{t+3}, v{t+3}, v{t+4}")
        A(f"v_mul_u32_u24 v{t+3}, {ROWB}, v{t+3}")
        A(f"v_lshl_add_u32 v{VW+k}, v{t+2}, 4, v{t+3}")
    A(f"v_lshlrev_b32 v{VL16}, 4, v{V_LANE}")

def dma(A, vreg, srd_i, ssoff, m0_expr, sc1=False):
    A(m0_expr)
    A("s_nop 0")
    A(f"buffer_load_dwordx4 v{vreg}, {srd(srd_i)}, s{ssoff} offen{' sc1' if sc1 else ''} lds")

def issue_x(A, vm, chunks, sc1, tagf):
    for cc in chunks:
        for o in range(2):
            A(f"s_mul_i32 s{S_T}, s{S_H}, {16*ROWB}")
            A(f"s_add_u32 s{S_T}, s{S_T}, s{S_T3}")
            A(f"s_add_u32 s{S_T}, s{S_T}, {o*8*ROWB + cc*128}")
            A(f"s_lshl_b32 s{S_T2}, s{S_H}, 11")
            dma(A, VX0 + o, SRD_A, S_T, f"s_add_u32 m0, s{S_T2}, {XB + cc*8192 + o*1024}", sc1)
            vm.issue(tagf(cc))

def issue_w(A, vm, h3, reps, tagf):
    for a_ in reps:
        A(f"s_mul_i32 s{S_T}, s{S_HG}, 144")
        A(f"s_add_u32 s{S_T}, s{S_T}, {a_*64*ROWB}")
        for k in range(3 if h3 else 2):
            if k < 2:
                A(f"s_lshl_b32 s{S_T2}, s{S_H}, 11")
                dma(A, VW + k, SRD_W, S_T, f"s_add_u32 m0, s{S_T2}, {WB + (9*a_ + k)*1024}")
            else:
                dma(A, VW + 2, SRD_W, S_T, f"s_mov_b32 m0, {WB + (9*a_ + 8)*1024}")
            vm.issue(tagf(a_))

def poll(A, voff, nlanes, cmpval, name, ge=False):
    t = HT
    skip = A.newlabel(name + "skip"); lp = A.newlabel(name + "lp"); done = A.newlabel(name + "ok")
    A(f"s_cmp_lg_u32 s{S_H}, 0"); A(f"s_cbranch_scc1 {skip}")
    voff(A, t)
    A(f"s_mov_b32 s80, 0")
    A.label(lp)
    A(f"buffer_load_dword v{t+1}, v{t}, {srd(SRD_DBG)}, 0 offen sc1")
    A("s_waitcnt vmcnt(0)")
    A(f"v_mov_b32 v{t+2}, {cmpval}")
    A(f"v_cmp_{'le' if ge else 'eq'}_u32 vcc, v{t+2}, v{t+1}")
    A("s_nop 1")
    A("s_cmp_eq_u64 vcc, exec") if False else None
    A(f"s_not_b64 s[82:83], vcc")
    A(f"s_cmp_eq_u64 s[82:83], 0")
    A(f"s_cbranch_scc1 {done}")
    A("s_sleep 2")
    A(f"s_add_u32 s80, s80, 1")
    A(f"s_cmp_lt_u32 s80, 0x80000"); A(f"s_cbranch_scc1 {lp}")
    A.label(done)
    A.label(skip)

def kv_pieces():
    st0 = list(range(0, 14)) + list(range(74, 88))
    order0 = [x for pair in zip(range(0, 14), range(74, 88)) for x in pair]
    rest_a = list(range(14, 74)); rest_b = list(range(88, 148))
    order1 = [x for pair in zip(rest_a, rest_b) for x in pair]
    return order0, order1

def issue_kv(A, vm, pieces, tag):
    for u in range(0, len(pieces), 4):
        grp = pieces[u:u + 4]
        a_, b_ = grp[0], grp[1]
        assert grp == [a_, b_, a_ + 1, b_ + 1], grp
        A(f"s_mov_b32 s{S_T}, {a_*1024}")
        A(f"s_mov_b32 s{S_T2}, {b_*1024}")
        A(f"s_bitcmp1_b32 s{S_H}, 0")
        A(f"s_cselect_b32 s{S_T}, s{S_T2}, s{S_T}")
        A(f"s_lshr_b32 s{S_T2}, s{S_H}, 1"); A(f"s_lshl_b32 s{S_T2}, s{S_T2}, 10")
        A(f"s_add_u32 s{S_T}, s{S_T}, s{S_T2}")
        dma(A, VL16, SRD_KV, S_T, f"s_mov_b32 m0, s{S_T}", sc1=True)
        vm.issue(tag)

F_W = 24
F_X = 96
F_KEY = 148
F_A = 152
F_ACC = 160
S_M, S_KH, S_SL = 84, 85, 86

def lds_sync(A, idx, name):
    t = HT + 12
    A("s_waitcnt lgkmcnt(0)")
    A(f"v_mov_b32 v{t}, {L_CNT + 4*idx}")
    A(f"v_mov_b32 v{t+1}, 1")
    A(f"s_mov_b64 s[{S_EX}:{S_EX+1}], exec")
    A("s_mov_b64 exec, 1")
    A(f"ds_add_u32 v{t}, v{t+1}")
    A(f"s_mov_b64 exec, s[{S_EX}:{S_EX+1}]")
    lp = A.newlabel(name); done = A.newlabel(name + "d")
    A(f"s_mov_b32 s80, 0")
    A.label(lp)
    A(f"ds_read_b32 v{t+1}, v{t}")
    A("s_waitcnt lgkmcnt(0)")
    A(f"v_readfirstlane_b32 s81, v{t+1}")
    A(f"s_cmp_ge_u32 s81, 4"); A(f"s_cbranch_scc1 {done}")
    A("s_sleep 1")
    A(f"s_add_u32 s80, s80, 1")
    A(f"s_cmp_lt_u32 s80, 0x100000"); A(f"s_cbranch_scc1 {lp}")
    A.label(done)

def select_top2(A):
    t = HT
    m1, m2 = t, t + 1
    A(f"v_max_u32 v{m1}, v{F_KEY}, v{F_KEY+1}")
    A(f"v_min_u32 v{m2}, v{F_KEY}, v{F_KEY+1}")
    for i in range(2, 4):
        A(f"v_med3_u32 v{m2}, v{m1}, v{m2}, v{F_KEY+i}")
        A(f"v_max_u32 v{m1}, v{m1}, v{F_KEY+i}")
    def wave_max(reg, sdst):
        A(f"v_mov_b32 v{t+2}, v{reg}")
        for sh in (1, 2, 4, 8):
            A(f"v_max_u32_dpp v{t+2}, v{t+2}, v{t+2} row_ror:{sh} row_mask:0xf bank_mask:0xf")
        A(f"v_readlane_b32 s{sdst}, v{t+2}, 0")
        for ln in (16, 32, 48):
            A(f"v_readlane_b32 s{S_T}, v{t+2}, {ln}")
            A(f"s_max_u32 s{sdst}, s{sdst}, s{S_T}")
    wave_max(m1, 80)
    A(f"v_cmp_eq_u32 vcc, s80, v{m1}")
    A(f"v_cndmask_b32 v{m1}, v{m1}, v{m2}, vcc")
    wave_max(m1, 81)
    for j in range(2):
        A(f"s_and_b32 s{S_T}, s{80+j}, 0xffff")
        A(f"s_sub_u32 s{S_IDX0+j}, 0xffff, s{S_T}")
        A(f"s_min_u32 s{S_IDX0+j}, s{S_IDX0+j}, {S_TOK-1}")
    nosel = A.newlabel("nosel")
    A(f"s_cmp_lg_u32 s{S_H}, 0"); A(f"s_cbranch_scc1 {nosel}")
    A(f"v_mov_b32 v{t}, s80"); A(f"v_mov_b32 v{t+1}, s81")
    A(f"v_cmp_eq_u32 vcc, 1, v{V_LANE}")
    A(f"v_cndmask_b32 v{t}, v{t}, v{t+1}, vcc")
    A(f"v_lshrrev_b32 v{t+1}, 16, v{t}")
    A(f"v_xor_b32 v{t+2}, 0x8000, v{t+1}")
    A(f"v_xor_b32 v{t+3}, 0xffff, v{t+1}")
    A(f"v_cmp_lt_u32 vcc, 0x7fff, v{t+1}")
    A(f"v_cndmask_b32 v{t+1}, v{t+3}, v{t+2}, vcc")
    A(f"v_lshlrev_b32 v{t+1}, 16, v{t+1}")
    A(f"v_mul_f32 v{t+1}, {f32(-LOG2E)}, v{t+1}")
    A(f"v_exp_f32 v{t+1}, v{t+1}")
    A(f"v_add_f32 v{t+1}, 1.0, v{t+1}")
    A(f"v_rcp_f32 v{t+1}, v{t+1}")
    A(f"v_cvt_pk_bf16_f32 v{t+1}, v{t+1}, v{t+1}")
    A(f"v_and_b32 v{t+1}, 0xffff0000, v{t+1}")
    A(f"v_and_b32 v{t}, 0xffff, v{t}")
    A(f"v_sub_u32 v{t}, 0xffff, v{t}")
    A(f"v_min_u32 v{t}, {S_TOK-1}, v{t}")
    A(f"v_lshlrev_b32 v{t+2}, 2, v{V_LANE}")
    A(f"v_add_u32 v{t+2}, {L_SEL}, v{t+2}")
    A(f"v_cmp_gt_u32 vcc, 2, v{V_LANE}")
    A(f"s_and_saveexec_b64 s[{S_EX}:{S_EX+1}], vcc")
    A(f"ds_write_b32 v{t+2}, v{t}")
    A(f"ds_write_b32 v{t+2}, v{t+1} offset:8")
    A(f"s_mov_b64 exec, s[{S_EX}:{S_EX+1}]")
    A.label(nosel)

def ffn(A):
    t = HT; WS = srd(SRD_WS)
    FT, FG = t + 14, t + 15
    A(f"v_and_b32 v{FT}, 15, v{V_LANE}"); A(f"v_lshrrev_b32 v{FG}, 4, v{V_LANE}")
    A(f"s_and_b32 s{S_M}, s{S_H}, 1"); A(f"s_lshr_b32 s{S_KH}, s{S_H}, 1")
    A(f"s_cmp_eq_u32 s{S_M}, 0")
    A(f"s_cselect_b32 s{SRD_E}, s{S_WG}, s{S_WU}")
    A(f"s_cselect_b32 s{SRD_E+1}, s{S_WG+1}, s{S_WU+1}")
    A(f"s_and_b32 s{SRD_E+1}, s{SRD_E+1}, 0xffff")
    A(f"s_mov_b32 s{SRD_E+2}, {D*F*2}"); A(f"s_mov_b32 s{SRD_E+3}, 0x20000")
    mk_srd(A, SRD_F, S_WD, F * ROWB)
    A(f"v_lshrrev_b32 v{t}, 2, v{V_LANE}")
    A(f"v_and_b32 v{t+1}, 3, v{V_LANE}")
    A(f"v_lshlrev_b32 v{t+1}, 4, v{t+1}")
    A(f"v_mul_u32_u24 v{t+2}, {ROWB}, v{t}")
    A(f"v_add_u32 v{t+2}, v{t+2}, v{t+1}")
    A(f"v_mul_u32_u24 v{t}, {F*2}, v{t}")
    A(f"v_add_u32 v{t}, v{t}, v{t+1}")
    A(f"s_mul_i32 s{S_T}, s{S_KH}, {9*32*F*2}")
    A(f"s_lshl_b32 s{S_T2}, s{S_SL}, 6")
    A(f"s_add_u32 s{S_T}, s{S_T}, s{S_T2}")
    for s_ in range(9):
        for hf in range(2):
            A(f"buffer_load_dwordx4 {vr(F_W+8*s_+4*hf,4)}, v{t}, {srd(SRD_E)}, s{S_T} offen")
            A(f"s_add_u32 s{S_T}, s{S_T}, {16*F*2}")
    A(f"v_mov_b32 v{t}, s{S_IDX0}"); A(f"v_mov_b32 v{t+1}, s{S_IDX1}")
    A(f"v_cmp_eq_u32 vcc, 1, v{FT}")
    A(f"v_cndmask_b32 v{t}, v{t}, v{t+1}, vcc")
    A(f"v_mul_u32_u24 v{t}, {ROWB}, v{t}")
    A(f"v_lshl_add_u32 v{t}, v{FG}, 4, v{t}")
    A(f"s_mul_i32 s{S_T}, s{S_KH}, {9*64}")
    for s_ in range(9):
        A(f"buffer_load_dwordx4 {vr(F_X+4*s_,4)}, v{t}, {srd(SRD_A)}, s{S_T} offen offset:{64*s_}")
    wr, r1 = t + 3, t + 4
    A(f"s_lshl_b32 s{S_T}, s{S_H}, 11"); A(f"s_add_u32 s{S_T}, s{S_T}, {H_STG}")
    A(f"v_add_u32 v{wr}, s{S_T}, v{VL16}")
    A(f"v_bfe_u32 v{t+5}, v{V_LANE}, 2, 2")
    A(f"v_lshl_add_u32 v{t+5}, v{FG}, 3, v{t+5}")
    A(f"v_and_b32 v{t+6}, 3, v{V_LANE}")
    A(f"v_lshlrev_b32 v{t+6}, 3, v{t+6}")
    A(f"v_lshl_add_u32 v{r1}, v{t+5}, 6, v{t+6}")
    A(f"v_add_u32 v{r1}, s{S_T}, v{r1}")
    def through_lds(src, ntile):
        A(f"ds_write_b128 v{wr}, {vr(src,4)}")
        A(f"ds_write_b128 v{wr}, {vr(src+4,4)} offset:1024")
        A("s_waitcnt lgkmcnt(0)")
        for tile in range(ntile):
            for q in range(2):
                A(f"ds_read_b64_tr_b16 {vr(F_A+4*tile+2*q,2)}, v{r1} offset:{32*tile + 256*q}")
        A("s_waitcnt lgkmcnt(0)")
    A("s_waitcnt vmcnt(0)")
    for s_ in range(9):
        through_lds(F_W + 8 * s_, 2)
        for tile in range(2):
            c = "0" if s_ == 0 else vr(F_ACC + 4 * tile, 4)
            A(f"v_mfma_f32_16x16x32_bf16 {vr(F_ACC+4*tile,4)}, {vr(F_A+4*tile,4)}, {vr(F_X+4*s_,4)}, {c}")
        if s_ == 4:
            A(f"s_mul_i32 s{S_T}, s{S_SL}, {32*ROWB}")
            A(f"s_mul_i32 s{S_T2}, s{S_H}, 288")
            A(f"s_add_u32 s{S_T}, s{S_T}, s{S_T2}")
            A(f"s_add_u32 s{S_T2}, s{S_T}, {16*ROWB}")
            for rd in range(5):
                A(f"buffer_load_dwordx4 {vr(F_W+8*rd,4)}, v{t+2}, {srd(SRD_F)}, s{S_T} offen offset:{64*rd}")
                A(f"buffer_load_dwordx4 {vr(F_W+8*rd+4,4)}, v{t+2}, {srd(SRD_F)}, s{S_T2} offen offset:{64*rd}")
    A("s_nop 7")
    A(f"v_lshlrev_b32 v{t+5}, 1, v{FG}")
    A(f"v_add_u32 v{t+5}, v{t+5}, v{FT}")
    A(f"v_lshlrev_b32 v{t+5}, 4, v{t+5}")
    A(f"v_add_u32 v{t+7}, {H_RED}, v{t+5}")
    A(f"s_lshl_b32 s{S_T}, s{S_H}, 8")
    A(f"v_add_u32 v{t+6}, s{S_T}, v{t+7}")
    A(f"v_cmp_gt_u32 vcc, 2, v{FT}")
    A(f"s_and_saveexec_b64 s[{S_EX}:{S_EX+1}], vcc")
    A(f"ds_write_b128 v{t+6}, {vr(F_ACC,4)}")
    A(f"ds_write_b128 v{t+6}, {vr(F_ACC+4,4)} offset:128")
    A(f"s_mov_b64 exec, s[{S_EX}:{S_EX+1}]")
    lds_sync(A, 0, "hs0")
    noh = A.newlabel("noh")
    A(f"s_cmp_lg_u32 s{S_H}, 0"); A(f"s_cbranch_scc1 {noh}")
    B0 = F_X
    A(f"v_cmp_gt_u32 vcc, 2, v{FT}")
    A(f"s_and_saveexec_b64 s[{S_EX}:{S_EX+1}], vcc")
    for tile in range(2):
        for w in range(4):
            A(f"ds_read_b128 {vr(B0+16*tile+4*w,4)}, v{t+7} offset:{256*w + 128*tile}")
    A("s_waitcnt lgkmcnt(0)")
    for tile in range(2):
        b = B0 + 16 * tile
        for r in range(4):
            gq = b + r; uq = b + 4 + r
            A(f"v_add_f32 v{gq}, v{gq}, v{b+8+r}")
            A(f"v_add_f32 v{uq}, v{uq}, v{b+12+r}")
            A(f"v_cvt_pk_bf16_f32 v{gq}, v{gq}, v{uq}")
            A(f"v_and_b32 v{uq}, 0xffff0000, v{gq}")
            A(f"v_lshlrev_b32 v{gq}, 16, v{gq}")
            A(f"v_mul_f32 v{b+8+r}, {f32(-LOG2E)}, v{gq}")
            A(f"v_exp_f32 v{b+8+r}, v{b+8+r}")
            A(f"v_add_f32 v{b+8+r}, 1.0, v{b+8+r}")
            A(f"v_rcp_f32 v{b+8+r}, v{b+8+r}")
            A(f"v_mul_f32 v{gq}, v{gq}, v{b+8+r}")
            A(f"v_cvt_pk_bf16_f32 v{gq}, v{gq}, v{gq}")
            A(f"v_and_b32 v{gq}, 0xffff0000, v{gq}")
            A(f"v_mul_f32 v{gq}, v{gq}, v{uq}")
        A(f"v_cvt_pk_bf16_f32 v{b}, v{b}, v{b+1}")
        A(f"v_cvt_pk_bf16_f32 v{b+1}, v{b+2}, v{b+3}")
    A(f"v_lshlrev_b32 v{t+5}, 6, v{FT}")
    A(f"v_lshl_add_u32 v{t+5}, v{FG}, 3, v{t+5}")
    A(f"v_add_u32 v{t+5}, {H_H}, v{t+5}")
    A(f"ds_write_b64 v{t+5}, {vr(B0,2)}")
    A(f"ds_write_b64 v{t+5}, {vr(B0+16,2)} offset:32")
    A(f"s_mov_b64 exec, s[{S_EX}:{S_EX+1}]")
    A.label(noh)
    lds_sync(A, 1, "hs1")
    A(f"v_and_b32 v{t+5}, 1, v{FT}")
    A(f"v_lshlrev_b32 v{t+5}, 6, v{t+5}")
    A(f"v_lshl_add_u32 v{t+5}, v{FG}, 4, v{t+5}")
    A(f"v_add_u32 v{t+5}, {H_H}, v{t+5}")
    A(f"ds_read_b128 {vr(F_KEY,4)}, v{t+5}")
    A("s_waitcnt vmcnt(0)")
    for rd in range(5):
        nt = 2 if rd < 4 else 1
        through_lds(F_W + 8 * rd, nt)
        for tile in range(nt):
            A(f"v_mfma_f32_16x16x32_bf16 {vr(F_X+4*(2*rd+tile),4)}, {vr(F_A+4*tile,4)}, {vr(F_KEY,4)}, 0")
    A("s_nop 7")
    A(f"s_and_b32 s{S_T}, s2, {Y_REP-1}")
    A(f"s_mul_i32 s{S_T}, s{S_T}, {2*D*4}")
    A(f"s_mul_i32 s{S_T2}, s{S_H}, {144*4}")
    A(f"s_add_u32 s{S_T}, s{S_T}, s{S_T2}")
    A(f"s_add_u32 s{S_T}, s{S_T}, {FW_YACC}")
    A(f"v_mul_u32_u24 v{t+5}, {D*4}, v{FT}")
    A(f"v_lshl_add_u32 v{t+5}, v{FG}, 4, v{t+5}")
    A(f"v_cmp_gt_u32 vcc, 2, v{FT}")
    A(f"s_and_saveexec_b64 s[{S_EX}:{S_EX+1}], vcc")
    for tile in range(9):
        for r in range(4):
            A(f"buffer_atomic_add_f32 v{F_X+4*tile+r}, v{t+5}, {WS}, s{S_T} offen offset:{64*tile+4*r}")
    A(f"s_mov_b64 exec, s[{S_EX}:{S_EX+1}]")
    A("s_waitcnt vmcnt(0)")
    lds_sync(A, 2, "hs2")
    nof = A.newlabel("nof")
    A(f"s_cmp_lg_u32 s{S_H}, 0"); A(f"s_cbranch_scc1 {nof}")
    A(f"v_mov_b32 v{t}, {DBG_FFN}"); A(f"v_mov_b32 v{t+1}, 1")
    A("s_mov_b64 exec, 1")
    A(f"buffer_atomic_add v{t+1}, v{t}, {srd(SRD_DBG)}, 0 offen sc1")
    A("s_mov_b64 exec, -1")
    A.label(nof)
```

```python
from fcommon import *
from f_gemm import *
import f_attn

def out_epilogue(A, R, nt):
    t = GT; WS = srd(SRD_WS)
    g = GATE; og = GT + 16
    X = AF
    A(f"v_sub_f32 v{og}, 1.0, v{g}")
    A(f"v_cvt_pk_bf16_f32 v{og}, v{og}, v{og}")
    A(f"v_and_b32 v{og}, 0xffff0000, v{og}")
    for j in range(nt):
        for q in range(2):
            src = XRES + 2 * j + q; d = X + 4 * j + 2 * q
            A(f"v_lshlrev_b32 v{d}, 16, v{src}")
            A(f"v_and_b32 v{d+1}, 0xffff0000, v{src}")
    A(f"v_mov_b32 v{t}, {L_SEL}")
    A(f"ds_read_b128 {vr(t+4,4)}, v{t}")
    A("s_waitcnt lgkmcnt(0)")
    for e in range(4): A(f"v_readfirstlane_b32 s{80+e}, v{t+4+e}")
    for jr in range(2):
        skip = A.newlabel("nort")
        A(f"s_lshl_b32 s{S_T}, s{S_TG}, 4")
        A(f"s_add_u32 s{S_T}, s{S_T}, s{S_ROW0}")
        A(f"s_sub_u32 s84, s{80+jr}, s{S_T}")
        A(f"s_cmp_lt_u32 s84, 16")
        A(f"s_cbranch_scc0 {skip}")
        lp = A.newlabel("ypoll"); ldone = A.newlabel("ydone")
        A(f"s_mov_b32 s85, 0")
        A(f"v_mov_b32 v{t}, {DBG_FFN}")
        A.label(lp)
        A(f"buffer_load_dword v{t+1}, v{t}, {srd(SRD_DBG)}, 0 offen sc1")
        A("s_waitcnt vmcnt(0)")
        A(f"v_readfirstlane_b32 s86, v{t+1}")
        A(f"s_cmp_ge_u32 s86, 144"); A(f"s_cbranch_scc1 {ldone}")
        A("s_sleep 8")
        A(f"s_add_u32 s85, s85, 1")
        A(f"s_cmp_lt_u32 s85, 0x40000"); A(f"s_cbranch_scc1 {lp}")
        A.label(ldone)
        A(f"s_mul_i32 s{S_T2}, s{S_HG}, 288")
        A(f"s_mul_i32 s{S_T3}, s{S_FH}, 192")
        A(f"s_add_u32 s{S_T2}, s{S_T2}, s{S_T3}")
        A(f"s_add_u32 s{S_T2}, s{S_T2}, {FW_YACC + jr*D*4}")
        A(f"v_lshlrev_b32 v{t}, 4, v{V_G}")
        A(f"v_add_u32 v{t}, s{S_T2}, v{t}")
        Y = 16 + 24
        for j in range(nt):
            for rp in range(Y_REP):
                A(f"s_mov_b32 s{S_T2}, {rp*2*D*4}")
                A(f"buffer_load_dwordx4 {vr(Y+4*rp,4)}, v{t}, {WS}, s{S_T2} offen offset:{64*j} sc1")
            A("s_waitcnt vmcnt(0)")
            for rp in range(1, Y_REP):
                for r in range(4): A(f"v_add_f32 v{Y+r}, v{Y+r}, v{Y+4*rp+r}")
            A(f"v_cmp_eq_u32 vcc, s84, v{V_T}")
            for r in range(4):
                y = Y + r; x = X + 4 * j + r
                A(f"v_cvt_pk_bf16_f32 v{y}, v{y}, v{y}")
                A(f"v_and_b32 v{y}, 0xffff0000, v{y}")
                A(f"v_mul_f32 v{y}, s{82+jr}, v{y}")
                A(f"v_cvt_pk_bf16_f32 v{y}, v{y}, v{y}")
                A(f"v_and_b32 v{y}, 0xffff0000, v{y}")
                A(f"v_add_f32 v{y}, v{x}, v{y}")
                A(f"v_cvt_pk_bf16_f32 v{y}, v{y}, v{y}")
                A(f"v_and_b32 v{y}, 0xffff0000, v{y}")
                A(f"v_cndmask_b32 v{x}, v{x}, v{y}, vcc")
        A.label(skip)
    ad = stage_rows(A, OSTG, None)
    for j in range(nt):
        a_ = ACC + 4 * j; x = X + 4 * j; d = GT + 2 * j
        for r in range(4):
            A(f"v_mul_f32 v{x+r}, v{og}, v{x+r}")
            A(f"v_fma_f32 v{x+r}, v{g}, v{a_+r}, v{x+r}")
        A(f"v_cvt_pk_bf16_f32 v{d}, v{x}, v{x+1}")
        A(f"v_cvt_pk_bf16_f32 v{d+1}, v{x+2}, v{x+3}")
        last = (nt == 2 and j == 1)
        if last:
            A(f"v_cmp_gt_u32 vcc, 2, v{V_G}")
            A(f"s_and_saveexec_b64 s[{S_EX}:{S_EX+1}], vcc")
        A(f"ds_write_b64 v{ad}, {vr(d,2)} offset:{32*j}")
        if last: A(f"s_mov_b64 exec, s[{S_EX}:{S_EX+1}]")
    A("s_waitcnt lgkmcnt(0)")

def out_phase(A, R):
    gemm_addresses(A)
    lf = A.newlabel("p3f1"); le = A.newlabel("p3e")
    bars0 = list(R.bars)
    A(f"s_cmp_eq_u32 s{S_FH}, 0"); A(f"s_cbranch_scc0 {lf}")
    for nt in (3, 2):
        if nt == 2:
            A.label(lf); R.bars = list(bars0)
        for q in range(3):
            R.bar(f"bX{q}")
            gemm_steps(A, list(range(6 * q, 6 * q + 6)), nt, True)
        A("s_nop 7")
        out_epilogue(A, R, nt)
        if nt == 3: A(f"s_branch {le}")
    A.label(le)
    R.bar("B7")
    def sbase(A):
        A(f"s_mul_i32 s{S_T}, s{S_ROW0}, {ROWB}")
        A(f"s_mul_i32 s{S_T2}, s{S_HG}, 144")
        A(f"s_add_u32 s{S_T}, s{S_T}, s{S_T2}")
    f_attn.store_rows(A, SRD_OUT, sbase, False)
```

```python
from common import *
import os

FW_KV   = 0
TB_BYTES = 4736
TB_KEXT = 2048
TB_V    = 2304
KV_IMG  = 32 * TB_BYTES
FW_KN   = KV_IMG
FW_G    = FW_KN + 256
FW_KEYS = FW_G + 8192
FW_YACC = FW_KEYS + 1024
FW_O    = (FW_YACC + Y_REP * 2 * D * 4 + 4095) // 4096 * 4096
FW_SIZE = FW_O + S_TOK * ROWB
DBG_K, DBG_V, DBG_G = 0, 32, 64
DBG_FFN = 96
DBG_GRP = 128
XB = 0
WB = 73728
W_STEP = 32 * 144
E2B = WB + 12 * W_STEP
E3B = E2B + 576 * 32
STG = WB + 18 * W_STEP
STG_N = STG + 2560
QS = WB
OSTG = 32768
H_STG = KV_IMG
H_RED = H_STG + 8192
H_H = H_RED + 1024
L_CNT = 163584
L_SEL = 163600
LDS_BYTES = 163840
OOR = 0x30000

S_WAVE, S_TB, S_HG = 33, 34, 35
S_T, S_T2, S_T3 = 36, 37, 38
S_TG, S_FH, S_ROW0 = 39, 40, 41
S_IDX0, S_IDX1 = 42, 43
SRD_A, SRD_W, SRD_WS, SRD_E, SRD_KV, SRD_OUT, SRD_DBG, SRD_F = 44, 48, 52, 56, 60, 64, 68, 72
S_EX = 76

def srd(i): return f"s[{i}:{i+3}]"

class Role:
    def __init__(self, A): self.A = A; self.bars = []
    def bar(self, name):
        self.bars.append(name)
        self.A(f"s_barrier ; {name}")

STOP = os.environ.get("STOP", "")
```

```python
from fcommon import *
import sys
import f_gemm as G, f_attn as AT, f_out as FO, f_help as HP

NWAVES = 12

def stop_here(A, name):
    if STOP == name:
        A("s_waitcnt vmcnt(0) lgkmcnt(0)")
        A("s_endpgm")
        return True
    return False

def compute_p1(A, R, duty):
    if duty:
        if duty in ("k", "v"):
            mk_srd(A, SRD_E, S_WK if duty == "k" else S_WV, 576 * 36)
        else:
            mk_srd(A, SRD_E, S_GW, ROWB); mk_srd(A, SRD_F, S_WR, ROWB)
        G.duty_loads(A, duty)
    G.gemm_addresses(A)
    if duty:
        G.duty_addresses(A)
        G.duty_writes(A, duty)
    A("s_waitcnt lgkmcnt(0)")
    R.bar("b1")
    pstamp(A, 1, "p1")
    G.residual_x(A)
    if duty:
        {"k": G.k_stage, "v": G.v_stage, "g": G.g_stage}[duty](A)
        A("s_waitcnt lgkmcnt(0)")
        R.bar("b2")
        pstamp(A, 2, "p1")
        np_ = A.newlabel("nopub")
        A(f"s_cmp_lg_u32 s{S_WAVE}, 0"); A(f"s_cbranch_scc1 {np_}")
        G.publish(A, duty)
        A.label(np_)
    lf = A.newlabel("p1f1"); le = A.newlabel("p1e")
    bars0 = list(R.bars)
    A(f"s_cmp_eq_u32 s{S_FH}, 0"); A(f"s_cbranch_scc0 {lf}")
    stages = [list(range(0, 4)), list(range(4, 8)), list(range(8, 12)), list(range(12, 18))]
    for nt in (3, 2):
        if nt == 2:
            A.label(lf); R.bars = list(bars0)
        for q, steps in enumerate(stages):
            if q == 3 and duty and nt == 3:
                nf = A.newlabel("noflag")
                A(f"s_cmp_lg_u32 s{S_WAVE}, 0"); A(f"s_cbranch_scc1 {nf}")
                pstamp(A, 3, "p1")
                G.raise_flag(A, duty)
                pstamp(A, 4, "p1")
                A.label(nf)
            R.bar(f"bW{q}")
            if q == 3: pstamp(A, 5, "p1")
            G.gemm_steps(A, steps, nt, True)
        A("s_nop 7")
        G.q_epilogue(A, nt)
        if nt == 3: A(f"s_branch {le}")
    A.label(le)
    A("s_waitcnt lgkmcnt(0)")
    R.bar("bQ")

def compute_role(A):
    R = Role(A)
    A(f"s_and_b32 s{S_TG}, s{S_WAVE}, 3"); A(f"s_lshr_b32 s{S_FH}, s{S_WAVE}, 2")
    G.lane_setup(A)
    A(f"v_mov_b32 v{G.GT}, {L_CNT}"); A(f"v_mov_b32 v{G.GT+2}, 0"); A(f"v_mov_b32 v{G.GT+3}, 0")
    A(f"v_mov_b32 v{G.GT+4}, 0"); A(f"v_mov_b32 v{G.GT+5}, 0")
    A(f"ds_write_b128 v{G.GT}, {vr(G.GT+2,4)}")
    lk = A.newlabel("dk"); lv = A.newlabel("dv"); lg = A.newlabel("dg"); lj = A.newlabel("dj")
    A(f"s_cmp_eq_u32 s{S_HG}, 0"); A(f"s_cbranch_scc1 {lk}")
    A(f"s_cmp_eq_u32 s{S_HG}, 1"); A(f"s_cbranch_scc1 {lv}")
    A(f"s_cmp_eq_u32 s{S_HG}, 2"); A(f"s_cbranch_scc1 {lg}")
    seqs = {}
    for duty, lab in ((None, None), ("k", lk), ("v", lv), ("g", lg)):
        if lab: A.label(lab)
        R.bars = []
        compute_p1(A, R, duty)
        seqs[duty] = list(R.bars)
        if duty != "g": A(f"s_branch {lj}")
    A.label(lj)
    R.bars = []
    pstamp(A, 1)
    AT.q_fragments(A)
    AT.lds_addresses(A)
    pstamp(A, 6, "p1")
    R.bar("bKV")
    pstamp(A, 7, "p1")
    if stop_here(A, "p1"): return seqs, R.bars
    t = AT.T
    A(f"v_lshlrev_b32 v{t}, 2, v{G.V_I}")
    A(f"v_add_u32 v{t}, {FW_KN}, v{t}")
    A(f"buffer_load_dword v{t+6}, v{t}, {srd(SRD_WS)}, 0 offen sc1")
    A(f"s_lshl_b32 s{S_T}, s{S_TG}, 4"); A(f"s_add_u32 s{S_T}, s{S_T}, s{S_ROW0}")
    A(f"v_add_u32 v{t+1}, s{S_T}, v{G.V_T}")
    A(f"v_lshlrev_b32 v{t+1}, 2, v{t+1}")
    A(f"v_add_u32 v{t+1}, {FW_G}, v{t+1}")
    A(f"buffer_load_dword v{G.GATE}, v{t+1}, {srd(SRD_WS)}, 0 offen sc1")
    A("s_waitcnt vmcnt(0)")
    AT.range_check(A)
    R.bar("B0")
    pstamp(A, 2)
    lf = A.newlabel("fallback"); le = A.newlabel("attdone")
    A(f"s_cbranch_vccz {lf}")
    b0 = list(R.bars)
    AT.fast_path(A, R)
    A(f"s_branch {le}")
    A.label(lf)
    b1 = list(R.bars); R.bars = list(b0)
    AT.fallback_path(A, R)
    assert R.bars == b1
    A.label(le)
    AT.finish(A, R)
    def sbase(A):
        A(f"s_mul_i32 s{S_T}, s{S_ROW0}, {ROWB}")
        A(f"s_mul_i32 s{S_T2}, s{S_HG}, 144")
        A(f"s_add_u32 s{S_T}, s{S_T}, s{S_T2}")
        A(f"s_add_u32 s{S_T}, s{S_T}, {FW_O}")
    AT.store_rows(A, SRD_WS, sbase, True)
    A("s_waitcnt vmcnt(0)")
    R.bar("B5")
    nf = A.newlabel("nogrp")
    A(f"s_cmp_lg_u32 s{S_WAVE}, 0"); A(f"s_cbranch_scc1 {nf}")
    A(f"s_lshl_b32 s{S_T}, s{S_TB}, 2"); A(f"s_add_u32 s{S_T}, s{S_T}, {DBG_GRP}")
    A(f"v_mov_b32 v{t}, s{S_T}"); A(f"v_mov_b32 v{t+1}, 1")
    A("s_mov_b64 exec, 1")
    A(f"buffer_atomic_add v{t+1}, v{t}, {srd(SRD_DBG)}, 0 offen sc1")
    A("s_mov_b64 exec, -1")
    A.label(nf)
    R.bar("B6")
    if stop_here(A, "attn"): return seqs, R.bars
    FO.out_phase(A, R)
    if STAMPS: A("s_waitcnt vmcnt(0)")
    pstamp(A, 7)
    pstamp_flush(A, S_WAVE, S_WS, WS_STAMP, AT.T)
    A("s_endpgm")
    return seqs, R.bars

def helper_p1(A, R, duty, h3):
    vm = VmTrack()
    A(f"s_mul_i32 s{S_T3}, s{S_ROW0}, {ROWB}")
    HP.issue_x(A, vm, range(9), False, lambda cc: "x")
    HP.issue_w(A, vm, h3, range(6), lambda a_: f"w{a_//2}")
    if not duty: HP.issue_w(A, vm, h3, range(6, 9), lambda a_: "w3")
    A(f"s_waitcnt vmcnt({vm.after('x')})")
    R.bar("b1")
    if duty:
        R.bar("b2")
        HP.issue_w(A, vm, h3, range(6, 9), lambda a_: "w3")
    for q in range(4):
        A(f"s_waitcnt vmcnt({vm.after(f'w{q}')})")
        R.bar(f"bW{q}")
    R.bar("bQ")

def helper_rest(A, R, h3):
    def flag_off(A, t):
        A(f"v_min_u32 v{t}, 23, v{HP.V_LANE}"); A(f"v_lshlrev_b32 v{t}, 2, v{t}")
    pstamp(A, 1)
    HP.poll(A, flag_off, 24, "0x01010101", "kvp")
    pstamp(A, 2)
    R.bar("bKV")
    if stop_here(A, "p1"): return
    vm = VmTrack()
    A(f"s_mov_b32 s{S_T}, {FW_KEYS}")
    A(f"buffer_load_dwordx4 {vr(HP.F_KEY,4)}, v{HP.VL16}, {srd(SRD_WS)}, s{S_T} offen sc1")
    o0, o1 = HP.kv_pieces()
    HP.issue_kv(A, vm, o0, "s0")
    HP.issue_kv(A, vm, o1, "s1")
    A(f"s_waitcnt vmcnt({vm.after('s0')})")
    R.bar("B0")
    HP.select_top2(A)
    A("s_waitcnt vmcnt(0) lgkmcnt(0)")
    R.bar("B1")
    nof = A.newlabel("noffn")
    A(f"s_lshr_b32 s{S_T}, s2, 3")
    A(f"s_cmp_ge_u32 s{S_T}, 18"); A(f"s_cbranch_scc1 {nof}")
    A(f"s_and_b32 s{S_T2}, s2, 7"); A(f"s_mul_i32 s{S_T2}, s{S_T2}, 18")
    A(f"s_add_u32 s{HP.S_SL}, s{S_T2}, s{S_T}")
    pstamp(A, 3)
    HP.ffn(A)
    A.label(nof)
    pstamp(A, 4)
    mk_srd(A, SRD_W, S_WO, D * ROWB)
    mk_srd(A, SRD_A, S_WS, S_TOK * ROWB, add=FW_O)
    vm = VmTrack()
    R.bar("B2")
    HP.issue_w(A, vm, h3, range(0, 3), lambda a_: "w")
    R.bar("B3")
    HP.issue_w(A, vm, h3, range(3, 6), lambda a_: "w")
    R.bar("B4")
    HP.issue_w(A, vm, h3, range(6, 9), lambda a_: "w")
    R.bar("B5")
    def grp_off(A, t):
        A(f"s_lshl_b32 s{S_T}, s{S_TB}, 2"); A(f"s_add_u32 s{S_T}, s{S_T}, {DBG_GRP}")
        A(f"v_mov_b32 v{t}, s{S_T}")
    pstamp(A, 5)
    HP.poll(A, grp_off, 1, "8", "grp", ge=True)
    pstamp(A, 6)
    R.bar("B6")
    if stop_here(A, "attn"): return
    vm = VmTrack()
    A(f"s_mul_i32 s{S_T3}, s{S_ROW0}, {ROWB}")
    HP.issue_x(A, vm, range(9), True, lambda cc: f"x{cc//3}")
    for q in range(3):
        A(f"s_waitcnt vmcnt({vm.after(f'x{q}')})")
        R.bar(f"bX{q}")
    R.bar("B7")
    pstamp(A, 7)
    pstamp_flush(A, S_WAVE, S_WS, WS_STAMP, HP.HT)
    A("s_endpgm")

def helper_role(A):
    R = Role(A)
    A("s_setprio 3")
    A(f"s_sub_u32 s{HP.S_H}, s{S_WAVE}, 8")
    A(f"v_and_b32 v{HP.V_LANE}, 63, v0")
    HP.setup(A)
    l3 = A.newlabel("h3")
    A(f"s_cmp_eq_u32 s{HP.S_H}, 3"); A(f"s_cbranch_scc1 {l3}")
    seqs = {}
    for h3 in (False, True):
        if h3: A.label(l3)
        ld = A.newlabel("hduty"); lj = A.newlabel("hj")
        A(f"s_cmp_lt_u32 s{S_HG}, 3"); A(f"s_cbranch_scc1 {ld}")
        R.bars = []; helper_p1(A, R, False, h3); seqs[None] = list(R.bars)
        A(f"s_branch {lj}")
        A.label(ld)
        R.bars = []; helper_p1(A, R, True, h3); seqs["d"] = list(R.bars)
        A.label(lj)
        R.bars = []
        helper_rest(A, R, h3)
    return seqs, R.bars

def gen(name):
    A = Asm()
    end = "L_end"
    A("s_cmp_ge_u32 s2, 256"); A(f"s_cbranch_scc1 {end}")
    pstamp_init(A); pstamp(A, 0)
    load_kernargs(A)
    A(f"v_lshrrev_b32 v1, 6, v0")
    A(f"v_and_b32 v{G.V_LANE}, 63, v0")
    A(f"v_readfirstlane_b32 s{S_WAVE}, v1")
    A(f"s_and_b32 s{S_T}, s2, 7"); A(f"s_lshr_b32 s{S_T2}, s2, 3")
    A(f"s_and_b32 s{S_HG}, s{S_T2}, 7"); A(f"s_lshr_b32 s{S_T2}, s{S_T2}, 3")
    A(f"s_lshl_b32 s{S_T}, s{S_T}, 2"); A(f"s_add_u32 s{S_TB}, s{S_T}, s{S_T2}")
    A(f"s_lshl_b32 s{S_ROW0}, s{S_TB}, 6")
    A("s_waitcnt lgkmcnt(0)")
    mk_srd(A, SRD_A, S_X, S_TOK * ROWB)
    mk_srd(A, SRD_W, S_WQ, D * ROWB)
    mk_srd(A, SRD_WS, S_WS, FW_SIZE)
    mk_srd(A, SRD_KV, S_WS, KV_IMG, add=FW_KV)
    mk_srd(A, SRD_OUT, S_OUT, S_TOK * ROWB)
    mk_srd(A, SRD_DBG, S_DBG, 256)
    lh = A.newlabel("helper")
    A(f"s_cmp_ge_u32 s{S_WAVE}, 8"); A(f"s_cbranch_scc1 {lh}")
    cs, cb = compute_role(A)
    A.label(lh)
    hs, hb = helper_role(A)
    assert cs[None] == hs[None], (cs[None], hs[None])
    for d in "kvg": assert cs[d] == hs["d"], (cs[d], hs["d"])
    assert cb == hb, (cb, hb)
    A.label(end); A("s_endpgm")
    return A, 168, LDS_BYTES, 64 * NWAVES

def build(out):
    n = NAME + "_kernel"
    A, nv, lds, blk = gen(n)
    hdr = open("cdna_kernels/" + NAME + ".s.ref").read().split("; Override launch")[0]
    txt = hdr + f"; @launch grid=(256,1,1) block=({blk},1,1) lds={lds}\n"
    txt += '.amdgcn_target "amdgcn-amd-amdhsa--gfx950"\n'
    rep = []
    body = A.finish(rep)
    if "-v" in sys.argv:
        print(len(rep), "nop insertions")
        for r in rep: print("   ", r)
    txt += kernel_header(n) + body + kernel_desc(n, nv, nsgpr=102)
    open(out, "w").write(txt)
    print("wrote", out, len(txt), "bytes")

if __name__ == "__main__":
    import sys
    build(sys.argv[1])
```

```python
from fcommon import *
from f_gemm import V_LANE, V_I, V_H, GATE, V_T, V_G

S0, S1 = 0, 16
P = 32
OA, OB = 40, 56
QA, QEA = 72, 76
QB, QEB = 80, 84
K, KE = 88, 92
V0, V1 = 96, 100
A_K, A_KE, A_V = 104, 105, 106
T = 110
NEGM = 112
S_QN, S_KN = 78, 79
T_SAFE = 60.0
HALF = 16 * TB_BYTES
BUMP = 8 * TB_BYTES

def M(d, a, b, c):
    cs = "0" if c is None else vr(c, 16)
    return f"v_mfma_f32_32x32x16_bf16 {vr(d,16)}, {vr(a,4)}, {vr(b,4)}, {cs}"
def M8(d, a, b, c):
    return f"v_mfma_f32_32x32x8bf16_1k {vr(d,16)}, {vr(a,2)}, {vr(b,2)}, {vr(c,16)}"
def E(r): return f"v_exp_f32 v{r}, v{r}"
def C(d, a): return f"v_cvt_pk_bf16_f32 v{d}, v{a}, v{a+1}"

def q_fragments(A):
    t = T
    A(f"s_mul_i32 s{S_T}, s{S_TG}, 36")
    A(f"s_add_u32 s{S_T}, s{S_T}, {QS}")
    A(f"v_mul_u32_u24 v{t}, 144, v{V_I}")
    A(f"v_add_u32 v{t}, s{S_T}, v{t}")
    A(f"v_lshl_add_u32 v{t+1}, v{V_H}, 4, v{t}")
    A(f"v_add_u32 v{t+2}, {32*144}, v{t+1}")
    A(f"v_add_u32 v{t}, 32, v{t}")
    A(f"v_mov_b32 v{t+3}, {OOR}")
    A(f"v_cmp_eq_u32 vcc, 0, v{V_H}")
    A(f"v_cndmask_b32 v{t}, v{t+3}, v{t}, vcc")
    for (Q, QE, ad, off) in ((QA, QEA, t + 1, 0), (QB, QEB, t + 2, 32 * 144)):
        A(f"ds_read2_b32 {vr(Q,2)}, v{ad} offset0:0 offset1:1")
        A(f"ds_read2_b32 {vr(Q+2,2)}, v{ad} offset0:2 offset1:3")
        A(f"ds_read_b32 v{QE}, v{t} offset:{off}")
    A("s_waitcnt lgkmcnt(0)")
    for QE in (QEA, QEB):
        A(f"v_mov_b32 v{QE+1}, 0"); A(f"v_mov_b32 v{QE+2}, 0"); A(f"v_mov_b32 v{QE+3}, v{QE}")

def lds_addresses(A):
    A(f"s_mul_i32 s{S_T}, s{S_FH}, {HALF}")
    A(f"v_lshlrev_b32 v{A_K}, 4, v{V_LANE}")
    A(f"v_add_u32 v{A_K}, s{S_T}, v{A_K}")
    A(f"s_add_u32 s{S_T2}, s{S_T}, {TB_KEXT}")
    A(f"v_lshlrev_b32 v{A_KE}, 3, v{V_I}")
    A(f"v_add_u32 v{A_KE}, s{S_T2}, v{A_KE}")
    A(f"v_mul_u32_u24 v{T+2}, {VROWS}, v{V_H}")
    A(f"v_add_u32 v{T+1}, v{V_I}, v{T+2}")
    A(f"s_add_u32 s{S_T2}, s{S_T}, {TB_V}")
    A(f"v_lshlrev_b32 v{A_V}, 4, v{T+1}")
    A(f"v_add_u32 v{A_V}, s{S_T2}, v{A_V}")
    A(f"v_mov_b32 v{T+2}, {OOR}")
    A(f"v_cmp_lt_u32 vcc, 18, v{V_I}")
    A(f"v_cndmask_b32 v{A_V}, v{A_V}, v{T+2}, vcc")
    A(f"v_cmp_eq_u32 vcc, 1, v{V_H}")
    A(f"v_cndmask_b32 v{A_KE}, v{A_KE}, v{T+2}, vcc")

def range_check(A):
    for k_, (Q, QE) in enumerate(((QA, QEA), (QB, QEB))):
        n = T + 8 + k_
        A(f"v_dot2_f32_bf16 v{n}, v{Q}, v{Q}, 0")
        for r in range(1, 4): A(f"v_dot2_f32_bf16 v{n}, v{Q+r}, v{Q+r}, v{n}")
        A(f"v_dot2_f32_bf16 v{n}, v{QE}, v{QE}, v{n}")
    A("s_nop 2")
    for k_ in range(2):
        n = T + 8 + k_
        A(f"v_mov_b32 v{T+10}, v{n}")
        A(f"v_permlane32_swap_b32 v{n}, v{T+10}")
        A(f"v_add_f32 v{n}, v{n}, v{T+10}")
    A(f"v_max_f32 v{T+8}, v{T+8}, v{T+9}")
    for sh in (1, 2, 4, 8):
        A(f"v_max_f32_dpp v{T+8}, v{T+8}, v{T+8} row_ror:{sh} row_mask:0xf bank_mask:0xf")
        A(f"v_max_f32_dpp v{T+6}, v{T+6}, v{T+6} row_ror:{sh} row_mask:0xf bank_mask:0xf")
    A(f"v_readlane_b32 s{S_QN}, v{T+8}, 0")
    A(f"v_readlane_b32 s{S_T}, v{T+8}, 16")
    A(f"s_max_u32 s{S_QN}, s{S_QN}, s{S_T}")
    A(f"v_readlane_b32 s{S_KN}, v{T+6}, 0")
    A(f"v_readlane_b32 s{S_T}, v{T+6}, 16")
    A(f"s_max_u32 s{S_KN}, s{S_KN}, s{S_T}")
    A(f"v_mov_b32 v{T+8}, s{S_QN}")
    A(f"v_mul_f32 v{T+8}, s{S_KN}, v{T+8}")
    A(f"v_mov_b32 v{T+9}, {f32(T_SAFE*T_SAFE)}")
    A(f"v_cmp_le_f32 vcc, v{T+8}, v{T+9}")

class Streams:
    def __init__(self): self.bumped = set()
    def off(self, reg, j, L):
        if j >= 16 and reg not in self.bumped:
            L.append(f"v_add_u32 v{reg}, {BUMP}, v{reg}"); self.bumped.add(reg)
        return ((j - 16) if j >= 16 else j)
    def K(self, j):
        L = []; jj = self.off(A_K, j, L)
        return L + [f"ds_read_b128 {vr(K,4)}, v{A_K} offset:{(jj>>1)*TB_BYTES + (jj&1)*1024}"]
    def KE(self, j):
        L = []; jj = self.off(A_KE, j, L)
        return L + [f"ds_read_b64 {vr(KE,2)}, v{A_KE} offset:{(jj>>1)*TB_BYTES}"]
    def V(self, reg, j, m):
        L = []; jj = self.off(A_V, j, L)
        return L + [f"ds_read_b128 {vr(reg,4)}, v{A_V} offset:{(jj>>1)*TB_BYTES + (jj&1)*V_TILE + m*(V_TILE//2)}"]

def sub_step(A, Scur, Snxt, Qn, QEn, e, Oprev, Ocur, first_prev, first_cur, do_qk, wait_pre, loads):
    if wait_pre is not None: A(f"s_waitcnt lgkmcnt({wait_pre})")
    if do_qk: A(M(Snxt, K, Qn, None))
    for x in loads.get(0, []): A(x)
    for r in range(0, 4): A(E(Scur + r))
    A(C(P + 0, Scur + 0)); A(C(P + 1, Scur + 2))
    if not first_prev: A(M(Oprev, V1, P + 4, Oprev))
    for x in loads.get(1, []): A(x)
    for r in range(4, 8): A(E(Scur + r))
    A(C(P + 2, Scur + 4)); A(C(P + 3, Scur + 6))
    if do_qk: A(M8(Snxt, KE, QEn + 2 * e, Snxt))
    for x in loads.get(2, []): A(x)
    for r in range(8, 12): A(E(Scur + r))
    A(M(Ocur, V0, P, None if first_cur else Ocur))
    for x in loads.get(3, []): A(x)
    A(C(P + 4, Scur + 8)); A(C(P + 5, Scur + 10))
    for r in range(12, 16): A(E(Scur + r))
    A(C(P + 6, Scur + 12)); A(C(P + 7, Scur + 14))

def release(A, fh):
    skip = None
    if fh is not None:
        skip = A.newlabel("norel")
        A(f"s_cmp_lg_u32 s{S_FH}, {fh}"); A(f"s_cbranch_scc1 {skip}")
    A(f"v_mov_b32 v{T}, {L_CNT+12}"); A(f"v_mov_b32 v{T+1}, 1")
    A(f"ds_add_u32 v{T}, v{T+1}")
    if skip: A.label(skip)

def fast_path(A, R, NK=32):
    st = Streams()
    for x in st.K(0) + st.KE(0) + st.V(V0, 0, 0): A(x)
    A("s_waitcnt lgkmcnt(1)")
    A(M(S0, K, QA, None))
    A(M8(S0, KE, QEA, S0))
    A("s_nop 7"); A("s_nop 3")
    for j in range(NK):
        if j == 4: R.bar("B1")
        if j in (4, 11, 18, 25): pstamp(A, {4: 3, 11: 4, 18: 5, 25: 5}[j]) if j != 25 else None
        if j == 5: release(A, 1)
        e = j % 2
        last = j == NK - 1
        ld = {0: [] if last else st.K(j + 1), 1: st.V(V1, j, 1)}
        if e == 1 and not last: ld[2] = st.KE(j + 1)
        sub_step(A, S0, S1, QB, QEB, e, OB, OA, j == 0, j == 0, True, 0 if j else None, ld)
        ld = {3: [] if last else st.V(V0, j + 1, 0)}
        sub_step(A, S1, S0, QA, QEA, (j + 1) % 2, OA, OB, False, j == 0, not last, 0, ld)
    A(M(OB, V1, P + 4, OB))
    release(A, 0)

def fallback_path(A, R):
    R.bar("B1")
    A(f"v_mov_b32 v{KE+1}, 0")
    for (Q, QE, O, tag) in ((QA, QEA, OA, "a"), (QB, QEB, OB, "b")):
        mx = T
        A(f"v_mov_b32 v{mx}, 0xff800000")
        A(f"s_mov_b32 s{S_T}, 0")
        l1 = A.newlabel("fb1" + tag)
        A.label(l1)
        A(f"s_lshr_b32 s{S_T2}, s{S_T}, 1"); A(f"s_mul_i32 s{S_T2}, s{S_T2}, {TB_BYTES}")
        A(f"s_and_b32 s{S_T3}, s{S_T}, 1")
        A(f"v_lshlrev_b32 v{T+1}, 4, v{V_LANE}")
        A(f"v_add_u32 v{T+1}, s{S_T2}, v{T+1}")
        A(f"s_lshl_b32 s80, s{S_T3}, 10")
        A(f"v_add_u32 v{T+1}, s80, v{T+1}")
        A(f"v_lshlrev_b32 v{P}, 3, v{V_I}")
        A(f"s_lshl_b32 s80, s{S_T3}, 2"); A(f"s_add_u32 s80, s80, s{S_T2}"); A(f"s_add_u32 s80, s80, {TB_KEXT}")
        A(f"v_add_u32 v{P}, s80, v{P}")
        A(f"ds_read_b128 {vr(K,4)}, v{T+1}")
        A(f"ds_read_b32 v{KE}, v{P}")
        A("s_waitcnt lgkmcnt(0)")
        A(M(S0, K, Q, None))
        A(M8(S0, KE, QE, S0))
        A("s_nop 7"); A("s_nop 7")
        for r in range(0, 16, 2): A(f"v_max3_f32 v{mx}, v{S0+r}, v{S0+r+1}, v{mx}")
        A(f"s_add_u32 s{S_T}, s{S_T}, 1")
        A(f"s_cmp_lt_u32 s{S_T}, 64")
        A(f"s_cbranch_scc1 {l1}")
        A(f"v_mov_b32 v{T+1}, v{mx}")
        A(f"v_permlane32_swap_b32 v{mx}, v{T+1}")
        A(f"v_max_f32 v{mx}, v{mx}, v{T+1}")
        A(f"v_sub_f32 v{mx}, 0, v{mx}")
        for r in range(16): A(f"v_mov_b32 v{NEGM+r}, v{mx}")
        A(f"s_mov_b32 s{S_T}, 0")
        for r in range(16): A(f"v_mov_b32 v{O+r}, 0")
        l2 = A.newlabel("fb2" + tag)
        A.label(l2)
        A(f"s_lshr_b32 s{S_T2}, s{S_T}, 1"); A(f"s_mul_i32 s{S_T2}, s{S_T2}, {TB_BYTES}")
        A(f"s_and_b32 s{S_T3}, s{S_T}, 1")
        A(f"s_lshl_b32 s80, s{S_T3}, 10"); A(f"s_add_u32 s80, s80, s{S_T2}")
        A(f"v_add_u32 v{S1}, s80, v{A_K}")
        A(f"s_lshl_b32 s80, s{S_T3}, 2"); A(f"s_add_u32 s80, s80, s{S_T2}")
        A(f"v_add_u32 v{S1+1}, s80, v{A_KE}")
        A(f"s_mul_i32 s80, s{S_T3}, {V_TILE}"); A(f"s_add_u32 s80, s80, s{S_T2}")
        A(f"v_add_u32 v{S1+2}, s80, v{A_V}")
        A(f"ds_read_b128 {vr(K,4)}, v{S1}")
        A(f"ds_read_b32 v{KE}, v{S1+1}")
        A(f"ds_read_b128 {vr(V0,4)}, v{S1+2}")
        A(f"ds_read_b128 {vr(V1,4)}, v{S1+2} offset:{V_TILE//2}")
        A("s_waitcnt lgkmcnt(0)")
        A(M(S0, K, Q, NEGM))
        A(M8(S0, KE, QE, S0))
        A("s_nop 7"); A("s_nop 7")
        for r in range(16): A(E(S0 + r))
        A("s_nop 0")
        for r in range(8): A(C(P + r, S0 + 2 * r))
        A("s_nop 1")
        A(M(O, V0, P, O)); A(M(O, V1, P + 4, O))
        A(f"s_add_u32 s{S_T}, s{S_T}, 1")
        A(f"s_cmp_lt_u32 s{S_T}, 32")
        A(f"s_cbranch_scc1 {l2}")
        A("s_nop 7"); A("s_nop 7")
    release(A, None)

def finish(A, R):
    A("s_nop 7"); A("s_nop 3")
    pstamp(A, 6)
    R.bar("B2")
    pstamp(A, 20, "t")
    lsw = A.newlabel("sw"); ld = A.newlabel("swd")
    A(f"s_lshl_b32 s{S_T}, s{S_WAVE}, 12")
    A(f"v_lshlrev_b32 v{T}, 4, v{V_LANE}")
    A(f"v_add_u32 v{T}, {PSLOT}, v{T}")
    A(f"v_add_u32 v{T+1}, s{S_T}, v{T}")
    A(f"s_xor_b32 s{S_T}, s{S_WAVE}, 4")
    A(f"s_lshl_b32 s{S_T}, s{S_T}, 12")
    A(f"v_add_u32 v{T+2}, s{S_T}, v{T}")
    A(f"s_cmp_eq_u32 s{S_FH}, 0"); A(f"s_cbranch_scc0 {lsw}")
    for q in range(3): A(f"ds_write_b128 v{T+1}, {vr(OB+4*q,4)} offset:{1024*q}")
    A(f"s_branch {ld}")
    A.label(lsw)
    for q in range(3): A(f"ds_write_b128 v{T+1}, {vr(OA+4*q,4)} offset:{1024*q}")
    A("s_nop 1")
    for r in range(12): A(f"v_mov_b32 v{OA+r}, v{OB+r}")
    A.label(ld)
    A("s_waitcnt lgkmcnt(0)")
    R.bar("B3")
    pstamp(A, 21, "t")
    for q in range(3): A(f"ds_read_b128 {vr(S0+4*q,4)}, v{T+2} offset:{1024*q}")
    A("s_waitcnt lgkmcnt(0)")
    for r in range(11): A(f"v_add_f32 v{OA+r}, v{OA+r}, v{S0+r}")
    A(f"v_mov_b32 v{T}, v{OA+10}")
    A(f"v_permlane32_swap_b32 v{OA+10}, v{T}")
    A(f"v_rcp_f32 v{T}, v{OA+10}")
    A("s_nop 0")
    for r in range(10): A(f"v_mul_f32 v{OA+r}, v{OA+r}, v{T}")
    for r in range(5): A(C(P + r, OA + 2 * r))
    A(f"s_lshl_b32 s{S_T}, s{S_FH}, 5")
    A(f"v_add_u32 v{T}, s{S_T}, v{V_I}")
    A(f"v_mul_u32_u24 v{T}, 144, v{T}")
    A(f"s_mul_i32 s{S_T}, s{S_TG}, 36"); A(f"s_add_u32 s{S_T}, s{S_T}, {OSTG}")
    A(f"v_add_u32 v{T}, s{S_T}, v{T}")
    A(f"v_lshl_add_u32 v{T+1}, v{V_H}, 4, v{T}")
    A(f"ds_write2_b32 v{T+1}, v{P}, v{P+1} offset0:0 offset1:1")
    A(f"ds_write2_b32 v{T+1}, v{P+2}, v{P+3} offset0:2 offset1:3")
    A(f"v_cmp_eq_u32 vcc, 0, v{V_H}")
    A(f"s_and_saveexec_b64 s[{S_EX}:{S_EX+1}], vcc")
    A(f"ds_write_b32 v{T}, v{P+4} offset:32")
    A(f"s_mov_b64 exec, s[{S_EX}:{S_EX+1}]")
    A("s_waitcnt lgkmcnt(0)")
    R.bar("B4")
    pstamp(A, 22, "t")

def store_rows(A, srd_i, sbase_fn, sc1):
    t = T
    for u8 in (0, 1):
        skip = None
        if u8:
            skip = A.newlabel("st8")
            A(f"s_cmp_lg_u32 s{S_WAVE}, 0"); A(f"s_cbranch_scc1 {skip}")
            A(f"v_add_u32 v{t}, 512, v{V_LANE}")
        else:
            A(f"s_lshl_b32 s{S_T}, s{S_WAVE}, 6")
            A(f"v_add_u32 v{t}, s{S_T}, v{V_LANE}")
        A(f"v_lshlrev_b32 v{t+1}, 4, v{t}")
        A(f"v_add_u32 v{t+1}, {OSTG}, v{t+1}")
        d = S0 + 4 * u8
        A(f"ds_read_b128 {vr(d,4)}, v{t+1}")
        A(f"v_mul_u32_u24 v{t+2}, 7282, v{t}")
        A(f"v_lshrrev_b32 v{t+2}, 16, v{t+2}")
        A(f"v_mul_u32_u24 v{t+3}, 9, v{t+2}")
        A(f"v_sub_u32 v{t+3}, v{t}, v{t+3}")
        A(f"v_mul_u32_u24 v{t+2}, {ROWB}, v{t+2}")
        A(f"v_lshl_add_u32 v{t+2}, v{t+3}, 4, v{t+2}")
        sbase_fn(A)
        A("s_waitcnt lgkmcnt(0)")
        A(f"buffer_store_dwordx4 {vr(d,4)}, v{t+2}, {srd(srd_i)}, s{S_T} offen" + (" sc1" if sc1 else ""))
        if skip: A.label(skip)
```

```python
from fcommon import *

ACC, DACC, AF, BF = 0, 12, 16, 40
AW0, AW1, AX0, AX1, AE0, AE1, AE3 = 48, 49, 50, 51, 52, 53, 54
EL = 56
GT = 72
V_LANE, V_I, V_H = 107, 108, 109
XRES, GATE, V_T, V_G = 128, 134, 135, 136
QSCALE = LOG2E / (DH ** 0.5)

def lane_setup(A):
    A(f"v_and_b32 v{V_T}, 15, v{V_LANE}")
    A(f"v_lshrrev_b32 v{V_G}, 4, v{V_LANE}")
    A(f"v_and_b32 v{V_I}, 31, v{V_LANE}")
    A(f"v_lshrrev_b32 v{V_H}, 5, v{V_LANE}")

def gemm_addresses(A, xb=XB, wb=WB):
    t = GT
    A(f"s_lshl_b32 s{S_T}, s{S_TG}, 4")
    A(f"v_add_u32 v{t}, s{S_T}, v{V_T}")
    A(f"v_lshlrev_b32 v{t}, 7, v{t}")
    A(f"v_lshrrev_b32 v{t+1}, 1, v{V_T}")
    A(f"v_xor_b32 v{t+1}, v{t+1}, v{V_G}")
    A(f"v_lshl_add_u32 v{AX0}, v{t+1}, 4, v{t}")
    A(f"v_xor_b32 v{AX1}, 64, v{AX0}")
    if xb:
        A(f"v_add_u32 v{AX0}, {xb}, v{AX0}"); A(f"v_add_u32 v{AX1}, {xb}, v{AX1}")
    A(f"v_bfe_u32 v{t}, v{V_LANE}, 2, 2")
    A(f"v_lshlrev_b32 v{t}, 1, v{t}")
    A(f"v_lshl_add_u32 v{t}, v{V_G}, 3, v{t}")
    A(f"v_mul_u32_u24 v{t}, 144, v{t}")
    A(f"v_and_b32 v{t+1}, 3, v{V_LANE}")
    A(f"v_lshl_add_u32 v{t}, v{t+1}, 3, v{t}")
    A(f"s_mul_i32 s{S_T}, s{S_FH}, 96")
    A(f"s_add_u32 s{S_T}, s{S_T}, {wb}")
    A(f"v_add_u32 v{AW0}, s{S_T}, v{t}")
    A(f"v_add_u32 v{AW1}, {9*W_STEP}, v{AW0}")

def rd_b(A, s):
    reg = AX0 + (s & 1); cc = s >> 1
    off = cc * 8192 if cc < 8 else 7 * 8192
    if s == 16:
        A(f"v_add_u32 v{AX0}, 8192, v{AX0}"); A(f"v_add_u32 v{AX1}, 8192, v{AX1}")
    A(f"ds_read_b128 {vr(BF+4*(s&1),4)}, v{reg} offset:{off}")

def rd_a(A, s, nt):
    base = AF + 12 * (s & 1)
    reg = AW0 if s < 9 else AW1
    for j in range(nt):
        for q in range(2):
            A(f"ds_read_b64_tr_b16 {vr(base+4*j+2*q,2)}, v{reg} offset:{(s%9)*W_STEP + 144*q + 32*j}")

def gemm_steps(A, steps, nt, first_zero):
    rd_b(A, steps[0]); rd_a(A, steps[0], nt)
    for n, s in enumerate(steps):
        nr = 0
        if n + 1 < len(steps):
            rd_b(A, steps[n + 1]); rd_a(A, steps[n + 1], nt); nr = 1 + 2 * nt
        A(f"s_waitcnt lgkmcnt({nr})")
        for j in range(nt):
            c = "0" if (s == 0 and first_zero) else vr(ACC + 4 * j, 4)
            A(f"v_mfma_f32_16x16x32_bf16 {vr(ACC+4*j,4)}, {vr(AF+12*(s&1)+4*j,4)}, {vr(BF+4*(s&1),4)}, {c}")

def restore_x_addresses(A):
    A(f"v_subrev_u32 v{AX0}, 8192, v{AX0}"); A(f"v_subrev_u32 v{AX1}, 8192, v{AX1}")

def duty_loads(A, duty):
    t = GT
    if duty in ("k", "v"):
        for rd in range(4):
            skip = None
            if rd == 3:
                skip = A.newlabel("elskip")
                A(f"s_cmp_ge_u32 s{S_WAVE}, 3"); A(f"s_cbranch_scc1 {skip}")
            A(f"s_lshl_b32 s{S_T}, s{S_WAVE}, 6")
            A(f"s_add_u32 s{S_T}, s{S_T}, {512*rd}")
            A(f"v_add_u32 v{t}, s{S_T}, v{V_LANE}")
            A(f"v_mul_u32_u24 v{t}, 12, v{t}")
            A(f"buffer_load_dwordx3 {vr(EL+3*rd+ (rd&1),3)}, v{t}, {srd(SRD_E)}, 0 offen" if False else
              f"buffer_load_dwordx3 v[{ELR(rd)}:{ELR(rd)+2}], v{t}, {srd(SRD_E)}, 0 offen")
            if skip: A.label(skip)
    else:
        for rd in range(2):
            skip = None
            if rd == 1:
                skip = A.newlabel("elskip")
                A(f"s_cmp_lg_u32 s{S_WAVE}, 0"); A(f"s_cbranch_scc1 {skip}")
            A(f"s_lshl_b32 s{S_T}, s{S_WAVE}, 6")
            A(f"s_add_u32 s{S_T}, s{S_T}, {512*rd}")
            A(f"v_add_u32 v{t}, s{S_T}, v{V_LANE}")
            A(f"v_lshlrev_b32 v{t}, 1, v{t}")
            A(f"buffer_load_ushort v{ELR(rd)}, v{t}, {srd(SRD_E)}, 0 offen")
            A(f"buffer_load_ushort v{ELR(rd)+1}, v{t}, {srd(SRD_F)}, 0 offen")
            if skip: A.label(skip)

def ELR(rd): return EL + 4 * rd

def duty_writes(A, duty):
    t = GT + 4
    A("s_waitcnt vmcnt(0)")
    if duty in ("k", "v"):
        for rd in range(4):
            skip = None
            if rd == 3:
                skip = A.newlabel("ewskip")
                A(f"s_cmp_ge_u32 s{S_WAVE}, 3"); A(f"s_cbranch_scc1 {skip}")
            A(f"s_lshl_b32 s{S_T}, s{S_WAVE}, 6")
            A(f"s_add_u32 s{S_T}, s{S_T}, {512*rd}")
            A(f"v_add_u32 v{t}, s{S_T}, v{V_LANE}")
            A(f"v_mul_u32_u24 v{t+1}, 21846, v{t}")
            A(f"v_lshrrev_b32 v{t+1}, 16, v{t+1}")
            A(f"v_mul_u32_u24 v{t+2}, 3, v{t+1}")
            A(f"v_sub_u32 v{t+2}, v{t}, v{t+2}")
            A(f"v_lshrrev_b32 v{t+3}, 1, v{t+1}")
            A(f"v_and_b32 v{t+3}, 4, v{t+3}")
            A(f"v_xor_b32 v{t+3}, v{t+1}, v{t+3}")
            A(f"v_lshlrev_b32 v{t+3}, 5, v{t+3}")
            A(f"v_mul_u32_u24 v{t+4}, 12, v{t+2}")
            A(f"v_add3_u32 v{t+3}, v{t+3}, v{t+4}, s{S_T3}") if False else None
            A(f"v_add_u32 v{t+3}, v{t+3}, v{t+4}")
            A(f"v_add_u32 v{t+3}, {E2B}, v{t+3}")
            A(f"v_lshlrev_b32 v{t+4}, 3, v{t+1}")
            A(f"v_add_u32 v{t+4}, {E3B}, v{t+4}")
            A(f"v_add_u32 v{t+5}, 8, v{t+3}")
            A(f"v_cmp_eq_u32 vcc, 2, v{t+2}")
            A(f"v_cndmask_b32 v{t+4}, v{t+5}, v{t+4}, vcc")
            A(f"ds_write2_b32 v{t+3}, v{ELR(rd)}, v{ELR(rd)+1} offset0:0 offset1:1")
            A(f"ds_write_b32 v{t+4}, v{ELR(rd)+2}")
            if skip: A.label(skip)
    else:
        for rd in range(2):
            skip = None
            if rd == 1:
                skip = A.newlabel("ewskip")
                A(f"s_cmp_lg_u32 s{S_WAVE}, 0"); A(f"s_cbranch_scc1 {skip}")
            A(f"s_lshl_b32 s{S_T}, s{S_WAVE}, 6")
            A(f"s_add_u32 s{S_T}, s{S_T}, {512*rd}")
            A(f"v_add_u32 v{t}, s{S_T}, v{V_LANE}")
            A(f"v_lshlrev_b32 v{t}, 3, v{t}")
            A(f"v_add_u32 v{t}, {E3B}, v{t}")
            A(f"v_lshl_or_b32 v{ELR(rd)}, v{ELR(rd)+1}, 16, v{ELR(rd)}")
            A(f"ds_write_b32 v{t}, v{ELR(rd)}")
            if skip: A.label(skip)

def duty_addresses(A):
    t = GT
    A(f"v_bfe_u32 v{t}, v{V_LANE}, 2, 2")
    A(f"v_lshl_add_u32 v{t}, v{V_G}, 3, v{t}")
    A(f"v_and_b32 v{t+1}, 1, v{V_G}")
    A(f"v_lshl_add_u32 v{t+2}, v{t+1}, 2, v{t}")
    A(f"v_xor_b32 v{t+1}, 1, v{t+1}")
    A(f"v_lshl_add_u32 v{t+3}, v{t+1}, 2, v{t}")
    A(f"v_and_b32 v{t+1}, 3, v{V_LANE}")
    A(f"v_lshlrev_b32 v{t+1}, 3, v{t+1}")
    A(f"v_lshl_add_u32 v{AE0}, v{t+2}, 5, v{t+1}")
    A(f"v_lshl_add_u32 v{AE1}, v{t+3}, 5, v{t+1}")
    A(f"v_add_u32 v{AE0}, {E2B}, v{AE0}")
    A(f"v_add_u32 v{AE1}, {E2B}, v{AE1}")
    A(f"v_lshlrev_b32 v{AE3}, 3, v{t}")
    A(f"v_add_u32 v{AE3}, {E3B}, v{AE3}")

def duty_gemm(A, which):
    DA, DB, DEP = 16, 32, 4
    def rd(s):
        b = DA + 4 * (s % DEP)
        reg = AX0 + (s & 1); cc = s >> 1
        if s == 16:
            A(f"v_add_u32 v{AX0}, 8192, v{AX0}"); A(f"v_add_u32 v{AX1}, 8192, v{AX1}")
        A(f"ds_read_b128 {vr(DB+4*(s%DEP),4)}, v{reg} offset:{cc*8192 if cc < 8 else 7*8192}")
        for q in range(2):
            if which == 2: A(f"ds_read_b64_tr_b16 {vr(b+2*q,2)}, v{AE0+q} offset:{s*1024}")
            else: A(f"ds_read_b64_tr_b16 {vr(b+2*q,2)}, v{AE3} offset:{s*256 + 32*q}")
    for s in range(DEP): rd(s)
    for s in range(18):
        ahead = min(DEP - 1, 17 - s)
        A(f"s_waitcnt lgkmcnt({3*ahead})")
        c = "0" if s == 0 else vr(DACC, 4)
        A(f"v_mfma_f32_16x16x32_bf16 {vr(DACC,4)}, {vr(DA+4*(s%DEP),4)}, {vr(DB+4*(s%DEP),4)}, {c}")
        if s + DEP < 18: rd(s + DEP)
    restore_x_addresses(A)
    A("s_nop 7")

def k_stage(A):
    t = GT; d = GT + 10
    l1 = A.newlabel("k1"); le = A.newlabel("ke")
    A(f"s_and_b32 s{S_T}, s{S_TG}, 1"); A(f"s_lshl_b32 s{S_T}, s{S_T}, 4")
    A(f"v_add_u32 v{t}, s{S_T}, v{V_T}")
    A(f"s_lshr_b32 s{S_T2}, s{S_TG}, 1")
    A(f"s_cmp_eq_u32 s{S_FH}, 0"); A(f"s_cbranch_scc0 {l1}")
    duty_gemm(A, 2)
    A(f"v_lshrrev_b32 v{t+1}, 1, v{V_G}")
    A(f"v_lshl_add_u32 v{t+1}, v{t+1}, 5, v{t}")
    A(f"v_lshlrev_b32 v{t+1}, 4, v{t+1}")
    A(f"v_and_b32 v{t+2}, 1, v{V_G}")
    A(f"v_lshl_add_u32 v{t+1}, v{t+2}, 3, v{t+1}")
    A(f"s_lshl_b32 s{S_T}, s{S_T2}, 10"); A(f"s_add_u32 s{S_T}, s{S_T}, {STG}")
    A(f"v_add_u32 v{t+1}, s{S_T}, v{t+1}")
    A(f"v_cvt_pk_bf16_f32 v{d}, v{DACC}, v{DACC+1}")
    A(f"v_cvt_pk_bf16_f32 v{d+1}, v{DACC+2}, v{DACC+3}")
    A(f"ds_write_b64 v{t+1}, {vr(d,2)}")
    n = t + 3
    A(f"v_mul_f32 v{n}, v{DACC}, v{DACC}")
    for r in range(1, 4): A(f"v_fma_f32 v{n}, v{DACC+r}, v{DACC+r}, v{n}")
    A(f"ds_swizzle_b32 v{n+1}, v{n} offset:0x401F")
    A("s_waitcnt lgkmcnt(0)")
    A(f"v_add_f32 v{n}, v{n}, v{n+1}")
    A(f"v_mov_b32 v{n+1}, v{n}")
    A(f"v_permlane32_swap_b32 v{n}, v{n+1}")
    A(f"v_add_f32 v{n}, v{n}, v{n+1}")
    A(f"s_lshl_b32 s{S_T}, s{S_TG}, 2"); A(f"s_add_u32 s{S_T}, s{S_T}, {STG_N}")
    A(f"s_branch {le}")
    A.label(l1)
    duty_gemm(A, 3)
    A(f"v_lshlrev_b32 v{t+1}, 3, v{t}")
    A(f"s_lshl_b32 s{S_T}, s{S_T2}, 2"); A(f"s_add_u32 s{S_T}, s{S_T}, {STG+TB_KEXT}")
    A(f"v_add_u32 v{t+1}, s{S_T}, v{t+1}")
    A(f"v_cvt_pk_bf16_f32 v{d}, v{DACC}, v{DACC+1}")
    n = t + 3
    A(f"v_mul_f32 v{n}, v{DACC}, v{DACC}")
    A(f"v_fma_f32 v{n}, v{DACC+1}, v{DACC+1}, v{n}")
    A(f"v_cmp_eq_u32 vcc, 0, v{V_G}")
    A(f"s_and_saveexec_b64 s[{S_EX}:{S_EX+1}], vcc")
    A(f"ds_write_b32 v{t+1}, v{d}")
    A(f"s_mov_b64 exec, s[{S_EX}:{S_EX+1}]")
    A(f"s_lshl_b32 s{S_T}, s{S_TG}, 2"); A(f"s_add_u32 s{S_T}, s{S_T}, {STG_N+16}")
    A.label(le)
    n = t + 3
    for sh in (1, 2, 4, 8):
        A(f"v_max_f32_dpp v{n}, v{n}, v{n} row_ror:{sh} row_mask:0xf bank_mask:0xf")
    A(f"v_mov_b32 v{n+1}, s{S_T}")
    A(f"v_cmp_eq_u32 vcc, 0, v{V_LANE}")
    A(f"s_and_saveexec_b64 s[{S_EX}:{S_EX+1}], vcc")
    A(f"ds_write_b32 v{n+1}, v{n}")
    A(f"s_mov_b64 exec, s[{S_EX}:{S_EX+1}]")

def v_stage(A):
    t = GT; d = GT + 10
    l1 = A.newlabel("v1"); le = A.newlabel("ve")
    A(f"s_lshr_b32 s{S_T}, s{S_TG}, 1"); A(f"s_mul_i32 s{S_T}, s{S_T}, {V_TILE}")
    A(f"s_and_b32 s{S_T2}, s{S_TG}, 1"); A(f"s_mul_i32 s{S_T2}, s{S_T2}, {2*VROWS*16}")
    A(f"s_add_u32 s{S_T}, s{S_T}, s{S_T2}"); A(f"s_add_u32 s{S_T3}, s{S_T}, {STG}")
    A(f"v_bfe_u32 v{t}, v{V_T}, 2, 1")
    A(f"v_mul_u32_u24 v{t}, {VROWS*16}, v{t}")
    A(f"v_lshrrev_b32 v{t+1}, 3, v{V_T}")
    A(f"v_and_b32 v{t+2}, 3, v{V_T}")
    A(f"v_lshl_add_u32 v{t+1}, v{t+1}, 2, v{t+2}")
    A(f"v_lshl_add_u32 v{t}, v{t+1}, 1, v{t}")
    A(f"v_add_u32 v{t}, s{S_T3}, v{t}")
    A(f"s_cmp_eq_u32 s{S_FH}, 0"); A(f"s_cbranch_scc0 {l1}")
    duty_gemm(A, 2)
    A(f"v_and_b32 v{t+1}, 1, v{V_G}")
    A(f"v_lshrrev_b32 v{t+2}, 1, v{V_G}")
    A(f"v_lshl_add_u32 v{t+1}, v{t+1}, 1, v{t+2}")
    A(f"v_lshl_add_u32 v{t+1}, v{t+1}, 6, v{t}")
    A(f"v_cvt_pk_bf16_f32 v{d}, v{DACC}, v{DACC+1}")
    A(f"v_cvt_pk_bf16_f32 v{d+1}, v{DACC+2}, v{DACC+3}")
    A(f"ds_write_b16 v{t+1}, v{d}")
    A(f"ds_write_b16_d16_hi v{t+1}, v{d} offset:16")
    A(f"ds_write_b16 v{t+1}, v{d+1} offset:32")
    A(f"ds_write_b16_d16_hi v{t+1}, v{d+1} offset:48")
    A(f"s_branch {le}")
    A.label(l1)
    duty_gemm(A, 3)
    A(f"v_cvt_pk_bf16_f32 v{d}, v{DACC}, v{DACC+1}")
    A(f"v_mov_b32 v{d+1}, 0x3f80")
    A(f"v_cmp_eq_u32 vcc, 0, v{V_G}")
    A(f"s_and_saveexec_b64 s[{S_EX}:{S_EX+1}], vcc")
    A(f"ds_write_b16 v{t}, v{d} offset:{16*16}")
    A(f"ds_write_b16_d16_hi v{t}, v{d} offset:{17*16}")
    A(f"ds_write_b16 v{t}, v{d+1} offset:{18*16}")
    A(f"s_mov_b64 exec, s[{S_EX}:{S_EX+1}]")
    A.label(le)

def g_stage(A):
    t = GT
    le = A.newlabel("ge")
    A(f"s_cmp_eq_u32 s{S_FH}, 0"); A(f"s_cbranch_scc1 {le}")
    duty_gemm(A, 3)
    A(f"v_cvt_pk_bf16_f32 v{t}, v{DACC}, v{DACC}")
    A(f"v_and_b32 v{t}, 0xffff0000, v{t}")
    A(f"v_mul_f32 v{t}, {f32(-LOG2E)}, v{t}")
    A(f"v_exp_f32 v{t}, v{t}")
    A(f"v_add_f32 v{t}, 1.0, v{t}")
    A(f"v_rcp_f32 v{t}, v{t}")
    A(f"v_cvt_pk_bf16_f32 v{t}, v{t}, v{t}")
    A(f"v_and_b32 v{t}, 0xffff0000, v{t}")
    A(f"s_lshl_b32 s{S_T}, s{S_TG}, 4")
    A(f"v_add_u32 v{t+1}, s{S_T}, v{V_T}")
    A(f"v_lshlrev_b32 v{t+2}, 2, v{t+1}")
    A(f"v_add_u32 v{t+2}, {STG}, v{t+2}")
    k = t + 3; k2 = t + 4; u = t + 5
    A(f"v_cvt_pk_bf16_f32 v{k}, v{DACC+1}, v{DACC+1}")
    A(f"v_and_b32 v{k}, 0xffff, v{k}")
    A(f"v_xor_b32 v{k2}, 0x8000, v{k}")
    A(f"v_xor_b32 v{u}, 0xffff, v{k}")
    A(f"v_cmp_lt_u32 vcc, 0x7fff, v{k}")
    A(f"v_cndmask_b32 v{k}, v{k2}, v{u}, vcc")
    A(f"v_add_u32 v{k2}, s{S_ROW0}, v{t+1}")
    A(f"v_sub_u32 v{k2}, 0xffff, v{k2}")
    A(f"v_lshl_or_b32 v{k}, v{k}, 16, v{k2}")
    A(f"v_mov_b32 v{k2}, v{k}")
    for sh in (1, 2, 4, 8):
        A(f"v_max_u32_dpp v{k2}, v{k2}, v{k2} row_ror:{sh} row_mask:0xf bank_mask:0xf")
    A(f"v_cmp_eq_u32 vcc, v{k}, v{k2}")
    A(f"v_mov_b32 v{u}, 0")
    A(f"v_cndmask_b32 v{k}, v{k}, v{u}, vcc")
    for sh in (1, 2, 4, 8):
        A(f"v_max_u32_dpp v{k}, v{k}, v{k} row_ror:{sh} row_mask:0xf bank_mask:0xf")
    A(f"s_lshl_b32 s{S_T}, s{S_TG}, 3"); A(f"s_add_u32 s{S_T}, s{S_T}, {STG+256}")
    A(f"v_mov_b32 v{u}, s{S_T}")
    A(f"v_cmp_eq_u32 vcc, 0, v{V_G}")
    A(f"s_and_saveexec_b64 s[{S_EX}:{S_EX+1}], vcc")
    A(f"ds_write_b32 v{t+2}, v{t}")
    A(f"v_cmp_eq_u32 vcc, 0, v{V_LANE}")
    A(f"s_and_b64 exec, exec, vcc")
    A(f"ds_write2_b32 v{u}, v{k2}, v{k} offset0:0 offset1:1")
    A(f"s_mov_b64 exec, s[{S_EX}:{S_EX+1}]")
    A.label(le)

def publish(A, duty):
    t = GT; WS = srd(SRD_WS)
    A(f"v_lshlrev_b32 v{t}, 4, v{V_LANE}")
    if duty in ("k", "v"):
        nbytes = TB_V if duty == "k" else TB_BYTES - TB_V
        A(f"s_mul_i32 s{S_T}, s{S_TB}, {TB_BYTES}")
        A(f"s_add_u32 s{S_T}, s{S_T}, {FW_KV + (0 if duty == 'k' else TB_V)}")
        A(f"v_add_u32 v{t+1}, {STG}, v{t}")
        for u in range(3):
            A(f"ds_read_b128 {vr(AF+4*u,4)}, v{t+1} offset:{1024*u}")
        if duty == "k":
            A(f"v_mov_b32 v{t+2}, {STG_N}")
            A(f"ds_read_b128 {vr(AF+12,4)}, v{t+2}")
            A(f"ds_read_b128 {vr(AF+16,4)}, v{t+2} offset:16")
        A("s_waitcnt lgkmcnt(0)")
        A(f"buffer_store_dwordx4 {vr(AF,4)}, v{t}, {WS}, s{S_T} offen sc1")
        A(f"buffer_store_dwordx4 {vr(AF+4,4)}, v{t}, {WS}, s{S_T} offen offset:1024 sc1")
        A(f"v_cmp_gt_u32 vcc, {(nbytes-2048)//16}, v{V_LANE}")
        A(f"s_and_saveexec_b64 s[{S_EX}:{S_EX+1}], vcc")
        A(f"buffer_store_dwordx4 {vr(AF+8,4)}, v{t}, {WS}, s{S_T} offen offset:2048 sc1")
        A(f"s_mov_b64 exec, s[{S_EX}:{S_EX+1}]")
        if duty == "k":
            a_ = AF + 12; b_ = AF + 16
            A(f"v_max3_f32 v{a_}, v{a_}, v{a_+1}, v{a_+2}"); A(f"v_max_f32 v{a_}, v{a_}, v{a_+3}")
            A(f"v_max3_f32 v{b_}, v{b_}, v{b_+1}, v{b_+2}"); A(f"v_max_f32 v{b_}, v{b_}, v{b_+3}")
            A(f"v_add_f32 v{a_}, v{a_}, v{b_}")
            A(f"v_mul_f32 v{a_}, {f32(1.02)}, v{a_}")
            A(f"s_lshl_b32 s{S_T}, s{S_TB}, 2"); A(f"s_add_u32 s{S_T}, s{S_T}, {FW_KN}")
            A(f"v_mov_b32 v{t+2}, 0")
            A(f"v_cmp_eq_u32 vcc, 0, v{V_LANE}")
            A(f"s_and_saveexec_b64 s[{S_EX}:{S_EX+1}], vcc")
            A(f"buffer_store_dword v{a_}, v{t+2}, {WS}, s{S_T} offen sc1")
            A(f"s_mov_b64 exec, s[{S_EX}:{S_EX+1}]")
    else:
        A(f"v_lshlrev_b32 v{t+1}, 2, v{V_LANE}")
        A(f"v_add_u32 v{t+2}, {STG}, v{t+1}")
        A(f"ds_read_b32 v{AF}, v{t+2}")
        A(f"ds_read_b32 v{AF+1}, v{t+2} offset:256")
        for r in range(4): A(f"v_mov_b32 v{AF+4+r}, 0")
        A("s_waitcnt lgkmcnt(0)")
        A(f"s_lshl_b32 s{S_T}, s{S_ROW0}, 2"); A(f"s_add_u32 s{S_T}, s{S_T}, {FW_G}")
        A(f"buffer_store_dword v{AF}, v{t+1}, {WS}, s{S_T} offen sc1")
        A(f"s_mul_i32 s{S_T}, s{S_TB}, 1152"); A(f"s_add_u32 s{S_T}, s{S_T}, {FW_YACC}")
        A(f"buffer_store_dwordx4 {vr(AF+4,4)}, v{t}, {WS}, s{S_T} offen sc1")
        A(f"v_cmp_gt_u32 vcc, 8, v{V_LANE}")
        A(f"s_and_saveexec_b64 s[{S_EX}:{S_EX+1}], vcc")
        A(f"buffer_store_dwordx4 {vr(AF+4,4)}, v{t}, {WS}, s{S_T} offen offset:1024 sc1")
        A(f"s_lshl_b32 s{S_T}, s{S_TB}, 5"); A(f"s_add_u32 s{S_T}, s{S_T}, {FW_KEYS}")
        A(f"buffer_store_dword v{AF+1}, v{t+1}, {WS}, s{S_T} offen sc1")
        A(f"s_mov_b64 exec, s[{S_EX}:{S_EX+1}]")

def raise_flag(A, duty):
    t = GT
    base = {"k": FL_K, "v": FL_V, "g": FL_G}[duty]
    lp = A.newlabel("initp"); done = A.newlabel("initok")
    A(f"v_mov_b32 v{t}, {DBG_INIT}")
    A(f"s_mov_b32 s80, 0")
    A.label(lp)
    A(f"buffer_load_dword v{t+1}, v{t}, {srd(SRD_DBG)}, 0 offen sc1")
    A("s_waitcnt vmcnt(0)")
    A(f"v_readfirstlane_b32 s81, v{t+1}")
    A(f"s_cmp_ge_u32 s81, 32"); A(f"s_cbranch_scc1 {done}")
    A("s_sleep 4")
    A(f"s_add_u32 s80, s80, 1")
    A(f"s_cmp_lt_u32 s80, 0x40000"); A(f"s_cbranch_scc1 {lp}")
    A.label(done)
    A(f"s_add_u32 s{S_T}, s{S_TB}, {FW_FLAG + base}")
    A(f"v_lshlrev_b32 v{t}, 8, v{V_LANE}")
    A(f"v_add_u32 v{t}, s{S_T}, v{t}")
    A(f"v_mov_b32 v{t+1}, 1")
    A(f"v_cmp_gt_u32 vcc, 32, v{V_LANE}")
    A(f"s_and_saveexec_b64 s[{S_EX}:{S_EX+1}], vcc")
    A(f"buffer_store_byte v{t+1}, v{t}, {srd(SRD_WS)}, 0 offen sc1")
    A(f"s_mov_b64 exec, s[{S_EX}:{S_EX+1}]")

def clear_flag_lines(A):
    t = GT
    skip = A.newlabel("noclr")
    A(f"s_cmp_lg_u32 s{S_HG}, 7"); A(f"s_cbranch_scc1 {skip}")
    A(f"s_cmp_lg_u32 s{S_WAVE}, 0"); A(f"s_cbranch_scc1 {skip}")
    for r in range(4): A(f"v_mov_b32 v{t+2+r}, 0")
    A(f"s_lshl_b32 s{S_T}, s{S_TB}, 8"); A(f"s_add_u32 s{S_T}, s{S_T}, {FW_FLAG}")
    A(f"v_lshlrev_b32 v{t}, 4, v{V_LANE}")
    A(f"v_cmp_gt_u32 vcc, 16, v{V_LANE}")
    A(f"s_and_saveexec_b64 s[{S_EX}:{S_EX+1}], vcc")
    A(f"buffer_store_dwordx4 {vr(t+2,4)}, v{t}, {srd(SRD_WS)}, s{S_T} offen sc1")
    A(f"s_mov_b32 s{S_T}, {FW_FFNC}")
    A(f"s_cmp_eq_u32 s{S_TB}, 0")
    l2 = A.newlabel("noffc")
    A(f"s_cbranch_scc0 {l2}")
    A("s_mov_b64 exec, 1")
    A(f"buffer_store_dwordx4 {vr(t+2,4)}, v{t}, {srd(SRD_WS)}, s{S_T} offen sc1")
    A.label(l2)
    A("s_waitcnt vmcnt(0)")
    A("s_mov_b64 exec, 1")
    A(f"v_mov_b32 v{t}, {DBG_INIT}"); A(f"v_mov_b32 v{t+1}, 1")
    A(f"buffer_atomic_add v{t+1}, v{t}, {srd(SRD_DBG)}, 0 offen sc1")
    A("s_mov_b64 exec, -1")
    A.label(skip)

def residual_x(A):
    t = GT
    A(f"s_mul_i32 s{S_T}, s{S_HG}, 144")
    A(f"s_mul_i32 s{S_T2}, s{S_FH}, 96")
    A(f"s_add_u32 s{S_T}, s{S_T}, s{S_T2}")
    A(f"s_lshl_b32 s{S_T2}, s{S_TG}, 4")
    A(f"v_add_u32 v{t}, s{S_T2}, v{V_T}")
    A(f"v_lshlrev_b32 v{t}, 7, v{t}")
    A(f"v_lshrrev_b32 v{t+1}, 1, v{V_T}")
    for j in range(3):
        A(f"v_lshlrev_b32 v{t+2}, 3, v{V_G}")
        A(f"v_add_u32 v{t+2}, s{S_T}, v{t+2}")
        if j: A(f"v_add_u32 v{t+2}, {32*j}, v{t+2}")
        A(f"v_lshrrev_b32 v{t+3}, 7, v{t+2}")
        A(f"v_lshl_add_u32 v{t+3}, v{t+3}, 13, v{t}")
        A(f"v_bfe_u32 v{t+4}, v{t+2}, 4, 3")
        A(f"v_xor_b32 v{t+4}, v{t+4}, v{t+1}")
        A(f"v_lshl_add_u32 v{t+3}, v{t+4}, 4, v{t+3}")
        A(f"v_and_b32 v{t+2}, 8, v{t+2}")
        A(f"v_add_u32 v{t+3}, v{t+3}, v{t+2}")
        A(f"ds_read_b64 {vr(XRES+2*j,2)}, v{t+3}")

def stage_rows(A, base, vals):
    t = GT + 8
    A(f"s_lshl_b32 s{S_T}, s{S_TG}, 4")
    A(f"v_add_u32 v{t}, s{S_T}, v{V_T}")
    A(f"v_mul_u32_u24 v{t}, 144, v{t}")
    A(f"v_lshl_add_u32 v{t}, v{V_G}, 3, v{t}")
    A(f"s_mul_i32 s{S_T}, s{S_FH}, 96")
    A(f"s_add_u32 s{S_T}, s{S_T}, {base}")
    A(f"v_add_u32 v{t}, s{S_T}, v{t}")
    return t

def q_epilogue(A, nt):
    ad = stage_rows(A, QS, None)
    A(f"s_mov_b32 s{S_T}, {f32(QSCALE)}")
    t = GT
    for j in range(nt):
        a_ = ACC + 4 * j; d = AF + 2 * j
        for r in range(4): A(f"v_mul_f32 v{t+r}, s{S_T}, v{a_+r}")
        A(f"v_cvt_pk_bf16_f32 v{d}, v{t}, v{t+1}")
        A(f"v_cvt_pk_bf16_f32 v{d+1}, v{t+2}, v{t+3}")
        last = (nt == 2 and j == 1)
        if last:
            A(f"v_cmp_gt_u32 vcc, 2, v{V_G}")
            A(f"s_and_saveexec_b64 s[{S_EX}:{S_EX+1}], vcc")
        A(f"ds_write_b64 v{ad}, {vr(d,2)} offset:{32*j}")
        if last: A(f"s_mov_b64 exec, s[{S_EX}:{S_EX+1}]")
```

```python
from fcommon import *

V_LANE = 0
VX0, VX1, VW, VL16 = 1, 2, 3, 6
HT = 8
S_H = 39

def setup(A):
    t = HT
    A(f"v_lshrrev_b32 v{t}, 3, v{V_LANE}")
    A(f"v_mul_u32_u24 v{t}, {ROWB}, v{t}")
    A(f"v_and_b32 v{t+1}, 7, v{V_LANE}")
    A(f"v_lshrrev_b32 v{t+2}, 4, v{V_LANE}")
    A(f"v_xor_b32 v{t+1}, v{t+1}, v{t+2}")
    A(f"v_lshl_add_u32 v{VX0}, v{t+1}, 4, v{t}")
    A(f"v_xor_b32 v{VX1}, 64, v{VX0}")
    for k in range(3):
        if k < 2:
            A(f"s_lshl_b32 s{S_T}, s{S_H}, 7"); A(f"s_add_u32 s{S_T}, s{S_T}, {64*k}")
            A(f"v_add_u32 v{t}, s{S_T}, v{V_LANE}")
        else:
            A(f"v_add_u32 v{t}, 512, v{V_LANE}")
        A(f"v_mul_u32_u24 v{t+1}, 7282, v{t}")
        A(f"v_lshrrev_b32 v{t+1}, 16, v{t+1}")
        A(f"v_mul_u32_u24 v{t+2}, 9, v{t+1}")
        A(f"v_sub_u32 v{t+2}, v{t}, v{t+2}")
        A(f"v_and_b32 v{t+3}, 0x38, v{t+1}")
        A(f"v_and_b32 v{t+4}, 1, v{t+1}")
        A(f"v_lshl_add_u32 v{t+3}, v{t+4}, 2, v{t+3}")
        A(f"v_bfe_u32 v{t+4}, v{t+1}, 1, 2")
        A(f"v_add_u32 v{t+3}, v{t+3}, v{t+4}")
        A(f"v_mul_u32_u24 v{t+3}, {ROWB}, v{t+3}")
        A(f"v_lshl_add_u32 v{VW+k}, v{t+2}, 4, v{t+3}")
    A(f"v_lshlrev_b32 v{VL16}, 4, v{V_LANE}")

def dma(A, vreg, srd_i, ssoff, m0_expr, sc1=False):
    A(m0_expr)
    A("s_nop 0")
    A(f"buffer_load_dwordx4 v{vreg}, {srd(srd_i)}, s{ssoff} offen{' sc1' if sc1 else ''} lds")

def issue_x(A, vm, chunks, sc1, tagf, xb=XB):
    for cc in chunks:
        for o in range(2):
            A(f"s_mul_i32 s{S_T}, s{S_H}, {16*ROWB}")
            A(f"s_add_u32 s{S_T}, s{S_T}, s{S_T3}")
            A(f"s_add_u32 s{S_T}, s{S_T}, {o*8*ROWB + cc*128}")
            A(f"s_lshl_b32 s{S_T2}, s{S_H}, 11")
            dma(A, VX0 + o, SRD_A, S_T, f"s_add_u32 m0, s{S_T2}, {xb + cc*8192 + o*1024}", sc1)
            vm.issue(tagf(cc))

def issue_w(A, vm, h3, reps, tagf, wb=WB):
    for a_ in reps:
        A(f"s_mul_i32 s{S_T}, s{S_HG}, 144")
        A(f"s_add_u32 s{S_T}, s{S_T}, {a_*64*ROWB}")
        for k in range(3 if h3 else 2):
            if k < 2:
                A(f"s_lshl_b32 s{S_T2}, s{S_H}, 11")
                dma(A, VW + k, SRD_W, S_T, f"s_add_u32 m0, s{S_T2}, {wb + (9*a_ + k)*1024}")
            else:
                dma(A, VW + 2, SRD_W, S_T, f"s_mov_b32 m0, {wb + (9*a_ + 8)*1024}")
            vm.issue(tagf(a_))

def poll(A, voff, nlanes, cmpval, name, ge=False):
    t = HT
    skip = A.newlabel(name + "skip"); lp = A.newlabel(name + "lp"); done = A.newlabel(name + "ok")
    A(f"s_cmp_lg_u32 s{S_H}, 0"); A(f"s_cbranch_scc1 {skip}")
    voff(A, t)
    A(f"s_mov_b32 s80, 0")
    A.label(lp)
    A(f"buffer_load_dword v{t+1}, v{t}, {srd(SRD_WS)}, 0 offen sc1")
    A("s_waitcnt vmcnt(0)")
    A(f"v_mov_b32 v{t+2}, {cmpval}")
    A(f"v_cmp_{'le' if ge else 'eq'}_u32 vcc, v{t+2}, v{t+1}")
    A("s_nop 1")
    A("s_cmp_eq_u64 vcc, exec") if False else None
    A(f"s_not_b64 s[82:83], vcc")
    A(f"s_cmp_eq_u64 s[82:83], 0")
    A(f"s_cbranch_scc1 {done}")
    A("s_sleep 2")
    A(f"s_add_u32 s80, s80, 1")
    A(f"s_cmp_lt_u32 s80, 0x80000"); A(f"s_cbranch_scc1 {lp}")
    A.label(done)
    A.label(skip)

def kv_pieces():
    st0 = list(range(0, 14)) + list(range(74, 88))
    order0 = [x for pair in zip(range(0, 14), range(74, 88)) for x in pair]
    rest_a = list(range(14, 74)); rest_b = list(range(88, 148))
    order1 = [x for pair in zip(rest_a, rest_b) for x in pair]
    return order0, order1

def issue_kv(A, vm, pieces, tag):
    for u in range(0, len(pieces), 4):
        grp = pieces[u:u + 4]
        a_, b_ = grp[0], grp[1]
        assert grp == [a_, b_, a_ + 1, b_ + 1], grp
        A(f"s_mov_b32 s{S_T}, {a_*1024}")
        A(f"s_mov_b32 s{S_T2}, {b_*1024}")
        A(f"s_bitcmp1_b32 s{S_H}, 0")
        A(f"s_cselect_b32 s{S_T}, s{S_T2}, s{S_T}")
        A(f"s_lshr_b32 s{S_T2}, s{S_H}, 1"); A(f"s_lshl_b32 s{S_T2}, s{S_T2}, 10")
        A(f"s_add_u32 s{S_T}, s{S_T}, s{S_T2}")
        dma(A, VL16, SRD_KV, S_T, f"s_mov_b32 m0, s{S_T}", sc1=True)
        vm.issue(tag)

F_W = 24
F_X = 96
F_KEY = 148
F_A = 152
F_ACC = 160
S_M, S_KH, S_SL = 84, 85, 86

def lds_sync(A, idx, name):
    t = HT + 12
    A("s_waitcnt lgkmcnt(0)")
    A(f"v_mov_b32 v{t}, {L_CNT + 4*idx}")
    A(f"v_mov_b32 v{t+1}, 1")
    A(f"s_mov_b64 s[{S_EX}:{S_EX+1}], exec")
    A("s_mov_b64 exec, 1")
    A(f"ds_add_u32 v{t}, v{t+1}")
    A(f"s_mov_b64 exec, s[{S_EX}:{S_EX+1}]")
    lp = A.newlabel(name); done = A.newlabel(name + "d")
    A(f"s_mov_b32 s80, 0")
    A.label(lp)
    A(f"ds_read_b32 v{t+1}, v{t}")
    A("s_waitcnt lgkmcnt(0)")
    A(f"v_readfirstlane_b32 s81, v{t+1}")
    A(f"s_cmp_ge_u32 s81, 4"); A(f"s_cbranch_scc1 {done}")
    A("s_sleep 1")
    A(f"s_add_u32 s80, s80, 1")
    A(f"s_cmp_lt_u32 s80, 0x100000"); A(f"s_cbranch_scc1 {lp}")
    A.label(done)

def wait_released(A):
    t = HT + 12
    lp = A.newlabel("rel"); done = A.newlabel("reld")
    A(f"v_mov_b32 v{t}, {L_CNT + 12}")
    A(f"s_mov_b32 s80, 0")
    A.label(lp)
    A(f"ds_read_b32 v{t+1}, v{t}")
    A("s_waitcnt lgkmcnt(0)")
    A(f"v_readfirstlane_b32 s81, v{t+1}")
    A(f"s_cmp_ge_u32 s81, 512"); A(f"s_cbranch_scc1 {done}")
    A("s_sleep 16")
    A(f"s_add_u32 s80, s80, 1")
    A(f"s_cmp_lt_u32 s80, 0x400000"); A(f"s_cbranch_scc1 {lp}")
    A.label(done)

def select_top2(A):
    t = HT
    m1, m2 = t, t + 1
    A(f"v_max_u32 v{m1}, v{F_KEY}, v{F_KEY+1}")
    A(f"v_min_u32 v{m2}, v{F_KEY}, v{F_KEY+1}")
    for i in range(2, 4):
        A(f"v_med3_u32 v{m2}, v{m1}, v{m2}, v{F_KEY+i}")
        A(f"v_max_u32 v{m1}, v{m1}, v{F_KEY+i}")
    def wave_max(reg, sdst):
        A(f"v_mov_b32 v{t+2}, v{reg}")
        for sh in (1, 2, 4, 8):
            A(f"v_max_u32_dpp v{t+2}, v{t+2}, v{t+2} row_ror:{sh} row_mask:0xf bank_mask:0xf")
        A(f"v_readlane_b32 s{sdst}, v{t+2}, 0")
        for ln in (16, 32, 48):
            A(f"v_readlane_b32 s{S_T}, v{t+2}, {ln}")
            A(f"s_max_u32 s{sdst}, s{sdst}, s{S_T}")
    wave_max(m1, 80)
    A(f"v_cmp_eq_u32 vcc, s80, v{m1}")
    A(f"v_cndmask_b32 v{m1}, v{m1}, v{m2}, vcc")
    wave_max(m1, 81)
    for j in range(2):
        A(f"s_and_b32 s{S_T}, s{80+j}, 0xffff")
        A(f"s_sub_u32 s{S_IDX0+j}, 0xffff, s{S_T}")
        A(f"s_min_u32 s{S_IDX0+j}, s{S_IDX0+j}, {S_TOK-1}")
    nosel = A.newlabel("nosel")
    A(f"s_cmp_lg_u32 s{S_H}, 0"); A(f"s_cbranch_scc1 {nosel}")
    A(f"v_mov_b32 v{t}, s80"); A(f"v_mov_b32 v{t+1}, s81")
    A(f"v_cmp_eq_u32 vcc, 1, v{V_LANE}")
    A(f"v_cndmask_b32 v{t}, v{t}, v{t+1}, vcc")
    A(f"v_lshrrev_b32 v{t+1}, 16, v{t}")
    A(f"v_xor_b32 v{t+2}, 0x8000, v{t+1}")
    A(f"v_xor_b32 v{t+3}, 0xffff, v{t+1}")
    A(f"v_cmp_lt_u32 vcc, 0x7fff, v{t+1}")
    A(f"v_cndmask_b32 v{t+1}, v{t+3}, v{t+2}, vcc")
    A(f"v_lshlrev_b32 v{t+1}, 16, v{t+1}")
    A(f"v_mul_f32 v{t+1}, {f32(-LOG2E)}, v{t+1}")
    A(f"v_exp_f32 v{t+1}, v{t+1}")
    A(f"v_add_f32 v{t+1}, 1.0, v{t+1}")
    A(f"v_rcp_f32 v{t+1}, v{t+1}")
    A(f"v_cvt_pk_bf16_f32 v{t+1}, v{t+1}, v{t+1}")
    A(f"v_and_b32 v{t+1}, 0xffff0000, v{t+1}")
    A(f"v_and_b32 v{t}, 0xffff, v{t}")
    A(f"v_sub_u32 v{t}, 0xffff, v{t}")
    A(f"v_min_u32 v{t}, {S_TOK-1}, v{t}")
    A(f"v_lshlrev_b32 v{t+2}, 2, v{V_LANE}")
    A(f"v_add_u32 v{t+2}, {L_SEL}, v{t+2}")
    A(f"v_cmp_gt_u32 vcc, 2, v{V_LANE}")
    A(f"s_and_saveexec_b64 s[{S_EX}:{S_EX+1}], vcc")
    A(f"ds_write_b32 v{t+2}, v{t}")
    A(f"ds_write_b32 v{t+2}, v{t+1} offset:8")
    A(f"s_mov_b64 exec, s[{S_EX}:{S_EX+1}]")
    A.label(nosel)

def ffn(A):
    t = HT; WS = srd(SRD_WS)
    FT, FG = t + 14, t + 15
    A(f"v_and_b32 v{FT}, 15, v{V_LANE}"); A(f"v_lshrrev_b32 v{FG}, 4, v{V_LANE}")
    A(f"s_and_b32 s{S_M}, s{S_H}, 1"); A(f"s_lshr_b32 s{S_KH}, s{S_H}, 1")
    A(f"s_cmp_eq_u32 s{S_M}, 0")
    A(f"s_cselect_b32 s{SRD_E}, s{S_WG}, s{S_WU}")
    A(f"s_cselect_b32 s{SRD_E+1}, s{S_WG+1}, s{S_WU+1}")
    A(f"s_and_b32 s{SRD_E+1}, s{SRD_E+1}, 0xffff")
    A(f"s_mov_b32 s{SRD_E+2}, {D*F*2}"); A(f"s_mov_b32 s{SRD_E+3}, 0x20000")
    mk_srd(A, SRD_F, S_WD, F * ROWB)
    A(f"v_lshrrev_b32 v{t}, 2, v{V_LANE}")
    A(f"v_and_b32 v{t+1}, 3, v{V_LANE}")
    A(f"v_lshlrev_b32 v{t+1}, 4, v{t+1}")
    A(f"v_mul_u32_u24 v{t+2}, {ROWB}, v{t}")
    A(f"v_add_u32 v{t+2}, v{t+2}, v{t+1}")
    A(f"v_mul_u32_u24 v{t}, {F*2}, v{t}")
    A(f"v_add_u32 v{t}, v{t}, v{t+1}")
    A(f"s_mul_i32 s{S_T}, s{S_KH}, {9*32*F*2}")
    A(f"s_lshl_b32 s{S_T2}, s{S_SL}, 6")
    A(f"s_add_u32 s{S_T}, s{S_T}, s{S_T2}")
    for s_ in range(9):
        for hf in range(2):
            A(f"buffer_load_dwordx4 {vr(F_W+8*s_+4*hf,4)}, v{t}, {srd(SRD_E)}, s{S_T} offen")
            A(f"s_add_u32 s{S_T}, s{S_T}, {16*F*2}")
    A(f"v_mov_b32 v{t}, s{S_IDX0}"); A(f"v_mov_b32 v{t+1}, s{S_IDX1}")
    A(f"v_cmp_eq_u32 vcc, 1, v{FT}")
    A(f"v_cndmask_b32 v{t}, v{t}, v{t+1}, vcc")
    A(f"v_mul_u32_u24 v{t}, {ROWB}, v{t}")
    A(f"v_lshl_add_u32 v{t}, v{FG}, 4, v{t}")
    A(f"s_mul_i32 s{S_T}, s{S_KH}, {9*64}")
    for s_ in range(9):
        A(f"buffer_load_dwordx4 {vr(F_X+4*s_,4)}, v{t}, {srd(SRD_A)}, s{S_T} offen offset:{64*s_}")
    wr, r1 = t + 3, t + 4
    A(f"s_lshl_b32 s{S_T}, s{S_H}, 11"); A(f"s_add_u32 s{S_T}, s{S_T}, {H_STG}")
    A(f"v_add_u32 v{wr}, s{S_T}, v{VL16}")
    A(f"v_bfe_u32 v{t+5}, v{V_LANE}, 2, 2")
    A(f"v_lshl_add_u32 v{t+5}, v{FG}, 3, v{t+5}")
    A(f"v_and_b32 v{t+6}, 3, v{V_LANE}")
    A(f"v_lshlrev_b32 v{t+6}, 3, v{t+6}")
    A(f"v_lshl_add_u32 v{r1}, v{t+5}, 6, v{t+6}")
    A(f"v_add_u32 v{r1}, s{S_T}, v{r1}")
    def through_lds(src, ntile):
        A(f"ds_write_b128 v{wr}, {vr(src,4)}")
        A(f"ds_write_b128 v{wr}, {vr(src+4,4)} offset:1024")
        A("s_waitcnt lgkmcnt(0)")
        for tile in range(ntile):
            for q in range(2):
                A(f"ds_read_b64_tr_b16 {vr(F_A+4*tile+2*q,2)}, v{r1} offset:{32*tile + 256*q}")
        A("s_waitcnt lgkmcnt(0)")
    A("s_waitcnt vmcnt(0)")
    for s_ in range(9):
        through_lds(F_W + 8 * s_, 2)
        for tile in range(2):
            c = "0" if s_ == 0 else vr(F_ACC + 4 * tile, 4)
            A(f"v_mfma_f32_16x16x32_bf16 {vr(F_ACC+4*tile,4)}, {vr(F_A+4*tile,4)}, {vr(F_X+4*s_,4)}, {c}")
        if s_ == 4:
            A(f"s_mul_i32 s{S_T}, s{S_SL}, {32*ROWB}")
            A(f"s_mul_i32 s{S_T2}, s{S_H}, 288")
            A(f"s_add_u32 s{S_T}, s{S_T}, s{S_T2}")
            A(f"s_add_u32 s{S_T2}, s{S_T}, {16*ROWB}")
            for rd in range(5):
                A(f"buffer_load_dwordx4 {vr(F_W+8*rd,4)}, v{t+2}, {srd(SRD_F)}, s{S_T} offen offset:{64*rd}")
                A(f"buffer_load_dwordx4 {vr(F_W+8*rd+4,4)}, v{t+2}, {srd(SRD_F)}, s{S_T2} offen offset:{64*rd}")
    A("s_nop 7")
    A(f"v_lshlrev_b32 v{t+5}, 1, v{FG}")
    A(f"v_add_u32 v{t+5}, v{t+5}, v{FT}")
    A(f"v_lshlrev_b32 v{t+5}, 4, v{t+5}")
    A(f"v_add_u32 v{t+7}, {H_RED}, v{t+5}")
    A(f"s_lshl_b32 s{S_T}, s{S_H}, 8")
    A(f"v_add_u32 v{t+6}, s{S_T}, v{t+7}")
    A(f"v_cmp_gt_u32 vcc, 2, v{FT}")
    A(f"s_and_saveexec_b64 s[{S_EX}:{S_EX+1}], vcc")
    A(f"ds_write_b128 v{t+6}, {vr(F_ACC,4)}")
    A(f"ds_write_b128 v{t+6}, {vr(F_ACC+4,4)} offset:128")
    A(f"s_mov_b64 exec, s[{S_EX}:{S_EX+1}]")
    lds_sync(A, 0, "hs0")
    noh = A.newlabel("noh")
    A(f"s_cmp_lg_u32 s{S_H}, 0"); A(f"s_cbranch_scc1 {noh}")
    B0 = F_X
    A(f"v_cmp_gt_u32 vcc, 2, v{FT}")
    A(f"s_and_saveexec_b64 s[{S_EX}:{S_EX+1}], vcc")
    for tile in range(2):
        for w in range(4):
            A(f"ds_read_b128 {vr(B0+16*tile+4*w,4)}, v{t+7} offset:{256*w + 128*tile}")
    A("s_waitcnt lgkmcnt(0)")
    for tile in range(2):
        b = B0 + 16 * tile
        for r in range(4):
            gq = b + r; uq = b + 4 + r
            A(f"v_add_f32 v{gq}, v{gq}, v{b+8+r}")
            A(f"v_add_f32 v{uq}, v{uq}, v{b+12+r}")
            A(f"v_cvt_pk_bf16_f32 v{gq}, v{gq}, v{uq}")
            A(f"v_and_b32 v{uq}, 0xffff0000, v{gq}")
            A(f"v_lshlrev_b32 v{gq}, 16, v{gq}")
            A(f"v_mul_f32 v{b+8+r}, {f32(-LOG2E)}, v{gq}")
            A(f"v_exp_f32 v{b+8+r}, v{b+8+r}")
            A(f"v_add_f32 v{b+8+r}, 1.0, v{b+8+r}")
            A(f"v_rcp_f32 v{b+8+r}, v{b+8+r}")
            A(f"v_mul_f32 v{gq}, v{gq}, v{b+8+r}")
            A(f"v_cvt_pk_bf16_f32 v{gq}, v{gq}, v{gq}")
            A(f"v_and_b32 v{gq}, 0xffff0000, v{gq}")
            A(f"v_mul_f32 v{gq}, v{gq}, v{uq}")
        A(f"v_cvt_pk_bf16_f32 v{b}, v{b}, v{b+1}")
        A(f"v_cvt_pk_bf16_f32 v{b+1}, v{b+2}, v{b+3}")
    A(f"v_lshlrev_b32 v{t+5}, 6, v{FT}")
    A(f"v_lshl_add_u32 v{t+5}, v{FG}, 3, v{t+5}")
    A(f"v_add_u32 v{t+5}, {H_H}, v{t+5}")
    A(f"ds_write_b64 v{t+5}, {vr(B0,2)}")
    A(f"ds_write_b64 v{t+5}, {vr(B0+16,2)} offset:32")
    A(f"s_mov_b64 exec, s[{S_EX}:{S_EX+1}]")
    A.label(noh)
    lds_sync(A, 1, "hs1")
    A(f"v_and_b32 v{t+5}, 1, v{FT}")
    A(f"v_lshlrev_b32 v{t+5}, 6, v{t+5}")
    A(f"v_lshl_add_u32 v{t+5}, v{FG}, 4, v{t+5}")
    A(f"v_add_u32 v{t+5}, {H_H}, v{t+5}")
    A(f"ds_read_b128 {vr(F_KEY,4)}, v{t+5}")
    A("s_waitcnt vmcnt(0)")
    for rd in range(5):
        nt = 2 if rd < 4 else 1
        through_lds(F_W + 8 * rd, nt)
        for tile in range(nt):
            A(f"v_mfma_f32_16x16x32_bf16 {vr(F_X+4*(2*rd+tile),4)}, {vr(F_A+4*tile,4)}, {vr(F_KEY,4)}, 0")
    A("s_nop 7")
    A(f"s_and_b32 s{S_T}, s2, {Y_REP-1}")
    A(f"s_mul_i32 s{S_T}, s{S_T}, {2*D*4}")
    A(f"s_mul_i32 s{S_T2}, s{S_H}, {144*4}")
    A(f"s_add_u32 s{S_T}, s{S_T}, s{S_T2}")
    A(f"s_add_u32 s{S_T}, s{S_T}, {FW_YACC}")
    A(f"v_mul_u32_u24 v{t+5}, {D*4}, v{FT}")
    A(f"v_lshl_add_u32 v{t+5}, v{FG}, 4, v{t+5}")
    A(f"v_cmp_gt_u32 vcc, 2, v{FT}")
    A(f"s_and_saveexec_b64 s[{S_EX}:{S_EX+1}], vcc")
    for tile in range(9):
        for r in range(4):
            A(f"buffer_atomic_add_f32 v{F_X+4*tile+r}, v{t+5}, {WS}, s{S_T} offen offset:{64*tile+4*r}")
    A(f"s_mov_b64 exec, s[{S_EX}:{S_EX+1}]")
    A("s_waitcnt vmcnt(0)")
    lds_sync(A, 2, "hs2")
    nof = A.newlabel("nof")
    A(f"s_cmp_lg_u32 s{S_H}, 0"); A(f"s_cbranch_scc1 {nof}")
    A(f"v_mov_b32 v{t}, {FW_FFNC}"); A(f"v_mov_b32 v{t+1}, 1")
    A("s_mov_b64 exec, 1")
    A(f"buffer_atomic_add v{t+1}, v{t}, {WS}, 0 offen sc1")
    A("s_mov_b64 exec, -1")
    A.label(nof)
```

```python
from fcommon import *
from f_gemm import *
import f_attn

def out_epilogue(A, R, nt):
    t = GT; WS = srd(SRD_WS)
    g = GATE; og = GT + 16
    X = AF
    A(f"v_sub_f32 v{og}, 1.0, v{g}")
    A(f"v_cvt_pk_bf16_f32 v{og}, v{og}, v{og}")
    A(f"v_and_b32 v{og}, 0xffff0000, v{og}")
    for j in range(nt):
        for q in range(2):
            src = XRES + 2 * j + q; d = X + 4 * j + 2 * q
            A(f"v_lshlrev_b32 v{d}, 16, v{src}")
            A(f"v_and_b32 v{d+1}, 0xffff0000, v{src}")
    A(f"v_mov_b32 v{t}, {L_SEL}")
    A(f"ds_read_b128 {vr(t+4,4)}, v{t}")
    A("s_waitcnt lgkmcnt(0)")
    for e in range(4): A(f"v_readfirstlane_b32 s{80+e}, v{t+4+e}")
    for jr in range(2):
        skip = A.newlabel("nort")
        A(f"s_lshl_b32 s{S_T}, s{S_TG}, 4")
        A(f"s_add_u32 s{S_T}, s{S_T}, s{S_ROW0}")
        A(f"s_sub_u32 s84, s{80+jr}, s{S_T}")
        A(f"s_cmp_lt_u32 s84, 16")
        A(f"s_cbranch_scc0 {skip}")
        lp = A.newlabel("ypoll"); ldone = A.newlabel("ydone")
        A(f"s_mov_b32 s85, 0")
        A(f"v_mov_b32 v{t}, {FW_FFNC}")
        A.label(lp)
        A(f"buffer_load_dword v{t+1}, v{t}, {WS}, 0 offen sc1")
        A("s_waitcnt vmcnt(0)")
        A(f"v_readfirstlane_b32 s86, v{t+1}")
        A(f"s_cmp_ge_u32 s86, 144"); A(f"s_cbranch_scc1 {ldone}")
        A("s_sleep 8")
        A(f"s_add_u32 s85, s85, 1")
        A(f"s_cmp_lt_u32 s85, 0x40000"); A(f"s_cbranch_scc1 {lp}")
        A.label(ldone)
        A(f"s_mul_i32 s{S_T2}, s{S_HG}, 288")
        A(f"s_mul_i32 s{S_T3}, s{S_FH}, 192")
        A(f"s_add_u32 s{S_T2}, s{S_T2}, s{S_T3}")
        A(f"s_add_u32 s{S_T2}, s{S_T2}, {FW_YACC + jr*D*4}")
        A(f"v_lshlrev_b32 v{t}, 4, v{V_G}")
        A(f"v_add_u32 v{t}, s{S_T2}, v{t}")
        Y = 16 + 24
        for j in range(nt):
            for rp in range(Y_REP):
                A(f"s_mov_b32 s{S_T2}, {rp*2*D*4}")
                A(f"buffer_load_dwordx4 {vr(Y+4*rp,4)}, v{t}, {WS}, s{S_T2} offen offset:{64*j} sc1")
            A("s_waitcnt vmcnt(0)")
            for rp in range(1, Y_REP):
                for r in range(4): A(f"v_add_f32 v{Y+r}, v{Y+r}, v{Y+4*rp+r}")
            A(f"v_cmp_eq_u32 vcc, s84, v{V_T}")
            for r in range(4):
                y = Y + r; x = X + 4 * j + r
                A(f"v_cvt_pk_bf16_f32 v{y}, v{y}, v{y}")
                A(f"v_and_b32 v{y}, 0xffff0000, v{y}")
                A(f"v_mul_f32 v{y}, s{82+jr}, v{y}")
                A(f"v_cvt_pk_bf16_f32 v{y}, v{y}, v{y}")
                A(f"v_and_b32 v{y}, 0xffff0000, v{y}")
                A(f"v_add_f32 v{y}, v{x}, v{y}")
                A(f"v_cvt_pk_bf16_f32 v{y}, v{y}, v{y}")
                A(f"v_and_b32 v{y}, 0xffff0000, v{y}")
                A(f"v_cndmask_b32 v{x}, v{x}, v{y}, vcc")
        A.label(skip)
    ad = stage_rows(A, OSTG, None)
    for j in range(nt):
        a_ = ACC + 4 * j; x = X + 4 * j; d = GT + 2 * j
        for r in range(4):
            A(f"v_mul_f32 v{x+r}, v{og}, v{x+r}")
            A(f"v_fma_f32 v{x+r}, v{g}, v{a_+r}, v{x+r}")
        A(f"v_cvt_pk_bf16_f32 v{d}, v{x}, v{x+1}")
        A(f"v_cvt_pk_bf16_f32 v{d+1}, v{x+2}, v{x+3}")
        last = (nt == 2 and j == 1)
        if last:
            A(f"v_cmp_gt_u32 vcc, 2, v{V_G}")
            A(f"s_and_saveexec_b64 s[{S_EX}:{S_EX+1}], vcc")
        A(f"ds_write_b64 v{ad}, {vr(d,2)} offset:{32*j}")
        if last: A(f"s_mov_b64 exec, s[{S_EX}:{S_EX+1}]")
    A("s_waitcnt lgkmcnt(0)")

def out_phase(A, R):
    gemm_addresses(A, XB3, WB3)
    lf = A.newlabel("p3f1"); le = A.newlabel("p3e")
    bars0 = list(R.bars)
    A(f"s_cmp_eq_u32 s{S_FH}, 0"); A(f"s_cbranch_scc0 {lf}")
    for nt in (3, 2):
        if nt == 2:
            A.label(lf); R.bars = list(bars0)
        for q in range(3):
            R.bar(f"bX{q}")
            gemm_steps(A, list(range(6 * q, 6 * q + 6)), nt, True)
        A("s_nop 7")
        out_epilogue(A, R, nt)
        if nt == 3: A(f"s_branch {le}")
    A.label(le)
    R.bar("B7")
    def sbase(A):
        A(f"s_mul_i32 s{S_T}, s{S_ROW0}, {ROWB}")
        A(f"s_mul_i32 s{S_T2}, s{S_HG}, 144")
        A(f"s_add_u32 s{S_T}, s{S_T}, s{S_T2}")
    f_attn.store_rows(A, SRD_OUT, sbase, False)
```

```python
from common import *
import os

FW_KV   = 0
TB_BYTES = 4736
TB_KEXT = 2048
TB_V    = 2304
KV_IMG  = 32 * TB_BYTES
FW_KN   = KV_IMG
FW_G    = FW_KN + 256
FW_KEYS = FW_G + 8192
FW_YACC = FW_KEYS + 1024
FW_FLAG = (FW_YACC + Y_REP * 2 * D * 4 + 255) // 256 * 256
FL_GRP  = 128
FW_FFNC = FW_FLAG + 32 * 256
FW_O    = (FW_FFNC + 128 + 4095) // 4096 * 4096
FW_SIZE = FW_O + S_TOK * ROWB
DBG_INIT = 0
FL_K, FL_V, FL_G = 0, 32, 64
XB = 0
WB = 73728
W_STEP = 32 * 144
E2B = WB + 12 * W_STEP
E3B = E2B + 576 * 32
STG = WB + 18 * W_STEP
STG_N = STG + 2560
QS = WB
XB3, WB3 = 82944, 0
PSLOT = XB3
OSTG = XB3 + 32768
H_STG = KV_IMG
H_RED = H_STG + 8192
H_H = H_RED + 1024
L_CNT = 163584
L_SEL = 163600
LDS_BYTES = 163840
OOR = 0x30000

S_WAVE, S_TB, S_HG = 33, 34, 35
S_T, S_T2, S_T3 = 36, 37, 38
S_TG, S_FH, S_ROW0 = 39, 40, 41
S_IDX0, S_IDX1 = 42, 43
SRD_A, SRD_W, SRD_WS, SRD_E, SRD_KV, SRD_OUT, SRD_DBG, SRD_F = 44, 48, 52, 56, 60, 64, 68, 72
S_EX = 76

def srd(i): return f"s[{i}:{i+3}]"

class Role:
    def __init__(self, A): self.A = A; self.bars = []
    def bar(self, name):
        self.bars.append(name)
        self.A(f"s_barrier ; {name}")

STOP = os.environ.get("STOP", "")
```

```python
from fcommon import *
import sys
import f_gemm as G, f_attn as AT, f_out as FO, f_help as HP

NWAVES = 12

def stop_here(A, name):
    if STOP == name:
        A("s_waitcnt vmcnt(0) lgkmcnt(0)")
        A("s_endpgm")
        return True
    return False

def compute_p1(A, R, duty):
    if duty:
        if duty in ("k", "v"):
            mk_srd(A, SRD_E, S_WK if duty == "k" else S_WV, 576 * 36)
        else:
            mk_srd(A, SRD_E, S_GW, ROWB); mk_srd(A, SRD_F, S_WR, ROWB)
        G.duty_loads(A, duty)
    G.gemm_addresses(A)
    if duty:
        G.duty_addresses(A)
        G.duty_writes(A, duty)
    A("s_waitcnt lgkmcnt(0)")
    R.bar("b1")
    pstamp(A, 1, "p1")
    G.residual_x(A)
    if duty:
        {"k": G.k_stage, "v": G.v_stage, "g": G.g_stage}[duty](A)
        A("s_waitcnt lgkmcnt(0)")
        R.bar("b2")
        pstamp(A, 2, "p1")
        np_ = A.newlabel("nopub")
        A(f"s_cmp_lg_u32 s{S_WAVE}, 0"); A(f"s_cbranch_scc1 {np_}")
        G.publish(A, duty)
        A.label(np_)
    lf = A.newlabel("p1f1"); le = A.newlabel("p1e")
    bars0 = list(R.bars)
    A(f"s_cmp_eq_u32 s{S_FH}, 0"); A(f"s_cbranch_scc0 {lf}")
    stages = [list(range(0, 4)), list(range(4, 8)), list(range(8, 12)), list(range(12, 18))]
    for nt in (3, 2):
        if nt == 2:
            A.label(lf); R.bars = list(bars0)
        for q, steps in enumerate(stages):
            if q == 3 and duty and nt == 3:
                nf = A.newlabel("noflag")
                A(f"s_cmp_lg_u32 s{S_WAVE}, 0"); A(f"s_cbranch_scc1 {nf}")
                pstamp(A, 3, "p1")
                G.raise_flag(A, duty)
                pstamp(A, 4, "p1")
                A.label(nf)
            R.bar(f"bW{q}")
            if q == 3: pstamp(A, 5, "p1")
            G.gemm_steps(A, steps, nt, True)
        A("s_nop 7")
        G.q_epilogue(A, nt)
        if nt == 3: A(f"s_branch {le}")
    A.label(le)
    A("s_waitcnt lgkmcnt(0)")
    R.bar("bQ")

def compute_role(A):
    R = Role(A)
    A(f"s_and_b32 s{S_TG}, s{S_WAVE}, 3"); A(f"s_lshr_b32 s{S_FH}, s{S_WAVE}, 2")
    G.lane_setup(A)
    A(f"v_mov_b32 v{G.GT}, {L_CNT}"); A(f"v_mov_b32 v{G.GT+2}, 0"); A(f"v_mov_b32 v{G.GT+3}, 0")
    A(f"v_mov_b32 v{G.GT+4}, 0"); A(f"v_mov_b32 v{G.GT+5}, 0")
    A(f"ds_write_b128 v{G.GT}, {vr(G.GT+2,4)}")
    G.clear_flag_lines(A)
    lk = A.newlabel("dk"); lv = A.newlabel("dv"); lg = A.newlabel("dg"); lj = A.newlabel("dj")
    A(f"s_cmp_eq_u32 s{S_HG}, 0"); A(f"s_cbranch_scc1 {lk}")
    A(f"s_cmp_eq_u32 s{S_HG}, 1"); A(f"s_cbranch_scc1 {lv}")
    A(f"s_cmp_eq_u32 s{S_HG}, 2"); A(f"s_cbranch_scc1 {lg}")
    seqs = {}
    for duty, lab in ((None, None), ("k", lk), ("v", lv), ("g", lg)):
        if lab: A.label(lab)
        R.bars = []
        compute_p1(A, R, duty)
        seqs[duty] = list(R.bars)
        if duty != "g": A(f"s_branch {lj}")
    A.label(lj)
    R.bars = []
    pstamp(A, 1)
    AT.q_fragments(A)
    AT.lds_addresses(A)
    pstamp(A, 6, "p1")
    R.bar("bKV")
    pstamp(A, 7, "p1")
    if stop_here(A, "p1"): return seqs, R.bars
    t = AT.T
    A(f"v_lshlrev_b32 v{t}, 2, v{G.V_I}")
    A(f"v_add_u32 v{t}, {FW_KN}, v{t}")
    A(f"buffer_load_dword v{t+6}, v{t}, {srd(SRD_WS)}, 0 offen sc1")
    A(f"s_lshl_b32 s{S_T}, s{S_TG}, 4"); A(f"s_add_u32 s{S_T}, s{S_T}, s{S_ROW0}")
    A(f"v_add_u32 v{t+1}, s{S_T}, v{G.V_T}")
    A(f"v_lshlrev_b32 v{t+1}, 2, v{t+1}")
    A(f"v_add_u32 v{t+1}, {FW_G}, v{t+1}")
    A(f"buffer_load_dword v{G.GATE}, v{t+1}, {srd(SRD_WS)}, 0 offen sc1")
    A("s_waitcnt vmcnt(0)")
    AT.range_check(A)
    R.bar("B0")
    pstamp(A, 2)
    lf = A.newlabel("fallback"); le = A.newlabel("attdone")
    A(f"s_cbranch_vccz {lf}")
    b0 = list(R.bars)
    AT.fast_path(A, R)
    A(f"s_branch {le}")
    A.label(lf)
    b1 = list(R.bars); R.bars = list(b0)
    AT.fallback_path(A, R)
    assert R.bars == b1
    A.label(le)
    AT.finish(A, R)
    def sbase(A):
        A(f"s_mul_i32 s{S_T}, s{S_ROW0}, {ROWB}")
        A(f"s_mul_i32 s{S_T2}, s{S_HG}, 144")
        A(f"s_add_u32 s{S_T}, s{S_T}, s{S_T2}")
        A(f"s_add_u32 s{S_T}, s{S_T}, {FW_O}")
    AT.store_rows(A, SRD_WS, sbase, True)
    A("s_waitcnt vmcnt(0)")
    R.bar("B5")
    nf = A.newlabel("nogrp")
    A(f"s_cmp_lg_u32 s{S_WAVE}, 0"); A(f"s_cbranch_scc1 {nf}")
    A(f"s_lshl_b32 s{S_T}, s{S_TB}, 8"); A(f"s_add_u32 s{S_T}, s{S_T}, {FW_FLAG + FL_GRP}")
    A(f"v_mov_b32 v{t}, s{S_T}"); A(f"v_mov_b32 v{t+1}, 1")
    A("s_mov_b64 exec, 1")
    A(f"buffer_atomic_add v{t+1}, v{t}, {srd(SRD_WS)}, 0 offen sc1")
    A("s_mov_b64 exec, -1")
    A.label(nf)
    R.bar("B6")
    if stop_here(A, "attn"): return seqs, R.bars
    FO.out_phase(A, R)
    if STAMPS: A("s_waitcnt vmcnt(0)")
    pstamp(A, 7)
    pstamp_flush(A, S_WAVE, S_WS, WS_STAMP, AT.T)
    A("s_endpgm")
    return seqs, R.bars

def helper_p1(A, R, duty, h3):
    vm = VmTrack()
    A(f"s_mul_i32 s{S_T3}, s{S_ROW0}, {ROWB}")
    HP.issue_x(A, vm, range(9), False, lambda cc: "x")
    HP.issue_w(A, vm, h3, range(6), lambda a_: f"w{a_//2}")
    if not duty: HP.issue_w(A, vm, h3, range(6, 9), lambda a_: "w3")
    A(f"s_waitcnt vmcnt({vm.after('x')})")
    R.bar("b1")
    if duty:
        R.bar("b2")
        HP.issue_w(A, vm, h3, range(6, 9), lambda a_: "w3")
    for q in range(4):
        A(f"s_waitcnt vmcnt({vm.after(f'w{q}')})")
        R.bar(f"bW{q}")
    R.bar("bQ")

def helper_rest(A, R, h3):
    def flag_off(A, t):
        A(f"v_min_u32 v{t}, 23, v{HP.V_LANE}"); A(f"v_lshlrev_b32 v{t}, 2, v{t}")
        A(f"s_lshl_b32 s{S_T}, s{S_TB}, 8"); A(f"s_add_u32 s{S_T}, s{S_T}, {FW_FLAG}")
        A(f"v_add_u32 v{t}, s{S_T}, v{t}")
    pstamp(A, 1)
    HP.poll(A, flag_off, 24, "0x01010101", "kvp")
    pstamp(A, 2)
    R.bar("bKV")
    if stop_here(A, "p1"): return
    vm = VmTrack()
    A(f"s_mov_b32 s{S_T}, {FW_KEYS}")
    A(f"buffer_load_dwordx4 {vr(HP.F_KEY,4)}, v{HP.VL16}, {srd(SRD_WS)}, s{S_T} offen sc1")
    o0, o1 = HP.kv_pieces()
    HP.issue_kv(A, vm, o0, "s0")
    A("s_waitcnt vmcnt(0)")
    R.bar("B0")
    HP.issue_kv(A, vm, o1, "s1")
    HP.select_top2(A)
    A("s_waitcnt vmcnt(0) lgkmcnt(0)")
    R.bar("B1")
    nof = A.newlabel("noffn")
    A(f"s_lshr_b32 s{S_T}, s2, 3")
    A(f"s_cmp_ge_u32 s{S_T}, 18"); A(f"s_cbranch_scc1 {nof}")
    A(f"s_and_b32 s{S_T2}, s2, 7"); A(f"s_mul_i32 s{S_T2}, s{S_T2}, 18")
    A(f"s_add_u32 s{HP.S_SL}, s{S_T2}, s{S_T}")
    pstamp(A, 3)
    HP.ffn(A)
    A.label(nof)
    pstamp(A, 4)
    mk_srd(A, SRD_W, S_WO, D * ROWB)
    mk_srd(A, SRD_A, S_WS, S_TOK * ROWB, add=FW_O)
    vm = VmTrack()
    HP.wait_released(A)
    HP.issue_w(A, vm, h3, range(9), lambda a_: "w", wb=WB3)
    A("s_waitcnt vmcnt(0)")
    R.bar("B2"); R.bar("B3"); R.bar("B4"); R.bar("B5")
    def grp_off(A, t):
        A(f"s_lshl_b32 s{S_T}, s{S_TB}, 8"); A(f"s_add_u32 s{S_T}, s{S_T}, {FW_FLAG + FL_GRP}")
        A(f"v_mov_b32 v{t}, s{S_T}")
    pstamp(A, 5)
    HP.poll(A, grp_off, 1, "8", "grp", ge=True)
    pstamp(A, 6)
    R.bar("B6")
    if stop_here(A, "attn"): return
    vm = VmTrack()
    A(f"s_mul_i32 s{S_T3}, s{S_ROW0}, {ROWB}")
    HP.issue_x(A, vm, range(9), True, lambda cc: f"x{cc//3}", xb=XB3)
    for q in range(3):
        A(f"s_waitcnt vmcnt({vm.after(f'x{q}')})")
        R.bar(f"bX{q}")
    R.bar("B7")
    pstamp(A, 7)
    pstamp_flush(A, S_WAVE, S_WS, WS_STAMP, HP.HT)
    A("s_endpgm")

def helper_role(A):
    R = Role(A)
    A("s_setprio 3")
    A(f"s_sub_u32 s{HP.S_H}, s{S_WAVE}, 8")
    A(f"v_and_b32 v{HP.V_LANE}, 63, v0")
    HP.setup(A)
    l3 = A.newlabel("h3")
    A(f"s_cmp_eq_u32 s{HP.S_H}, 3"); A(f"s_cbranch_scc1 {l3}")
    seqs = {}
    for h3 in (False, True):
        if h3: A.label(l3)
        ld = A.newlabel("hduty"); lj = A.newlabel("hj")
        A(f"s_cmp_lt_u32 s{S_HG}, 3"); A(f"s_cbranch_scc1 {ld}")
        R.bars = []; helper_p1(A, R, False, h3); seqs[None] = list(R.bars)
        A(f"s_branch {lj}")
        A.label(ld)
        R.bars = []; helper_p1(A, R, True, h3); seqs["d"] = list(R.bars)
        A.label(lj)
        R.bars = []
        helper_rest(A, R, h3)
    return seqs, R.bars

def gen(name):
    A = Asm()
    end = "L_end"
    A("s_cmp_ge_u32 s2, 256"); A(f"s_cbranch_scc1 {end}")
    pstamp_init(A); pstamp(A, 0)
    load_kernargs(A)
    A(f"v_lshrrev_b32 v1, 6, v0")
    A(f"v_and_b32 v{G.V_LANE}, 63, v0")
    A(f"v_readfirstlane_b32 s{S_WAVE}, v1")
    A(f"s_and_b32 s{S_T}, s2, 7"); A(f"s_lshr_b32 s{S_T2}, s2, 3")
    A(f"s_and_b32 s{S_HG}, s{S_T2}, 7"); A(f"s_lshr_b32 s{S_T2}, s{S_T2}, 3")
    A(f"s_lshl_b32 s{S_T}, s{S_T}, 2"); A(f"s_add_u32 s{S_TB}, s{S_T}, s{S_T2}")
    A(f"s_lshl_b32 s{S_ROW0}, s{S_TB}, 6")
    A("s_waitcnt lgkmcnt(0)")
    mk_srd(A, SRD_A, S_X, S_TOK * ROWB)
    mk_srd(A, SRD_W, S_WQ, D * ROWB)
    mk_srd(A, SRD_WS, S_WS, FW_SIZE)
    mk_srd(A, SRD_KV, S_WS, KV_IMG, add=FW_KV)
    mk_srd(A, SRD_OUT, S_OUT, S_TOK * ROWB)
    mk_srd(A, SRD_DBG, S_DBG, 256)
    lh = A.newlabel("helper")
    A(f"s_cmp_ge_u32 s{S_WAVE}, 8"); A(f"s_cbranch_scc1 {lh}")
    cs, cb = compute_role(A)
    A.label(lh)
    hs, hb = helper_role(A)
    assert cs[None] == hs[None], (cs[None], hs[None])
    for d in "kvg": assert cs[d] == hs["d"], (cs[d], hs["d"])
    assert cb == hb, (cb, hb)
    A.label(end); A("s_endpgm")
    return A, 168, LDS_BYTES, 64 * NWAVES

def build(out):
    n = NAME + "_kernel"
    A, nv, lds, blk = gen(n)
    hdr = open("cdna_kernels/" + NAME + ".s.ref").read().split("; Override launch")[0]
    txt = hdr + f"; @launch grid=(256,1,1) block=({blk},1,1) lds={lds}\n"
    txt += '.amdgcn_target "amdgcn-amd-amdhsa--gfx950"\n'
    rep = []
    body = A.finish(rep)
    if "-v" in sys.argv:
        print(len(rep), "nop insertions")
        for r in rep: print("   ", r)
    txt += kernel_header(n) + body + kernel_desc(n, nv, nsgpr=102)
    open(out, "w").write(txt)
    print("wrote", out, len(txt), "bytes")

if __name__ == "__main__":
    import sys
    build(sys.argv[1])
```

```python
from fcommon import *
import sys
import f_gemm as G, f_attn as AT, f_out as FO, f_help as HP

NWAVES = 12

def stop_here(A, name):
    if STOP == name:
        A("s_waitcnt vmcnt(0) lgkmcnt(0)")
        A("s_endpgm")
        return True
    return False

def compute_p1(A, R, duty):
    if duty:
        if duty in ("k", "v"):
            mk_srd(A, SRD_E, S_WK if duty == "k" else S_WV, 576 * 36)
        else:
            mk_srd(A, SRD_E, S_GW, ROWB); mk_srd(A, SRD_F, S_WR, ROWB)
        G.duty_loads(A, duty)
    G.gemm_addresses(A)
    if duty:
        G.duty_addresses(A)
        G.duty_writes(A, duty)
    A("s_waitcnt lgkmcnt(0)")
    R.bar("b1")
    pstamp(A, 1, "p1")
    G.residual_x(A)
    if duty:
        {"k": G.k_stage, "v": G.v_stage, "g": G.g_stage}[duty](A)
        A("s_waitcnt lgkmcnt(0)")
        R.bar("b2")
        pstamp(A, 2, "p1")
        np_ = A.newlabel("nopub")
        A(f"s_cmp_lg_u32 s{S_WAVE}, 0"); A(f"s_cbranch_scc1 {np_}")
        G.publish(A, duty)
        A.label(np_)
    lf = A.newlabel("p1f1"); le = A.newlabel("p1e")
    bars0 = list(R.bars)
    A(f"s_cmp_eq_u32 s{S_FH}, 0"); A(f"s_cbranch_scc0 {lf}")
    stages = [list(range(0, 4)), list(range(4, 8)), list(range(8, 12)), list(range(12, 18))]
    for nt in (3, 2):
        if nt == 2:
            A.label(lf); R.bars = list(bars0)
        for q, steps in enumerate(stages):
            if q == 3 and duty and nt == 3:
                nf = A.newlabel("noflag")
                A(f"s_cmp_lg_u32 s{S_WAVE}, 0"); A(f"s_cbranch_scc1 {nf}")
                pstamp(A, 3, "p1")
                G.raise_flag(A, duty)
                pstamp(A, 4, "p1")
                A.label(nf)
            R.bar(f"bW{q}")
            if q == 3: pstamp(A, 5, "p1")
            G.gemm_steps(A, steps, nt, True)
        A("s_nop 7")
        G.q_epilogue(A, nt)
        if nt == 3: A(f"s_branch {le}")
    A.label(le)
    A("s_waitcnt lgkmcnt(0)")
    R.bar("bQ")

def compute_role(A):
    R = Role(A)
    A(f"s_and_b32 s{S_TG}, s{S_WAVE}, 3"); A(f"s_lshr_b32 s{S_FH}, s{S_WAVE}, 2")
    G.lane_setup(A)
    A(f"v_mov_b32 v{G.GT}, {L_CNT}"); A(f"v_mov_b32 v{G.GT+2}, 0"); A(f"v_mov_b32 v{G.GT+3}, 0")
    A(f"v_mov_b32 v{G.GT+4}, 0"); A(f"v_mov_b32 v{G.GT+5}, 0")
    A(f"ds_write_b128 v{G.GT}, {vr(G.GT+2,4)}")
    G.clear_flag_lines(A)
    lk = A.newlabel("dk"); lv = A.newlabel("dv"); lg = A.newlabel("dg"); lj = A.newlabel("dj")
    A(f"s_cmp_eq_u32 s{S_HG}, 0"); A(f"s_cbranch_scc1 {lk}")
    A(f"s_cmp_eq_u32 s{S_HG}, 1"); A(f"s_cbranch_scc1 {lv}")
    A(f"s_cmp_eq_u32 s{S_HG}, 2"); A(f"s_cbranch_scc1 {lg}")
    seqs = {}
    for duty, lab in ((None, None), ("k", lk), ("v", lv), ("g", lg)):
        if lab: A.label(lab)
        R.bars = []
        compute_p1(A, R, duty)
        seqs[duty] = list(R.bars)
        if duty != "g": A(f"s_branch {lj}")
    A.label(lj)
    R.bars = []
    pstamp(A, 1)
    AT.q_fragments(A)
    AT.lds_addresses(A)
    pstamp(A, 6, "p1")
    R.bar("bKV")
    pstamp(A, 7, "p1")
    if stop_here(A, "p1"): return seqs, R.bars
    t = AT.T
    A(f"v_lshlrev_b32 v{t}, 2, v{G.V_I}")
    A(f"v_add_u32 v{t}, {FW_KN}, v{t}")
    A(f"buffer_load_dword v{t+6}, v{t}, {srd(SRD_WS)}, 0 offen sc1")
    A(f"s_lshl_b32 s{S_T}, s{S_TG}, 4"); A(f"s_add_u32 s{S_T}, s{S_T}, s{S_ROW0}")
    A(f"v_add_u32 v{t+1}, s{S_T}, v{G.V_T}")
    A(f"v_lshlrev_b32 v{t+1}, 2, v{t+1}")
    A(f"v_add_u32 v{t+1}, {FW_G}, v{t+1}")
    A(f"buffer_load_dword v{G.GATE}, v{t+1}, {srd(SRD_WS)}, 0 offen sc1")
    A("s_waitcnt vmcnt(0)")
    AT.range_check(A)
    R.bar("B0")
    pstamp(A, 2)
    lf = A.newlabel("fallback"); le = A.newlabel("attdone")
    A(f"s_cbranch_vccz {lf}")
    b0 = list(R.bars)
    AT.fast_path(A, R)
    A(f"s_branch {le}")
    A.label(lf)
    b1 = list(R.bars); R.bars = list(b0)
    AT.fallback_path(A, R)
    assert R.bars == b1
    A.label(le)
    AT.finish(A, R)
    def sbase(A):
        A(f"s_mul_i32 s{S_T}, s{S_ROW0}, {ROWB}")
        A(f"s_mul_i32 s{S_T2}, s{S_HG}, 144")
        A(f"s_add_u32 s{S_T}, s{S_T}, s{S_T2}")
        A(f"s_add_u32 s{S_T}, s{S_T}, {FW_O}")
    AT.store_rows(A, SRD_WS, sbase, True)
    A("s_waitcnt vmcnt(0)")
    R.bar("B5")
    nf = A.newlabel("nogrp")
    A(f"s_cmp_lg_u32 s{S_WAVE}, 0"); A(f"s_cbranch_scc1 {nf}")
    A(f"s_lshl_b32 s{S_T}, s{S_TB}, 8"); A(f"s_add_u32 s{S_T}, s{S_T}, {FW_FLAG + FL_GRP}")
    A(f"v_mov_b32 v{t}, s{S_T}"); A(f"v_mov_b32 v{t+1}, 1")
    A("s_mov_b64 exec, 1")
    A(f"buffer_atomic_add v{t+1}, v{t}, {srd(SRD_WS)}, 0 offen sc1")
    A("s_mov_b64 exec, -1")
    A.label(nf)
    R.bar("B6")
    if stop_here(A, "attn"): return seqs, R.bars
    FO.out_phase(A, R)
    if STAMPS: A("s_waitcnt vmcnt(0)")
    pstamp(A, 7)
    if os.environ.get("DBGSTAMP"):
        nd = A.newlabel("nodbg")
        A(f"s_cmp_lg_u32 s2, {int(os.environ['DBGSTAMP'])}"); A(f"s_cbranch_scc1 {nd}")
        A(f"s_cmp_lg_u32 s{S_WAVE}, 4"); A(f"s_cbranch_scc1 {nd}")
        A(f"v_mbcnt_lo_u32_b32 v{AT.T}, -1, 0")
        A(f"v_lshlrev_b32 v{AT.T}, 2, v{AT.T}")
        A(f"v_add_u32 v{AT.T}, 32, v{AT.T}")
        A("s_mov_b64 exec, 0xff")
        A(f"buffer_store_dword v{V_ST}, v{AT.T}, {srd(SRD_DBG)}, 0 offen")
        A.label(nd)
    else:
        pstamp_flush(A, S_WAVE, S_WS, WS_STAMP, AT.T)
    A("s_endpgm")
    return seqs, R.bars

def helper_p1(A, R, duty, h3):
    vm = VmTrack()
    A(f"s_mul_i32 s{S_T3}, s{S_ROW0}, {ROWB}")
    HP.issue_x(A, vm, range(9), False, lambda cc: "x")
    HP.issue_w(A, vm, h3, range(6), lambda a_: f"w{a_//2}")
    if not duty: HP.issue_w(A, vm, h3, range(6, 9), lambda a_: "w3")
    A(f"s_waitcnt vmcnt({vm.after('x')})")
    R.bar("b1")
    if duty:
        R.bar("b2")
        HP.issue_w(A, vm, h3, range(6, 9), lambda a_: "w3")
    for q in range(4):
        A(f"s_waitcnt vmcnt({vm.after(f'w{q}')})")
        R.bar(f"bW{q}")
    R.bar("bQ")

def helper_rest(A, R, h3):
    def flag_off(A, t):
        A(f"v_min_u32 v{t}, 23, v{HP.V_LANE}"); A(f"v_lshlrev_b32 v{t}, 2, v{t}")
        A(f"s_lshl_b32 s{S_T}, s{S_TB}, 8"); A(f"s_add_u32 s{S_T}, s{S_T}, {FW_FLAG}")
        A(f"v_add_u32 v{t}, s{S_T}, v{t}")
    pstamp(A, 1)
    HP.poll(A, flag_off, 24, "0x01010101", "kvp")
    pstamp(A, 2)
    R.bar("bKV")
    if stop_here(A, "p1"): return
    vm = VmTrack()
    A(f"s_mov_b32 s{S_T}, {FW_KEYS}")
    A(f"buffer_load_dwordx4 {vr(HP.F_KEY,4)}, v{HP.VL16}, {srd(SRD_WS)}, s{S_T} offen sc1")
    o0, o1 = HP.kv_pieces()
    HP.issue_kv(A, vm, o0, "s0")
    A("s_waitcnt vmcnt(0)")
    R.bar("B0")
    HP.issue_kv(A, vm, o1, "s1")
    HP.select_top2(A)
    A("s_waitcnt vmcnt(0) lgkmcnt(0)")
    R.bar("B1")
    nof = A.newlabel("noffn")
    A(f"s_lshr_b32 s{S_T}, s2, 3")
    A(f"s_cmp_ge_u32 s{S_T}, 18"); A(f"s_cbranch_scc1 {nof}")
    A(f"s_and_b32 s{S_T2}, s2, 7"); A(f"s_mul_i32 s{S_T2}, s{S_T2}, 18")
    A(f"s_add_u32 s{HP.S_SL}, s{S_T2}, s{S_T}")
    pstamp(A, 3)
    HP.ffn(A)
    A.label(nof)
    pstamp(A, 4)
    mk_srd(A, SRD_W, S_WO, D * ROWB)
    mk_srd(A, SRD_A, S_WS, S_TOK * ROWB, add=FW_O)
    vm = VmTrack()
    HP.wait_released(A)
    HP.issue_w(A, vm, h3, range(9), lambda a_: "w", wb=WB3)
    A("s_waitcnt vmcnt(0)")
    R.bar("B2"); R.bar("B3"); R.bar("B4"); R.bar("B5")
    def grp_off(A, t):
        A(f"s_lshl_b32 s{S_T}, s{S_TB}, 8"); A(f"s_add_u32 s{S_T}, s{S_T}, {FW_FLAG + FL_GRP}")
        A(f"v_mov_b32 v{t}, s{S_T}")
    pstamp(A, 5)
    HP.poll(A, grp_off, 1, "8", "grp", ge=True)
    pstamp(A, 6)
    R.bar("B6")
    if stop_here(A, "attn"): return
    vm = VmTrack()
    A(f"s_mul_i32 s{S_T3}, s{S_ROW0}, {ROWB}")
    HP.issue_x(A, vm, range(9), True, lambda cc: f"x{cc//3}", xb=XB3)
    for q in range(3):
        A(f"s_waitcnt vmcnt({vm.after(f'x{q}')})")
        R.bar(f"bX{q}")
    R.bar("B7")
    pstamp(A, 7)
    if not os.environ.get("DBGSTAMP"): pstamp_flush(A, S_WAVE, S_WS, WS_STAMP, HP.HT)
    A("s_endpgm")

def helper_role(A):
    R = Role(A)
    A("s_setprio 3")
    A(f"s_sub_u32 s{HP.S_H}, s{S_WAVE}, 8")
    A(f"v_and_b32 v{HP.V_LANE}, 63, v0")
    HP.setup(A)
    l3 = A.newlabel("h3")
    A(f"s_cmp_eq_u32 s{HP.S_H}, 3"); A(f"s_cbranch_scc1 {l3}")
    seqs = {}
    for h3 in (False, True):
        if h3: A.label(l3)
        ld = A.newlabel("hduty"); lj = A.newlabel("hj")
        A(f"s_cmp_lt_u32 s{S_HG}, 3"); A(f"s_cbranch_scc1 {ld}")
        R.bars = []; helper_p1(A, R, False, h3); seqs[None] = list(R.bars)
        A(f"s_branch {lj}")
        A.label(ld)
        R.bars = []; helper_p1(A, R, True, h3); seqs["d"] = list(R.bars)
        A.label(lj)
        R.bars = []
        helper_rest(A, R, h3)
    return seqs, R.bars

def gen(name):
    A = Asm()
    end = "L_end"
    A("s_cmp_ge_u32 s2, 256"); A(f"s_cbranch_scc1 {end}")
    pstamp_init(A); pstamp(A, 0)
    load_kernargs(A)
    A(f"v_lshrrev_b32 v1, 6, v0")
    A(f"v_and_b32 v{G.V_LANE}, 63, v0")
    A(f"v_readfirstlane_b32 s{S_WAVE}, v1")
    A(f"s_and_b32 s{S_T}, s2, 7"); A(f"s_lshr_b32 s{S_T2}, s2, 3")
    A(f"s_and_b32 s{S_HG}, s{S_T2}, 7"); A(f"s_lshr_b32 s{S_T2}, s{S_T2}, 3")
    A(f"s_lshl_b32 s{S_T}, s{S_T}, 2"); A(f"s_add_u32 s{S_TB}, s{S_T}, s{S_T2}")
    A(f"s_lshl_b32 s{S_ROW0}, s{S_TB}, 6")
    A("s_waitcnt lgkmcnt(0)")
    mk_srd(A, SRD_A, S_X, S_TOK * ROWB)
    mk_srd(A, SRD_W, S_WQ, D * ROWB)
    mk_srd(A, SRD_WS, S_WS, FW_SIZE)
    mk_srd(A, SRD_KV, S_WS, KV_IMG, add=FW_KV)
    mk_srd(A, SRD_OUT, S_OUT, S_TOK * ROWB)
    mk_srd(A, SRD_DBG, S_DBG, 256)
    lh = A.newlabel("helper")
    A(f"s_cmp_ge_u32 s{S_WAVE}, 8"); A(f"s_cbranch_scc1 {lh}")
    cs, cb = compute_role(A)
    A.label(lh)
    hs, hb = helper_role(A)
    assert cs[None] == hs[None], (cs[None], hs[None])
    for d in "kvg": assert cs[d] == hs["d"], (cs[d], hs["d"])
    assert cb == hb, (cb, hb)
    A.label(end); A("s_endpgm")
    return A, 168, LDS_BYTES, 64 * NWAVES

def build(out):
    n = NAME + "_kernel"
    A, nv, lds, blk = gen(n)
    hdr = open("cdna_kernels/" + NAME + ".s.ref").read().split("; Override launch")[0]
    txt = hdr + f"; @launch grid=(256,1,1) block=({blk},1,1) lds={lds}\n"
    txt += '.amdgcn_target "amdgcn-amd-amdhsa--gfx950"\n'
    rep = []
    body = A.finish(rep)
    if "-v" in sys.argv:
        print(len(rep), "nop insertions")
        for r in rep: print("   ", r)
    txt += kernel_header(n) + body + kernel_desc(n, nv, nsgpr=102)
    open(out, "w").write(txt)
    print("wrote", out, len(txt), "bytes")

if __name__ == "__main__":
    import sys
    build(sys.argv[1])
```

```python
from asmlib import *

NAME = "gated_mix__grouped_kv_mqa__moe_arch_mod__prompt"
S_TOK = 2048; D = 576; H = 32; DH = 18; F = 4608
ROWB = D * 2
WS_Q    = 0
WS_O    = WS_Q + S_TOK * ROWB
WS_KV   = WS_O + S_TOK * ROWB
KV_KMAIN = 0
KV_KEXT  = 65536
KV_V     = 65536 + 8192
VROWS    = 19
V_TILE   = 2 * 2 * VROWS * 16
KV_BYTES = KV_V + 64 * V_TILE
WS_G    = WS_KV + KV_BYTES
WS_KEYS = WS_G + S_TOK * 4
WS_KN   = WS_KEYS + S_TOK * 4
WS_YACC = WS_KN + 512
Y_REP   = 8
WS_SEL  = WS_YACC + Y_REP * 2 * D * 4
WS_END  = WS_SEL + 64
WS_SIZE = (WS_END + 4095) // 4096 * 4096

LOG2E = 1.4426950408889634
import struct
def f32(x): return "0x%08x" % struct.unpack("<I", struct.pack("<f", x))[0]

S_X, S_WQ, S_WK, S_WV = 4, 6, 8, 10
S_WO, S_BX, S_WR, S_WG = 12, 14, 16, 18
S_WU, S_WD = 20, 22
S_GW, S_OUT, S_DBG, S_WS = 24, 26, 28, 30

def load_kernargs(A):
    A("s_load_dwordx8 s[4:11], s[0:1], 0")
    A("s_load_dwordx8 s[12:19], s[0:1], 32")
    A("s_load_dwordx4 s[20:23], s[0:1], 64")
    A("s_load_dwordx8 s[24:31], s[0:1], 80")

def mk_srd(A, dst, ptr, nbytes, add=0):
    if add:
        A(f"s_add_u32 s{dst}, s{ptr}, {add}")
        A(f"s_addc_u32 s{dst+1}, s{ptr+1}, 0")
        A(f"s_and_b32 s{dst+1}, s{dst+1}, 0xffff")
    else:
        A(f"s_mov_b32 s{dst}, s{ptr}")
        A(f"s_and_b32 s{dst+1}, s{ptr+1}, 0xffff")
    A(f"s_mov_b32 s{dst+2}, {nbytes}")
    A(f"s_mov_b32 s{dst+3}, 0x20000")

def kernel_header(name):
    return (f".text\n.globl {name}\n.p2align 8\n.type {name},@function\n{name}:\n")

def kernel_desc(name, nvgpr, nsgpr=100, accum=None):
    if accum is None: accum = min(256, (nvgpr + 3) // 4 * 4)
    return f""".section .rodata,"a"
.p2align 6
.amdhsa_kernel {name}
  .amdhsa_next_free_vgpr {nvgpr}
  .amdhsa_next_free_sgpr {nsgpr}
  .amdhsa_accum_offset {accum}
  .amdhsa_group_segment_fixed_size 0
  .amdhsa_kernarg_size 112
  .amdhsa_user_sgpr_count 2
  .amdhsa_user_sgpr_kernarg_segment_ptr 1
  .amdhsa_system_sgpr_workgroup_id_x 1
  .amdhsa_float_denorm_mode_32 3
.end_amdhsa_kernel
"""

class VmTrack:
    def __init__(self): self.ops = []
    def issue(self, tag, n=1): self.ops += [tag] * n
    def after(self, tag):
        last = max(i for i, t in enumerate(self.ops) if t == tag)
        return len(self.ops) - 1 - last

import os
STAMPS = os.environ.get("STAMPS", "") != ""
WS_STAMP = 8 << 20
S_ST = 78
def stamp(A, i):
    if not STAMPS: return
    A(f"s_memrealtime s[94:95]")
    A("s_waitcnt lgkmcnt(0)")
    A(f"s_mov_b32 s{S_ST+i}, s94")
def cstamp(A, i):
    if not STAMPS: return
    A(f"s_memtime s[94:95]")
    A("s_waitcnt lgkmcnt(0)")
    A(f"s_mov_b32 s{S_ST+i}, s94")
V_ST = 155
STAMP_SET = os.environ.get("STAMPS", "")
STAMP_MAP = {
    "La": {("p1", 1): 1, ("p1", 5): 2, ("1", 1): 3, ("p1", 7): 4, ("1", 2): 5, ("1", 6): 6},
    "Lc": {("t", 2): 1, ("t", 10): 2, ("t", 11): 3, ("t", 12): 4, ("t", 13): 5, ("t", 3): 6},
    "Ld": {("1", 6): 1, ("t", 20): 2, ("t", 21): 3, ("t", 22): 4, ("t", 1): 5, ("t", 2): 6},
    "Le": {("p1", 1): 1, ("p1", 2): 2, ("p1", 4): 3, ("p1", 5): 4, ("1", 1): 5, ("p1", 7): 6},
    "Lf": {("p1", 1): 1, ("p1", 2): 2, ("w", 0): 3, ("w", 1): 4, ("w", 2): 5, ("p1", 5): 6},
    "Lg": {("p1", 2): 1, ("w", 2): 2, ("p1", 3): 3, ("p1", 4): 4, ("w", 9): 5, ("p1", 5): 6},
    "Lh": {("p1", 1): 1, ("p1", 2): 2, ("w", 2): 3, ("w", 9): 4, ("p1", 5): 5, ("1", 1): 6},
    "Li": {("e", 0): 1, ("e", 1): 2, ("e", 2): 3, ("p1", 1): 4, ("p1", 2): 5, ("1", 1): 6},
    "Lb": {("1", 2): 1, ("1", 6): 2, ("t", 1): 3, ("t", 2): 4, ("t", 3): 5, ("1", 7): 6},
}
def pstamp(A, i, which="1"):
    if not STAMPS: return
    if STAMP_SET.startswith("L"):
        m = STAMP_MAP.get(STAMP_SET, {})
        j = 0 if (i == 0 and which == '1') else m.get((which, i))
        if j is None: return
        A(f"s_memrealtime s[{88+2*j}:{89+2*j}]")
        return
    if which != STAMP_SET and i != 0: return
    A(f"s_memrealtime s[94:95]")
    A(f"s_memtime s[96:97]")
    A("s_waitcnt lgkmcnt(0)")
    A(f"v_writelane_b32 v{V_ST}, s94, {i}")
    A(f"v_writelane_b32 v{V_ST}, s96, {8+i}")
def pstamp_init(A):
    if STAMPS: A(f"v_mov_b32 v{V_ST}, 0")
    if STAMP_SET.startswith("L"):
        for j in range(7): A(f"s_mov_b32 s{88+2*j}, 0")
def pstamp_flush(A, s_wave, s_ws, off, vtmp):
    if not STAMPS: return
    if STAMP_SET.startswith("L"):
        A("s_waitcnt lgkmcnt(0)")
        for j in range(7): A(f"v_writelane_b32 v{V_ST}, s{88+2*j}, {j}")
    A(f"s_lshl_b32 s94, s2, 4")
    A(f"s_add_u32 s94, s94, s{s_wave}")
    A(f"s_lshl_b32 s94, s94, 6")
    A(f"s_add_u32 s94, s94, {off}")
    A(f"s_add_u32 s94, s{s_ws}, s94")
    A(f"s_addc_u32 s95, s{s_ws+1}, 0")
    A(f"s_mov_b64 exec, -1")
    A(f"v_mbcnt_lo_u32_b32 v{vtmp}, -1, 0")
    A(f"v_lshlrev_b32 v{vtmp}, 2, v{vtmp}")
    A(f"s_mov_b64 exec, 0xffff")
    A(f"global_store_dword v{vtmp}, v{V_ST}, s[94:95]")
def stamp_init(A):
    if not STAMPS: return
    for i in range(16): A(f"s_mov_b32 s{S_ST+i}, 0")
def stamp_flush(A, kidx, s_wave, s_ws, vtmp):
    if not STAMPS: return
    A(f"s_lshl_b32 s94, s2, 4")
    A(f"s_add_u32 s94, s94, s{s_wave}")
    A(f"s_lshl_b32 s94, s94, 6")
    A(f"s_add_u32 s94, s94, {WS_STAMP + kidx * (1 << 18)}")
    A(f"s_add_u32 s94, s{s_ws}, s94")
    A(f"s_addc_u32 s95, s{s_ws+1}, 0")
    A(f"s_mov_b64 exec, -1")
    for i in range(16):
        A(f"v_writelane_b32 v{vtmp}, s{S_ST+i}, {i}")
    A(f"v_mbcnt_lo_u32_b32 v{vtmp+1}, -1, 0")
    A(f"v_lshlrev_b32 v{vtmp+1}, 2, v{vtmp+1}")
    A(f"s_mov_b64 exec, 0xffff")
    A(f"global_store_dword v{vtmp+1}, v{vtmp}, s[94:95]")
```

```python
from fcommon import *

ACC, DACC, AF, BF = 0, 12, 16, 40
AW0, AW1, AX0, AX1, AE0, AE1, AE3 = 148, 149, 150, 151, 52, 53, 54
RB0, NRB = 12, 3
RA0 = 24
EL = 56
GT = 72
V_LANE, V_I, V_H, V_T, V_G, GATE = 156, 157, 158, 159, 160, 161
XRES = 162
QSCALE = LOG2E / (DH ** 0.5)

def lane_setup(A):
    A(f"v_and_b32 v{V_T}, 15, v{V_LANE}")
    A(f"v_lshrrev_b32 v{V_G}, 4, v{V_LANE}")
    A(f"v_and_b32 v{V_I}, 31, v{V_LANE}")
    A(f"v_lshrrev_b32 v{V_H}, 5, v{V_LANE}")

def gemm_addresses(A, xb=XB, wb=WB):
    t = GT
    A(f"s_lshl_b32 s{S_T}, s{S_TG}, 4")
    A(f"v_add_u32 v{t}, s{S_T}, v{V_T}")
    A(f"v_lshlrev_b32 v{t}, 7, v{t}")
    A(f"v_lshrrev_b32 v{t+1}, 1, v{V_T}")
    A(f"v_xor_b32 v{t+1}, v{t+1}, v{V_G}")
    A(f"v_lshl_add_u32 v{AX0}, v{t+1}, 4, v{t}")
    A(f"v_xor_b32 v{AX1}, 64, v{AX0}")
    if xb:
        A(f"v_add_u32 v{AX0}, {xb}, v{AX0}"); A(f"v_add_u32 v{AX1}, {xb}, v{AX1}")
    A(f"v_bfe_u32 v{t}, v{V_LANE}, 2, 2")
    A(f"v_lshlrev_b32 v{t}, 1, v{t}")
    A(f"v_lshl_add_u32 v{t}, v{V_G}, 3, v{t}")
    A(f"v_mul_u32_u24 v{t}, 144, v{t}")
    A(f"v_and_b32 v{t+1}, 3, v{V_LANE}")
    A(f"v_lshl_add_u32 v{t}, v{t+1}, 3, v{t}")
    A(f"s_mul_i32 s{S_T}, s{S_FH}, 96")
    A(f"s_add_u32 s{S_T}, s{S_T}, {wb}")
    A(f"v_add_u32 v{AW0}, s{S_T}, v{t}")
    A(f"v_add_u32 v{AW1}, {9*W_STEP}, v{AW0}")

class Gemm:
    def __init__(self, A, nt, ra):
        self.A, self.nt, self.ra = A, nt, ra
        self.na = self.nb = 0; self.log = []; self.bumped = False
    def rd_b(self):
        s = self.nb; A = self.A; cc = s >> 1
        if s == 16:
            A(f"v_add_u32 v{AX0}, 8192, v{AX0}"); A(f"v_add_u32 v{AX1}, 8192, v{AX1}")
        A(f"ds_read_b128 {vr(RB0+4*(s%NRB),4)}, v{AX0+(s&1)} offset:{cc*8192 if cc < 8 else 7*8192}")
        self.log.append(("b", s)); self.nb += 1
    def rd_a(self):
        s = self.na; A = self.A
        base = RA0 + 4 * self.nt * (s % self.ra)
        reg = AW0 if s < 9 else AW1
        for j in range(self.nt):
            for q in range(2):
                A(f"ds_read_b64_tr_b16 {vr(base+4*j+2*q,2)}, v{reg} offset:{(s%9)*W_STEP + 144*q + 32*j}")
                self.log.append(("a", s))
        self.na += 1
    def preload_a(self, upto):
        while self.na < upto: self.rd_a()
    def steps(self, steps, avail_a, avail_b, la_a=2, burst=False):
        A = self.A
        for s in steps:
            while self.nb < min(avail_b, s + NRB): self.rd_b()
            while self.na < min(avail_a, s + 1): self.rd_a()
            if burst:
                while self.na < min(avail_a, s + la_a + 1, s + self.ra): self.rd_a()
            elif self.na < min(avail_a, s + la_a + 1, s + self.ra): self.rd_a()
            last = max(i for i, (k, st) in enumerate(self.log) if st == s)
            n = len(self.log) - 1 - last
            A(f"s_waitcnt lgkmcnt({min(n, 15)})")
            base = RA0 + 4 * self.nt * (s % self.ra)
            for j in range(self.nt):
                c = "0" if s == 0 else vr(ACC + 4 * j, 4)
                A(f"v_mfma_f32_16x16x32_bf16 {vr(ACC+4*j,4)}, {vr(base+4*j,4)}, {vr(RB0+4*(s%NRB),4)}, {c}")

def restore_x_addresses(A):
    A(f"v_subrev_u32 v{AX0}, 8192, v{AX0}"); A(f"v_subrev_u32 v{AX1}, 8192, v{AX1}")

def duty_loads(A, duty):
    t = GT
    if duty in ("k", "v"):
        for rd in range(4):
            skip = None
            if rd == 3:
                skip = A.newlabel("elskip")
                A(f"s_cmp_ge_u32 s{S_WAVE}, 3"); A(f"s_cbranch_scc1 {skip}")
            A(f"s_lshl_b32 s{S_T}, s{S_WAVE}, 6")
            A(f"s_add_u32 s{S_T}, s{S_T}, {512*rd}")
            A(f"v_add_u32 v{t}, s{S_T}, v{V_LANE}")
            A(f"v_mul_u32_u24 v{t}, 12, v{t}")
            A(f"buffer_load_dwordx3 {vr(EL+3*rd+ (rd&1),3)}, v{t}, {srd(SRD_E)}, 0 offen" if False else
              f"buffer_load_dwordx3 v[{ELR(rd)}:{ELR(rd)+2}], v{t}, {srd(SRD_E)}, 0 offen")
            if skip: A.label(skip)
    else:
        for rd in range(2):
            skip = None
            if rd == 1:
                skip = A.newlabel("elskip")
                A(f"s_cmp_lg_u32 s{S_WAVE}, 0"); A(f"s_cbranch_scc1 {skip}")
            A(f"s_lshl_b32 s{S_T}, s{S_WAVE}, 6")
            A(f"s_add_u32 s{S_T}, s{S_T}, {512*rd}")
            A(f"v_add_u32 v{t}, s{S_T}, v{V_LANE}")
            A(f"v_lshlrev_b32 v{t}, 1, v{t}")
            A(f"buffer_load_ushort v{ELR(rd)}, v{t}, {srd(SRD_E)}, 0 offen")
            A(f"buffer_load_ushort v{ELR(rd)+1}, v{t}, {srd(SRD_F)}, 0 offen")
            if skip: A.label(skip)

def ELR(rd): return EL + 4 * rd

def duty_writes(A, duty):
    t = GT + 4
    A("s_waitcnt vmcnt(0)")
    if duty in ("k", "v"):
        for rd in range(4):
            skip = None
            if rd == 3:
                skip = A.newlabel("ewskip")
                A(f"s_cmp_ge_u32 s{S_WAVE}, 3"); A(f"s_cbranch_scc1 {skip}")
            A(f"s_lshl_b32 s{S_T}, s{S_WAVE}, 6")
            A(f"s_add_u32 s{S_T}, s{S_T}, {512*rd}")
            A(f"v_add_u32 v{t}, s{S_T}, v{V_LANE}")
            A(f"v_mul_u32_u24 v{t+1}, 21846, v{t}")
            A(f"v_lshrrev_b32 v{t+1}, 16, v{t+1}")
            A(f"v_mul_u32_u24 v{t+2}, 3, v{t+1}")
            A(f"v_sub_u32 v{t+2}, v{t}, v{t+2}")
            A(f"v_lshrrev_b32 v{t+3}, 1, v{t+1}")
            A(f"v_and_b32 v{t+3}, 4, v{t+3}")
            A(f"v_xor_b32 v{t+3}, v{t+1}, v{t+3}")
            A(f"v_lshlrev_b32 v{t+3}, 5, v{t+3}")
            A(f"v_mul_u32_u24 v{t+4}, 12, v{t+2}")
            A(f"v_add3_u32 v{t+3}, v{t+3}, v{t+4}, s{S_T3}") if False else None
            A(f"v_add_u32 v{t+3}, v{t+3}, v{t+4}")
            A(f"v_add_u32 v{t+3}, {E2B}, v{t+3}")
            A(f"v_lshlrev_b32 v{t+4}, 3, v{t+1}")
            A(f"v_add_u32 v{t+4}, {E3B}, v{t+4}")
            A(f"v_add_u32 v{t+5}, 8, v{t+3}")
            A(f"v_cmp_eq_u32 vcc, 2, v{t+2}")
            A(f"v_cndmask_b32 v{t+4}, v{t+5}, v{t+4}, vcc")
            A(f"ds_write2_b32 v{t+3}, v{ELR(rd)}, v{ELR(rd)+1} offset0:0 offset1:1")
            A(f"ds_write_b32 v{t+4}, v{ELR(rd)+2}")
            if skip: A.label(skip)
    else:
        for rd in range(2):
            skip = None
            if rd == 1:
                skip = A.newlabel("ewskip")
                A(f"s_cmp_lg_u32 s{S_WAVE}, 0"); A(f"s_cbranch_scc1 {skip}")
            A(f"s_lshl_b32 s{S_T}, s{S_WAVE}, 6")
            A(f"s_add_u32 s{S_T}, s{S_T}, {512*rd}")
            A(f"v_add_u32 v{t}, s{S_T}, v{V_LANE}")
            A(f"v_lshlrev_b32 v{t}, 3, v{t}")
            A(f"v_add_u32 v{t}, {E3B}, v{t}")
            A(f"v_lshl_or_b32 v{ELR(rd)}, v{ELR(rd)+1}, 16, v{ELR(rd)}")
            A(f"ds_write_b32 v{t}, v{ELR(rd)}")
            if skip: A.label(skip)

def duty_addresses(A):
    t = GT
    A(f"v_bfe_u32 v{t}, v{V_LANE}, 2, 2")
    A(f"v_lshl_add_u32 v{t}, v{V_G}, 3, v{t}")
    A(f"v_and_b32 v{t+1}, 1, v{V_G}")
    A(f"v_lshl_add_u32 v{t+2}, v{t+1}, 2, v{t}")
    A(f"v_xor_b32 v{t+1}, 1, v{t+1}")
    A(f"v_lshl_add_u32 v{t+3}, v{t+1}, 2, v{t}")
    A(f"v_and_b32 v{t+1}, 3, v{V_LANE}")
    A(f"v_lshlrev_b32 v{t+1}, 3, v{t+1}")
    A(f"v_lshl_add_u32 v{AE0}, v{t+2}, 5, v{t+1}")
    A(f"v_lshl_add_u32 v{AE1}, v{t+3}, 5, v{t+1}")
    A(f"v_add_u32 v{AE0}, {E2B}, v{AE0}")
    A(f"v_add_u32 v{AE1}, {E2B}, v{AE1}")
    A(f"v_lshlrev_b32 v{AE3}, 3, v{t}")
    A(f"v_add_u32 v{AE3}, {E3B}, v{AE3}")

def duty_gemm(A, which):
    DA, DB, DEP = 16, 32, 4
    def rd(s):
        b = DA + 4 * (s % DEP)
        reg = AX0 + (s & 1); cc = s >> 1
        if s == 16:
            A(f"v_add_u32 v{AX0}, 8192, v{AX0}"); A(f"v_add_u32 v{AX1}, 8192, v{AX1}")
        A(f"ds_read_b128 {vr(DB+4*(s%DEP),4)}, v{reg} offset:{cc*8192 if cc < 8 else 7*8192}")
        for q in range(2):
            if which == 2: A(f"ds_read_b64_tr_b16 {vr(b+2*q,2)}, v{AE0+q} offset:{s*1024}")
            else: A(f"ds_read_b64_tr_b16 {vr(b+2*q,2)}, v{AE3} offset:{s*256 + 32*q}")
    for s in range(DEP): rd(s)
    for s in range(18):
        ahead = min(DEP - 1, 17 - s)
        A(f"s_waitcnt lgkmcnt({3*ahead})")
        c = "0" if s == 0 else vr(DACC, 4)
        A(f"v_mfma_f32_16x16x32_bf16 {vr(DACC,4)}, {vr(DA+4*(s%DEP),4)}, {vr(DB+4*(s%DEP),4)}, {c}")
        if s + DEP < 18: rd(s + DEP)
    restore_x_addresses(A)
    A("s_nop 7")

def k_stage(A):
    t = GT; d = GT + 10
    l1 = A.newlabel("k1"); le = A.newlabel("ke")
    A(f"s_lshr_b32 s{S_T2}, s{S_TG}, 1")
    A(f"s_cmp_eq_u32 s{S_FH}, 0"); A(f"s_cbranch_scc0 {l1}")
    duty_gemm(A, 2)
    A(f"s_and_b32 s{S_T}, s{S_TG}, 1"); A(f"s_lshl_b32 s{S_T}, s{S_T}, 4")
    A(f"v_add_u32 v{t}, s{S_T}, v{V_T}")
    A(f"v_lshrrev_b32 v{t+1}, 1, v{V_G}")
    A(f"v_lshl_add_u32 v{t+1}, v{t+1}, 5, v{t}")
    A(f"v_lshlrev_b32 v{t+1}, 4, v{t+1}")
    A(f"v_and_b32 v{t+2}, 1, v{V_G}")
    A(f"v_lshl_add_u32 v{t+1}, v{t+2}, 3, v{t+1}")
    A(f"s_lshl_b32 s{S_T}, s{S_T2}, 10"); A(f"s_add_u32 s{S_T}, s{S_T}, {STG}")
    A(f"v_add_u32 v{t+1}, s{S_T}, v{t+1}")
    A(f"v_cvt_pk_bf16_f32 v{d}, v{DACC}, v{DACC+1}")
    A(f"v_cvt_pk_bf16_f32 v{d+1}, v{DACC+2}, v{DACC+3}")
    A(f"ds_write_b64 v{t+1}, {vr(d,2)}")
    n = t + 3
    A(f"v_mul_f32 v{n}, v{DACC}, v{DACC}")
    for r in range(1, 4): A(f"v_fma_f32 v{n}, v{DACC+r}, v{DACC+r}, v{n}")
    A(f"ds_swizzle_b32 v{n+1}, v{n} offset:0x401F")
    A("s_waitcnt lgkmcnt(0)")
    A(f"v_add_f32 v{n}, v{n}, v{n+1}")
    A(f"v_mov_b32 v{n+1}, v{n}")
    A(f"v_permlane32_swap_b32 v{n}, v{n+1}")
    A(f"v_add_f32 v{n}, v{n}, v{n+1}")
    A(f"s_lshl_b32 s{S_T}, s{S_TG}, 2"); A(f"s_add_u32 s{S_T}, s{S_T}, {STG_N}")
    A(f"s_branch {le}")
    A.label(l1)
    duty_gemm(A, 3)
    A(f"s_and_b32 s{S_T}, s{S_TG}, 1"); A(f"s_lshl_b32 s{S_T}, s{S_T}, 4")
    A(f"v_add_u32 v{t}, s{S_T}, v{V_T}")
    A(f"v_lshlrev_b32 v{t+1}, 3, v{t}")
    A(f"s_lshl_b32 s{S_T}, s{S_T2}, 2"); A(f"s_add_u32 s{S_T}, s{S_T}, {STG+TB_KEXT}")
    A(f"v_add_u32 v{t+1}, s{S_T}, v{t+1}")
    A(f"v_cvt_pk_bf16_f32 v{d}, v{DACC}, v{DACC+1}")
    n = t + 3
    A(f"v_mul_f32 v{n}, v{DACC}, v{DACC}")
    A(f"v_fma_f32 v{n}, v{DACC+1}, v{DACC+1}, v{n}")
    A(f"v_cmp_eq_u32 vcc, 0, v{V_G}")
    A(f"s_and_saveexec_b64 s[{S_EX}:{S_EX+1}], vcc")
    A(f"ds_write_b32 v{t+1}, v{d}")
    A(f"s_mov_b64 exec, s[{S_EX}:{S_EX+1}]")
    A(f"s_lshl_b32 s{S_T}, s{S_TG}, 2"); A(f"s_add_u32 s{S_T}, s{S_T}, {STG_N+16}")
    A.label(le)
    n = t + 3
    for sh in (1, 2, 4, 8):
        A(f"v_max_f32_dpp v{n}, v{n}, v{n} row_ror:{sh} row_mask:0xf bank_mask:0xf")
    A(f"v_mov_b32 v{n+1}, s{S_T}")
    A(f"v_cmp_eq_u32 vcc, 0, v{V_LANE}")
    A(f"s_and_saveexec_b64 s[{S_EX}:{S_EX+1}], vcc")
    A(f"ds_write_b32 v{n+1}, v{n}")
    A(f"s_mov_b64 exec, s[{S_EX}:{S_EX+1}]")

def v_stage(A):
    t = GT; d = GT + 10
    l1 = A.newlabel("v1"); le = A.newlabel("ve")
    def base():
        A(f"s_mul_i32 s{S_T3}, s{S_TG}, {V_TILE//2}"); A(f"s_add_u32 s{S_T3}, s{S_T3}, {STG}")
        A(f"v_bfe_u32 v{t}, v{V_T}, 2, 1")
        A(f"v_mul_u32_u24 v{t}, {VROWS*16}, v{t}")
        A(f"v_lshrrev_b32 v{t+1}, 3, v{V_T}")
        A(f"v_and_b32 v{t+2}, 3, v{V_T}")
        A(f"v_lshl_add_u32 v{t+1}, v{t+1}, 2, v{t+2}")
        A(f"v_lshl_add_u32 v{t}, v{t+1}, 1, v{t}")
        A(f"v_add_u32 v{t}, s{S_T3}, v{t}")
    A(f"s_cmp_eq_u32 s{S_FH}, 0"); A(f"s_cbranch_scc0 {l1}")
    duty_gemm(A, 2)
    base()
    A(f"v_and_b32 v{t+1}, 1, v{V_G}")
    A(f"v_lshrrev_b32 v{t+2}, 1, v{V_G}")
    A(f"v_lshl_add_u32 v{t+1}, v{t+1}, 1, v{t+2}")
    A(f"v_lshl_add_u32 v{t+1}, v{t+1}, 6, v{t}")
    A(f"v_cvt_pk_bf16_f32 v{d}, v{DACC}, v{DACC+1}")
    A(f"v_cvt_pk_bf16_f32 v{d+1}, v{DACC+2}, v{DACC+3}")
    A(f"ds_write_b16 v{t+1}, v{d}")
    A(f"ds_write_b16_d16_hi v{t+1}, v{d} offset:16")
    A(f"ds_write_b16 v{t+1}, v{d+1} offset:32")
    A(f"ds_write_b16_d16_hi v{t+1}, v{d+1} offset:48")
    A(f"s_branch {le}")
    A.label(l1)
    duty_gemm(A, 3)
    base()
    A(f"v_cvt_pk_bf16_f32 v{d}, v{DACC}, v{DACC+1}")
    A(f"v_mov_b32 v{d+1}, 0x3f80")
    A(f"v_cmp_eq_u32 vcc, 0, v{V_G}")
    A(f"s_and_saveexec_b64 s[{S_EX}:{S_EX+1}], vcc")
    A(f"ds_write_b16 v{t}, v{d} offset:{16*16}")
    A(f"ds_write_b16_d16_hi v{t}, v{d} offset:{17*16}")
    A(f"ds_write_b16 v{t}, v{d+1} offset:{18*16}")
    A(f"s_mov_b64 exec, s[{S_EX}:{S_EX+1}]")
    A.label(le)

def g_stage(A):
    t = GT
    le = A.newlabel("ge")
    A(f"s_cmp_eq_u32 s{S_FH}, 0"); A(f"s_cbranch_scc1 {le}")
    duty_gemm(A, 3)
    A(f"v_cvt_pk_bf16_f32 v{t}, v{DACC}, v{DACC}")
    A(f"v_and_b32 v{t}, 0xffff0000, v{t}")
    A(f"v_mul_f32 v{t}, {f32(-LOG2E)}, v{t}")
    A(f"v_exp_f32 v{t}, v{t}")
    A(f"v_add_f32 v{t}, 1.0, v{t}")
    A(f"v_rcp_f32 v{t}, v{t}")
    A(f"v_cvt_pk_bf16_f32 v{t}, v{t}, v{t}")
    A(f"v_and_b32 v{t}, 0xffff0000, v{t}")
    A(f"s_lshl_b32 s{S_T}, s{S_TG}, 4")
    A(f"v_add_u32 v{t+1}, s{S_T}, v{V_T}")
    A(f"v_lshlrev_b32 v{t+2}, 2, v{t+1}")
    A(f"v_add_u32 v{t+2}, {STG}, v{t+2}")
    k = t + 3; k2 = t + 4; u = t + 5
    A(f"v_cvt_pk_bf16_f32 v{k}, v{DACC+1}, v{DACC+1}")
    A(f"v_and_b32 v{k}, 0xffff, v{k}")
    A(f"v_xor_b32 v{k2}, 0x8000, v{k}")
    A(f"v_xor_b32 v{u}, 0xffff, v{k}")
    A(f"v_cmp_lt_u32 vcc, 0x7fff, v{k}")
    A(f"v_cndmask_b32 v{k}, v{k2}, v{u}, vcc")
    A(f"v_add_u32 v{k2}, s{S_ROW0}, v{t+1}")
    A(f"v_sub_u32 v{k2}, 0xffff, v{k2}")
    A(f"v_lshl_or_b32 v{k}, v{k}, 16, v{k2}")
    A(f"v_mov_b32 v{k2}, v{k}")
    for sh in (1, 2, 4, 8):
        A(f"v_max_u32_dpp v{k2}, v{k2}, v{k2} row_ror:{sh} row_mask:0xf bank_mask:0xf")
    A(f"v_cmp_eq_u32 vcc, v{k}, v{k2}")
    A(f"v_mov_b32 v{u}, 0")
    A(f"v_cndmask_b32 v{k}, v{k}, v{u}, vcc")
    for sh in (1, 2, 4, 8):
        A(f"v_max_u32_dpp v{k}, v{k}, v{k} row_ror:{sh} row_mask:0xf bank_mask:0xf")
    A(f"s_lshl_b32 s{S_T}, s{S_TG}, 3"); A(f"s_add_u32 s{S_T}, s{S_T}, {STG+256}")
    A(f"v_mov_b32 v{u}, s{S_T}")
    A(f"v_cmp_eq_u32 vcc, 0, v{V_G}")
    A(f"s_and_saveexec_b64 s[{S_EX}:{S_EX+1}], vcc")
    A(f"ds_write_b32 v{t+2}, v{t}")
    A(f"v_cmp_eq_u32 vcc, 0, v{V_LANE}")
    A(f"s_and_b64 exec, exec, vcc")
    A(f"ds_write2_b32 v{u}, v{k2}, v{k} offset0:0 offset1:1")
    A(f"s_mov_b64 exec, s[{S_EX}:{S_EX+1}]")
    A.label(le)

def publish(A, duty):
    t = GT; WS = srd(SRD_WS)
    A(f"v_lshlrev_b32 v{t}, 4, v{V_LANE}")
    if duty in ("k", "v"):
        nbytes = TB_V if duty == "k" else TB_BYTES - TB_V
        A(f"s_mul_i32 s{S_T}, s{S_TB}, {TB_BYTES}")
        A(f"s_add_u32 s{S_T}, s{S_T}, {FW_KV + (0 if duty == 'k' else TB_V)}")
        A(f"v_add_u32 v{t+1}, {STG}, v{t}")
        for u in range(3):
            A(f"ds_read_b128 {vr(AF+4*u,4)}, v{t+1} offset:{1024*u}")
        if duty == "k":
            A(f"v_mov_b32 v{t+2}, {STG_N}")
            A(f"ds_read_b128 {vr(AF+12,4)}, v{t+2}")
            A(f"ds_read_b128 {vr(AF+16,4)}, v{t+2} offset:16")
        A("s_waitcnt lgkmcnt(0)")
        A(f"buffer_store_dwordx4 {vr(AF,4)}, v{t}, {WS}, s{S_T} offen sc1")
        A(f"buffer_store_dwordx4 {vr(AF+4,4)}, v{t}, {WS}, s{S_T} offen offset:1024 sc1")
        A(f"v_cmp_gt_u32 vcc, {(nbytes-2048)//16}, v{V_LANE}")
        A(f"s_and_saveexec_b64 s[{S_EX}:{S_EX+1}], vcc")
        A(f"buffer_store_dwordx4 {vr(AF+8,4)}, v{t}, {WS}, s{S_T} offen offset:2048 sc1")
        A(f"s_mov_b64 exec, s[{S_EX}:{S_EX+1}]")
        if duty == "k":
            a_ = AF + 12; b_ = AF + 16
            A(f"v_max3_f32 v{a_}, v{a_}, v{a_+1}, v{a_+2}"); A(f"v_max_f32 v{a_}, v{a_}, v{a_+3}")
            A(f"v_max3_f32 v{b_}, v{b_}, v{b_+1}, v{b_+2}"); A(f"v_max_f32 v{b_}, v{b_}, v{b_+3}")
            A(f"v_add_f32 v{a_}, v{a_}, v{b_}")
            A(f"v_mul_f32 v{a_}, {f32(1.02)}, v{a_}")
            A(f"s_lshl_b32 s{S_T}, s{S_TB}, 2"); A(f"s_add_u32 s{S_T}, s{S_T}, {FW_KN}")
            A(f"v_mov_b32 v{t+2}, 0")
            A(f"v_cmp_eq_u32 vcc, 0, v{V_LANE}")
            A(f"s_and_saveexec_b64 s[{S_EX}:{S_EX+1}], vcc")
            A(f"buffer_store_dword v{a_}, v{t+2}, {WS}, s{S_T} offen sc1")
            A(f"s_mov_b64 exec, s[{S_EX}:{S_EX+1}]")
    else:
        A(f"v_lshlrev_b32 v{t+1}, 2, v{V_LANE}")
        A(f"v_add_u32 v{t+2}, {STG}, v{t+1}")
        A(f"ds_read_b32 v{AF}, v{t+2}")
        A(f"ds_read_b32 v{AF+1}, v{t+2} offset:256")
        for r in range(4): A(f"v_mov_b32 v{AF+4+r}, 0")
        A("s_waitcnt lgkmcnt(0)")
        A(f"s_lshl_b32 s{S_T}, s{S_ROW0}, 2"); A(f"s_add_u32 s{S_T}, s{S_T}, {FW_G}")
        A(f"buffer_store_dword v{AF}, v{t+1}, {WS}, s{S_T} offen sc1")
        A(f"s_mul_i32 s{S_T}, s{S_TB}, 1152"); A(f"s_add_u32 s{S_T}, s{S_T}, {FW_YACC}")
        A(f"buffer_store_dwordx4 {vr(AF+4,4)}, v{t}, {WS}, s{S_T} offen sc1")
        A(f"v_cmp_gt_u32 vcc, 8, v{V_LANE}")
        A(f"s_and_saveexec_b64 s[{S_EX}:{S_EX+1}], vcc")
        A(f"buffer_store_dwordx4 {vr(AF+4,4)}, v{t}, {WS}, s{S_T} offen offset:1024 sc1")
        A(f"s_lshl_b32 s{S_T}, s{S_TB}, 5"); A(f"s_add_u32 s{S_T}, s{S_T}, {FW_KEYS}")
        A(f"buffer_store_dword v{AF+1}, v{t+1}, {WS}, s{S_T} offen sc1")
        A(f"s_mov_b64 exec, s[{S_EX}:{S_EX+1}]")

V_INIT = 92
def init_probe(A):
    A(f"v_mov_b32 v{V_INIT+1}, {DBG_INIT}")
    A(f"buffer_load_dword v{V_INIT}, v{V_INIT+1}, {srd(SRD_DBG)}, 0 offen sc1")

def raise_flag(A, duty):
    t = GT
    base = {"k": FL_K, "v": FL_V, "g": FL_G}[duty]
    lp = A.newlabel("initp"); done = A.newlabel("initok")
    A("s_waitcnt vmcnt(0)")
    A(f"v_readfirstlane_b32 s81, v{V_INIT}")
    A(f"s_cmp_ge_u32 s81, 32"); A(f"s_cbranch_scc1 {done}")
    A(f"v_mov_b32 v{t}, {DBG_INIT}")
    A(f"s_mov_b32 s80, 0")
    A.label(lp)
    A(f"buffer_load_dword v{t+1}, v{t}, {srd(SRD_DBG)}, 0 offen sc1")
    A("s_waitcnt vmcnt(0)")
    A(f"v_readfirstlane_b32 s81, v{t+1}")
    A(f"s_cmp_ge_u32 s81, 32"); A(f"s_cbranch_scc1 {done}")
    A("s_sleep 4")
    A(f"s_add_u32 s80, s80, 1")
    A(f"s_cmp_lt_u32 s80, 0x40000"); A(f"s_cbranch_scc1 {lp}")
    A.label(done)
    A(f"s_add_u32 s{S_T}, s{S_TB}, {base}")
    A(f"s_lshr_b32 s{S_T2}, s{S_T}, 4"); A(f"s_lshl_b32 s{S_T2}, s{S_T2}, 7")
    A(f"s_and_b32 s{S_T}, s{S_T}, 15"); A(f"s_add_u32 s{S_T}, s{S_T}, s{S_T2}"); A(f"s_add_u32 s{S_T}, s{S_T}, {FW_FLAG}")
    A(f"v_lshlrev_b32 v{t}, 10, v{V_LANE}")
    A(f"v_add_u32 v{t}, s{S_T}, v{t}")
    A(f"v_mov_b32 v{t+1}, 1")
    A(f"v_cmp_gt_u32 vcc, 32, v{V_LANE}")
    A(f"s_and_saveexec_b64 s[{S_EX}:{S_EX+1}], vcc")
    A(f"buffer_store_byte v{t+1}, v{t}, {srd(SRD_WS)}, 0 offen sc1")
    A(f"s_mov_b64 exec, s[{S_EX}:{S_EX+1}]")

def clear_flag_lines(A):
    t = GT
    skip = A.newlabel("noclr")
    A(f"s_cmp_lg_u32 s{S_HG}, 7"); A(f"s_cbranch_scc1 {skip}")
    A(f"s_cmp_lg_u32 s{S_WAVE}, 0"); A(f"s_cbranch_scc1 {skip}")
    for r in range(4): A(f"v_mov_b32 v{t+2+r}, 0")
    A(f"s_lshl_b32 s{S_T}, s{S_TB}, 10"); A(f"s_add_u32 s{S_T}, s{S_T}, {FW_FLAG}")
    A(f"v_lshlrev_b32 v{t}, 4, v{V_LANE}")
    A(f"buffer_store_dwordx4 {vr(t+2,4)}, v{t}, {srd(SRD_WS)}, s{S_T} offen sc1")
    A(f"s_mov_b32 s{S_T}, {FW_FFNC}")
    A(f"s_cmp_eq_u32 s{S_TB}, 0")
    l2 = A.newlabel("noffc")
    A(f"s_cbranch_scc0 {l2}")
    A("s_mov_b64 exec, 1")
    A(f"buffer_store_dwordx4 {vr(t+2,4)}, v{t}, {srd(SRD_WS)}, s{S_T} offen sc1")
    A.label(l2)
    A("s_waitcnt vmcnt(0)")
    A("s_mov_b64 exec, 1")
    A(f"v_mov_b32 v{t}, {DBG_INIT}"); A(f"v_mov_b32 v{t+1}, 1")
    A(f"buffer_atomic_add v{t+1}, v{t}, {srd(SRD_DBG)}, 0 offen sc1")
    A("s_mov_b64 exec, -1")
    A.label(skip)

def residual_x(A):
    t = GT
    A(f"s_mul_i32 s{S_T}, s{S_HG}, 144")
    A(f"s_mul_i32 s{S_T2}, s{S_FH}, 96")
    A(f"s_add_u32 s{S_T}, s{S_T}, s{S_T2}")
    A(f"s_lshl_b32 s{S_T2}, s{S_TG}, 4")
    A(f"v_add_u32 v{t}, s{S_T2}, v{V_T}")
    A(f"v_lshlrev_b32 v{t}, 7, v{t}")
    A(f"v_lshrrev_b32 v{t+1}, 1, v{V_T}")
    for j in range(3):
        A(f"v_lshlrev_b32 v{t+2}, 3, v{V_G}")
        A(f"v_add_u32 v{t+2}, s{S_T}, v{t+2}")
        if j: A(f"v_add_u32 v{t+2}, {32*j}, v{t+2}")
        A(f"v_lshrrev_b32 v{t+3}, 7, v{t+2}")
        A(f"v_lshl_add_u32 v{t+3}, v{t+3}, 13, v{t}")
        A(f"v_bfe_u32 v{t+4}, v{t+2}, 4, 3")
        A(f"v_xor_b32 v{t+4}, v{t+4}, v{t+1}")
        A(f"v_lshl_add_u32 v{t+3}, v{t+4}, 4, v{t+3}")
        A(f"v_and_b32 v{t+2}, 8, v{t+2}")
        A(f"v_add_u32 v{t+3}, v{t+3}, v{t+2}")
        A(f"ds_read_b64 {vr(XRES+2*j,2)}, v{t+3}")

def stage_rows(A, base, vals):
    t = GT + 8
    A(f"s_lshl_b32 s{S_T}, s{S_TG}, 4")
    A(f"v_add_u32 v{t}, s{S_T}, v{V_T}")
    A(f"v_mul_u32_u24 v{t}, 144, v{t}")
    A(f"v_lshl_add_u32 v{t}, v{V_G}, 3, v{t}")
    A(f"s_mul_i32 s{S_T}, s{S_FH}, 96")
    A(f"s_add_u32 s{S_T}, s{S_T}, {base}")
    A(f"v_add_u32 v{t}, s{S_T}, v{t}")
    return t

def q_epilogue(A, nt):
    ad = stage_rows(A, QS, None)
    A(f"s_mov_b32 s{S_T}, {f32(QSCALE)}")
    t = GT
    for j in range(nt):
        a_ = ACC + 4 * j; d = AF + 2 * j
        for r in range(4): A(f"v_mul_f32 v{t+r}, s{S_T}, v{a_+r}")
        A(f"v_cvt_pk_bf16_f32 v{d}, v{t}, v{t+1}")
        A(f"v_cvt_pk_bf16_f32 v{d+1}, v{t+2}, v{t+3}")
        last = (nt == 2 and j == 1)
        if last:
            A(f"v_cmp_gt_u32 vcc, 2, v{V_G}")
            A(f"s_and_saveexec_b64 s[{S_EX}:{S_EX+1}], vcc")
        A(f"ds_write_b64 v{ad}, {vr(d,2)} offset:{32*j}")
        if last: A(f"s_mov_b64 exec, s[{S_EX}:{S_EX+1}]")
```

```python
from fcommon import *

V_LANE = 0
VX0, VX1, VW, VL16 = 1, 2, 3, 6
HT = 8
S_H = 39

def setup(A):
    t = HT
    A(f"v_lshrrev_b32 v{t}, 3, v{V_LANE}")
    A(f"v_mul_u32_u24 v{t}, {ROWB}, v{t}")
    A(f"v_and_b32 v{t+1}, 7, v{V_LANE}")
    A(f"v_lshrrev_b32 v{t+2}, 4, v{V_LANE}")
    A(f"v_xor_b32 v{t+1}, v{t+1}, v{t+2}")
    A(f"v_lshl_add_u32 v{VX0}, v{t+1}, 4, v{t}")
    A(f"v_xor_b32 v{VX1}, 64, v{VX0}")
    for k in range(3):
        if k < 2:
            A(f"s_lshl_b32 s{S_T}, s{S_H}, 7"); A(f"s_add_u32 s{S_T}, s{S_T}, {64*k}")
            A(f"v_add_u32 v{t}, s{S_T}, v{V_LANE}")
        else:
            A(f"v_add_u32 v{t}, 512, v{V_LANE}")
        A(f"v_mul_u32_u24 v{t+1}, 7282, v{t}")
        A(f"v_lshrrev_b32 v{t+1}, 16, v{t+1}")
        A(f"v_mul_u32_u24 v{t+2}, 9, v{t+1}")
        A(f"v_sub_u32 v{t+2}, v{t}, v{t+2}")
        A(f"v_and_b32 v{t+3}, 0x38, v{t+1}")
        A(f"v_and_b32 v{t+4}, 1, v{t+1}")
        A(f"v_lshl_add_u32 v{t+3}, v{t+4}, 2, v{t+3}")
        A(f"v_bfe_u32 v{t+4}, v{t+1}, 1, 2")
        A(f"v_add_u32 v{t+3}, v{t+3}, v{t+4}")
        A(f"v_mul_u32_u24 v{t+3}, {ROWB}, v{t+3}")
        A(f"v_lshl_add_u32 v{VW+k}, v{t+2}, 4, v{t+3}")
    A(f"v_lshlrev_b32 v{VL16}, 4, v{V_LANE}")

def dma(A, vreg, srd_i, ssoff, m0_expr, sc1=False):
    A(m0_expr)
    A("s_nop 0")
    A(f"buffer_load_dwordx4 v{vreg}, {srd(srd_i)}, s{ssoff} offen{' sc1' if sc1 else ''} lds")

def issue_x(A, vm, chunks, sc1, tagf, xb=XB):
    for cc in chunks:
        for o in range(2):
            A(f"s_mul_i32 s{S_T}, s{S_H}, {16*ROWB}")
            A(f"s_add_u32 s{S_T}, s{S_T}, s{S_T3}")
            A(f"s_add_u32 s{S_T}, s{S_T}, {o*8*ROWB + cc*128}")
            A(f"s_lshl_b32 s{S_T2}, s{S_H}, 11")
            dma(A, VX0 + o, SRD_A, S_T, f"s_add_u32 m0, s{S_T2}, {xb + cc*8192 + o*1024}", sc1)
            vm.issue(tagf(cc))

def issue_w(A, vm, h3, reps, tagf, wb=WB):
    for a_ in reps:
        A(f"s_mul_i32 s{S_T}, s{S_HG}, 144")
        A(f"s_add_u32 s{S_T}, s{S_T}, {a_*64*ROWB}")
        for k in range(3 if h3 else 2):
            if k < 2:
                A(f"s_lshl_b32 s{S_T2}, s{S_H}, 11")
                dma(A, VW + k, SRD_W, S_T, f"s_add_u32 m0, s{S_T2}, {wb + (9*a_ + k)*1024}")
            else:
                dma(A, VW + 2, SRD_W, S_T, f"s_mov_b32 m0, {wb + (9*a_ + 8)*1024}")
            vm.issue(tagf(a_))

def poll_issue(A, voff):
    t = HT
    skip = A.newlabel("pissue")
    A(f"s_cmp_lg_u32 s{S_H}, 0"); A(f"s_cbranch_scc1 {skip}")
    voff(A, t)
    A(f"buffer_load_dword v{t+1}, v{t}, {srd(SRD_WS)}, 0 offen sc1")
    A.label(skip)

def poll(A, voff, nlanes, cmpval, name, ge=False, preissued=False):
    t = HT
    skip = A.newlabel(name + "skip"); lp = A.newlabel(name + "lp"); done = A.newlabel(name + "ok")
    chk = A.newlabel(name + "chk")
    A(f"s_cmp_lg_u32 s{S_H}, 0"); A(f"s_cbranch_scc1 {skip}")
    A(f"s_mov_b32 s80, 0")
    if preissued: A(f"s_branch {chk}")
    else: voff(A, t)
    A.label(lp)
    A(f"buffer_load_dword v{t+1}, v{t}, {srd(SRD_WS)}, 0 offen sc1")
    A.label(chk)
    A("s_waitcnt vmcnt(0)")
    A(f"v_mov_b32 v{t+2}, {cmpval}")
    A(f"v_cmp_{'le' if ge else 'eq'}_u32 vcc, v{t+2}, v{t+1}")
    A("s_nop 1")
    A(f"s_not_b64 s[82:83], vcc")
    A(f"s_cmp_eq_u64 s[82:83], 0")
    A(f"s_cbranch_scc1 {done}")
    A("s_sleep 1")
    A(f"s_add_u32 s80, s80, 1")
    A(f"s_cmp_lt_u32 s80, 0x80000"); A(f"s_cbranch_scc1 {lp}")
    A.label(done)
    A.label(skip)

def kv_pieces():
    st0 = list(range(0, 14)) + list(range(74, 88))
    order0 = [x for pair in zip(range(0, 14), range(74, 88)) for x in pair]
    rest_a = list(range(14, 74)); rest_b = list(range(88, 148))
    order1 = [x for pair in zip(rest_a, rest_b) for x in pair]
    return order0, order1

def issue_kv(A, vm, pieces, tag):
    for u in range(0, len(pieces), 4):
        grp = pieces[u:u + 4]
        a_, b_ = grp[0], grp[1]
        assert grp == [a_, b_, a_ + 1, b_ + 1], grp
        A(f"s_mov_b32 s{S_T}, {a_*1024}")
        A(f"s_mov_b32 s{S_T2}, {b_*1024}")
        A(f"s_bitcmp1_b32 s{S_H}, 0")
        A(f"s_cselect_b32 s{S_T}, s{S_T2}, s{S_T}")
        A(f"s_lshr_b32 s{S_T2}, s{S_H}, 1"); A(f"s_lshl_b32 s{S_T2}, s{S_T2}, 10")
        A(f"s_add_u32 s{S_T}, s{S_T}, s{S_T2}")
        dma(A, VL16, SRD_KV, S_T, f"s_mov_b32 m0, s{S_T}", sc1=not PLAIN)
        vm.issue(tag)

F_W = 24
F_X = 96
F_KEY = 148
F_A = 152
F_ACC = 160
S_M, S_KH, S_SL = 84, 85, 86

def lds_sync(A, idx, name):
    t = HT + 12
    A("s_waitcnt lgkmcnt(0)")
    A(f"v_mov_b32 v{t}, {L_CNT + 4*idx}")
    A(f"v_mov_b32 v{t+1}, 1")
    A(f"s_mov_b64 s[{S_EX}:{S_EX+1}], exec")
    A("s_mov_b64 exec, 1")
    A(f"ds_add_u32 v{t}, v{t+1}")
    A(f"s_mov_b64 exec, s[{S_EX}:{S_EX+1}]")
    lp = A.newlabel(name); done = A.newlabel(name + "d")
    A(f"s_mov_b32 s80, 0")
    A.label(lp)
    A(f"ds_read_b32 v{t+1}, v{t}")
    A("s_waitcnt lgkmcnt(0)")
    A(f"v_readfirstlane_b32 s81, v{t+1}")
    A(f"s_cmp_ge_u32 s81, 4"); A(f"s_cbranch_scc1 {done}")
    A("s_sleep 1")
    A(f"s_add_u32 s80, s80, 1")
    A(f"s_cmp_lt_u32 s80, 0x100000"); A(f"s_cbranch_scc1 {lp}")
    A.label(done)

def wait_released(A):
    t = HT + 12
    lp = A.newlabel("rel"); done = A.newlabel("reld")
    A(f"v_mov_b32 v{t}, {L_CNT + 12}")
    A(f"s_mov_b32 s80, 0")
    A.label(lp)
    A(f"ds_read_b32 v{t+1}, v{t}")
    A("s_waitcnt lgkmcnt(0)")
    A(f"v_readfirstlane_b32 s81, v{t+1}")
    A(f"s_cmp_ge_u32 s81, 512"); A(f"s_cbranch_scc1 {done}")
    A("s_sleep 16")
    A(f"s_add_u32 s80, s80, 1")
    A(f"s_cmp_lt_u32 s80, 0x400000"); A(f"s_cbranch_scc1 {lp}")
    A.label(done)

def select_top2(A):
    t = HT
    m1, m2 = t, t + 1
    A(f"v_max_u32 v{m1}, v{F_KEY}, v{F_KEY+1}")
    A(f"v_min_u32 v{m2}, v{F_KEY}, v{F_KEY+1}")
    for i in range(2, 4):
        A(f"v_med3_u32 v{m2}, v{m1}, v{m2}, v{F_KEY+i}")
        A(f"v_max_u32 v{m1}, v{m1}, v{F_KEY+i}")
    def wave_max(reg, sdst):
        A(f"v_mov_b32 v{t+2}, v{reg}")
        for sh in (1, 2, 4, 8):
            A(f"v_max_u32_dpp v{t+2}, v{t+2}, v{t+2} row_ror:{sh} row_mask:0xf bank_mask:0xf")
        A(f"v_readlane_b32 s{sdst}, v{t+2}, 0")
        for ln in (16, 32, 48):
            A(f"v_readlane_b32 s{S_T}, v{t+2}, {ln}")
            A(f"s_max_u32 s{sdst}, s{sdst}, s{S_T}")
    wave_max(m1, 80)
    A(f"v_cmp_eq_u32 vcc, s80, v{m1}")
    A(f"v_cndmask_b32 v{m1}, v{m1}, v{m2}, vcc")
    wave_max(m1, 81)
    for j in range(2):
        A(f"s_and_b32 s{S_T}, s{80+j}, 0xffff")
        A(f"s_sub_u32 s{S_IDX0+j}, 0xffff, s{S_T}")
        A(f"s_min_u32 s{S_IDX0+j}, s{S_IDX0+j}, {S_TOK-1}")
    nosel = A.newlabel("nosel")
    A(f"s_cmp_lg_u32 s{S_H}, 0"); A(f"s_cbranch_scc1 {nosel}")
    A(f"v_mov_b32 v{t}, s80"); A(f"v_mov_b32 v{t+1}, s81")
    A(f"v_cmp_eq_u32 vcc, 1, v{V_LANE}")
    A(f"v_cndmask_b32 v{t}, v{t}, v{t+1}, vcc")
    A(f"v_lshrrev_b32 v{t+1}, 16, v{t}")
    A(f"v_xor_b32 v{t+2}, 0x8000, v{t+1}")
    A(f"v_xor_b32 v{t+3}, 0xffff, v{t+1}")
    A(f"v_cmp_lt_u32 vcc, 0x7fff, v{t+1}")
    A(f"v_cndmask_b32 v{t+1}, v{t+3}, v{t+2}, vcc")
    A(f"v_lshlrev_b32 v{t+1}, 16, v{t+1}")
    A(f"v_mul_f32 v{t+1}, {f32(-LOG2E)}, v{t+1}")
    A(f"v_exp_f32 v{t+1}, v{t+1}")
    A(f"v_add_f32 v{t+1}, 1.0, v{t+1}")
    A(f"v_rcp_f32 v{t+1}, v{t+1}")
    A(f"v_cvt_pk_bf16_f32 v{t+1}, v{t+1}, v{t+1}")
    A(f"v_and_b32 v{t+1}, 0xffff0000, v{t+1}")
    A(f"v_and_b32 v{t}, 0xffff, v{t}")
    A(f"v_sub_u32 v{t}, 0xffff, v{t}")
    A(f"v_min_u32 v{t}, {S_TOK-1}, v{t}")
    A(f"v_lshlrev_b32 v{t+2}, 2, v{V_LANE}")
    A(f"v_add_u32 v{t+2}, {L_SEL}, v{t+2}")
    A(f"v_cmp_gt_u32 vcc, 2, v{V_LANE}")
    A(f"s_and_saveexec_b64 s[{S_EX}:{S_EX+1}], vcc")
    A(f"ds_write_b32 v{t+2}, v{t}")
    A(f"ds_write_b32 v{t+2}, v{t+1} offset:8")
    A(f"s_mov_b64 exec, s[{S_EX}:{S_EX+1}]")
    A.label(nosel)

def ffn(A):
    t = HT; WS = srd(SRD_WS)
    FT, FG = t + 14, t + 15
    A(f"v_and_b32 v{FT}, 15, v{V_LANE}"); A(f"v_lshrrev_b32 v{FG}, 4, v{V_LANE}")
    A(f"s_and_b32 s{S_M}, s{S_H}, 1"); A(f"s_lshr_b32 s{S_KH}, s{S_H}, 1")
    A(f"s_cmp_eq_u32 s{S_M}, 0")
    A(f"s_cselect_b32 s{SRD_E}, s{S_WG}, s{S_WU}")
    A(f"s_cselect_b32 s{SRD_E+1}, s{S_WG+1}, s{S_WU+1}")
    A(f"s_and_b32 s{SRD_E+1}, s{SRD_E+1}, 0xffff")
    A(f"s_mov_b32 s{SRD_E+2}, {D*F*2}"); A(f"s_mov_b32 s{SRD_E+3}, 0x20000")
    mk_srd(A, SRD_F, S_WD, F * ROWB)
    A(f"v_lshrrev_b32 v{t}, 2, v{V_LANE}")
    A(f"v_and_b32 v{t+1}, 3, v{V_LANE}")
    A(f"v_lshlrev_b32 v{t+1}, 4, v{t+1}")
    A(f"v_mul_u32_u24 v{t+2}, {ROWB}, v{t}")
    A(f"v_add_u32 v{t+2}, v{t+2}, v{t+1}")
    A(f"v_mul_u32_u24 v{t}, {F*2}, v{t}")
    A(f"v_add_u32 v{t}, v{t}, v{t+1}")
    A(f"s_mul_i32 s{S_T}, s{S_KH}, {9*32*F*2}")
    A(f"s_lshl_b32 s{S_T2}, s{S_SL}, 6")
    A(f"s_add_u32 s{S_T}, s{S_T}, s{S_T2}")
    for s_ in range(9):
        for hf in range(2):
            A(f"buffer_load_dwordx4 {vr(F_W+8*s_+4*hf,4)}, v{t}, {srd(SRD_E)}, s{S_T} offen")
            A(f"s_add_u32 s{S_T}, s{S_T}, {16*F*2}")
    A(f"v_mov_b32 v{t}, s{S_IDX0}"); A(f"v_mov_b32 v{t+1}, s{S_IDX1}")
    A(f"v_cmp_eq_u32 vcc, 1, v{FT}")
    A(f"v_cndmask_b32 v{t}, v{t}, v{t+1}, vcc")
    A(f"v_mul_u32_u24 v{t}, {ROWB}, v{t}")
    A(f"v_lshl_add_u32 v{t}, v{FG}, 4, v{t}")
    A(f"s_mul_i32 s{S_T}, s{S_KH}, {9*64}")
    for s_ in range(9):
        A(f"buffer_load_dwordx4 {vr(F_X+4*s_,4)}, v{t}, {srd(SRD_A)}, s{S_T} offen offset:{64*s_}")
    wr, r1 = t + 3, t + 4
    A(f"s_lshl_b32 s{S_T}, s{S_H}, 11"); A(f"s_add_u32 s{S_T}, s{S_T}, {H_STG}")
    A(f"v_add_u32 v{wr}, s{S_T}, v{VL16}")
    A(f"v_bfe_u32 v{t+5}, v{V_LANE}, 2, 2")
    A(f"v_lshl_add_u32 v{t+5}, v{FG}, 3, v{t+5}")
    A(f"v_and_b32 v{t+6}, 3, v{V_LANE}")
    A(f"v_lshlrev_b32 v{t+6}, 3, v{t+6}")
    A(f"v_lshl_add_u32 v{r1}, v{t+5}, 6, v{t+6}")
    A(f"v_add_u32 v{r1}, s{S_T}, v{r1}")
    def through_lds(src, ntile):
        A(f"ds_write_b128 v{wr}, {vr(src,4)}")
        A(f"ds_write_b128 v{wr}, {vr(src+4,4)} offset:1024")
        A("s_waitcnt lgkmcnt(0)")
        for tile in range(ntile):
            for q in range(2):
                A(f"ds_read_b64_tr_b16 {vr(F_A+4*tile+2*q,2)}, v{r1} offset:{32*tile + 256*q}")
        A("s_waitcnt lgkmcnt(0)")
    A("s_waitcnt vmcnt(0)")
    for s_ in range(9):
        through_lds(F_W + 8 * s_, 2)
        for tile in range(2):
            c = "0" if s_ == 0 else vr(F_ACC + 4 * tile, 4)
            A(f"v_mfma_f32_16x16x32_bf16 {vr(F_ACC+4*tile,4)}, {vr(F_A+4*tile,4)}, {vr(F_X+4*s_,4)}, {c}")
        if s_ == 4:
            A(f"s_mul_i32 s{S_T}, s{S_SL}, {32*ROWB}")
            A(f"s_mul_i32 s{S_T2}, s{S_H}, 288")
            A(f"s_add_u32 s{S_T}, s{S_T}, s{S_T2}")
            A(f"s_add_u32 s{S_T2}, s{S_T}, {16*ROWB}")
            for rd in range(5):
                A(f"buffer_load_dwordx4 {vr(F_W+8*rd,4)}, v{t+2}, {srd(SRD_F)}, s{S_T} offen offset:{64*rd}")
                A(f"buffer_load_dwordx4 {vr(F_W+8*rd+4,4)}, v{t+2}, {srd(SRD_F)}, s{S_T2} offen offset:{64*rd}")
    A("s_nop 7")
    A(f"v_lshlrev_b32 v{t+5}, 1, v{FG}")
    A(f"v_add_u32 v{t+5}, v{t+5}, v{FT}")
    A(f"v_lshlrev_b32 v{t+5}, 4, v{t+5}")
    A(f"v_add_u32 v{t+7}, {H_RED}, v{t+5}")
    A(f"s_lshl_b32 s{S_T}, s{S_H}, 8")
    A(f"v_add_u32 v{t+6}, s{S_T}, v{t+7}")
    A(f"v_cmp_gt_u32 vcc, 2, v{FT}")
    A(f"s_and_saveexec_b64 s[{S_EX}:{S_EX+1}], vcc")
    A(f"ds_write_b128 v{t+6}, {vr(F_ACC,4)}")
    A(f"ds_write_b128 v{t+6}, {vr(F_ACC+4,4)} offset:128")
    A(f"s_mov_b64 exec, s[{S_EX}:{S_EX+1}]")
    lds_sync(A, 0, "hs0")
    noh = A.newlabel("noh")
    A(f"s_cmp_lg_u32 s{S_H}, 0"); A(f"s_cbranch_scc1 {noh}")
    B0 = F_X
    A(f"v_cmp_gt_u32 vcc, 2, v{FT}")
    A(f"s_and_saveexec_b64 s[{S_EX}:{S_EX+1}], vcc")
    for tile in range(2):
        for w in range(4):
            A(f"ds_read_b128 {vr(B0+16*tile+4*w,4)}, v{t+7} offset:{256*w + 128*tile}")
    A("s_waitcnt lgkmcnt(0)")
    for tile in range(2):
        b = B0 + 16 * tile
        for r in range(4):
            gq = b + r; uq = b + 4 + r
            A(f"v_add_f32 v{gq}, v{gq}, v{b+8+r}")
            A(f"v_add_f32 v{uq}, v{uq}, v{b+12+r}")
            A(f"v_cvt_pk_bf16_f32 v{gq}, v{gq}, v{uq}")
            A(f"v_and_b32 v{uq}, 0xffff0000, v{gq}")
            A(f"v_lshlrev_b32 v{gq}, 16, v{gq}")
            A(f"v_mul_f32 v{b+8+r}, {f32(-LOG2E)}, v{gq}")
            A(f"v_exp_f32 v{b+8+r}, v{b+8+r}")
            A(f"v_add_f32 v{b+8+r}, 1.0, v{b+8+r}")
            A(f"v_rcp_f32 v{b+8+r}, v{b+8+r}")
            A(f"v_mul_f32 v{gq}, v{gq}, v{b+8+r}")
            A(f"v_cvt_pk_bf16_f32 v{gq}, v{gq}, v{gq}")
            A(f"v_and_b32 v{gq}, 0xffff0000, v{gq}")
            A(f"v_mul_f32 v{gq}, v{gq}, v{uq}")
        A(f"v_cvt_pk_bf16_f32 v{b}, v{b}, v{b+1}")
        A(f"v_cvt_pk_bf16_f32 v{b+1}, v{b+2}, v{b+3}")
    A(f"v_lshlrev_b32 v{t+5}, 6, v{FT}")
    A(f"v_lshl_add_u32 v{t+5}, v{FG}, 3, v{t+5}")
    A(f"v_add_u32 v{t+5}, {H_H}, v{t+5}")
    A(f"ds_write_b64 v{t+5}, {vr(B0,2)}")
    A(f"ds_write_b64 v{t+5}, {vr(B0+16,2)} offset:32")
    A(f"s_mov_b64 exec, s[{S_EX}:{S_EX+1}]")
    A.label(noh)
    lds_sync(A, 1, "hs1")
    HA = F_X + 16
    A(f"v_and_b32 v{t+5}, 3, v{FT}")
    A(f"v_lshrrev_b32 v{t+6}, 2, v{FT}")
    A(f"v_lshlrev_b32 v{t+7}, 6, v{t+5}")
    A(f"v_lshl_add_u32 v{t+7}, v{FG}, 4, v{t+7}")
    A(f"v_add_u32 v{t+7}, {H_H}, v{t+7}")
    A(f"v_mov_b32 v{t+8}, {OOR}")
    A(f"v_cmp_gt_u32 vcc, 2, v{t+5}")
    A(f"v_cndmask_b32 v{t+7}, v{t+8}, v{t+7}, vcc")
    for j in range(4):
        A(f"v_cmp_eq_u32 vcc, {j}, v{t+6}")
        A(f"v_cndmask_b32 v{t+5}, v{t+8}, v{t+7}, vcc")
        A(f"ds_read_b128 {vr(HA+4*j,4)}, v{t+5}")
    A("s_waitcnt vmcnt(0)")
    DY = F_X
    for rd in range(5):
        nt = 2 if rd < 4 else 1
        through_lds(F_W + 8 * rd, nt)
        for tile in range(nt):
            u, j = divmod(2 * rd + tile, 4)
            c = "0" if j == 0 else vr(DY + 4 * u, 4)
            A(f"v_mfma_f32_16x16x32_bf16 {vr(DY+4*u,4)}, {vr(HA+4*j,4)}, {vr(F_A+4*tile,4)}, {c}")
    A("s_nop 7")
    A(f"s_and_b32 s{S_T}, s2, {Y_REP-1}")
    A(f"s_mul_i32 s{S_T}, s{S_T}, {2*D*4}")
    A(f"s_mul_i32 s{S_T2}, s{S_H}, {144*4}")
    A(f"s_add_u32 s{S_T}, s{S_T}, s{S_T2}")
    A(f"s_add_u32 s{S_T}, s{S_T}, {FW_YACC}")
    A(f"s_add_u32 s{S_T2}, s{S_T}, {D*4}")
    A(f"v_lshlrev_b32 v{t+5}, 2, v{V_LANE}")
    for u in range(3):
        if u == 2: A("s_mov_b64 exec, 0xffff")
        A(f"buffer_atomic_add_f32 v{DY+4*u}, v{t+5}, {WS}, s{S_T} offen offset:{256*u}")
        A(f"buffer_atomic_add_f32 v{DY+4*u+1}, v{t+5}, {WS}, s{S_T2} offen offset:{256*u}")
    A("s_mov_b64 exec, -1")
    A("s_waitcnt vmcnt(0)")
    lds_sync(A, 2, "hs2")
    nof = A.newlabel("nof")
    A(f"s_cmp_lg_u32 s{S_H}, 0"); A(f"s_cbranch_scc1 {nof}")
    A(f"v_mov_b32 v{t}, {FW_FFNC}"); A(f"v_mov_b32 v{t+1}, 1")
    A("s_mov_b64 exec, 1")
    A(f"buffer_atomic_add v{t+1}, v{t}, {WS}, 0 offen sc1")
    A("s_mov_b64 exec, -1")
    A.label(nof)
```

```python
from fcommon import *
from f_gemm import *
import f_attn

def out_epilogue(A, R, nt):
    t = GT; WS = srd(SRD_WS)
    g = GATE; og = GT + 16
    X = AF
    A(f"v_sub_f32 v{og}, 1.0, v{g}")
    A(f"v_cvt_pk_bf16_f32 v{og}, v{og}, v{og}")
    A(f"v_and_b32 v{og}, 0xffff0000, v{og}")
    for j in range(nt):
        for q in range(2):
            src = XRES + 2 * j + q; d = X + 4 * j + 2 * q
            A(f"v_lshlrev_b32 v{d}, 16, v{src}")
            A(f"v_and_b32 v{d+1}, 0xffff0000, v{src}")
    A(f"v_mov_b32 v{t}, {L_SEL}")
    A(f"ds_read_b128 {vr(t+4,4)}, v{t}")
    A("s_waitcnt lgkmcnt(0)")
    for e in range(4): A(f"v_readfirstlane_b32 s{80+e}, v{t+4+e}")
    for jr in range(2):
        skip = A.newlabel("nort")
        A(f"s_lshl_b32 s{S_T}, s{S_TG}, 4")
        A(f"s_add_u32 s{S_T}, s{S_T}, s{S_ROW0}")
        A(f"s_sub_u32 s84, s{80+jr}, s{S_T}")
        A(f"s_cmp_lt_u32 s84, 16")
        A(f"s_cbranch_scc0 {skip}")
        lp = A.newlabel("ypoll"); ldone = A.newlabel("ydone")
        A(f"s_mov_b32 s85, 0")
        A(f"v_mov_b32 v{t}, {FW_FFNC}")
        A.label(lp)
        A(f"buffer_load_dword v{t+1}, v{t}, {WS}, 0 offen sc1")
        A("s_waitcnt vmcnt(0)")
        A(f"v_readfirstlane_b32 s86, v{t+1}")
        A(f"s_cmp_ge_u32 s86, 144"); A(f"s_cbranch_scc1 {ldone}")
        A("s_sleep 8")
        A(f"s_add_u32 s85, s85, 1")
        A(f"s_cmp_lt_u32 s85, 0x40000"); A(f"s_cbranch_scc1 {lp}")
        A.label(ldone)
        A(f"s_mul_i32 s{S_T2}, s{S_HG}, 288")
        A(f"s_mul_i32 s{S_T3}, s{S_FH}, 192")
        A(f"s_add_u32 s{S_T2}, s{S_T2}, s{S_T3}")
        A(f"s_add_u32 s{S_T2}, s{S_T2}, {FW_YACC + jr*D*4}")
        A(f"v_lshlrev_b32 v{t}, 4, v{V_G}")
        A(f"v_add_u32 v{t}, s{S_T2}, v{t}")
        Y = 16 + 24
        for j in range(nt):
            for rp in range(Y_REP):
                A(f"s_mov_b32 s{S_T2}, {rp*2*D*4}")
                A(f"buffer_load_dwordx4 {vr(Y+4*rp,4)}, v{t}, {WS}, s{S_T2} offen offset:{64*j} sc1")
            A("s_waitcnt vmcnt(0)")
            for rp in range(1, Y_REP):
                for r in range(4): A(f"v_add_f32 v{Y+r}, v{Y+r}, v{Y+4*rp+r}")
            A(f"v_cmp_eq_u32 vcc, s84, v{V_T}")
            for r in range(4):
                y = Y + r; x = X + 4 * j + r
                A(f"v_cvt_pk_bf16_f32 v{y}, v{y}, v{y}")
                A(f"v_and_b32 v{y}, 0xffff0000, v{y}")
                A(f"v_mul_f32 v{y}, s{82+jr}, v{y}")
                A(f"v_cvt_pk_bf16_f32 v{y}, v{y}, v{y}")
                A(f"v_and_b32 v{y}, 0xffff0000, v{y}")
                A(f"v_add_f32 v{y}, v{x}, v{y}")
                A(f"v_cvt_pk_bf16_f32 v{y}, v{y}, v{y}")
                A(f"v_and_b32 v{y}, 0xffff0000, v{y}")
                A(f"v_cndmask_b32 v{x}, v{x}, v{y}, vcc")
        A.label(skip)
    ad = stage_rows(A, OSTG, None)
    for j in range(nt):
        a_ = ACC + 4 * j; x = X + 4 * j; d = GT + 2 * j
        for r in range(4):
            A(f"v_mul_f32 v{x+r}, v{og}, v{x+r}")
            A(f"v_fma_f32 v{x+r}, v{g}, v{a_+r}, v{x+r}")
        A(f"v_cvt_pk_bf16_f32 v{d}, v{x}, v{x+1}")
        A(f"v_cvt_pk_bf16_f32 v{d+1}, v{x+2}, v{x+3}")
        last = (nt == 2 and j == 1)
        if last:
            A(f"v_cmp_gt_u32 vcc, 2, v{V_G}")
            A(f"s_and_saveexec_b64 s[{S_EX}:{S_EX+1}], vcc")
        A(f"ds_write_b64 v{ad}, {vr(d,2)} offset:{32*j}")
        if last: A(f"s_mov_b64 exec, s[{S_EX}:{S_EX+1}]")
    A("s_waitcnt lgkmcnt(0)")

def out_phase(A, R):
    gemm_addresses(A, XB3, WB3)
    lf = A.newlabel("p3f1"); le = A.newlabel("p3e")
    bars0 = list(R.bars)
    A(f"s_cmp_eq_u32 s{S_FH}, 0"); A(f"s_cbranch_scc0 {lf}")
    for nt in (3, 2):
        if nt == 2:
            A.label(lf); R.bars = list(bars0)
        ra = 10 if nt == 3 else 15
        gm = Gemm(A, nt, ra)
        gm.preload_a(ra)
        R.bar("B6")
        pstamp(A, 2, "t")
        for q in range(3):
            R.bar(f"bX{q}")
            pstamp(A, 10 + q, "t")
            gm.steps(list(range(6 * q, 6 * q + 6)), 18, 6 * q + 6, la_a=ra)
        pstamp(A, 13, "t")
        A("s_nop 7")
        out_epilogue(A, R, nt)
        if nt == 3: A(f"s_branch {le}")
    A.label(le)
    pstamp(A, 3, "t")
    R.bar("B7")
    def sbase(A):
        A(f"s_mul_i32 s{S_T}, s{S_ROW0}, {ROWB}")
        A(f"s_mul_i32 s{S_T2}, s{S_HG}, 144")
        A(f"s_add_u32 s{S_T}, s{S_T}, s{S_T2}")
    f_attn.store_rows(A, SRD_OUT, sbase, os.environ.get('OUTMOD', ''))
```

```python
from common import *
import os

FW_KV   = 0
TB_BYTES = 4736
TB_KEXT = 2048
TB_V    = 2304
KV_IMG  = 32 * TB_BYTES
FW_KN   = KV_IMG
FW_G    = FW_KN + 256
FW_KEYS = FW_G + 8192
FW_YACC = FW_KEYS + 1024
FW_FLAG = (FW_YACC + Y_REP * 2 * D * 4 + 255) // 256 * 256
FL_KN   = 896
FL_XCC  = 784
FL_GRP  = 768
FW_FFNC = FW_FLAG + 32 * 1024
FW_O    = (FW_FFNC + 128 + 4095) // 4096 * 4096
FW_SIZE = FW_O + S_TOK * ROWB
DBG_INIT = 0
FL_K, FL_V, FL_G = 0, 32, 64
XB = 0
WB = 73728
W_STEP = 32 * 144
E2B = WB + 12 * W_STEP
E3B = E2B + 576 * 32
STG = WB + 18 * W_STEP
STG_N = STG + 2560
QS = WB
XB3, WB3 = 82944, 0
PSLOT = XB3
OSTG = XB3 + 32768
RESB = OSTG + 9216
OUTSTG = WB3
H_STG = KV_IMG
H_RED = H_STG + 8192
H_H = H_RED + 1024
L_UPD = H_H + 128
L_CNT = 163584
L_SEL = L_CNT + 32
L_SAME = L_CNT + 52
L_KN = L_CNT + 48
LDS_BYTES = 163840
OOR = 0x30000

S_WAVE, S_TB, S_HG = 33, 34, 35
S_T, S_T2, S_T3 = 36, 37, 38
S_TG, S_FH, S_ROW0 = 39, 40, 41
S_IDX0, S_IDX1 = 42, 43
SRD_A, SRD_W, SRD_WS, SRD_E, SRD_KV, SRD_OUT, SRD_DBG, SRD_F = 44, 48, 52, 56, 60, 64, 68, 72
S_EX = 76

def srd(i): return f"s[{i}:{i+3}]"

class Role:
    def __init__(self, A): self.A = A; self.bars = []
    def bar(self, name):
        self.bars.append(name)
        self.A(f"s_barrier ; {name}")

STOP = os.environ.get("STOP", "")

PLAIN = os.environ.get("PLAIN", "1") == "1"
HSC = "" if PLAIN else " sc1"
```

```python
from fcommon import *
import sys
import f_gemm as G, f_attn as AT, f_out as FO, f_help as HP

NWAVES = 12
FLAG_STAGE = int(os.environ.get('FLAG_STAGE', '2'))

def stop_here(A, name):
    if STOP == name:
        A("s_waitcnt vmcnt(0) lgkmcnt(0)")
        A("s_endpgm")
        return True
    return False

def compute_p1(A, R, duty):
    if duty:
        if duty in ("k", "v"):
            mk_srd(A, SRD_E, S_WK if duty == "k" else S_WV, 576 * 36)
        else:
            mk_srd(A, SRD_E, S_GW, ROWB); mk_srd(A, SRD_F, S_WR, ROWB)
        G.duty_loads(A, duty)
    G.gemm_addresses(A)
    if duty:
        G.duty_addresses(A)
        G.duty_writes(A, duty)
    A("s_waitcnt lgkmcnt(0)")
    R.bar("b1")
    pstamp(A, 1, "p1")
    if not duty: G.residual_x(A)
    if duty:
        {"k": G.k_stage, "v": G.v_stage, "g": G.g_stage}[duty](A)
        A("s_waitcnt lgkmcnt(0)")
        R.bar("b2")
        pstamp(A, 2, "p1")
        np_ = A.newlabel("nopub")
        A(f"s_cmp_lg_u32 s{S_WAVE}, 0"); A(f"s_cbranch_scc1 {np_}")
        G.publish(A, duty)
        G.init_probe(A)
        A.label(np_)
        G.residual_x(A)
    lf = A.newlabel("p1f1"); le = A.newlabel("p1e")
    bars0 = list(R.bars)
    A(f"s_cmp_eq_u32 s{S_FH}, 0"); A(f"s_cbranch_scc0 {lf}")
    stages = [list(range(0, 4)), list(range(4, 8)), list(range(8, 12)), list(range(12, 18))]
    for nt in (3, 2):
        if nt == 2:
            A.label(lf); R.bars = list(bars0)
        gm = G.Gemm(A, nt, 4)
        for q, steps in enumerate(stages):
            if q == FLAG_STAGE and duty and nt == 3:
                nf = A.newlabel("noflag")
                A(f"s_cmp_lg_u32 s{S_WAVE}, 0"); A(f"s_cbranch_scc1 {nf}")
                pstamp(A, 3, "p1")
                G.raise_flag(A, duty)
                pstamp(A, 4, "p1")
                A.label(nf)
            R.bar(f"bW{q}")
            if q == 3: pstamp(A, 5, "p1")
            gm.steps(steps, steps[-1] + 1, 18, la_a=1, burst=True)
        A("s_nop 7")
        G.q_epilogue(A, nt)
        if nt == 3: A(f"s_branch {le}")
    A.label(le)
    A("s_waitcnt lgkmcnt(0)")
    R.bar("bQ")

def compute_role(A):
    R = Role(A)
    A(f"s_and_b32 s{S_TG}, s{S_WAVE}, 3"); A(f"s_lshr_b32 s{S_FH}, s{S_WAVE}, 2")
    G.lane_setup(A)
    A(f"v_mov_b32 v{G.GT}, {L_CNT}"); A(f"v_mov_b32 v{G.GT+2}, 0"); A(f"v_mov_b32 v{G.GT+3}, 0")
    A(f"v_mov_b32 v{G.GT+4}, 0"); A(f"v_mov_b32 v{G.GT+5}, 0")
    A(f"ds_write_b128 v{G.GT}, {vr(G.GT+2,4)}")
    G.clear_flag_lines(A)
    lk = A.newlabel("dk"); lv = A.newlabel("dv"); lg = A.newlabel("dg"); lj = A.newlabel("dj")
    A(f"s_cmp_eq_u32 s{S_HG}, 0"); A(f"s_cbranch_scc1 {lk}")
    A(f"s_cmp_eq_u32 s{S_HG}, 1"); A(f"s_cbranch_scc1 {lv}")
    A(f"s_cmp_eq_u32 s{S_HG}, 2"); A(f"s_cbranch_scc1 {lg}")
    seqs = {}
    for duty, lab in ((None, None), ("k", lk), ("v", lv), ("g", lg)):
        if lab: A.label(lab)
        R.bars = []
        compute_p1(A, R, duty)
        seqs[duty] = list(R.bars)
        if duty != "g": A(f"s_branch {lj}")
    A.label(lj)
    R.bars = []
    pstamp(A, 1)
    AT.q_fragments(A)
    AT.lds_addresses(A)
    pstamp(A, 6, "p1")
    R.bar("bKV")
    pstamp(A, 7, "p1")
    if stop_here(A, "p1"): return seqs, R.bars
    t = AT.T
    A(f"v_lshlrev_b32 v{t}, 2, v{G.V_I}")
    A(f"v_add_u32 v{t}, {FW_KN}, v{t}")
    A(f"buffer_load_dword v{t+6}, v{t}, {srd(SRD_WS)}, 0 offen{HSC}")
    A(f"s_lshl_b32 s{S_T}, s{S_TG}, 4"); A(f"s_add_u32 s{S_T}, s{S_T}, s{S_ROW0}")
    A(f"v_add_u32 v{t+1}, s{S_T}, v{G.V_T}")
    A(f"v_lshlrev_b32 v{t+1}, 2, v{t+1}")
    A(f"v_add_u32 v{t+1}, {FW_G}, v{t+1}")
    A(f"buffer_load_dword v{G.GATE}, v{t+1}, {srd(SRD_WS)}, 0 offen{HSC}")
    A("s_waitcnt vmcnt(0)")
    AT.range_check(A)
    R.bar("B0")
    pstamp(A, 2)
    lf = A.newlabel("fallback"); le = A.newlabel("attdone")
    A(f"s_cbranch_vccz {lf}")
    b0 = list(R.bars)
    AT.fast_path(A, R)
    A(f"s_branch {le}")
    A.label(lf)
    b1 = list(R.bars); R.bars = list(b0)
    AT.fallback_path(A, R)
    assert R.bars == b1
    A.label(le)
    AT.finish(A, R)
    def sbase(A):
        A(f"s_mul_i32 s{S_T}, s{S_ROW0}, {ROWB}")
        A(f"s_mul_i32 s{S_T2}, s{S_HG}, 144")
        A(f"s_add_u32 s{S_T}, s{S_T}, s{S_T2}")
        A(f"s_add_u32 s{S_T}, s{S_T}, {FW_O}")
    AT.store_rows(A, SRD_WS, sbase, True)
    A("s_waitcnt vmcnt(0)")
    pstamp(A, 1, "t")
    R.bar("B5")
    nf = A.newlabel("nogrp")
    A(f"s_cmp_lg_u32 s{S_WAVE}, 0"); A(f"s_cbranch_scc1 {nf}")
    A(f"s_lshl_b32 s{S_T}, s{S_TB}, 10"); A(f"s_add_u32 s{S_T}, s{S_T}, {FW_FLAG + FL_GRP}")
    A(f"v_mov_b32 v{t}, s{S_T}"); A(f"v_mov_b32 v{t+1}, 1")
    A("s_mov_b64 exec, 1")
    A(f"buffer_atomic_add v{t+1}, v{t}, {srd(SRD_WS)}, 0 offen sc1")
    A("s_mov_b64 exec, -1")
    A.label(nf)
    FO.out_phase(A, R)
    if STAMPS: A("s_waitcnt vmcnt(0)")
    pstamp(A, 7)
    if os.environ.get("DBGSTAMP"):
        nd = A.newlabel("nodbg")
        A(f"s_cmp_lg_u32 s2, {int(os.environ['DBGSTAMP'])}"); A(f"s_cbranch_scc1 {nd}")
        A(f"s_cmp_lg_u32 s{S_WAVE}, 4"); A(f"s_cbranch_scc1 {nd}")
        A(f"v_mbcnt_lo_u32_b32 v{AT.T}, -1, 0")
        A(f"v_lshlrev_b32 v{AT.T}, 2, v{AT.T}")
        A(f"v_add_u32 v{AT.T}, 32, v{AT.T}")
        A("s_mov_b64 exec, 0xff")
        A(f"buffer_store_dword v{V_ST}, v{AT.T}, {srd(SRD_DBG)}, 0 offen")
        A.label(nd)
    else:
        pstamp_flush(A, S_WAVE, S_WS, WS_STAMP, AT.T)
    A("s_endpgm")
    return seqs, R.bars

def flag_off(A, t):
    A(f"v_min_u32 v{t}, 23, v{HP.V_LANE}")
    A(f"v_and_b32 v{t+1}, 3, v{t}"); A(f"v_lshrrev_b32 v{t}, 2, v{t}")
    A(f"v_lshlrev_b32 v{t}, 7, v{t}"); A(f"v_lshl_add_u32 v{t}, v{t+1}, 2, v{t}")
    A(f"s_lshl_b32 s{S_T}, s{S_TB}, 10"); A(f"s_add_u32 s{S_T}, s{S_T}, {FW_FLAG}")
    A(f"v_add_u32 v{t}, s{S_T}, v{t}")

def helper_p1(A, R, duty, h3):
    vm = VmTrack()
    A(f"s_mul_i32 s{S_T3}, s{S_ROW0}, {ROWB}")
    HP.issue_x(A, vm, range(9), False, lambda cc: "x")
    HP.issue_w(A, vm, h3, range(6), lambda a_: f"w{a_//2}")
    if not duty: HP.issue_w(A, vm, h3, range(6, 9), lambda a_: "w3")
    A(f"s_waitcnt vmcnt({vm.after('x')})")
    R.bar("b1")
    if duty:
        R.bar("b2")
        HP.issue_w(A, vm, h3, range(6, 9), lambda a_: "w3")
    for q in range(4):
        A(f"s_waitcnt vmcnt({vm.after(f'w{q}')})")
        R.bar(f"bW{q}")
    HP.poll_issue(A, flag_off)
    R.bar("bQ")

def helper_rest(A, R, h3):
    pstamp(A, 1)
    HP.poll(A, flag_off, 24, "0x01010101", "kvp", preissued=True)
    pstamp(A, 2)
    R.bar("bKV")
    if stop_here(A, "p1"): return
    vm = VmTrack()
    A(f"s_mov_b32 s{S_T}, {FW_KEYS}")
    A(f"buffer_load_dwordx4 {vr(HP.F_KEY,4)}, v{HP.VL16}, {srd(SRD_WS)}, s{S_T} offen{HSC}")
    o0, o1 = HP.kv_pieces()
    HP.issue_kv(A, vm, o0, "s0")
    A("s_waitcnt vmcnt(0)")
    R.bar("B0")
    HP.issue_kv(A, vm, o1, "s1")
    HP.select_top2(A)
    A("s_waitcnt vmcnt(0) lgkmcnt(0)")
    R.bar("B1")
    nof = A.newlabel("noffn")
    A(f"s_cmp_lt_u32 s{S_HG}, 3"); A(f"s_cbranch_scc1 {nof}")
    A(f"s_lshr_b32 s{S_T}, s2, 6"); A(f"s_mul_i32 s{S_T}, s{S_T}, 5")
    A(f"s_add_u32 s{S_T}, s{S_T}, s{S_HG}"); A(f"s_sub_u32 s{S_T}, s{S_T}, 3")
    A(f"s_cmp_ge_u32 s{S_T}, 18"); A(f"s_cbranch_scc1 {nof}")
    A(f"s_and_b32 s{S_T2}, s2, 7"); A(f"s_mul_i32 s{S_T2}, s{S_T2}, 18")
    A(f"s_add_u32 s{HP.S_SL}, s{S_T2}, s{S_T}")
    pstamp(A, 3)
    HP.ffn(A)
    A.label(nof)
    pstamp(A, 4)
    mk_srd(A, SRD_W, S_WO, D * ROWB)
    mk_srd(A, SRD_A, S_WS, S_TOK * ROWB, add=FW_O)
    vm = VmTrack()
    HP.wait_released(A)
    HP.issue_w(A, vm, h3, range(9), lambda a_: "w", wb=WB3)
    A("s_waitcnt vmcnt(0)")
    R.bar("B2"); R.bar("B3"); R.bar("B4"); R.bar("B5")
    def grp_off(A, t):
        A(f"s_lshl_b32 s{S_T}, s{S_TB}, 10"); A(f"s_add_u32 s{S_T}, s{S_T}, {FW_FLAG + FL_GRP}")
        A(f"v_mov_b32 v{t}, s{S_T}")
    pstamp(A, 5)
    HP.poll(A, grp_off, 1, "8", "grp", ge=True)
    pstamp(A, 6)
    R.bar("B6")
    if stop_here(A, "attn"): return
    vm = VmTrack()
    A(f"s_mul_i32 s{S_T3}, s{S_ROW0}, {ROWB}")
    HP.issue_x(A, vm, range(9), not PLAIN, lambda cc: f"x{cc//3}", xb=XB3)
    for q in range(3):
        A(f"s_waitcnt vmcnt({vm.after(f'x{q}')})")
        R.bar(f"bX{q}")
    R.bar("B7")
    pstamp(A, 7)
    if not os.environ.get("DBGSTAMP"): pstamp_flush(A, S_WAVE, S_WS, WS_STAMP, HP.HT)
    A("s_endpgm")

def helper_role(A):
    R = Role(A)
    A("s_setprio 3")
    A(f"s_sub_u32 s{HP.S_H}, s{S_WAVE}, 8")
    A(f"v_and_b32 v{HP.V_LANE}, 63, v0")
    HP.setup(A)
    l3 = A.newlabel("h3")
    A(f"s_cmp_eq_u32 s{HP.S_H}, 3"); A(f"s_cbranch_scc1 {l3}")
    seqs = {}
    for h3 in (False, True):
        if h3: A.label(l3)
        ld = A.newlabel("hduty"); lj = A.newlabel("hj")
        A(f"s_cmp_lt_u32 s{S_HG}, 3"); A(f"s_cbranch_scc1 {ld}")
        R.bars = []; helper_p1(A, R, False, h3); seqs[None] = list(R.bars)
        A(f"s_branch {lj}")
        A.label(ld)
        R.bars = []; helper_p1(A, R, True, h3); seqs["d"] = list(R.bars)
        A.label(lj)
        R.bars = []
        helper_rest(A, R, h3)
    return seqs, R.bars

def gen(name):
    A = Asm()
    end = "L_end"
    A("s_cmp_ge_u32 s2, 256"); A(f"s_cbranch_scc1 {end}")
    pstamp_init(A); pstamp(A, 0)
    load_kernargs(A)
    A(f"v_lshrrev_b32 v1, 6, v0")
    A(f"v_and_b32 v{G.V_LANE}, 63, v0")
    A(f"v_readfirstlane_b32 s{S_WAVE}, v1")
    A(f"s_and_b32 s{S_T}, s2, 7"); A(f"s_lshr_b32 s{S_T2}, s2, 3")
    A(f"s_and_b32 s{S_HG}, s{S_T2}, 7"); A(f"s_lshr_b32 s{S_T2}, s{S_T2}, 3")
    A(f"s_lshl_b32 s{S_T}, s{S_T}, 2"); A(f"s_add_u32 s{S_TB}, s{S_T}, s{S_T2}")
    A(f"s_lshl_b32 s{S_ROW0}, s{S_TB}, 6")
    A("s_waitcnt lgkmcnt(0)")
    mk_srd(A, SRD_A, S_X, S_TOK * ROWB)
    mk_srd(A, SRD_W, S_WQ, D * ROWB)
    mk_srd(A, SRD_WS, S_WS, FW_SIZE)
    mk_srd(A, SRD_KV, S_WS, KV_IMG, add=FW_KV)
    mk_srd(A, SRD_OUT, S_OUT, S_TOK * ROWB)
    mk_srd(A, SRD_DBG, S_DBG, 256)
    lh = A.newlabel("helper")
    A(f"s_cmp_ge_u32 s{S_WAVE}, 8"); A(f"s_cbranch_scc1 {lh}")
    cs, cb = compute_role(A)
    A.label(lh)
    hs, hb = helper_role(A)
    assert cs[None] == hs[None], (cs[None], hs[None])
    for d in "kvg": assert cs[d] == hs["d"], (cs[d], hs["d"])
    assert cb == hb, (cb, hb)
    A.label(end); A("s_endpgm")
    return A, 168, LDS_BYTES, 64 * NWAVES

def build(out):
    n = NAME + "_kernel"
    A, nv, lds, blk = gen(n)
    hdr = open("cdna_kernels/" + NAME + ".s.ref").read().split("; Override launch")[0]
    txt = hdr + f"; @launch grid=(256,1,1) block=({blk},1,1) lds={lds}\n"
    txt += '.amdgcn_target "amdgcn-amd-amdhsa--gfx950"\n'
    rep = []
    body = A.finish(rep)
    if "-v" in sys.argv:
        print(len(rep), "nop insertions")
        for r in rep: print("   ", r)
    txt += kernel_header(n) + body + kernel_desc(n, nv, nsgpr=102)
    open(out, "w").write(txt)
    print("wrote", out, len(txt), "bytes")

if __name__ == "__main__":
    import sys
    build(sys.argv[1])
```

```python
from fcommon import *
from f_gemm import V_LANE, V_I, V_H, GATE, V_T, V_G

S0, S1 = 0, 16
P = 32
OA, OB = 40, 56
QA, QEA = 72, 76
QB, QEB = 80, 84
K, KE = 88, 92
V0, V1 = 96, 100
A_K, A_KE, A_V = 104, 105, 106
T = 110
NEGM = 112
S_QN, S_KN = 78, 79
T_SAFE = 60.0
HALF = 16 * TB_BYTES
BUMP = 8 * TB_BYTES

def M(d, a, b, c):
    cs = "0" if c is None else vr(c, 16)
    return f"v_mfma_f32_32x32x16_bf16 {vr(d,16)}, {vr(a,4)}, {vr(b,4)}, {cs}"
def M8(d, a, b, c):
    return f"v_mfma_f32_32x32x8bf16_1k {vr(d,16)}, {vr(a,2)}, {vr(b,2)}, {vr(c,16)}"
def E(r): return f"v_exp_f32 v{r}, v{r}"
def C(d, a): return f"v_cvt_pk_bf16_f32 v{d}, v{a}, v{a+1}"

def q_fragments(A):
    t = T
    A(f"s_mul_i32 s{S_T}, s{S_TG}, 36")
    A(f"s_add_u32 s{S_T}, s{S_T}, {QS}")
    A(f"v_mul_u32_u24 v{t}, 144, v{V_I}")
    A(f"v_add_u32 v{t}, s{S_T}, v{t}")
    A(f"v_lshl_add_u32 v{t+1}, v{V_H}, 4, v{t}")
    A(f"v_add_u32 v{t+2}, {32*144}, v{t+1}")
    A(f"v_add_u32 v{t}, 32, v{t}")
    A(f"v_mov_b32 v{t+3}, {OOR}")
    A(f"v_cmp_eq_u32 vcc, 0, v{V_H}")
    A(f"v_cndmask_b32 v{t}, v{t+3}, v{t}, vcc")
    for (Q, QE, ad, off) in ((QA, QEA, t + 1, 0), (QB, QEB, t + 2, 32 * 144)):
        A(f"ds_read2_b32 {vr(Q,2)}, v{ad} offset0:0 offset1:1")
        A(f"ds_read2_b32 {vr(Q+2,2)}, v{ad} offset0:2 offset1:3")
        A(f"ds_read_b32 v{QE}, v{t} offset:{off}")
    A("s_waitcnt lgkmcnt(0)")
    for QE in (QEA, QEB):
        A(f"v_mov_b32 v{QE+1}, 0"); A(f"v_mov_b32 v{QE+2}, 0"); A(f"v_mov_b32 v{QE+3}, v{QE}")

def lds_addresses(A):
    A(f"s_mul_i32 s{S_T}, s{S_FH}, {HALF}")
    A(f"v_lshlrev_b32 v{A_K}, 4, v{V_LANE}")
    A(f"v_add_u32 v{A_K}, s{S_T}, v{A_K}")
    A(f"s_add_u32 s{S_T2}, s{S_T}, {TB_KEXT}")
    A(f"v_lshlrev_b32 v{A_KE}, 3, v{V_I}")
    A(f"v_add_u32 v{A_KE}, s{S_T2}, v{A_KE}")
    A(f"v_mul_u32_u24 v{T+2}, {VROWS}, v{V_H}")
    A(f"v_add_u32 v{T+1}, v{V_I}, v{T+2}")
    A(f"s_add_u32 s{S_T2}, s{S_T}, {TB_V}")
    A(f"v_lshlrev_b32 v{A_V}, 4, v{T+1}")
    A(f"v_add_u32 v{A_V}, s{S_T2}, v{A_V}")
    A(f"v_mov_b32 v{T+2}, 3"); A(f"v_mov_b32 v{T+3}, 4")
    A(f"v_cmp_lt_u32 vcc, 19, v{V_I}")
    A(f"v_cndmask_b32 v{T+2}, v{T+2}, v{T+3}, vcc")
    A(f"v_mov_b32 v{T+3}, 3")
    A(f"v_cmp_lt_u32 vcc, 27, v{V_I}")
    A(f"v_cndmask_b32 v{T+2}, v{T+2}, v{T+3}, vcc")
    A(f"v_mul_u32_u24 v{T+3}, {VROWS}, v{V_H}")
    A(f"v_add_u32 v{T+2}, v{T+2}, v{T+3}")
    A(f"v_lshlrev_b32 v{T+2}, 4, v{T+2}")
    A(f"v_add_u32 v{T+2}, {OOR}, v{T+2}")
    A(f"v_cmp_lt_u32 vcc, 18, v{V_I}")
    A(f"v_cndmask_b32 v{A_V}, v{A_V}, v{T+2}, vcc")
    A(f"v_mov_b32 v{T+2}, {OOR}")
    A(f"v_cmp_eq_u32 vcc, 1, v{V_H}")
    A(f"v_cndmask_b32 v{A_KE}, v{A_KE}, v{T+2}, vcc")

def range_check(A):
    for k_, (Q, QE) in enumerate(((QA, QEA), (QB, QEB))):
        n = T + 8 + k_
        A(f"v_dot2_f32_bf16 v{n}, v{Q}, v{Q}, 0")
        for r in range(1, 4): A(f"v_dot2_f32_bf16 v{n}, v{Q+r}, v{Q+r}, v{n}")
        A(f"v_dot2_f32_bf16 v{n}, v{QE}, v{QE}, v{n}")
    A("s_nop 2")
    for k_ in range(2):
        n = T + 8 + k_
        A(f"v_mov_b32 v{T+10}, v{n}")
        A(f"v_permlane32_swap_b32 v{n}, v{T+10}")
        A(f"v_add_f32 v{n}, v{n}, v{T+10}")
    A(f"v_max_f32 v{T+8}, v{T+8}, v{T+9}")
    for sh in (1, 2, 4, 8):
        A(f"v_max_f32_dpp v{T+8}, v{T+8}, v{T+8} row_ror:{sh} row_mask:0xf bank_mask:0xf")
        A(f"v_max_f32_dpp v{T+6}, v{T+6}, v{T+6} row_ror:{sh} row_mask:0xf bank_mask:0xf")
    A(f"v_readlane_b32 s{S_QN}, v{T+8}, 0")
    A(f"v_readlane_b32 s{S_T}, v{T+8}, 16")
    A(f"s_max_u32 s{S_QN}, s{S_QN}, s{S_T}")
    A(f"v_readlane_b32 s{S_KN}, v{T+6}, 0")
    A(f"v_readlane_b32 s{S_T}, v{T+6}, 16")
    A(f"s_max_u32 s{S_KN}, s{S_KN}, s{S_T}")
    A(f"v_mov_b32 v{T+8}, s{S_QN}")
    A(f"v_mul_f32 v{T+8}, s{S_KN}, v{T+8}")
    A(f"v_mov_b32 v{T+9}, {f32(T_SAFE*T_SAFE)}")
    A(f"v_cmp_le_f32 vcc, v{T+8}, v{T+9}")

class Streams:
    def __init__(self): self.bumped = set()
    def off(self, reg, j, L):
        if j >= 16 and reg not in self.bumped:
            L.append(f"v_add_u32 v{reg}, {BUMP}, v{reg}"); self.bumped.add(reg)
        return ((j - 16) if j >= 16 else j)
    def K(self, j):
        L = []; jj = self.off(A_K, j, L)
        return L + [f"ds_read_b128 {vr(K,4)}, v{A_K} offset:{(jj>>1)*TB_BYTES + (jj&1)*1024}"]
    def KE(self, j):
        L = []; jj = self.off(A_KE, j, L)
        return L + [f"ds_read_b64 {vr(KE,2)}, v{A_KE} offset:{(jj>>1)*TB_BYTES}"]
    def V(self, reg, j, m):
        L = []; jj = self.off(A_V, j, L)
        return L + [f"ds_read_b128 {vr(reg,4)}, v{A_V} offset:{(jj>>1)*TB_BYTES + (jj&1)*V_TILE + m*(V_TILE//2)}"]

EXPT = os.environ.get("EXPT", "")
def sub_step(A, Scur, Snxt, Qn, QEn, e, Oprev, Ocur, first_prev, first_cur, do_qk, wait_pre, loads):
    if wait_pre is not None: A(f"s_waitcnt lgkmcnt({wait_pre})")
    if do_qk: A(M(Snxt, K, Qn, None))
    for x in loads.get(0, []): A(x)
    for r in range(0, 4): A(E(Scur + r))
    A(C(P + 0, Scur + 0)); A(C(P + 1, Scur + 2))
    if not first_prev: A(M(Oprev, V1, P + 4, Oprev))
    for x in loads.get(1, []): A(x)
    for r in range(4, 8): A(E(Scur + r))
    A(C(P + 2, Scur + 4)); A(C(P + 3, Scur + 6))
    if do_qk: A(M8(Snxt, KE, QEn + 2 * e, Snxt))
    for x in loads.get(2, []): A(x)
    for r in range(8, 12): A(E(Scur + r))
    A(M(Ocur, V0, P, None if first_cur else Ocur))
    for x in loads.get(3, []): A(x)
    A(C(P + 4, Scur + 8)); A(C(P + 5, Scur + 10))
    for r in range(12, 16): A(E(Scur + r))
    A(C(P + 6, Scur + 12)); A(C(P + 7, Scur + 14))

def release(A, fh):
    skip = None
    if fh is not None:
        skip = A.newlabel("norel")
        A(f"s_cmp_lg_u32 s{S_FH}, {fh}"); A(f"s_cbranch_scc1 {skip}")
    A(f"v_mov_b32 v{T}, {L_CNT+12}"); A(f"v_mov_b32 v{T+1}, 1")
    A(f"ds_add_u32 v{T}, v{T+1}")
    if skip: A.label(skip)

def fast_path(A, R, NK=32):
    st = Streams()
    for x in st.K(0) + st.KE(0) + st.V(V0, 0, 0): A(x)
    A("s_waitcnt lgkmcnt(1)")
    A(M(S0, K, QA, None))
    A(M8(S0, KE, QEA, S0))
    A("s_nop 7"); A("s_nop 3")
    for j in range(NK):
        if j == 4: R.bar("B1")
        if j in (4, 11, 18, 25): pstamp(A, {4: 3, 11: 4, 18: 5, 25: 5}[j]) if j != 25 else None
        if j == 5: release(A, 1)
        e = j % 2
        last = j == NK - 1
        ld = {0: [] if last else st.K(j + 1), 1: st.V(V1, j, 1)}
        if e == 1 and not last: ld[2] = st.KE(j + 1)
        sub_step(A, S0, S1, QB, QEB, e, OB, OA, j == 0, j == 0, True, 0 if j else None, ld)
        ld = {3: [] if last else st.V(V0, j + 1, 0)}
        sub_step(A, S1, S0, QA, QEA, (j + 1) % 2, OA, OB, False, j == 0, not last, 0, ld)
    A(M(OB, V1, P + 4, OB))
    release(A, 0)

def fallback_path(A, R):
    R.bar("B1")
    A(f"v_mov_b32 v{KE+1}, 0")
    for (Q, QE, O, tag) in ((QA, QEA, OA, "a"), (QB, QEB, OB, "b")):
        mx = T
        A(f"v_mov_b32 v{mx}, 0xff800000")
        A(f"s_mov_b32 s{S_T}, 0")
        l1 = A.newlabel("fb1" + tag)
        A.label(l1)
        A(f"s_lshr_b32 s{S_T2}, s{S_T}, 1"); A(f"s_mul_i32 s{S_T2}, s{S_T2}, {TB_BYTES}")
        A(f"s_and_b32 s{S_T3}, s{S_T}, 1")
        A(f"v_lshlrev_b32 v{T+1}, 4, v{V_LANE}")
        A(f"v_add_u32 v{T+1}, s{S_T2}, v{T+1}")
        A(f"s_lshl_b32 s80, s{S_T3}, 10")
        A(f"v_add_u32 v{T+1}, s80, v{T+1}")
        A(f"v_lshlrev_b32 v{P}, 3, v{V_I}")
        A(f"s_lshl_b32 s80, s{S_T3}, 2"); A(f"s_add_u32 s80, s80, s{S_T2}"); A(f"s_add_u32 s80, s80, {TB_KEXT}")
        A(f"v_add_u32 v{P}, s80, v{P}")
        A(f"ds_read_b128 {vr(K,4)}, v{T+1}")
        A(f"ds_read_b32 v{KE}, v{P}")
        A("s_waitcnt lgkmcnt(0)")
        A(M(S0, K, Q, None))
        A(M8(S0, KE, QE, S0))
        A("s_nop 7"); A("s_nop 7")
        for r in range(0, 16, 2): A(f"v_max3_f32 v{mx}, v{S0+r}, v{S0+r+1}, v{mx}")
        A(f"s_add_u32 s{S_T}, s{S_T}, 1")
        A(f"s_cmp_lt_u32 s{S_T}, 64")
        A(f"s_cbranch_scc1 {l1}")
        A(f"v_mov_b32 v{T+1}, v{mx}")
        A(f"v_permlane32_swap_b32 v{mx}, v{T+1}")
        A(f"v_max_f32 v{mx}, v{mx}, v{T+1}")
        A(f"v_sub_f32 v{mx}, 0, v{mx}")
        for r in range(16): A(f"v_mov_b32 v{NEGM+r}, v{mx}")
        A(f"s_mov_b32 s{S_T}, 0")
        for r in range(16): A(f"v_mov_b32 v{O+r}, 0")
        l2 = A.newlabel("fb2" + tag)
        A.label(l2)
        A(f"s_lshr_b32 s{S_T2}, s{S_T}, 1"); A(f"s_mul_i32 s{S_T2}, s{S_T2}, {TB_BYTES}")
        A(f"s_and_b32 s{S_T3}, s{S_T}, 1")
        A(f"s_lshl_b32 s80, s{S_T3}, 10"); A(f"s_add_u32 s80, s80, s{S_T2}")
        A(f"v_add_u32 v{S1}, s80, v{A_K}")
        A(f"s_lshl_b32 s80, s{S_T3}, 2"); A(f"s_add_u32 s80, s80, s{S_T2}")
        A(f"v_add_u32 v{S1+1}, s80, v{A_KE}")
        A(f"s_mul_i32 s80, s{S_T3}, {V_TILE}"); A(f"s_add_u32 s80, s80, s{S_T2}")
        A(f"v_add_u32 v{S1+2}, s80, v{A_V}")
        A(f"ds_read_b128 {vr(K,4)}, v{S1}")
        A(f"ds_read_b32 v{KE}, v{S1+1}")
        A(f"ds_read_b128 {vr(V0,4)}, v{S1+2}")
        A(f"ds_read_b128 {vr(V1,4)}, v{S1+2} offset:{V_TILE//2}")
        A("s_waitcnt lgkmcnt(0)")
        A(M(S0, K, Q, NEGM))
        A(M8(S0, KE, QE, S0))
        A("s_nop 7"); A("s_nop 7")
        for r in range(16): A(E(S0 + r))
        A("s_nop 0")
        for r in range(8): A(C(P + r, S0 + 2 * r))
        A("s_nop 1")
        A(M(O, V0, P, O)); A(M(O, V1, P + 4, O))
        A(f"s_add_u32 s{S_T}, s{S_T}, 1")
        A(f"s_cmp_lt_u32 s{S_T}, 32")
        A(f"s_cbranch_scc1 {l2}")
        A("s_nop 7"); A("s_nop 7")
    release(A, None)

def finish(A, R):
    A("s_nop 7"); A("s_nop 3")
    pstamp(A, 6)
    R.bar("B2")
    pstamp(A, 20, "t")
    lsw = A.newlabel("sw"); ld = A.newlabel("swd")
    A(f"s_lshl_b32 s{S_T}, s{S_WAVE}, 12")
    A(f"v_lshlrev_b32 v{T}, 4, v{V_LANE}")
    A(f"v_add_u32 v{T}, {PSLOT}, v{T}")
    A(f"v_add_u32 v{T+1}, s{S_T}, v{T}")
    A(f"s_xor_b32 s{S_T}, s{S_WAVE}, 4")
    A(f"s_lshl_b32 s{S_T}, s{S_T}, 12")
    A(f"v_add_u32 v{T+2}, s{S_T}, v{T}")
    A(f"s_cmp_eq_u32 s{S_FH}, 0"); A(f"s_cbranch_scc0 {lsw}")
    for q in range(3): A(f"ds_write_b128 v{T+1}, {vr(OB+4*q,4)} offset:{1024*q}")
    A(f"s_branch {ld}")
    A.label(lsw)
    for q in range(3): A(f"ds_write_b128 v{T+1}, {vr(OA+4*q,4)} offset:{1024*q}")
    A("s_nop 1")
    for r in range(12): A(f"v_mov_b32 v{OA+r}, v{OB+r}")
    A.label(ld)
    A("s_waitcnt lgkmcnt(0)")
    R.bar("B3")
    pstamp(A, 21, "t")
    for q in range(3): A(f"ds_read_b128 {vr(S0+4*q,4)}, v{T+2} offset:{1024*q}")
    A("s_waitcnt lgkmcnt(0)")
    for r in range(11): A(f"v_add_f32 v{OA+r}, v{OA+r}, v{S0+r}")
    A(f"v_mov_b32 v{T}, v{OA+10}")
    A(f"v_permlane32_swap_b32 v{OA+10}, v{T}")
    A(f"v_rcp_f32 v{T}, v{OA+10}")
    A("s_nop 0")
    for r in range(10): A(f"v_mul_f32 v{OA+r}, v{OA+r}, v{T}")
    for r in range(5): A(C(P + r, OA + 2 * r))
    A(f"s_lshl_b32 s{S_T}, s{S_FH}, 5")
    A(f"v_add_u32 v{T}, s{S_T}, v{V_I}")
    A(f"v_mul_u32_u24 v{T}, 144, v{T}")
    A(f"s_mul_i32 s{S_T}, s{S_TG}, 36"); A(f"s_add_u32 s{S_T}, s{S_T}, {OSTG}")
    A(f"v_add_u32 v{T}, s{S_T}, v{T}")
    A(f"v_lshl_add_u32 v{T+1}, v{V_H}, 4, v{T}")
    A(f"ds_write2_b32 v{T+1}, v{P}, v{P+1} offset0:0 offset1:1")
    A(f"ds_write2_b32 v{T+1}, v{P+2}, v{P+3} offset0:2 offset1:3")
    A(f"v_cmp_eq_u32 vcc, 0, v{V_H}")
    A(f"s_and_saveexec_b64 s[{S_EX}:{S_EX+1}], vcc")
    A(f"ds_write_b32 v{T}, v{P+4} offset:32")
    A(f"s_mov_b64 exec, s[{S_EX}:{S_EX+1}]")
    A("s_waitcnt lgkmcnt(0)")
    R.bar("B4")
    pstamp(A, 22, "t")

def store_rows(A, srd_i, sbase_fn, sc1):
    t = T
    for u8 in (0, 1):
        skip = None
        if u8:
            skip = A.newlabel("st8")
            A(f"s_cmp_lg_u32 s{S_WAVE}, 0"); A(f"s_cbranch_scc1 {skip}")
            A(f"v_add_u32 v{t}, 512, v{V_LANE}")
        else:
            A(f"s_lshl_b32 s{S_T}, s{S_WAVE}, 6")
            A(f"v_add_u32 v{t}, s{S_T}, v{V_LANE}")
        A(f"v_lshlrev_b32 v{t+1}, 4, v{t}")
        A(f"v_add_u32 v{t+1}, {OSTG}, v{t+1}")
        d = S0 + 4 * u8
        A(f"ds_read_b128 {vr(d,4)}, v{t+1}")
        A(f"v_mul_u32_u24 v{t+2}, 7282, v{t}")
        A(f"v_lshrrev_b32 v{t+2}, 16, v{t+2}")
        A(f"v_mul_u32_u24 v{t+3}, 9, v{t+2}")
        A(f"v_sub_u32 v{t+3}, v{t}, v{t+3}")
        A(f"v_mul_u32_u24 v{t+2}, {ROWB}, v{t+2}")
        A(f"v_lshl_add_u32 v{t+2}, v{t+3}, 4, v{t+2}")
        sbase_fn(A)
        A("s_waitcnt lgkmcnt(0)")
        A(f"buffer_store_dwordx4 {vr(d,4)}, v{t+2}, {srd(srd_i)}, s{S_T} offen" + (" sc1" if sc1 is True else (" " + sc1 if sc1 else "")))
        if skip: A.label(skip)
```

```python
from fcommon import *
import sys
import f_gemm as G, f_attn as AT, f_out as FO, f_help as HP

NWAVES = 12
FLAG_STAGE = int(os.environ.get('FLAG_STAGE', '2'))

def stop_here(A, name):
    if STOP == name:
        A("s_waitcnt vmcnt(0) lgkmcnt(0)")
        A("s_endpgm")
        return True
    return False

def compute_p1(A, R, duty):
    if duty:
        if duty in ("k", "v"):
            mk_srd(A, SRD_E, S_WK if duty == "k" else S_WV, 576 * 36)
        else:
            mk_srd(A, SRD_E, S_GW, ROWB); mk_srd(A, SRD_F, S_WR, ROWB)
        G.duty_loads(A, duty)
    G.gemm_addresses(A)
    if duty:
        G.duty_addresses(A)
        G.duty_writes(A, duty)
    A("s_waitcnt lgkmcnt(0)")
    R.bar("b1")
    pstamp(A, 1, "p1")
    if not duty: G.residual_x(A)
    if duty:
        {"k": G.k_stage, "v": G.v_stage, "g": G.g_stage}[duty](A)
        A("s_waitcnt lgkmcnt(0)")
        R.bar("b2")
        pstamp(A, 2, "p1")
        np_ = A.newlabel("nopub")
        A(f"s_cmp_lg_u32 s{S_WAVE}, 0"); A(f"s_cbranch_scc1 {np_}")
        G.publish(A, duty)
        G.init_probe(A)
        A.label(np_)
        G.residual_x(A)
    lf = A.newlabel("p1f1"); le = A.newlabel("p1e")
    bars0 = list(R.bars)
    A(f"s_cmp_eq_u32 s{S_FH}, 0"); A(f"s_cbranch_scc0 {lf}")
    stages = [list(range(0, 4)), list(range(4, 8)), list(range(8, 12)), list(range(12, 18))]
    for nt in (3, 2):
        if nt == 2:
            A.label(lf); R.bars = list(bars0)
        gm = G.Gemm(A, nt, 4)
        for q, steps in enumerate(stages):
            if q == FLAG_STAGE and duty and nt == 3:
                nf = A.newlabel("noflag")
                A(f"s_cmp_lg_u32 s{S_WAVE}, 0"); A(f"s_cbranch_scc1 {nf}")
                pstamp(A, 3, "p1")
                G.raise_flag(A, duty)
                pstamp(A, 4, "p1")
                A.label(nf)
            R.bar(f"bW{q}")
            if q == 3: pstamp(A, 5, "p1")
            gm.steps(steps, steps[-1] + 1, 18, la_a=1, burst=True)
        A("s_nop 7")
        G.q_epilogue(A, nt)
        if nt == 3: A(f"s_branch {le}")
    A.label(le)
    A("s_waitcnt lgkmcnt(0)")
    R.bar("bQ")

def compute_role(A):
    R = Role(A)
    A(f"s_and_b32 s{S_TG}, s{S_WAVE}, 3"); A(f"s_lshr_b32 s{S_FH}, s{S_WAVE}, 2")
    G.lane_setup(A)
    A(f"v_mov_b32 v{G.GT}, {L_CNT}"); A(f"v_mov_b32 v{G.GT+2}, 0"); A(f"v_mov_b32 v{G.GT+3}, 0")
    A(f"v_mov_b32 v{G.GT+4}, 0"); A(f"v_mov_b32 v{G.GT+5}, 0")
    A(f"ds_write_b128 v{G.GT}, {vr(G.GT+2,4)}")
    G.clear_flag_lines(A)
    lk = A.newlabel("dk"); lv = A.newlabel("dv"); lg = A.newlabel("dg"); lj = A.newlabel("dj")
    A(f"s_cmp_eq_u32 s{S_HG}, 0"); A(f"s_cbranch_scc1 {lk}")
    A(f"s_cmp_eq_u32 s{S_HG}, 1"); A(f"s_cbranch_scc1 {lv}")
    A(f"s_cmp_eq_u32 s{S_HG}, 2"); A(f"s_cbranch_scc1 {lg}")
    seqs = {}
    for duty, lab in ((None, None), ("k", lk), ("v", lv), ("g", lg)):
        if lab: A.label(lab)
        R.bars = []
        compute_p1(A, R, duty)
        seqs[duty] = list(R.bars)
        if duty != "g": A(f"s_branch {lj}")
    A.label(lj)
    R.bars = []
    pstamp(A, 1)
    AT.q_fragments(A)
    AT.lds_addresses(A)
    pstamp(A, 6, "p1")
    R.bar("bKV")
    pstamp(A, 7, "p1")
    if stop_here(A, "p1"): return seqs, R.bars
    t = AT.T
    A(f"v_lshlrev_b32 v{t}, 2, v{G.V_I}")
    A(f"v_add_u32 v{t}, {FW_KN}, v{t}")
    A(f"buffer_load_dword v{t+6}, v{t}, {srd(SRD_WS)}, 0 offen{HSC}")
    A(f"s_lshl_b32 s{S_T}, s{S_TG}, 4"); A(f"s_add_u32 s{S_T}, s{S_T}, s{S_ROW0}")
    A(f"v_add_u32 v{t+1}, s{S_T}, v{G.V_T}")
    A(f"v_lshlrev_b32 v{t+1}, 2, v{t+1}")
    A(f"v_add_u32 v{t+1}, {FW_G}, v{t+1}")
    A(f"buffer_load_dword v{G.GATE}, v{t+1}, {srd(SRD_WS)}, 0 offen{HSC}")
    A("s_waitcnt vmcnt(0)")
    AT.range_check(A)
    R.bar("B0")
    pstamp(A, 2)
    if os.environ.get("YPRIO"):
        lp = A.newlabel("yprio")
        A(f"s_cmp_eq_u32 s{S_FH}, 0"); A(f"s_cbranch_scc1 {lp}")
        A(f"s_setprio {os.environ['YPRIO']}")
        A.label(lp)
    lf = A.newlabel("fallback"); le = A.newlabel("attdone")
    A(f"s_cbranch_vccz {lf}")
    b0 = list(R.bars)
    AT.fast_path(A, R)
    A(f"s_branch {le}")
    A.label(lf)
    b1 = list(R.bars); R.bars = list(b0)
    AT.fallback_path(A, R)
    assert R.bars == b1
    A.label(le)
    AT.finish(A, R)
    def sbase(A):
        A(f"s_mul_i32 s{S_T}, s{S_ROW0}, {ROWB}")
        A(f"s_mul_i32 s{S_T2}, s{S_HG}, 144")
        A(f"s_add_u32 s{S_T}, s{S_T}, s{S_T2}")
        A(f"s_add_u32 s{S_T}, s{S_T}, {FW_O}")
    AT.store_rows(A, SRD_WS, sbase, True)
    A("s_waitcnt vmcnt(0)")
    pstamp(A, 1, "t")
    R.bar("B5")
    nf = A.newlabel("nogrp")
    A(f"s_cmp_lg_u32 s{S_WAVE}, 0"); A(f"s_cbranch_scc1 {nf}")
    A(f"s_lshl_b32 s{S_T}, s{S_TB}, 10"); A(f"s_add_u32 s{S_T}, s{S_T}, {FW_FLAG + FL_GRP}")
    A(f"v_mov_b32 v{t}, s{S_T}"); A(f"v_mov_b32 v{t+1}, 1")
    A("s_mov_b64 exec, 1")
    A(f"buffer_atomic_add v{t+1}, v{t}, {srd(SRD_WS)}, 0 offen sc1")
    A("s_mov_b64 exec, -1")
    A.label(nf)
    FO.out_phase(A, R)
    if STAMPS: A("s_waitcnt vmcnt(0)")
    pstamp(A, 7)
    if os.environ.get("DBGSTAMP"):
        nd = A.newlabel("nodbg")
        A(f"s_cmp_lg_u32 s2, {int(os.environ['DBGSTAMP'])}"); A(f"s_cbranch_scc1 {nd}")
        A(f"s_cmp_lg_u32 s{S_WAVE}, 4"); A(f"s_cbranch_scc1 {nd}")
        A(f"v_mbcnt_lo_u32_b32 v{AT.T}, -1, 0")
        A(f"v_lshlrev_b32 v{AT.T}, 2, v{AT.T}")
        A(f"v_add_u32 v{AT.T}, 32, v{AT.T}")
        A("s_mov_b64 exec, 0xff")
        A(f"buffer_store_dword v{V_ST}, v{AT.T}, {srd(SRD_DBG)}, 0 offen")
        A.label(nd)
    else:
        pstamp_flush(A, S_WAVE, S_WS, WS_STAMP, AT.T)
    A("s_endpgm")
    return seqs, R.bars

def flag_off(A, t):
    A(f"v_min_u32 v{t}, 23, v{HP.V_LANE}")
    A(f"v_and_b32 v{t+1}, 3, v{t}"); A(f"v_lshrrev_b32 v{t}, 2, v{t}")
    A(f"v_lshlrev_b32 v{t}, 7, v{t}"); A(f"v_lshl_add_u32 v{t}, v{t+1}, 2, v{t}")
    A(f"s_lshl_b32 s{S_T}, s{S_TB}, 10"); A(f"s_add_u32 s{S_T}, s{S_T}, {FW_FLAG}")
    A(f"v_add_u32 v{t}, s{S_T}, v{t}")

def helper_p1(A, R, duty, h3):
    vm = VmTrack()
    A(f"s_mul_i32 s{S_T3}, s{S_ROW0}, {ROWB}")
    HP.issue_x(A, vm, range(9), False, lambda cc: "x")
    HP.issue_w(A, vm, h3, range(6), lambda a_: f"w{a_//2}")
    if not duty: HP.issue_w(A, vm, h3, range(6, 9), lambda a_: "w3")
    A(f"s_waitcnt vmcnt({vm.after('x')})")
    R.bar("b1")
    if duty:
        R.bar("b2")
        HP.issue_w(A, vm, h3, range(6, 9), lambda a_: "w3")
    for q in range(4):
        A(f"s_waitcnt vmcnt({vm.after(f'w{q}')})")
        R.bar(f"bW{q}")
    HP.poll_issue(A, flag_off)
    R.bar("bQ")

def helper_rest(A, R, h3):
    pstamp(A, 1)
    HP.poll(A, flag_off, 24, "0x01010101", "kvp", preissued=True)
    pstamp(A, 2)
    R.bar("bKV")
    if stop_here(A, "p1"): return
    vm = VmTrack()
    A(f"s_mov_b32 s{S_T}, {FW_KEYS}")
    A(f"buffer_load_dwordx4 {vr(HP.F_KEY,4)}, v{HP.VL16}, {srd(SRD_WS)}, s{S_T} offen{HSC}")
    o0, o1 = HP.kv_pieces()
    HP.issue_kv(A, vm, o0, "s0")
    A("s_waitcnt vmcnt(0)")
    R.bar("B0")
    HP.issue_kv(A, vm, o1, "s1")
    HP.select_top2(A)
    A("s_waitcnt vmcnt(0) lgkmcnt(0)")
    R.bar("B1")
    nof = A.newlabel("noffn")
    A(f"s_cmp_lt_u32 s{S_HG}, 3"); A(f"s_cbranch_scc1 {nof}")
    A(f"s_lshr_b32 s{S_T}, s2, 6"); A(f"s_mul_i32 s{S_T}, s{S_T}, 5")
    A(f"s_add_u32 s{S_T}, s{S_T}, s{S_HG}"); A(f"s_sub_u32 s{S_T}, s{S_T}, 3")
    A(f"s_cmp_ge_u32 s{S_T}, 18"); A(f"s_cbranch_scc1 {nof}")
    A(f"s_and_b32 s{S_T2}, s2, 7"); A(f"s_mul_i32 s{S_T2}, s{S_T2}, 18")
    A(f"s_add_u32 s{HP.S_SL}, s{S_T2}, s{S_T}")
    pstamp(A, 3)
    if not os.environ.get("NOFFN"): HP.ffn(A)
    else:
        nf2 = A.newlabel("nof2")
        A(f"s_cmp_lg_u32 s{HP.S_H}, 0"); A(f"s_cbranch_scc1 {nf2}")
        A(f"v_mov_b32 v8, {FW_FFNC}"); A(f"v_mov_b32 v9, 1")
        A("s_mov_b64 exec, 1")
        A(f"buffer_atomic_add v9, v8, {srd(SRD_WS)}, 0 offen sc1")
        A("s_mov_b64 exec, -1")
        A.label(nf2)
    A.label(nof)
    pstamp(A, 4)
    mk_srd(A, SRD_W, S_WO, D * ROWB)
    mk_srd(A, SRD_A, S_WS, S_TOK * ROWB, add=FW_O)
    vm = VmTrack()
    HP.wait_released(A)
    HP.issue_w(A, vm, h3, range(9), lambda a_: "w", wb=WB3)
    A("s_waitcnt vmcnt(0)")
    R.bar("B2"); R.bar("B3"); R.bar("B4"); R.bar("B5")
    def grp_off(A, t):
        A(f"s_lshl_b32 s{S_T}, s{S_TB}, 10"); A(f"s_add_u32 s{S_T}, s{S_T}, {FW_FLAG + FL_GRP}")
        A(f"v_mov_b32 v{t}, s{S_T}")
    pstamp(A, 5)
    HP.poll(A, grp_off, 1, "8", "grp", ge=True)
    pstamp(A, 6)
    R.bar("B6")
    if stop_here(A, "attn"): return
    vm = VmTrack()
    A(f"s_mul_i32 s{S_T3}, s{S_ROW0}, {ROWB}")
    HP.issue_x(A, vm, range(9), not PLAIN, lambda cc: f"x{cc//3}", xb=XB3)
    for q in range(3):
        A(f"s_waitcnt vmcnt({vm.after(f'x{q}')})")
        R.bar(f"bX{q}")
    R.bar("B7")
    pstamp(A, 7)
    if not os.environ.get("DBGSTAMP"): pstamp_flush(A, S_WAVE, S_WS, WS_STAMP, HP.HT)
    A("s_endpgm")

def helper_role(A):
    R = Role(A)
    A(f"s_setprio {os.environ.get('HPRIO', '3')}")
    A(f"s_sub_u32 s{HP.S_H}, s{S_WAVE}, 8")
    A(f"v_and_b32 v{HP.V_LANE}, 63, v0")
    HP.setup(A)
    l3 = A.newlabel("h3")
    A(f"s_cmp_eq_u32 s{HP.S_H}, 3"); A(f"s_cbranch_scc1 {l3}")
    seqs = {}
    for h3 in (False, True):
        if h3: A.label(l3)
        ld = A.newlabel("hduty"); lj = A.newlabel("hj")
        A(f"s_cmp_lt_u32 s{S_HG}, 3"); A(f"s_cbranch_scc1 {ld}")
        R.bars = []; helper_p1(A, R, False, h3); seqs[None] = list(R.bars)
        A(f"s_branch {lj}")
        A.label(ld)
        R.bars = []; helper_p1(A, R, True, h3); seqs["d"] = list(R.bars)
        A.label(lj)
        R.bars = []
        helper_rest(A, R, h3)
    return seqs, R.bars

def gen(name):
    A = Asm()
    end = "L_end"
    A("s_cmp_ge_u32 s2, 256"); A(f"s_cbranch_scc1 {end}")
    pstamp_init(A); pstamp(A, 0)
    load_kernargs(A)
    A(f"v_lshrrev_b32 v1, 6, v0")
    A(f"v_and_b32 v{G.V_LANE}, 63, v0")
    A(f"v_readfirstlane_b32 s{S_WAVE}, v1")
    A(f"s_and_b32 s{S_T}, s2, 7"); A(f"s_lshr_b32 s{S_T2}, s2, 3")
    A(f"s_and_b32 s{S_HG}, s{S_T2}, 7"); A(f"s_lshr_b32 s{S_T2}, s{S_T2}, 3")
    A(f"s_lshl_b32 s{S_T}, s{S_T}, 2"); A(f"s_add_u32 s{S_TB}, s{S_T}, s{S_T2}")
    A(f"s_lshl_b32 s{S_ROW0}, s{S_TB}, 6")
    A("s_waitcnt lgkmcnt(0)")
    mk_srd(A, SRD_A, S_X, S_TOK * ROWB)
    mk_srd(A, SRD_W, S_WQ, D * ROWB)
    mk_srd(A, SRD_WS, S_WS, FW_SIZE)
    mk_srd(A, SRD_KV, S_WS, KV_IMG, add=FW_KV)
    mk_srd(A, SRD_OUT, S_OUT, S_TOK * ROWB)
    mk_srd(A, SRD_DBG, S_DBG, 256)
    lh = A.newlabel("helper")
    A(f"s_cmp_ge_u32 s{S_WAVE}, 8"); A(f"s_cbranch_scc1 {lh}")
    cs, cb = compute_role(A)
    A.label(lh)
    hs, hb = helper_role(A)
    assert cs[None] == hs[None], (cs[None], hs[None])
    for d in "kvg": assert cs[d] == hs["d"], (cs[d], hs["d"])
    assert cb == hb, (cb, hb)
    A.label(end); A("s_endpgm")
    return A, 168, LDS_BYTES, 64 * NWAVES

def build(out):
    n = NAME + "_kernel"
    A, nv, lds, blk = gen(n)
    hdr = open("cdna_kernels/" + NAME + ".s.ref").read().split("; Override launch")[0]
    txt = hdr + f"; @launch grid=(256,1,1) block=({blk},1,1) lds={lds}\n"
    txt += '.amdgcn_target "amdgcn-amd-amdhsa--gfx950"\n'
    rep = []
    body = A.finish(rep)
    if "-v" in sys.argv:
        print(len(rep), "nop insertions")
        for r in rep: print("   ", r)
    txt += kernel_header(n) + body + kernel_desc(n, nv, nsgpr=102)
    open(out, "w").write(txt)
    print("wrote", out, len(txt), "bytes")

if __name__ == "__main__":
    import sys
    build(sys.argv[1])
```

```python
from fcommon import *
from f_gemm import V_LANE, V_I, V_H, GATE, V_T, V_G

S0, S1 = 0, 16
P = 32
OA, OB = 40, 56
QA, QEA = 72, 76
QB, QEB = 80, 84
K, KE = 88, 92
V0, V1 = 96, 100
A_K, A_KE, A_V = 104, 105, 106
T = 110
NEGM = 112
S_QN, S_KN = 78, 79
T_SAFE = 60.0
HALF = 16 * TB_BYTES
BUMP = 8 * TB_BYTES

def M(d, a, b, c):
    cs = "0" if c is None else vr(c, 16)
    return f"v_mfma_f32_32x32x16_bf16 {vr(d,16)}, {vr(a,4)}, {vr(b,4)}, {cs}"
def M8(d, a, b, c):
    return f"v_mfma_f32_32x32x8bf16_1k {vr(d,16)}, {vr(a,2)}, {vr(b,2)}, {vr(c,16)}"
def E(r): return f"v_exp_f32 v{r}, v{r}"
def C(d, a): return f"v_cvt_pk_bf16_f32 v{d}, v{a}, v{a+1}"

def q_fragments(A):
    t = T
    A(f"s_mul_i32 s{S_T}, s{S_TG}, 36")
    A(f"s_add_u32 s{S_T}, s{S_T}, {QS}")
    A(f"v_mul_u32_u24 v{t}, 144, v{V_I}")
    A(f"v_add_u32 v{t}, s{S_T}, v{t}")
    A(f"v_lshl_add_u32 v{t+1}, v{V_H}, 4, v{t}")
    A(f"v_add_u32 v{t+2}, {32*144}, v{t+1}")
    A(f"v_add_u32 v{t}, 32, v{t}")
    A(f"v_mov_b32 v{t+3}, {OOR}")
    A(f"v_cmp_eq_u32 vcc, 0, v{V_H}")
    A(f"v_cndmask_b32 v{t}, v{t+3}, v{t}, vcc")
    for (Q, QE, ad, off) in ((QA, QEA, t + 1, 0), (QB, QEB, t + 2, 32 * 144)):
        A(f"ds_read2_b32 {vr(Q,2)}, v{ad} offset0:0 offset1:1")
        A(f"ds_read2_b32 {vr(Q+2,2)}, v{ad} offset0:2 offset1:3")
        A(f"ds_read_b32 v{QE}, v{t} offset:{off}")
    A("s_waitcnt lgkmcnt(0)")
    for QE in (QEA, QEB):
        A(f"v_mov_b32 v{QE+1}, 0"); A(f"v_mov_b32 v{QE+2}, 0"); A(f"v_mov_b32 v{QE+3}, v{QE}")

def lds_addresses(A):
    A(f"s_mul_i32 s{S_T}, s{S_FH}, {HALF}")
    A(f"v_lshlrev_b32 v{A_K}, 4, v{V_LANE}")
    A(f"v_add_u32 v{A_K}, s{S_T}, v{A_K}")
    A(f"s_add_u32 s{S_T2}, s{S_T}, {TB_KEXT}")
    A(f"v_lshlrev_b32 v{A_KE}, 3, v{V_I}")
    A(f"v_add_u32 v{A_KE}, s{S_T2}, v{A_KE}")
    A(f"v_mul_u32_u24 v{T+2}, {VROWS}, v{V_H}")
    A(f"v_add_u32 v{T+1}, v{V_I}, v{T+2}")
    A(f"s_add_u32 s{S_T2}, s{S_T}, {TB_V}")
    A(f"v_lshlrev_b32 v{A_V}, 4, v{T+1}")
    A(f"v_add_u32 v{A_V}, s{S_T2}, v{A_V}")
    A(f"v_mov_b32 v{T+2}, 3"); A(f"v_mov_b32 v{T+3}, 4")
    A(f"v_cmp_lt_u32 vcc, 19, v{V_I}")
    A(f"v_cndmask_b32 v{T+2}, v{T+2}, v{T+3}, vcc")
    A(f"v_mov_b32 v{T+3}, 3")
    A(f"v_cmp_lt_u32 vcc, 27, v{V_I}")
    A(f"v_cndmask_b32 v{T+2}, v{T+2}, v{T+3}, vcc")
    A(f"v_mul_u32_u24 v{T+3}, {VROWS}, v{V_H}")
    A(f"v_add_u32 v{T+2}, v{T+2}, v{T+3}")
    A(f"v_lshlrev_b32 v{T+2}, 4, v{T+2}")
    A(f"v_add_u32 v{T+2}, {OOR}, v{T+2}")
    A(f"v_cmp_lt_u32 vcc, 18, v{V_I}")
    A(f"v_cndmask_b32 v{A_V}, v{A_V}, v{T+2}, vcc")
    A(f"v_mov_b32 v{T+2}, {OOR}")
    A(f"v_cmp_eq_u32 vcc, 1, v{V_H}")
    A(f"v_cndmask_b32 v{A_KE}, v{A_KE}, v{T+2}, vcc")

def range_check(A):
    for k_, (Q, QE) in enumerate(((QA, QEA), (QB, QEB))):
        n = T + 8 + k_
        A(f"v_dot2_f32_bf16 v{n}, v{Q}, v{Q}, 0")
        for r in range(1, 4): A(f"v_dot2_f32_bf16 v{n}, v{Q+r}, v{Q+r}, v{n}")
        A(f"v_dot2_f32_bf16 v{n}, v{QE}, v{QE}, v{n}")
    A("s_nop 2")
    for k_ in range(2):
        n = T + 8 + k_
        A(f"v_mov_b32 v{T+10}, v{n}")
        A(f"v_permlane32_swap_b32 v{n}, v{T+10}")
        A(f"v_add_f32 v{n}, v{n}, v{T+10}")
    A(f"v_max_f32 v{T+8}, v{T+8}, v{T+9}")
    for sh in (1, 2, 4, 8):
        A(f"v_max_f32_dpp v{T+8}, v{T+8}, v{T+8} row_ror:{sh} row_mask:0xf bank_mask:0xf")
        A(f"v_max_f32_dpp v{T+6}, v{T+6}, v{T+6} row_ror:{sh} row_mask:0xf bank_mask:0xf")
    A(f"v_readlane_b32 s{S_QN}, v{T+8}, 0")
    A(f"v_readlane_b32 s{S_T}, v{T+8}, 16")
    A(f"s_max_u32 s{S_QN}, s{S_QN}, s{S_T}")
    A(f"v_readlane_b32 s{S_KN}, v{T+6}, 0")
    A(f"v_readlane_b32 s{S_T}, v{T+6}, 16")
    A(f"s_max_u32 s{S_KN}, s{S_KN}, s{S_T}")
    A(f"v_mov_b32 v{T+8}, s{S_QN}")
    A(f"v_mul_f32 v{T+8}, s{S_KN}, v{T+8}")
    A(f"v_mov_b32 v{T+9}, {f32(T_SAFE*T_SAFE)}")
    A(f"v_cmp_le_f32 vcc, v{T+8}, v{T+9}")

class Streams:
    def __init__(self): self.bumped = set()
    def off(self, reg, j, L):
        if j >= 16 and reg not in self.bumped:
            L.append(f"v_add_u32 v{reg}, {BUMP}, v{reg}"); self.bumped.add(reg)
        return ((j - 16) if j >= 16 else j)
    def K(self, j):
        L = []; jj = self.off(A_K, j, L)
        return L + [f"ds_read_b128 {vr(K,4)}, v{A_K} offset:{(jj>>1)*TB_BYTES + (jj&1)*1024}"]
    def KE(self, j):
        L = []; jj = self.off(A_KE, j, L)
        return L + [f"ds_read_b64 {vr(KE,2)}, v{A_KE} offset:{(jj>>1)*TB_BYTES}"]
    def V(self, reg, j, m):
        L = []; jj = self.off(A_V, j, L)
        return L + [f"ds_read_b128 {vr(reg,4)}, v{A_V} offset:{(jj>>1)*TB_BYTES + (jj&1)*V_TILE + m*(V_TILE//2)}"]

EXPT = os.environ.get("EXPT", "")
ALIGN8 = os.environ.get("ALIGN8", "")
WAITPOS = os.environ.get("WAITPOS", "") == "1"
def sub_step(A, Scur, Snxt, Qn, QEn, e, Oprev, Ocur, first_prev, first_cur, do_qk, wait_pre, loads, wait_pv0=None, wait_tail=None):
    if wait_pre is not None: A(f"s_waitcnt lgkmcnt({wait_pre})")
    if do_qk: A(M(Snxt, K, Qn, None))
    for x in loads.get(0, []): A(x)
    for r in range(0, 4): A(E(Scur + r))
    A(C(P + 0, Scur + 0)); A(C(P + 1, Scur + 2))
    if not first_prev: A(M(Oprev, V1, P + 4, Oprev))
    for x in loads.get(1, []): A(x)
    for r in range(4, 8): A(E(Scur + r))
    A(C(P + 2, Scur + 4)); A(C(P + 3, Scur + 6))
    if do_qk: A(M8(Snxt, KE, QEn + 2 * e, Snxt))
    for x in loads.get(2, []): A(x)
    for r in range(8, 12): A(E(Scur + r))
    if wait_pv0 is not None: A(f"s_waitcnt lgkmcnt({wait_pv0})")
    A(M(Ocur, V0, P, None if first_cur else Ocur))
    for x in loads.get(3, []): A(x)
    A(C(P + 4, Scur + 8)); A(C(P + 5, Scur + 10))
    for r in range(12, 16):
        A(E(Scur + r))
        if r == 13 and wait_tail is not None: A(f"s_waitcnt lgkmcnt({wait_tail})")
    A(C(P + 6, Scur + 12)); A(C(P + 7, Scur + 14))

def release(A, fh):
    skip = None
    if fh is not None:
        skip = A.newlabel("norel")
        A(f"s_cmp_lg_u32 s{S_FH}, {fh}"); A(f"s_cbranch_scc1 {skip}")
    A(f"v_mov_b32 v{T}, {L_CNT+12}"); A(f"v_mov_b32 v{T+1}, 1")
    A(f"ds_add_u32 v{T}, v{T+1}")
    if skip: A.label(skip)

def isize(t):
    mn = t.split()[0]
    if t.endswith(":") or t.startswith(";"): return 0
    if mn.startswith("v_mfma") or mn.startswith("ds_") or mn.startswith("v_cvt_pk") or mn.endswith("_e64"): return 8
    if mn in ("v_exp_f32", "s_waitcnt", "s_barrier", "s_nop", "s_cmp_lg_u32", "s_cbranch_scc1", "s_memrealtime") or mn.startswith("s_cbranch"):
        return 8 if mn == "s_memrealtime" else 4
    if mn in ("v_add_u32", "v_mov_b32"):
        ops = t.split(",")
        lit = ops[1].strip()
        if lit.startswith("v") or lit in ("0", "1"): return 4
        return 8
    raise ValueError(t)

def align8(A, start):
    phase = 0; last4 = None
    i = start
    while i < len(A.out):
        t = A.out[i]; n = isize(t)
        if n == 8 and phase == 4:
            if last4 is not None:
                A.out[last4] = A.out[last4].replace("v_exp_f32 ", "v_exp_f32_e64 "); phase = 0
        if n == 4:
            phase ^= 4
            if t.startswith("v_exp_f32 "): last4 = i
        elif n == 8 and phase == 0:
            last4 = None
        i += 1

def fast_path(A, R, NK=32):
    st = Streams()
    for x in st.K(0) + st.KE(0) + st.V(V0, 0, 0): A(x)
    A("s_waitcnt lgkmcnt(1)")
    A(M(S0, K, QA, None))
    A(M8(S0, KE, QEA, S0))
    A("s_nop 7"); A("s_nop 3")
    if ALIGN8:
        A(".p2align 6")
        if ALIGN8 == "4": A("s_nop 0")
    start = len(A.out)
    for j in range(NK):
        if j == 4:
            R.bar("B1")
        if j in (4, 11, 18, 25): pstamp(A, {4: 3, 11: 4, 18: 5, 25: 5}[j]) if j != 25 else None
        if j == 5: release(A, 1)
        e = j % 2
        last = j == NK - 1
        ld = {0: [] if last else st.K(j + 1), 1: st.V(V1, j, 1)}
        if e == 1 and not last: ld[2] = st.KE(j + 1)
        if WAITPOS:
            nds = sum(1 for v_ in (0, 1, 2) for x in ld.get(v_, []) if x.startswith("ds_"))
            sub_step(A, S0, S1, QB, QEB, e, OB, OA, j == 0, j == 0, True, None, ld, wait_pv0=nds, wait_tail=0)
        else:
            sub_step(A, S0, S1, QB, QEB, e, OB, OA, j == 0, j == 0, True, 0 if j else None, ld)
        ld = {3: [] if last else st.V(V0, j + 1, 0)}
        sub_step(A, S1, S0, QA, QEA, (j + 1) % 2, OA, OB, False, j == 0, not last, None if WAITPOS else 0, ld)
    A(M(OB, V1, P + 4, OB))
    if ALIGN8: align8(A, start)
    release(A, 0)

def fallback_path(A, R):
    R.bar("B1")
    A(f"v_mov_b32 v{KE+1}, 0")
    for (Q, QE, O, tag) in ((QA, QEA, OA, "a"), (QB, QEB, OB, "b")):
        mx = T
        A(f"v_mov_b32 v{mx}, 0xff800000")
        A(f"s_mov_b32 s{S_T}, 0")
        l1 = A.newlabel("fb1" + tag)
        A.label(l1)
        A(f"s_lshr_b32 s{S_T2}, s{S_T}, 1"); A(f"s_mul_i32 s{S_T2}, s{S_T2}, {TB_BYTES}")
        A(f"s_and_b32 s{S_T3}, s{S_T}, 1")
        A(f"v_lshlrev_b32 v{T+1}, 4, v{V_LANE}")
        A(f"v_add_u32 v{T+1}, s{S_T2}, v{T+1}")
        A(f"s_lshl_b32 s80, s{S_T3}, 10")
        A(f"v_add_u32 v{T+1}, s80, v{T+1}")
        A(f"v_lshlrev_b32 v{P}, 3, v{V_I}")
        A(f"s_lshl_b32 s80, s{S_T3}, 2"); A(f"s_add_u32 s80, s80, s{S_T2}"); A(f"s_add_u32 s80, s80, {TB_KEXT}")
        A(f"v_add_u32 v{P}, s80, v{P}")
        A(f"ds_read_b128 {vr(K,4)}, v{T+1}")
        A(f"ds_read_b32 v{KE}, v{P}")
        A("s_waitcnt lgkmcnt(0)")
        A(M(S0, K, Q, None))
        A(M8(S0, KE, QE, S0))
        A("s_nop 7"); A("s_nop 7")
        for r in range(0, 16, 2): A(f"v_max3_f32 v{mx}, v{S0+r}, v{S0+r+1}, v{mx}")
        A(f"s_add_u32 s{S_T}, s{S_T}, 1")
        A(f"s_cmp_lt_u32 s{S_T}, 64")
        A(f"s_cbranch_scc1 {l1}")
        A(f"v_mov_b32 v{T+1}, v{mx}")
        A(f"v_permlane32_swap_b32 v{mx}, v{T+1}")
        A(f"v_max_f32 v{mx}, v{mx}, v{T+1}")
        A(f"v_sub_f32 v{mx}, 0, v{mx}")
        for r in range(16): A(f"v_mov_b32 v{NEGM+r}, v{mx}")
        A(f"s_mov_b32 s{S_T}, 0")
        for r in range(16): A(f"v_mov_b32 v{O+r}, 0")
        l2 = A.newlabel("fb2" + tag)
        A.label(l2)
        A(f"s_lshr_b32 s{S_T2}, s{S_T}, 1"); A(f"s_mul_i32 s{S_T2}, s{S_T2}, {TB_BYTES}")
        A(f"s_and_b32 s{S_T3}, s{S_T}, 1")
        A(f"s_lshl_b32 s80, s{S_T3}, 10"); A(f"s_add_u32 s80, s80, s{S_T2}")
        A(f"v_add_u32 v{S1}, s80, v{A_K}")
        A(f"s_lshl_b32 s80, s{S_T3}, 2"); A(f"s_add_u32 s80, s80, s{S_T2}")
        A(f"v_add_u32 v{S1+1}, s80, v{A_KE}")
        A(f"s_mul_i32 s80, s{S_T3}, {V_TILE}"); A(f"s_add_u32 s80, s80, s{S_T2}")
        A(f"v_add_u32 v{S1+2}, s80, v{A_V}")
        A(f"ds_read_b128 {vr(K,4)}, v{S1}")
        A(f"ds_read_b32 v{KE}, v{S1+1}")
        A(f"ds_read_b128 {vr(V0,4)}, v{S1+2}")
        A(f"ds_read_b128 {vr(V1,4)}, v{S1+2} offset:{V_TILE//2}")
        A("s_waitcnt lgkmcnt(0)")
        A(M(S0, K, Q, NEGM))
        A(M8(S0, KE, QE, S0))
        A("s_nop 7"); A("s_nop 7")
        for r in range(16): A(E(S0 + r))
        A("s_nop 0")
        for r in range(8): A(C(P + r, S0 + 2 * r))
        A("s_nop 1")
        A(M(O, V0, P, O)); A(M(O, V1, P + 4, O))
        A(f"s_add_u32 s{S_T}, s{S_T}, 1")
        A(f"s_cmp_lt_u32 s{S_T}, 32")
        A(f"s_cbranch_scc1 {l2}")
        A("s_nop 7"); A("s_nop 7")
    release(A, None)

def finish(A, R):
    A("s_nop 7"); A("s_nop 3")
    pstamp(A, 6)
    R.bar("B2")
    pstamp(A, 20, "t")
    lsw = A.newlabel("sw"); ld = A.newlabel("swd")
    A(f"s_lshl_b32 s{S_T}, s{S_WAVE}, 12")
    A(f"v_lshlrev_b32 v{T}, 4, v{V_LANE}")
    A(f"v_add_u32 v{T}, {PSLOT}, v{T}")
    A(f"v_add_u32 v{T+1}, s{S_T}, v{T}")
    A(f"s_xor_b32 s{S_T}, s{S_WAVE}, 4")
    A(f"s_lshl_b32 s{S_T}, s{S_T}, 12")
    A(f"v_add_u32 v{T+2}, s{S_T}, v{T}")
    A(f"s_cmp_eq_u32 s{S_FH}, 0"); A(f"s_cbranch_scc0 {lsw}")
    for q in range(3): A(f"ds_write_b128 v{T+1}, {vr(OB+4*q,4)} offset:{1024*q}")
    A(f"s_branch {ld}")
    A.label(lsw)
    for q in range(3): A(f"ds_write_b128 v{T+1}, {vr(OA+4*q,4)} offset:{1024*q}")
    A("s_nop 1")
    for r in range(12): A(f"v_mov_b32 v{OA+r}, v{OB+r}")
    A.label(ld)
    A("s_waitcnt lgkmcnt(0)")
    R.bar("B3")
    pstamp(A, 21, "t")
    for q in range(3): A(f"ds_read_b128 {vr(S0+4*q,4)}, v{T+2} offset:{1024*q}")
    A("s_waitcnt lgkmcnt(0)")
    for r in range(11): A(f"v_add_f32 v{OA+r}, v{OA+r}, v{S0+r}")
    A(f"v_mov_b32 v{T}, v{OA+10}")
    A(f"v_permlane32_swap_b32 v{OA+10}, v{T}")
    A(f"v_rcp_f32 v{T}, v{OA+10}")
    A("s_nop 0")
    for r in range(10): A(f"v_mul_f32 v{OA+r}, v{OA+r}, v{T}")
    for r in range(5): A(C(P + r, OA + 2 * r))
    A(f"s_lshl_b32 s{S_T}, s{S_FH}, 5")
    A(f"v_add_u32 v{T}, s{S_T}, v{V_I}")
    A(f"v_mul_u32_u24 v{T}, 144, v{T}")
    A(f"s_mul_i32 s{S_T}, s{S_TG}, 36"); A(f"s_add_u32 s{S_T}, s{S_T}, {OSTG}")
    A(f"v_add_u32 v{T}, s{S_T}, v{T}")
    A(f"v_lshl_add_u32 v{T+1}, v{V_H}, 4, v{T}")
    A(f"ds_write2_b32 v{T+1}, v{P}, v{P+1} offset0:0 offset1:1")
    A(f"ds_write2_b32 v{T+1}, v{P+2}, v{P+3} offset0:2 offset1:3")
    A(f"v_cmp_eq_u32 vcc, 0, v{V_H}")
    A(f"s_and_saveexec_b64 s[{S_EX}:{S_EX+1}], vcc")
    A(f"ds_write_b32 v{T}, v{P+4} offset:32")
    A(f"s_mov_b64 exec, s[{S_EX}:{S_EX+1}]")
    A("s_waitcnt lgkmcnt(0)")
    R.bar("B4")
    pstamp(A, 22, "t")

def store_rows(A, srd_i, sbase_fn, sc1):
    t = T
    for u8 in (0, 1):
        skip = None
        if u8:
            skip = A.newlabel("st8")
            A(f"s_cmp_lg_u32 s{S_WAVE}, 0"); A(f"s_cbranch_scc1 {skip}")
            A(f"v_add_u32 v{t}, 512, v{V_LANE}")
        else:
            A(f"s_lshl_b32 s{S_T}, s{S_WAVE}, 6")
            A(f"v_add_u32 v{t}, s{S_T}, v{V_LANE}")
        A(f"v_lshlrev_b32 v{t+1}, 4, v{t}")
        A(f"v_add_u32 v{t+1}, {OSTG}, v{t+1}")
        d = S0 + 4 * u8
        A(f"ds_read_b128 {vr(d,4)}, v{t+1}")
        A(f"v_mul_u32_u24 v{t+2}, 7282, v{t}")
        A(f"v_lshrrev_b32 v{t+2}, 16, v{t+2}")
        A(f"v_mul_u32_u24 v{t+3}, 9, v{t+2}")
        A(f"v_sub_u32 v{t+3}, v{t}, v{t+3}")
        A(f"v_mul_u32_u24 v{t+2}, {ROWB}, v{t+2}")
        A(f"v_lshl_add_u32 v{t+2}, v{t+3}, 4, v{t+2}")
        sbase_fn(A)
        A("s_waitcnt lgkmcnt(0)")
        A(f"buffer_store_dwordx4 {vr(d,4)}, v{t+2}, {srd(srd_i)}, s{S_T} offen" + (" sc1" if sc1 is True else (" " + sc1 if sc1 else "")))
        if skip: A.label(skip)
```

```python
from fcommon import *

V_LANE = 0
VX0, VX1, VW, VL16 = 1, 2, 3, 6
PR0, PR1 = 144, 145
HT = 8
DUAL = os.environ.get('DUAL', '0') == '1'
PSLEEP = int(os.environ.get('PSLEEP', '1'))
STAGGER = int(os.environ.get('STAGGER', '8'))
S_H = 39

def setup_x(A):
    t = HT
    A(f"v_lshrrev_b32 v{t}, 3, v{V_LANE}")
    A(f"v_mul_u32_u24 v{t}, {ROWB}, v{t}")
    A(f"v_and_b32 v{t+1}, 7, v{V_LANE}")
    A(f"v_lshrrev_b32 v{t+2}, 4, v{V_LANE}")
    A(f"v_xor_b32 v{t+1}, v{t+1}, v{t+2}")
    A(f"v_lshl_add_u32 v{VX0}, v{t+1}, 4, v{t}")
    A(f"v_xor_b32 v{VX1}, 64, v{VX0}")

def setup_w(A):
    t = HT
    for k in range(3):
        if k < 2:
            A(f"s_lshl_b32 s{S_T}, s{S_H}, 7"); A(f"s_add_u32 s{S_T}, s{S_T}, {64*k}")
            A(f"v_add_u32 v{t}, s{S_T}, v{V_LANE}")
        else:
            A(f"v_add_u32 v{t}, 512, v{V_LANE}")
        A(f"v_mul_u32_u24 v{t+1}, 7282, v{t}")
        A(f"v_lshrrev_b32 v{t+1}, 16, v{t+1}")
        A(f"v_mul_u32_u24 v{t+2}, 9, v{t+1}")
        A(f"v_sub_u32 v{t+2}, v{t}, v{t+2}")
        A(f"v_and_b32 v{t+3}, 0x38, v{t+1}")
        A(f"v_and_b32 v{t+4}, 1, v{t+1}")
        A(f"v_lshl_add_u32 v{t+3}, v{t+4}, 2, v{t+3}")
        A(f"v_bfe_u32 v{t+4}, v{t+1}, 1, 2")
        A(f"v_add_u32 v{t+3}, v{t+3}, v{t+4}")
        A(f"v_mul_u32_u24 v{t+3}, {ROWB}, v{t+3}")
        A(f"v_lshl_add_u32 v{VW+k}, v{t+2}, 4, v{t+3}")
    A(f"v_lshlrev_b32 v{VL16}, 4, v{V_LANE}")

def dma(A, vreg, srd_i, ssoff, m0_expr, sc1=False):
    A(m0_expr)
    A("s_nop 0")
    A(f"buffer_load_dwordx4 v{vreg}, {srd(srd_i)}, s{ssoff} offen{' sc1' if sc1 else ''} lds")

def issue_x(A, vm, chunks, sc1, tagf, xb=XB):
    for cc in chunks:
        for o in range(2):
            A(f"s_mul_i32 s{S_T}, s{S_H}, {16*ROWB}")
            A(f"s_add_u32 s{S_T}, s{S_T}, s{S_T3}")
            A(f"s_add_u32 s{S_T}, s{S_T}, {o*8*ROWB + cc*128}")
            A(f"s_lshl_b32 s{S_T2}, s{S_H}, 11")
            dma(A, VX0 + o, SRD_A, S_T, f"s_add_u32 m0, s{S_T2}, {xb + cc*8192 + o*1024}", sc1)
            vm.issue(tagf(cc))

def issue_w(A, vm, h3, reps, tagf, wb=WB):
    for a_ in reps:
        A(f"s_mul_i32 s{S_T}, s{S_HG}, 144")
        A(f"s_add_u32 s{S_T}, s{S_T}, {a_*64*ROWB}")
        for k in range(3 if h3 else 2):
            if k < 2:
                A(f"s_lshl_b32 s{S_T2}, s{S_H}, 11")
                dma(A, VW + k, SRD_W, S_T, f"s_add_u32 m0, s{S_T2}, {wb + (9*a_ + k)*1024}")
            else:
                dma(A, VW + 2, SRD_W, S_T, f"s_mov_b32 m0, {wb + (9*a_ + 8)*1024}")
            vm.issue(tagf(a_))

PRI = 146
def init_issue(A):
    skip = A.newlabel("iissue")
    A(f"v_mov_b32 v{PRI+1}, {DBG_INIT}")
    A(f"s_cmp_lg_u32 s{S_H}, 0"); A(f"s_cbranch_scc1 {skip}")
    A(f"buffer_load_dword v{PRI}, v{PRI+1}, {srd(SRD_DBG)}, 0 offen")
    A.label(skip)

def init_check(A):
    skip = A.newlabel("icheck"); lp = A.newlabel("icheckp")
    A(f"s_cmp_lg_u32 s{S_H}, 0"); A(f"s_cbranch_scc1 {skip}")
    A("s_waitcnt vmcnt(0)")
    A(f"s_mov_b32 s80, 0")
    A.label(lp)
    A(f"v_readfirstlane_b32 s81, v{PRI}")
    A(f"s_cmp_ge_u32 s81, 32"); A(f"s_cbranch_scc1 {skip}")
    A("s_sleep 8")
    A(f"buffer_load_dword v{PRI}, v{PRI+1}, {srd(SRD_DBG)}, 0 offen sc1")
    A("s_waitcnt vmcnt(0)")
    A(f"s_add_u32 s80, s80, 1")
    A(f"s_cmp_lt_u32 s80, 0x40000"); A(f"s_cbranch_scc1 {lp}")
    A.label(skip)

def poll_issue(A, voff):
    t = HT
    skip = A.newlabel("pissue")
    A(f"s_cmp_lg_u32 s{S_H}, 0"); A(f"s_cbranch_scc1 {skip}")
    voff(A, t)
    A(f"buffer_load_dword v{PR0}, v{t}, {srd(SRD_WS)}, 0 offen sc1")
    A.label(skip)

def poll(A, voff, nlanes, cmpval, name, ge=False, preissued=False):
    if DUAL: return poll2(A, voff, nlanes, cmpval, name, ge, preissued)
    t = HT
    skip = A.newlabel(name + "skip"); lp = A.newlabel(name + "lp"); done = A.newlabel(name + "ok")
    chk = A.newlabel(name + "chk")
    A(f"s_cmp_lg_u32 s{S_H}, 0"); A(f"s_cbranch_scc1 {skip}")
    A(f"s_mov_b32 s80, 0")
    if preissued: A(f"s_branch {chk}")
    else: voff(A, t)
    A.label(lp)
    A(f"buffer_load_dword v{PR0}, v{t}, {srd(SRD_WS)}, 0 offen sc1")
    A.label(chk)
    A("s_waitcnt vmcnt(0)")
    A(f"v_mov_b32 v{t+2}, {cmpval}")
    A(f"v_cmp_{'le' if ge else 'eq'}_u32 vcc, v{t+2}, v{PR0}")
    A("s_nop 1")
    A(f"s_not_b64 s[82:83], vcc")
    A(f"s_cmp_eq_u64 s[82:83], 0")
    A(f"s_cbranch_scc1 {done}")
    A(f"s_sleep {PSLEEP}")
    A(f"s_add_u32 s80, s80, 1")
    A(f"s_cmp_lt_u32 s80, 0x80000"); A(f"s_cbranch_scc1 {lp}")
    A.label(done)
    A.label(skip)

def poll2(A, voff, nlanes, cmpval, name, ge=False, preissued=False):
    t = HT
    skip = A.newlabel(name + "skip"); lp = A.newlabel(name + "lp"); done = A.newlabel(name + "ok")
    A(f"s_cmp_lg_u32 s{S_H}, 0"); A(f"s_cbranch_scc1 {skip}")
    A(f"s_mov_b32 s80, 0")
    ld = lambda r: A(f"buffer_load_dword v{r}, v{t}, {srd(SRD_WS)}, 0 offen sc1")
    def check(r):
        A(f"v_cmp_{'le' if ge else 'eq'}_u32 vcc, v{t+2}, v{r}")
        A("s_nop 1")
        A(f"s_not_b64 s[82:83], vcc")
        A(f"s_cmp_eq_u64 s[82:83], 0")
        A(f"s_cbranch_scc1 {done}")
    if not preissued:
        voff(A, t)
        ld(PR0)
    A(f"v_mov_b32 v{t+2}, {cmpval}")
    if preissued:
        A("s_waitcnt vmcnt(0)"); check(PR0)
        ld(PR0)
    if STAGGER: A(f"s_sleep {STAGGER}")
    A.label(lp)
    ld(PR1)
    A("s_waitcnt vmcnt(1)"); check(PR0)
    ld(PR0)
    A("s_waitcnt vmcnt(1)"); check(PR1)
    A(f"s_add_u32 s80, s80, 1")
    A(f"s_cmp_lt_u32 s80, 0x40000"); A(f"s_cbranch_scc1 {lp}")
    A.label(done)
    A.label(skip)

def kv_pieces():
    st0 = list(range(0, 14)) + list(range(74, 88))
    order0 = [x for pair in zip(range(0, 14), range(74, 88)) for x in pair]
    rest_a = list(range(14, 74)); rest_b = list(range(88, 148))
    order1 = [x for pair in zip(rest_a, rest_b) for x in pair]
    return order0, order1

def issue_kv(A, vm, pieces, tag):
    for u in range(0, len(pieces), 4):
        grp = pieces[u:u + 4]
        a_, b_ = grp[0], grp[1]
        assert grp == [a_, b_, a_ + 1, b_ + 1], grp
        A(f"s_mov_b32 s{S_T}, {a_*1024}")
        A(f"s_mov_b32 s{S_T2}, {b_*1024}")
        A(f"s_bitcmp1_b32 s{S_H}, 0")
        A(f"s_cselect_b32 s{S_T}, s{S_T2}, s{S_T}")
        A(f"s_lshr_b32 s{S_T2}, s{S_H}, 1"); A(f"s_lshl_b32 s{S_T2}, s{S_T2}, 10")
        A(f"s_add_u32 s{S_T}, s{S_T}, s{S_T2}")
        dma(A, VL16, SRD_KV, S_T, f"s_mov_b32 m0, s{S_T}", sc1=not PLAIN)
        vm.issue(tag)

F_W = 24
F_X = 96
F_KEY = 148
F_A = 152
F_ACC = 160
S_M, S_KH, S_SL = 84, 85, 86

def lds_sync(A, idx, name):
    t = HT + 12
    A("s_waitcnt lgkmcnt(0)")
    A(f"v_mov_b32 v{t}, {L_CNT + 4*idx}")
    A(f"v_mov_b32 v{t+1}, 1")
    A(f"s_mov_b64 s[{S_EX}:{S_EX+1}], exec")
    A("s_mov_b64 exec, 1")
    A(f"ds_add_u32 v{t}, v{t+1}")
    A(f"s_mov_b64 exec, s[{S_EX}:{S_EX+1}]")
    lp = A.newlabel(name); done = A.newlabel(name + "d")
    A(f"s_mov_b32 s80, 0")
    A.label(lp)
    A(f"ds_read_b32 v{t+1}, v{t}")
    A("s_waitcnt lgkmcnt(0)")
    A(f"v_readfirstlane_b32 s81, v{t+1}")
    A(f"s_cmp_ge_u32 s81, 4"); A(f"s_cbranch_scc1 {done}")
    A("s_sleep 1")
    A(f"s_add_u32 s80, s80, 1")
    A(f"s_cmp_lt_u32 s80, 0x100000"); A(f"s_cbranch_scc1 {lp}")
    A.label(done)

def wait_released(A):
    t = HT + 12
    lp = A.newlabel("rel"); done = A.newlabel("reld")
    A(f"v_mov_b32 v{t}, {L_CNT + 12}")
    A(f"s_mov_b32 s80, 0")
    A.label(lp)
    A(f"ds_read_b32 v{t+1}, v{t}")
    A("s_waitcnt lgkmcnt(0)")
    A(f"v_readfirstlane_b32 s81, v{t+1}")
    A(f"s_cmp_ge_u32 s81, 512"); A(f"s_cbranch_scc1 {done}")
    A("s_sleep 16")
    A(f"s_add_u32 s80, s80, 1")
    A(f"s_cmp_lt_u32 s80, 0x400000"); A(f"s_cbranch_scc1 {lp}")
    A.label(done)

def select_top2(A):
    t = HT
    m1, m2 = t, t + 1
    A(f"v_max_u32 v{m1}, v{F_KEY}, v{F_KEY+1}")
    A(f"v_min_u32 v{m2}, v{F_KEY}, v{F_KEY+1}")
    for i in range(2, 4):
        A(f"v_med3_u32 v{m2}, v{m1}, v{m2}, v{F_KEY+i}")
        A(f"v_max_u32 v{m1}, v{m1}, v{F_KEY+i}")
    def wave_max(reg, sdst):
        A(f"v_mov_b32 v{t+2}, v{reg}")
        for sh in (1, 2, 4, 8):
            A(f"v_max_u32_dpp v{t+2}, v{t+2}, v{t+2} row_ror:{sh} row_mask:0xf bank_mask:0xf")
        A(f"v_readlane_b32 s{sdst}, v{t+2}, 0")
        for ln in (16, 32, 48):
            A(f"v_readlane_b32 s{S_T}, v{t+2}, {ln}")
            A(f"s_max_u32 s{sdst}, s{sdst}, s{S_T}")
    wave_max(m1, 80)
    A(f"v_cmp_eq_u32 vcc, s80, v{m1}")
    A(f"v_cndmask_b32 v{m1}, v{m1}, v{m2}, vcc")
    wave_max(m1, 81)
    for j in range(2):
        A(f"s_and_b32 s{S_T}, s{80+j}, 0xffff")
        A(f"s_sub_u32 s{S_IDX0+j}, 0xffff, s{S_T}")
        A(f"s_min_u32 s{S_IDX0+j}, s{S_IDX0+j}, {S_TOK-1}")
    nosel = A.newlabel("nosel")
    A(f"s_cmp_lg_u32 s{S_H}, 0"); A(f"s_cbranch_scc1 {nosel}")
    A(f"v_mov_b32 v{t}, s80"); A(f"v_mov_b32 v{t+1}, s81")
    A(f"v_cmp_eq_u32 vcc, 1, v{V_LANE}")
    A(f"v_cndmask_b32 v{t}, v{t}, v{t+1}, vcc")
    A(f"v_lshrrev_b32 v{t+1}, 16, v{t}")
    A(f"v_xor_b32 v{t+2}, 0x8000, v{t+1}")
    A(f"v_xor_b32 v{t+3}, 0xffff, v{t+1}")
    A(f"v_cmp_lt_u32 vcc, 0x7fff, v{t+1}")
    A(f"v_cndmask_b32 v{t+1}, v{t+3}, v{t+2}, vcc")
    A(f"v_lshlrev_b32 v{t+1}, 16, v{t+1}")
    A(f"v_mul_f32 v{t+1}, {f32(-LOG2E)}, v{t+1}")
    A(f"v_exp_f32 v{t+1}, v{t+1}")
    A(f"v_add_f32 v{t+1}, 1.0, v{t+1}")
    A(f"v_rcp_f32 v{t+1}, v{t+1}")
    A(f"v_cvt_pk_bf16_f32 v{t+1}, v{t+1}, v{t+1}")
    A(f"v_and_b32 v{t+1}, 0xffff0000, v{t+1}")
    A(f"v_and_b32 v{t}, 0xffff, v{t}")
    A(f"v_sub_u32 v{t}, 0xffff, v{t}")
    A(f"v_min_u32 v{t}, {S_TOK-1}, v{t}")
    A(f"v_lshlrev_b32 v{t+2}, 2, v{V_LANE}")
    A(f"v_add_u32 v{t+2}, {L_SEL}, v{t+2}")
    A(f"v_cmp_gt_u32 vcc, 2, v{V_LANE}")
    A(f"s_and_saveexec_b64 s[{S_EX}:{S_EX+1}], vcc")
    A(f"ds_write_b32 v{t+2}, v{t}")
    A(f"ds_write_b32 v{t+2}, v{t+1} offset:8")
    A(f"s_mov_b64 exec, s[{S_EX}:{S_EX+1}]")
    A.label(nosel)

def ffn(A):
    t = HT; WS = srd(SRD_WS)
    FT, FG = t + 14, t + 15
    A(f"v_and_b32 v{FT}, 15, v{V_LANE}"); A(f"v_lshrrev_b32 v{FG}, 4, v{V_LANE}")
    A(f"s_and_b32 s{S_M}, s{S_H}, 1"); A(f"s_lshr_b32 s{S_KH}, s{S_H}, 1")
    A(f"s_cmp_eq_u32 s{S_M}, 0")
    A(f"s_cselect_b32 s{SRD_E}, s{S_WG}, s{S_WU}")
    A(f"s_cselect_b32 s{SRD_E+1}, s{S_WG+1}, s{S_WU+1}")
    A(f"s_and_b32 s{SRD_E+1}, s{SRD_E+1}, 0xffff")
    A(f"s_mov_b32 s{SRD_E+2}, {D*F*2}"); A(f"s_mov_b32 s{SRD_E+3}, 0x20000")
    mk_srd(A, SRD_F, S_WD, F * ROWB)
    A(f"v_lshrrev_b32 v{t}, 2, v{V_LANE}")
    A(f"v_and_b32 v{t+1}, 3, v{V_LANE}")
    A(f"v_lshlrev_b32 v{t+1}, 4, v{t+1}")
    A(f"v_mul_u32_u24 v{t+2}, {ROWB}, v{t}")
    A(f"v_add_u32 v{t+2}, v{t+2}, v{t+1}")
    A(f"v_mul_u32_u24 v{t}, {F*2}, v{t}")
    A(f"v_add_u32 v{t}, v{t}, v{t+1}")
    A(f"s_mul_i32 s{S_T}, s{S_KH}, {9*32*F*2}")
    A(f"s_lshl_b32 s{S_T2}, s{S_SL}, 6")
    A(f"s_add_u32 s{S_T}, s{S_T}, s{S_T2}")
    for s_ in range(9):
        for hf in range(2):
            A(f"buffer_load_dwordx4 {vr(F_W+8*s_+4*hf,4)}, v{t}, {srd(SRD_E)}, s{S_T} offen")
            A(f"s_add_u32 s{S_T}, s{S_T}, {16*F*2}")
    A(f"v_mov_b32 v{t}, s{S_IDX0}"); A(f"v_mov_b32 v{t+1}, s{S_IDX1}")
    A(f"v_cmp_eq_u32 vcc, 1, v{FT}")
    A(f"v_cndmask_b32 v{t}, v{t}, v{t+1}, vcc")
    A(f"v_mul_u32_u24 v{t}, {ROWB}, v{t}")
    A(f"v_lshl_add_u32 v{t}, v{FG}, 4, v{t}")
    A(f"s_mul_i32 s{S_T}, s{S_KH}, {9*64}")
    for s_ in range(9):
        A(f"buffer_load_dwordx4 {vr(F_X+4*s_,4)}, v{t}, {srd(SRD_A)}, s{S_T} offen offset:{64*s_}")
    wr, r1 = t + 3, t + 4
    A(f"s_lshl_b32 s{S_T}, s{S_H}, 11"); A(f"s_add_u32 s{S_T}, s{S_T}, {H_STG}")
    A(f"v_add_u32 v{wr}, s{S_T}, v{VL16}")
    A(f"v_bfe_u32 v{t+5}, v{V_LANE}, 2, 2")
    A(f"v_lshl_add_u32 v{t+5}, v{FG}, 3, v{t+5}")
    A(f"v_and_b32 v{t+6}, 3, v{V_LANE}")
    A(f"v_lshlrev_b32 v{t+6}, 3, v{t+6}")
    A(f"v_lshl_add_u32 v{r1}, v{t+5}, 6, v{t+6}")
    A(f"v_add_u32 v{r1}, s{S_T}, v{r1}")
    def through_lds(src, ntile):
        A(f"ds_write_b128 v{wr}, {vr(src,4)}")
        A(f"ds_write_b128 v{wr}, {vr(src+4,4)} offset:1024")
        A("s_waitcnt lgkmcnt(0)")
        for tile in range(ntile):
            for q in range(2):
                A(f"ds_read_b64_tr_b16 {vr(F_A+4*tile+2*q,2)}, v{r1} offset:{32*tile + 256*q}")
        A("s_waitcnt lgkmcnt(0)")
    A("s_waitcnt vmcnt(0)")
    for s_ in range(9):
        through_lds(F_W + 8 * s_, 2)
        for tile in range(2):
            c = "0" if s_ == 0 else vr(F_ACC + 4 * tile, 4)
            A(f"v_mfma_f32_16x16x32_bf16 {vr(F_ACC+4*tile,4)}, {vr(F_A+4*tile,4)}, {vr(F_X+4*s_,4)}, {c}")
        if s_ == 4:
            A(f"s_mul_i32 s{S_T}, s{S_SL}, {32*ROWB}")
            A(f"s_mul_i32 s{S_T2}, s{S_H}, 288")
            A(f"s_add_u32 s{S_T}, s{S_T}, s{S_T2}")
            A(f"s_add_u32 s{S_T2}, s{S_T}, {16*ROWB}")
            for rd in range(5):
                A(f"buffer_load_dwordx4 {vr(F_W+8*rd,4)}, v{t+2}, {srd(SRD_F)}, s{S_T} offen offset:{64*rd}")
                A(f"buffer_load_dwordx4 {vr(F_W+8*rd+4,4)}, v{t+2}, {srd(SRD_F)}, s{S_T2} offen offset:{64*rd}")
    A("s_nop 7")
    A(f"v_lshlrev_b32 v{t+5}, 1, v{FG}")
    A(f"v_add_u32 v{t+5}, v{t+5}, v{FT}")
    A(f"v_lshlrev_b32 v{t+5}, 4, v{t+5}")
    A(f"v_add_u32 v{t+7}, {H_RED}, v{t+5}")
    A(f"s_lshl_b32 s{S_T}, s{S_H}, 8")
    A(f"v_add_u32 v{t+6}, s{S_T}, v{t+7}")
    A(f"v_cmp_gt_u32 vcc, 2, v{FT}")
    A(f"s_and_saveexec_b64 s[{S_EX}:{S_EX+1}], vcc")
    A(f"ds_write_b128 v{t+6}, {vr(F_ACC,4)}")
    A(f"ds_write_b128 v{t+6}, {vr(F_ACC+4,4)} offset:128")
    A(f"s_mov_b64 exec, s[{S_EX}:{S_EX+1}]")
    lds_sync(A, 0, "hs0")
    noh = A.newlabel("noh")
    A(f"s_cmp_lg_u32 s{S_H}, 0"); A(f"s_cbranch_scc1 {noh}")
    B0 = F_X
    A(f"v_cmp_gt_u32 vcc, 2, v{FT}")
    A(f"s_and_saveexec_b64 s[{S_EX}:{S_EX+1}], vcc")
    for tile in range(2):
        for w in range(4):
            A(f"ds_read_b128 {vr(B0+16*tile+4*w,4)}, v{t+7} offset:{256*w + 128*tile}")
    A("s_waitcnt lgkmcnt(0)")
    for tile in range(2):
        b = B0 + 16 * tile
        for r in range(4):
            gq = b + r; uq = b + 4 + r
            A(f"v_add_f32 v{gq}, v{gq}, v{b+8+r}")
            A(f"v_add_f32 v{uq}, v{uq}, v{b+12+r}")
            A(f"v_cvt_pk_bf16_f32 v{gq}, v{gq}, v{uq}")
            A(f"v_and_b32 v{uq}, 0xffff0000, v{gq}")
            A(f"v_lshlrev_b32 v{gq}, 16, v{gq}")
            A(f"v_mul_f32 v{b+8+r}, {f32(-LOG2E)}, v{gq}")
            A(f"v_exp_f32 v{b+8+r}, v{b+8+r}")
            A(f"v_add_f32 v{b+8+r}, 1.0, v{b+8+r}")
            A(f"v_rcp_f32 v{b+8+r}, v{b+8+r}")
            A(f"v_mul_f32 v{gq}, v{gq}, v{b+8+r}")
            A(f"v_cvt_pk_bf16_f32 v{gq}, v{gq}, v{gq}")
            A(f"v_and_b32 v{gq}, 0xffff0000, v{gq}")
            A(f"v_mul_f32 v{gq}, v{gq}, v{uq}")
        A(f"v_cvt_pk_bf16_f32 v{b}, v{b}, v{b+1}")
        A(f"v_cvt_pk_bf16_f32 v{b+1}, v{b+2}, v{b+3}")
    A(f"v_lshlrev_b32 v{t+5}, 6, v{FT}")
    A(f"v_lshl_add_u32 v{t+5}, v{FG}, 3, v{t+5}")
    A(f"v_add_u32 v{t+5}, {H_H}, v{t+5}")
    A(f"ds_write_b64 v{t+5}, {vr(B0,2)}")
    A(f"ds_write_b64 v{t+5}, {vr(B0+16,2)} offset:32")
    A(f"s_mov_b64 exec, s[{S_EX}:{S_EX+1}]")
    A.label(noh)
    lds_sync(A, 1, "hs1")
    HA = F_X + 16
    A(f"v_and_b32 v{t+5}, 3, v{FT}")
    A(f"v_lshrrev_b32 v{t+6}, 2, v{FT}")
    A(f"v_lshlrev_b32 v{t+7}, 6, v{t+5}")
    A(f"v_lshl_add_u32 v{t+7}, v{FG}, 4, v{t+7}")
    A(f"v_add_u32 v{t+7}, {H_H}, v{t+7}")
    A(f"v_mov_b32 v{t+8}, {OOR}")
    A(f"v_cmp_gt_u32 vcc, 2, v{t+5}")
    A(f"v_cndmask_b32 v{t+7}, v{t+8}, v{t+7}, vcc")
    for j in range(4):
        A(f"v_cmp_eq_u32 vcc, {j}, v{t+6}")
        A(f"v_cndmask_b32 v{t+5}, v{t+8}, v{t+7}, vcc")
        A(f"ds_read_b128 {vr(HA+4*j,4)}, v{t+5}")
    A("s_waitcnt vmcnt(0)")
    DY = F_X
    for rd in range(5):
        nt = 2 if rd < 4 else 1
        through_lds(F_W + 8 * rd, nt)
        for tile in range(nt):
            u, j = divmod(2 * rd + tile, 4)
            c = "0" if j == 0 else vr(DY + 4 * u, 4)
            A(f"v_mfma_f32_16x16x32_bf16 {vr(DY+4*u,4)}, {vr(HA+4*j,4)}, {vr(F_A+4*tile,4)}, {c}")
    A("s_nop 7")
    A(f"s_and_b32 s{S_T}, s2, {Y_REP-1}")
    A(f"s_mul_i32 s{S_T}, s{S_T}, {2*D*4}")
    A(f"s_mul_i32 s{S_T2}, s{S_H}, {144*4}")
    A(f"s_add_u32 s{S_T}, s{S_T}, s{S_T2}")
    A(f"s_add_u32 s{S_T}, s{S_T}, {FW_YACC}")
    A(f"s_add_u32 s{S_T2}, s{S_T}, {D*4}")
    A(f"v_lshlrev_b32 v{t+5}, 2, v{V_LANE}")
    for u in range(3):
        if u == 2: A("s_mov_b64 exec, 0xffff")
        A(f"buffer_atomic_add_f32 v{DY+4*u}, v{t+5}, {WS}, s{S_T} offen offset:{256*u}")
        A(f"buffer_atomic_add_f32 v{DY+4*u+1}, v{t+5}, {WS}, s{S_T2} offen offset:{256*u}")
    A("s_mov_b64 exec, -1")
    A("s_waitcnt vmcnt(0)")
    lds_sync(A, 2, "hs2")
    nof = A.newlabel("nof")
    A(f"s_cmp_lg_u32 s{S_H}, 0"); A(f"s_cbranch_scc1 {nof}")
    A(f"v_mov_b32 v{t}, {FW_FFNC}"); A(f"v_mov_b32 v{t+1}, 1")
    A("s_mov_b64 exec, 1")
    A(f"buffer_atomic_add v{t+1}, v{t}, {WS}, 0 offen sc1")
    A("s_mov_b64 exec, -1")
    A.label(nof)

def routed_update(A):
    t = HT; WS = srd(SRD_WS)
    skip = A.newlabel("noupd")
    A(f"s_cmp_lg_u32 s{S_H}, 1"); A(f"s_cbranch_scc1 {skip}")
    A(f"s_sub_u32 s84, s{S_IDX0}, s{S_ROW0}"); A(f"s_sub_u32 s85, s{S_IDX1}, s{S_ROW0}")
    A(f"s_min_u32 s86, s84, s85")
    A(f"s_cmp_lt_u32 s86, 64"); A(f"s_cbranch_scc0 {skip}")
    lp = A.newlabel("ypoll"); done = A.newlabel("ydone")
    A(f"s_mov_b32 s80, 0")
    A(f"v_mov_b32 v{t}, {FW_FFNC}")
    A.label(lp)
    A(f"buffer_load_dword v{t+1}, v{t}, {WS}, 0 offen sc1")
    A("s_waitcnt vmcnt(0)")
    A(f"v_readfirstlane_b32 s81, v{t+1}")
    A(f"s_cmp_ge_u32 s81, 144"); A(f"s_cbranch_scc1 {done}")
    A("s_sleep 8")
    A(f"s_add_u32 s80, s80, 1")
    A(f"s_cmp_lt_u32 s80, 0x40000"); A(f"s_cbranch_scc1 {lp}")
    A.label(done)
    Y = F_W
    A(f"v_lshlrev_b32 v{t}, 3, v{V_LANE}")
    A(f"s_mul_i32 s{S_T}, s{S_HG}, 288"); A(f"s_add_u32 s{S_T}, s{S_T}, {FW_YACC}")
    A(f"v_mov_b32 v{t+2}, {L_SEL+8}")
    A(f"ds_read_b64 {vr(t+4,2)}, v{t+2}")
    A(f"v_cmp_gt_u32 vcc, 36, v{V_LANE}")
    A(f"s_and_saveexec_b64 s[{S_EX}:{S_EX+1}], vcc")
    for j in range(2):
        for rp in range(Y_REP):
            A(f"s_add_u32 s{S_T2}, s{S_T}, {rp*2*D*4 + j*D*4}")
            A(f"buffer_load_dwordx2 {vr(Y+16*j+2*rp,2)}, v{t}, {WS}, s{S_T2} offen sc1")
    A("s_waitcnt vmcnt(0) lgkmcnt(0)")
    for j in range(2):
        b = Y + 16 * j
        for rp in range(1, Y_REP):
            A(f"v_add_f32 v{b}, v{b}, v{b+2*rp}"); A(f"v_add_f32 v{b+1}, v{b+1}, v{b+2*rp+1}")
        for e in range(2):
            y = b + e
            A(f"v_cvt_pk_bf16_f32 v{y}, v{y}, v{y}")
            A(f"v_and_b32 v{y}, 0xffff0000, v{y}")
            A(f"v_mul_f32 v{y}, v{t+4+j}, v{y}")
            A(f"v_cvt_pk_bf16_f32 v{y}, v{y}, v{y}")
            A(f"v_and_b32 v{y}, 0xffff0000, v{y}")
        A(f"v_add_u32 v{t+2}, {L_UPD + 288*j}, v{t}")
        A(f"ds_write_b64 v{t+2}, {vr(b,2)}")
    A("s_mov_b64 exec, -1")
    A("s_waitcnt lgkmcnt(0)")
    A.label(skip)
```

```python
from fcommon import *
from f_gemm import *
import f_attn

def out_epilogue(A, R, nt):
    t = GT; WS = srd(SRD_WS)
    g = GATE; og = GT + 16
    X = AF
    A(f"v_sub_f32 v{og}, 1.0, v{g}")
    A(f"v_cvt_pk_bf16_f32 v{og}, v{og}, v{og}")
    A(f"v_and_b32 v{og}, 0xffff0000, v{og}")
    for j in range(nt):
        for q in range(2):
            src = XRES + 2 * j + q; d = X + 4 * j + 2 * q
            A(f"v_lshlrev_b32 v{d}, 16, v{src}")
            A(f"v_and_b32 v{d+1}, 0xffff0000, v{src}")
    A(f"v_mov_b32 v{t}, {L_SEL}")
    A(f"ds_read_b128 {vr(t+4,4)}, v{t}")
    A("s_waitcnt lgkmcnt(0)")
    for e in range(4): A(f"v_readfirstlane_b32 s{80+e}, v{t+4+e}")
    for jr in range(2):
        skip = A.newlabel("nort")
        A(f"s_lshl_b32 s{S_T}, s{S_TG}, 4")
        A(f"s_add_u32 s{S_T}, s{S_T}, s{S_ROW0}")
        A(f"s_sub_u32 s84, s{80+jr}, s{S_T}")
        A(f"s_cmp_lt_u32 s84, 16")
        A(f"s_cbranch_scc0 {skip}")
        A(f"s_mul_i32 s{S_T2}, s{S_FH}, 192"); A(f"s_add_u32 s{S_T2}, s{S_T2}, {L_UPD + 288*jr}")
        A(f"v_lshlrev_b32 v{t}, 4, v{V_G}")
        A(f"v_add_u32 v{t}, s{S_T2}, v{t}")
        Y = 40
        for j in range(nt): A(f"ds_read_b128 {vr(Y+4*j,4)}, v{t} offset:{64*j}")
        A(f"v_cmp_eq_u32 vcc, s84, v{V_T}")
        A("s_waitcnt lgkmcnt(0)")
        for j in range(nt):
            for r in range(4):
                y = Y + 4 * j + r; x = X + 4 * j + r
                A(f"v_add_f32 v{y}, v{x}, v{y}")
                A(f"v_cvt_pk_bf16_f32 v{y}, v{y}, v{y}")
                A(f"v_and_b32 v{y}, 0xffff0000, v{y}")
                A(f"v_cndmask_b32 v{x}, v{x}, v{y}, vcc")
        A.label(skip)
    ad = stage_rows(A, OSTG, None)
    for j in range(nt):
        a_ = ACC + 4 * j; x = X + 4 * j; d = GT + 2 * j
        for r in range(4):
            A(f"v_mul_f32 v{x+r}, v{og}, v{x+r}")
            A(f"v_fma_f32 v{x+r}, v{g}, v{a_+r}, v{x+r}")
        A(f"v_cvt_pk_bf16_f32 v{d}, v{x}, v{x+1}")
        A(f"v_cvt_pk_bf16_f32 v{d+1}, v{x+2}, v{x+3}")
        last = (nt == 2 and j == 1)
        if last:
            A(f"v_cmp_gt_u32 vcc, 2, v{V_G}")
            A(f"s_and_saveexec_b64 s[{S_EX}:{S_EX+1}], vcc")
        A(f"ds_write_b64 v{ad}, {vr(d,2)} offset:{32*j}")
        if last: A(f"s_mov_b64 exec, s[{S_EX}:{S_EX+1}]")
    A("s_waitcnt lgkmcnt(0)")

def out_phase(A, R):
    gemm_addresses(A, XB3, WB3)
    lf = A.newlabel("p3f1"); le = A.newlabel("p3e")
    bars0 = list(R.bars)
    A(f"s_cmp_eq_u32 s{S_FH}, 0"); A(f"s_cbranch_scc0 {lf}")
    for nt in (3, 2):
        if nt == 2:
            A.label(lf); R.bars = list(bars0)
        ra = 10 if nt == 3 else 15
        gm = Gemm(A, nt, ra)
        gm.preload_a(ra)
        R.bar("B6")
        pstamp(A, 2, "t")
        for q in range(3):
            R.bar(f"bX{q}")
            pstamp(A, 10 + q, "t")
            gm.steps(list(range(6 * q, 6 * q + 6)), 18, 6 * q + 6, la_a=ra)
        pstamp(A, 13, "t")
        A("s_nop 7")
        out_epilogue(A, R, nt)
        if nt == 3: A(f"s_branch {le}")
    A.label(le)
    pstamp(A, 3, "t")
    R.bar("B7")
    def sbase(A):
        A(f"s_mul_i32 s{S_T}, s{S_ROW0}, {ROWB}")
        A(f"s_mul_i32 s{S_T2}, s{S_HG}, 144")
        A(f"s_add_u32 s{S_T}, s{S_T}, s{S_T2}")
    f_attn.store_rows(A, SRD_OUT, sbase, os.environ.get('OUTMOD', ''))
```

```python
from fcommon import *
import sys
import f_gemm as G, f_attn as AT, f_out as FO, f_help as HP

NWAVES = 12
XFIRST = os.environ.get('XFIRST', '0') == '1'
FLAG_STAGE = int(os.environ.get('FLAG_STAGE', '2'))

def stop_here(A, name):
    if STOP == name:
        A("s_waitcnt vmcnt(0) lgkmcnt(0)")
        A("s_endpgm")
        return True
    return False

def compute_p1(A, R, duty):
    if duty:
        if duty in ("k", "v"):
            mk_srd(A, SRD_E, S_WK if duty == "k" else S_WV, 576 * 36)
        else:
            mk_srd(A, SRD_E, S_GW, ROWB); mk_srd(A, SRD_F, S_WR, ROWB)
        G.duty_loads(A, duty)
    G.gemm_addresses(A)
    if duty:
        G.duty_addresses(A)
        G.duty_writes(A, duty)
    A("s_waitcnt lgkmcnt(0)")
    R.bar("b1")
    pstamp(A, 1, "p1")
    if not duty: G.residual_x(A)
    if duty:
        {"k": G.k_stage, "v": G.v_stage, "g": G.g_stage}[duty](A)
        A("s_waitcnt lgkmcnt(0)")
        R.bar("b2")
        pstamp(A, 2, "p1")
        np_ = A.newlabel("nopub")
        A(f"s_cmp_lg_u32 s{S_WAVE}, 0"); A(f"s_cbranch_scc1 {np_}")
        G.publish(A, duty)
        G.init_probe(A)
        A.label(np_)
        G.residual_x(A)
    lf = A.newlabel("p1f1"); le = A.newlabel("p1e")
    bars0 = list(R.bars)
    A(f"s_cmp_eq_u32 s{S_FH}, 0"); A(f"s_cbranch_scc0 {lf}")
    stages = [list(range(0, 4)), list(range(4, 8)), list(range(8, 12)), list(range(12, 18))]
    for nt in (3, 2):
        if nt == 2:
            A.label(lf); R.bars = list(bars0)
        gm = G.Gemm(A, nt, 4)
        for q, steps in enumerate(stages):
            if q == FLAG_STAGE and duty and nt == 3:
                nf = A.newlabel("noflag")
                A(f"s_cmp_lg_u32 s{S_WAVE}, 0"); A(f"s_cbranch_scc1 {nf}")
                pstamp(A, 3, "p1")
                G.raise_flag(A, duty)
                pstamp(A, 4, "p1")
                A.label(nf)
            R.bar(f"bW{q}")
            if q == 3: pstamp(A, 5, "p1")
            gm.steps(steps, steps[-1] + 1, 18, la_a=1, burst=True)
        A("s_nop 7")
        G.q_epilogue(A, nt)
        if nt == 3: A(f"s_branch {le}")
    A.label(le)
    A("s_waitcnt lgkmcnt(0)")
    R.bar("bQ")

def compute_role(A):
    R = Role(A)
    A(f"s_and_b32 s{S_TG}, s{S_WAVE}, 3"); A(f"s_lshr_b32 s{S_FH}, s{S_WAVE}, 2")
    G.lane_setup(A)
    A(f"v_mov_b32 v{G.GT}, {L_CNT}"); A(f"v_mov_b32 v{G.GT+2}, 0"); A(f"v_mov_b32 v{G.GT+3}, 0")
    A(f"v_mov_b32 v{G.GT+4}, 0"); A(f"v_mov_b32 v{G.GT+5}, 0")
    A(f"ds_write_b128 v{G.GT}, {vr(G.GT+2,4)}")
    G.clear_flag_lines(A)
    lk = A.newlabel("dk"); lv = A.newlabel("dv"); lg = A.newlabel("dg"); lj = A.newlabel("dj")
    A(f"s_cmp_eq_u32 s{S_HG}, 0"); A(f"s_cbranch_scc1 {lk}")
    A(f"s_cmp_eq_u32 s{S_HG}, 1"); A(f"s_cbranch_scc1 {lv}")
    A(f"s_cmp_eq_u32 s{S_HG}, 2"); A(f"s_cbranch_scc1 {lg}")
    seqs = {}
    for duty, lab in ((None, None), ("k", lk), ("v", lv), ("g", lg)):
        if lab: A.label(lab)
        R.bars = []
        compute_p1(A, R, duty)
        seqs[duty] = list(R.bars)
        if duty != "g": A(f"s_branch {lj}")
    A.label(lj)
    R.bars = []
    pstamp(A, 1)
    AT.q_fragments(A)
    AT.lds_addresses(A)
    pstamp(A, 6, "p1")
    R.bar("bKV")
    pstamp(A, 7, "p1")
    if stop_here(A, "p1"): return seqs, R.bars
    t = AT.T
    A(f"v_lshlrev_b32 v{t}, 2, v{G.V_I}")
    A(f"v_add_u32 v{t}, {FW_KN}, v{t}")
    A(f"buffer_load_dword v{t+6}, v{t}, {srd(SRD_WS)}, 0 offen{HSC}")
    A(f"s_lshl_b32 s{S_T}, s{S_TG}, 4"); A(f"s_add_u32 s{S_T}, s{S_T}, s{S_ROW0}")
    A(f"v_add_u32 v{t+1}, s{S_T}, v{G.V_T}")
    A(f"v_lshlrev_b32 v{t+1}, 2, v{t+1}")
    A(f"v_add_u32 v{t+1}, {FW_G}, v{t+1}")
    A(f"buffer_load_dword v{G.GATE}, v{t+1}, {srd(SRD_WS)}, 0 offen{HSC}")
    A("s_waitcnt vmcnt(0)")
    AT.range_check(A)
    R.bar("B0")
    pstamp(A, 2)
    if os.environ.get("YPRIO"):
        lp = A.newlabel("yprio")
        A(f"s_cmp_eq_u32 s{S_FH}, 0"); A(f"s_cbranch_scc1 {lp}")
        A(f"s_setprio {os.environ['YPRIO']}")
        A.label(lp)
    lf = A.newlabel("fallback"); le = A.newlabel("attdone")
    A(f"s_cbranch_vccz {lf}")
    b0 = list(R.bars)
    AT.fast_path(A, R)
    A(f"s_branch {le}")
    A.label(lf)
    b1 = list(R.bars); R.bars = list(b0)
    AT.fallback_path(A, R)
    assert R.bars == b1
    A.label(le)
    AT.finish(A, R)
    def sbase(A):
        A(f"s_mul_i32 s{S_T}, s{S_ROW0}, {ROWB}")
        A(f"s_mul_i32 s{S_T2}, s{S_HG}, 144")
        A(f"s_add_u32 s{S_T}, s{S_T}, s{S_T2}")
        A(f"s_add_u32 s{S_T}, s{S_T}, {FW_O}")
    AT.store_rows(A, SRD_WS, sbase, True)
    A("s_waitcnt vmcnt(0)")
    pstamp(A, 1, "t")
    R.bar("B5")
    nf = A.newlabel("nogrp")
    A(f"s_cmp_lg_u32 s{S_WAVE}, 0"); A(f"s_cbranch_scc1 {nf}")
    A(f"s_lshl_b32 s{S_T}, s{S_TB}, 10"); A(f"s_add_u32 s{S_T}, s{S_T}, {FW_FLAG + FL_GRP}")
    A(f"v_mov_b32 v{t}, s{S_T}"); A(f"v_mov_b32 v{t+1}, 1")
    A("s_mov_b64 exec, 1")
    A(f"buffer_atomic_add v{t+1}, v{t}, {srd(SRD_WS)}, 0 offen sc1")
    A("s_mov_b64 exec, -1")
    A.label(nf)
    FO.out_phase(A, R)
    if STAMPS: A("s_waitcnt vmcnt(0)")
    pstamp(A, 7)
    if os.environ.get("DBGSTAMP"):
        nd = A.newlabel("nodbg")
        A(f"s_cmp_lg_u32 s2, {int(os.environ['DBGSTAMP'])}"); A(f"s_cbranch_scc1 {nd}")
        A(f"s_cmp_lg_u32 s{S_WAVE}, 4"); A(f"s_cbranch_scc1 {nd}")
        A(f"v_mbcnt_lo_u32_b32 v{AT.T}, -1, 0")
        A(f"v_lshlrev_b32 v{AT.T}, 2, v{AT.T}")
        A(f"v_add_u32 v{AT.T}, 32, v{AT.T}")
        A("s_mov_b64 exec, 0xff")
        A(f"buffer_store_dword v{V_ST}, v{AT.T}, {srd(SRD_DBG)}, 0 offen")
        A.label(nd)
    else:
        pstamp_flush(A, S_WAVE, S_WS, WS_STAMP, AT.T)
    A("s_endpgm")
    return seqs, R.bars

def flag_off(A, t):
    A(f"v_min_u32 v{t}, 23, v{HP.V_LANE}")
    A(f"v_and_b32 v{t+1}, 3, v{t}"); A(f"v_lshrrev_b32 v{t}, 2, v{t}")
    A(f"v_lshlrev_b32 v{t}, 7, v{t}"); A(f"v_lshl_add_u32 v{t}, v{t+1}, 2, v{t}")
    A(f"s_lshl_b32 s{S_T}, s{S_TB}, 10"); A(f"s_add_u32 s{S_T}, s{S_T}, {FW_FLAG}")
    A(f"v_add_u32 v{t}, s{S_T}, v{t}")

def helper_p1(A, R, duty, h3):
    vm = VmTrack()
    vm.issue("x", 18)
    HP.issue_w(A, vm, h3, range(6), lambda a_: f"w{a_//2}")
    if not duty: HP.issue_w(A, vm, h3, range(6, 9), lambda a_: "w3")
    A(f"s_waitcnt vmcnt({vm.after('x')})")
    R.bar("b1")
    if duty:
        R.bar("b2")
        if os.environ.get("B2SLEEP"): A(f"s_sleep {os.environ['B2SLEEP']}")
        HP.issue_w(A, vm, h3, range(6, 9), lambda a_: "w3")
    for q in range(4):
        A(f"s_waitcnt vmcnt({vm.after(f'w{q}')})")
        R.bar(f"bW{q}")
        if q == 2: HP.init_issue(A)
    HP.init_check(A)
    HP.poll_issue(A, flag_off)
    R.bar("bQ")

def helper_rest(A, R, h3):
    pstamp(A, 1)
    HP.poll(A, flag_off, 24, "0x01010101", "kvp", preissued=True)
    pstamp(A, 2)
    R.bar("bKV")
    if stop_here(A, "p1"): return
    vm = VmTrack()
    A(f"s_mov_b32 s{S_T}, {FW_KEYS}")
    A(f"buffer_load_dwordx4 {vr(HP.F_KEY,4)}, v{HP.VL16}, {srd(SRD_WS)}, s{S_T} offen{HSC}")
    o0, o1 = HP.kv_pieces()
    HP.issue_kv(A, vm, o0, "s0")
    A("s_waitcnt vmcnt(0)")
    R.bar("B0")
    HP.issue_kv(A, vm, o1, "s1")
    HP.select_top2(A)
    A("s_waitcnt vmcnt(0) lgkmcnt(0)")
    R.bar("B1")
    nof = A.newlabel("noffn")
    A(f"s_cmp_lt_u32 s{S_HG}, 3"); A(f"s_cbranch_scc1 {nof}")
    A(f"s_lshr_b32 s{S_T}, s2, 6"); A(f"s_mul_i32 s{S_T}, s{S_T}, 5")
    A(f"s_add_u32 s{S_T}, s{S_T}, s{S_HG}"); A(f"s_sub_u32 s{S_T}, s{S_T}, 3")
    A(f"s_cmp_ge_u32 s{S_T}, 18"); A(f"s_cbranch_scc1 {nof}")
    A(f"s_and_b32 s{S_T2}, s2, 7"); A(f"s_mul_i32 s{S_T2}, s{S_T2}, 18")
    A(f"s_add_u32 s{HP.S_SL}, s{S_T2}, s{S_T}")
    pstamp(A, 3)
    if not os.environ.get("NOFFN"): HP.ffn(A)
    else:
        nf2 = A.newlabel("nof2")
        A(f"s_cmp_lg_u32 s{HP.S_H}, 0"); A(f"s_cbranch_scc1 {nf2}")
        A(f"v_mov_b32 v8, {FW_FFNC}"); A(f"v_mov_b32 v9, 1")
        A("s_mov_b64 exec, 1")
        A(f"buffer_atomic_add v9, v8, {srd(SRD_WS)}, 0 offen sc1")
        A("s_mov_b64 exec, -1")
        A.label(nf2)
    A.label(nof)
    pstamp(A, 4)
    mk_srd(A, SRD_W, S_WO, D * ROWB)
    mk_srd(A, SRD_A, S_WS, S_TOK * ROWB, add=FW_O)
    vm = VmTrack()
    HP.wait_released(A)
    HP.issue_w(A, vm, h3, range(9), lambda a_: "w", wb=WB3)
    HP.routed_update(A)
    A("s_waitcnt vmcnt(0)")
    R.bar("B2"); R.bar("B3"); R.bar("B4"); R.bar("B5")
    def grp_off(A, t):
        A(f"s_lshl_b32 s{S_T}, s{S_TB}, 10"); A(f"s_add_u32 s{S_T}, s{S_T}, {FW_FLAG + FL_GRP}")
        A(f"v_mov_b32 v{t}, s{S_T}")
    pstamp(A, 5)
    HP.poll(A, grp_off, 1, "8", "grp", ge=True)
    pstamp(A, 6)
    R.bar("B6")
    if stop_here(A, "attn"): return
    vm = VmTrack()
    A(f"s_mul_i32 s{S_T3}, s{S_ROW0}, {ROWB}")
    HP.issue_x(A, vm, range(9), not PLAIN, lambda cc: f"x{cc//3}", xb=XB3)
    for q in range(3):
        A(f"s_waitcnt vmcnt({vm.after(f'x{q}')})")
        R.bar(f"bX{q}")
    R.bar("B7")
    pstamp(A, 7)
    if not os.environ.get("DBGSTAMP"): pstamp_flush(A, S_WAVE, S_WS, WS_STAMP, HP.HT)
    A("s_endpgm")

def helper_role(A):
    R = Role(A)
    A(f"s_setprio {os.environ.get('HPRIO', '3')}")
    A(f"s_sub_u32 s{HP.S_H}, s{S_WAVE}, 8")
    A(f"v_and_b32 v{HP.V_LANE}, 63, v0")
    HP.setup_x(A)
    if not XFIRST: HP.setup_w(A)
    A(f"s_mul_i32 s{S_T3}, s{S_ROW0}, {ROWB}")
    vmx = VmTrack()
    HP.issue_x(A, vmx, range(9), False, lambda cc: "x")
    if XFIRST: HP.setup_w(A)
    l3 = A.newlabel("h3")
    A(f"s_cmp_eq_u32 s{HP.S_H}, 3"); A(f"s_cbranch_scc1 {l3}")
    seqs = {}
    for h3 in (False, True):
        if h3: A.label(l3)
        ld = A.newlabel("hduty"); lj = A.newlabel("hj")
        A(f"s_cmp_lt_u32 s{S_HG}, 3"); A(f"s_cbranch_scc1 {ld}")
        R.bars = []; helper_p1(A, R, False, h3); seqs[None] = list(R.bars)
        A(f"s_branch {lj}")
        A.label(ld)
        R.bars = []; helper_p1(A, R, True, h3); seqs["d"] = list(R.bars)
        A.label(lj)
        R.bars = []
        helper_rest(A, R, h3)
    return seqs, R.bars

def gen(name):
    A = Asm()
    end = "L_end"
    A("s_cmp_ge_u32 s2, 256"); A(f"s_cbranch_scc1 {end}")
    pstamp_init(A); pstamp(A, 0)
    load_kernargs(A)
    A(f"v_lshrrev_b32 v1, 6, v0")
    A(f"v_and_b32 v{G.V_LANE}, 63, v0")
    A(f"v_readfirstlane_b32 s{S_WAVE}, v1")
    A(f"s_and_b32 s{S_T}, s2, 7"); A(f"s_lshr_b32 s{S_T2}, s2, 3")
    A(f"s_and_b32 s{S_HG}, s{S_T2}, 7"); A(f"s_lshr_b32 s{S_T2}, s{S_T2}, 3")
    A(f"s_lshl_b32 s{S_T}, s{S_T}, 2"); A(f"s_add_u32 s{S_TB}, s{S_T}, s{S_T2}")
    A(f"s_lshl_b32 s{S_ROW0}, s{S_TB}, 6")
    A("s_waitcnt lgkmcnt(0)")
    mk_srd(A, SRD_A, S_X, S_TOK * ROWB)
    mk_srd(A, SRD_W, S_WQ, D * ROWB)
    mk_srd(A, SRD_WS, S_WS, FW_SIZE)
    mk_srd(A, SRD_KV, S_WS, KV_IMG, add=FW_KV)
    mk_srd(A, SRD_OUT, S_OUT, S_TOK * ROWB)
    mk_srd(A, SRD_DBG, S_DBG, 256)
    lh = A.newlabel("helper")
    A(f"s_cmp_ge_u32 s{S_WAVE}, 8"); A(f"s_cbranch_scc1 {lh}")
    cs, cb = compute_role(A)
    A.label(lh)
    hs, hb = helper_role(A)
    assert cs[None] == hs[None], (cs[None], hs[None])
    for d in "kvg": assert cs[d] == hs["d"], (cs[d], hs["d"])
    assert cb == hb, (cb, hb)
    A.label(end); A("s_endpgm")
    return A, 168, LDS_BYTES, 64 * NWAVES

def build(out):
    n = NAME + "_kernel"
    A, nv, lds, blk = gen(n)
    hdr = open("cdna_kernels/" + NAME + ".s.ref").read().split("; Override launch")[0]
    txt = hdr + f"; @launch grid=(256,1,1) block=({blk},1,1) lds={lds}\n"
    txt += '.amdgcn_target "amdgcn-amd-amdhsa--gfx950"\n'
    rep = []
    body = A.finish(rep)
    if "-v" in sys.argv:
        print(len(rep), "nop insertions")
        for r in rep: print("   ", r)
    txt += kernel_header(n) + body + kernel_desc(n, nv, nsgpr=102)
    open(out, "w").write(txt)
    print("wrote", out, len(txt), "bytes")

if __name__ == "__main__":
    import sys
    build(sys.argv[1])
```

```python
from fcommon import *
from f_gemm import V_LANE, V_I, V_H, GATE, V_T, V_G

S0, S1 = 0, 16
P = 32
OA, OB = 40, 56
QA, QEA = 72, 76
QB, QEB = 80, 84
K, KE = 88, 92
V0, V1 = 96, 100
A_K, A_KE, A_V = 104, 105, 106
T = 110
NEGM = 112
S_QN, S_KN = 78, 79
T_SAFE = 60.0
HALF = 4 * TB_BYTES
BUMP = 8 * TB_BYTES
B1_STEP = 7

def M(d, a, b, c):
    cs = "0" if c is None else vr(c, 16)
    return f"v_mfma_f32_32x32x16_bf16 {vr(d,16)}, {vr(a,4)}, {vr(b,4)}, {cs}"
def M8(d, a, b, c):
    return f"v_mfma_f32_32x32x8bf16_1k {vr(d,16)}, {vr(a,2)}, {vr(b,2)}, {vr(c,16)}"
def E(r): return f"v_exp_f32 v{r}, v{r}"
def C(d, a): return f"v_cvt_pk_bf16_f32 v{d}, v{a}, v{a+1}"

def q_fragments(A):
    t = T
    A(f"s_mul_i32 s{S_T}, s{S_TG}, 36")
    A(f"s_add_u32 s{S_T}, s{S_T}, {QS}")
    A(f"v_mul_u32_u24 v{t}, 144, v{V_I}")
    A(f"v_add_u32 v{t}, s{S_T}, v{t}")
    A(f"v_lshl_add_u32 v{t+1}, v{V_H}, 4, v{t}")
    A(f"v_add_u32 v{t+2}, {32*144}, v{t+1}")
    A(f"v_add_u32 v{t}, 32, v{t}")
    A(f"v_mov_b32 v{t+3}, {OOR}")
    A(f"v_cmp_eq_u32 vcc, 0, v{V_H}")
    A(f"v_cndmask_b32 v{t}, v{t+3}, v{t}, vcc")
    for (Q, QE, ad, off) in ((QA, QEA, t + 1, 0), (QB, QEB, t + 2, 32 * 144)):
        A(f"ds_read2_b32 {vr(Q,2)}, v{ad} offset0:0 offset1:1")
        A(f"ds_read2_b32 {vr(Q+2,2)}, v{ad} offset0:2 offset1:3")
        A(f"ds_read_b32 v{QE}, v{t} offset:{off}")
    A("s_waitcnt lgkmcnt(0)")
    for QE in (QEA, QEB):
        A(f"v_mov_b32 v{QE+1}, 0"); A(f"v_mov_b32 v{QE+2}, 0"); A(f"v_mov_b32 v{QE+3}, v{QE}")

def lds_addresses(A):
    A(f"s_mul_i32 s{S_T}, s{S_FH}, {HALF}")
    A(f"v_lshlrev_b32 v{A_K}, 4, v{V_LANE}")
    A(f"v_add_u32 v{A_K}, s{S_T}, v{A_K}")
    A(f"s_add_u32 s{S_T2}, s{S_T}, {TB_KEXT}")
    A(f"v_lshlrev_b32 v{A_KE}, 3, v{V_I}")
    A(f"v_add_u32 v{A_KE}, s{S_T2}, v{A_KE}")
    A(f"v_mul_u32_u24 v{T+2}, {VROWS}, v{V_H}")
    A(f"v_add_u32 v{T+1}, v{V_I}, v{T+2}")
    A(f"s_add_u32 s{S_T2}, s{S_T}, {TB_V}")
    A(f"v_lshlrev_b32 v{A_V}, 4, v{T+1}")
    A(f"v_add_u32 v{A_V}, s{S_T2}, v{A_V}")
    A(f"v_mov_b32 v{T+2}, 3"); A(f"v_mov_b32 v{T+3}, 4")
    A(f"v_cmp_lt_u32 vcc, 19, v{V_I}")
    A(f"v_cndmask_b32 v{T+2}, v{T+2}, v{T+3}, vcc")
    A(f"v_mov_b32 v{T+3}, 3")
    A(f"v_cmp_lt_u32 vcc, 27, v{V_I}")
    A(f"v_cndmask_b32 v{T+2}, v{T+2}, v{T+3}, vcc")
    A(f"v_mul_u32_u24 v{T+3}, {VROWS}, v{V_H}")
    A(f"v_add_u32 v{T+2}, v{T+2}, v{T+3}")
    A(f"v_lshlrev_b32 v{T+2}, 4, v{T+2}")
    A(f"v_add_u32 v{T+2}, {OOR}, v{T+2}")
    A(f"v_cmp_lt_u32 vcc, 18, v{V_I}")
    A(f"v_cndmask_b32 v{A_V}, v{A_V}, v{T+2}, vcc")
    A(f"v_mov_b32 v{T+2}, {OOR}")
    A(f"v_cmp_eq_u32 vcc, 1, v{V_H}")
    A(f"v_cndmask_b32 v{A_KE}, v{A_KE}, v{T+2}, vcc")

def q_norm(A):
    for k_, (Q, QE) in enumerate(((QA, QEA), (QB, QEB))):
        n = T + 8 + k_
        A(f"v_dot2_f32_bf16 v{n}, v{Q}, v{Q}, 0")
        for r in range(1, 4): A(f"v_dot2_f32_bf16 v{n}, v{Q+r}, v{Q+r}, v{n}")
        A(f"v_dot2_f32_bf16 v{n}, v{QE}, v{QE}, v{n}")
    A("s_nop 2")
    for k_ in range(2):
        n = T + 8 + k_
        A(f"v_mov_b32 v{T+10}, v{n}")
        A(f"v_permlane32_swap_b32 v{n}, v{T+10}")
        A(f"v_add_f32 v{n}, v{n}, v{T+10}")
    A(f"v_max_f32 v{T+8}, v{T+8}, v{T+9}")
    for sh in (1, 2, 4, 8):
        A(f"v_max_f32_dpp v{T+8}, v{T+8}, v{T+8} row_ror:{sh} row_mask:0xf bank_mask:0xf")
    A(f"v_readlane_b32 s{S_QN}, v{T+8}, 0")
    A(f"v_readlane_b32 s{S_T}, v{T+8}, 16")
    A(f"s_max_u32 s{S_QN}, s{S_QN}, s{S_T}")

def range_check(A, fallback):
    A(f"v_mov_b32 v{T}, {L_KN}")
    A(f"ds_read_b32 v{T+1}, v{T}")
    A(f"v_mov_b32 v{T+2}, {f32(T_SAFE*T_SAFE)}")
    A("s_waitcnt lgkmcnt(0)")
    A(f"v_mul_f32 v{T+1}, s{S_QN}, v{T+1}")
    A(f"v_cmp_le_f32 vcc, v{T+1}, v{T+2}")
    A("s_nop 4")
    A(f"s_cbranch_vccz {fallback}")

class Streams:
    def __init__(self): self.seg = {}
    def off(self, reg, j, L):
        while self.seg.get(reg, 0) < (j >> 3):
            L.append(f"v_add_u32 v{reg}, {BUMP}, v{reg}"); self.seg[reg] = self.seg.get(reg, 0) + 1
        return j & 7
    def K(self, j):
        L = []; jj = self.off(A_K, j, L)
        return L + [f"ds_read_b128 {vr(K,4)}, v{A_K} offset:{(jj>>1)*TB_BYTES + (jj&1)*1024}"]
    def KE(self, j):
        L = []; jj = self.off(A_KE, j, L)
        return L + [f"ds_read_b64 {vr(KE,2)}, v{A_KE} offset:{(jj>>1)*TB_BYTES}"]
    def V(self, reg, j, m):
        L = []; jj = self.off(A_V, j, L)
        return L + [f"ds_read_b128 {vr(reg,4)}, v{A_V} offset:{(jj>>1)*TB_BYTES + (jj&1)*V_TILE + m*(V_TILE//2)}"]

EXPT = os.environ.get("EXPT", "")
ALIGN8 = os.environ.get("ALIGN8", "")
WAITPOS = os.environ.get("WAITPOS", "") == "1"
def sub_step(A, Scur, Snxt, Qn, QEn, e, Oprev, Ocur, first_prev, first_cur, do_qk, wait_pre, loads, wait_pv0=None, wait_tail=None):
    if wait_pre is not None: A(f"s_waitcnt lgkmcnt({wait_pre})")
    if do_qk: A(M(Snxt, K, Qn, None))
    for x in loads.get(0, []): A(x)
    for r in range(0, 4): A(E(Scur + r))
    A(C(P + 0, Scur + 0)); A(C(P + 1, Scur + 2))
    if not first_prev: A(M(Oprev, V1, P + 4, Oprev))
    for x in loads.get(1, []): A(x)
    for r in range(4, 8): A(E(Scur + r))
    A(C(P + 2, Scur + 4)); A(C(P + 3, Scur + 6))
    if do_qk: A(M8(Snxt, KE, QEn + 2 * e, Snxt))
    for x in loads.get(2, []): A(x)
    for r in range(8, 12): A(E(Scur + r))
    if wait_pv0 is not None: A(f"s_waitcnt lgkmcnt({wait_pv0})")
    A(M(Ocur, V0, P, None if first_cur else Ocur))
    for x in loads.get(3, []): A(x)
    A(C(P + 4, Scur + 8)); A(C(P + 5, Scur + 10))
    for r in range(12, 16):
        A(E(Scur + r))
        if r == 13 and wait_tail is not None: A(f"s_waitcnt lgkmcnt({wait_tail})")
    A(C(P + 6, Scur + 12)); A(C(P + 7, Scur + 14))

def gate_address(A):
    t = T
    A(f"s_lshl_b32 s{S_T}, s{S_TG}, 4"); A(f"s_add_u32 s{S_T}, s{S_T}, s{S_ROW0}")
    A(f"v_add_u32 v{GATE}, s{S_T}, v{V_T}")
    A(f"v_lshlrev_b32 v{GATE}, 2, v{GATE}")
    A(f"v_add_u32 v{GATE}, {FW_G}, v{GATE}")

def gate_load(A):
    A(f"buffer_load_dword v{GATE}, v{GATE}, {srd(SRD_WS)}, 0 offen{HSC}")

def release(A, fh):
    skip = None
    if fh is not None:
        skip = A.newlabel("norel")
        A(f"s_cmp_lg_u32 s{S_FH}, {fh}"); A(f"s_cbranch_scc1 {skip}")
    A(f"v_mov_b32 v{T}, {L_CNT+12}"); A(f"v_mov_b32 v{T+1}, 1")
    A(f"ds_add_u32 v{T}, v{T+1}")
    if skip: A.label(skip)

def isize(t):
    mn = t.split()[0]
    if t.endswith(":") or t.startswith(";"): return 0
    if mn.startswith("v_mfma") or mn.startswith("ds_") or mn.startswith("v_cvt_pk") or mn.endswith("_e64"): return 8
    if mn in ("v_exp_f32", "s_waitcnt", "s_barrier", "s_nop", "s_cmp_lg_u32", "s_cbranch_scc1", "s_memrealtime") or mn.startswith("s_cbranch"):
        return 8 if mn == "s_memrealtime" else 4
    if mn in ("v_add_u32", "v_mov_b32"):
        ops = t.split(",")
        lit = ops[1].strip()
        if lit.startswith("v") or lit in ("0", "1"): return 4
        return 8
    raise ValueError(t)

def align8(A, start):
    phase = 0; last4 = None
    i = start
    while i < len(A.out):
        t = A.out[i]; n = isize(t)
        if n == 8 and phase == 4:
            if last4 is not None:
                A.out[last4] = A.out[last4].replace("v_exp_f32 ", "v_exp_f32_e64 "); phase = 0
        if n == 4:
            phase ^= 4
            if t.startswith("v_exp_f32 "): last4 = i
        elif n == 8 and phase == 0:
            last4 = None
        i += 1

def fast_path(A, R, fallback, NK=32):
    st = Streams()
    for x in st.K(0) + st.KE(0) + st.V(V0, 0, 0): A(x)
    A("s_waitcnt lgkmcnt(1)")
    A(M(S0, K, QA, None))
    A(M8(S0, KE, QEA, S0))
    A("s_nop 7"); A("s_nop 3")
    if ALIGN8:
        A(".p2align 6")
        if ALIGN8 == "4": A("s_nop 0")
    start = len(A.out)
    for j in range(NK):
        if j == B1_STEP:
            R.bar("B1")
            range_check(A, fallback)
            gate_load(A)
        if j in (11, 18): pstamp(A, {11: 4, 18: 5}[j])
        if j == 17: release(A, 1)
        if j == 21: release(A, 0)
        e = j % 2
        last = j == NK - 1
        ld = {0: [] if last else st.K(j + 1), 1: st.V(V1, j, 1)}
        if e == 1 and not last: ld[2] = st.KE(j + 1)
        if WAITPOS:
            nds = sum(1 for v_ in (0, 1, 2) for x in ld.get(v_, []) if x.startswith("ds_"))
            sub_step(A, S0, S1, QB, QEB, e, OB, OA, j == 0, j == 0, True, None, ld, wait_pv0=nds, wait_tail=0)
        else:
            sub_step(A, S0, S1, QB, QEB, e, OB, OA, j == 0, j == 0, True, 0 if j else None, ld)
        ld = {3: [] if last else st.V(V0, j + 1, 0)}
        sub_step(A, S1, S0, QA, QEA, (j + 1) % 2, OA, OB, False, j == 0, not last, None if WAITPOS else 0, ld)
    A(M(OB, V1, P + 4, OB))
    if ALIGN8: align8(A, start)

def fallback_path(A, R):
    gate_load(A)
    A(f"v_mov_b32 v{KE+1}, 0")
    for (Q, QE, O, tag) in ((QA, QEA, OA, "a"), (QB, QEB, OB, "b")):
        mx = T
        A(f"v_mov_b32 v{mx}, 0xff800000")
        A(f"s_mov_b32 s{S_T}, 0")
        l1 = A.newlabel("fb1" + tag)
        A.label(l1)
        A(f"s_lshr_b32 s{S_T2}, s{S_T}, 1"); A(f"s_mul_i32 s{S_T2}, s{S_T2}, {TB_BYTES}")
        A(f"s_and_b32 s{S_T3}, s{S_T}, 1")
        A(f"v_lshlrev_b32 v{T+1}, 4, v{V_LANE}")
        A(f"v_add_u32 v{T+1}, s{S_T2}, v{T+1}")
        A(f"s_lshl_b32 s80, s{S_T3}, 10")
        A(f"v_add_u32 v{T+1}, s80, v{T+1}")
        A(f"v_lshlrev_b32 v{P}, 3, v{V_I}")
        A(f"s_lshl_b32 s80, s{S_T3}, 2"); A(f"s_add_u32 s80, s80, s{S_T2}"); A(f"s_add_u32 s80, s80, {TB_KEXT}")
        A(f"v_add_u32 v{P}, s80, v{P}")
        A(f"ds_read_b128 {vr(K,4)}, v{T+1}")
        A(f"ds_read_b32 v{KE}, v{P}")
        A("s_waitcnt lgkmcnt(0)")
        A(M(S0, K, Q, None))
        A(M8(S0, KE, QE, S0))
        A("s_nop 7"); A("s_nop 7")
        for r in range(0, 16, 2): A(f"v_max3_f32 v{mx}, v{S0+r}, v{S0+r+1}, v{mx}")
        A(f"s_add_u32 s{S_T}, s{S_T}, 1")
        A(f"s_cmp_lt_u32 s{S_T}, 64")
        A(f"s_cbranch_scc1 {l1}")
        A(f"v_mov_b32 v{T+1}, v{mx}")
        A(f"v_permlane32_swap_b32 v{mx}, v{T+1}")
        A(f"v_max_f32 v{mx}, v{mx}, v{T+1}")
        A(f"v_sub_f32 v{mx}, 0, v{mx}")
        for r in range(16): A(f"v_mov_b32 v{NEGM+r}, v{mx}")
        A(f"s_mov_b32 s{S_T}, 0")
        for r in range(16): A(f"v_mov_b32 v{O+r}, 0")
        l2 = A.newlabel("fb2" + tag)
        A.label(l2)
        A(f"s_lshr_b32 s{S_T2}, s{S_T}, 3"); A(f"s_lshl_b32 s{S_T2}, s{S_T2}, 3")
        A(f"s_lshr_b32 s{S_T3}, s{S_T}, 1"); A(f"s_and_b32 s{S_T3}, s{S_T3}, 3")
        A(f"s_add_u32 s{S_T2}, s{S_T2}, s{S_T3}"); A(f"s_mul_i32 s{S_T2}, s{S_T2}, {TB_BYTES}")
        A(f"s_and_b32 s{S_T3}, s{S_T}, 1")
        A(f"s_lshl_b32 s80, s{S_T3}, 10"); A(f"s_add_u32 s80, s80, s{S_T2}")
        A(f"v_add_u32 v{S1}, s80, v{A_K}")
        A(f"s_lshl_b32 s80, s{S_T3}, 2"); A(f"s_add_u32 s80, s80, s{S_T2}")
        A(f"v_add_u32 v{S1+1}, s80, v{A_KE}")
        A(f"s_mul_i32 s80, s{S_T3}, {V_TILE}"); A(f"s_add_u32 s80, s80, s{S_T2}")
        A(f"v_add_u32 v{S1+2}, s80, v{A_V}")
        A(f"ds_read_b128 {vr(K,4)}, v{S1}")
        A(f"ds_read_b32 v{KE}, v{S1+1}")
        A(f"ds_read_b128 {vr(V0,4)}, v{S1+2}")
        A(f"ds_read_b128 {vr(V1,4)}, v{S1+2} offset:{V_TILE//2}")
        A("s_waitcnt lgkmcnt(0)")
        A(M(S0, K, Q, NEGM))
        A(M8(S0, KE, QE, S0))
        A("s_nop 7"); A("s_nop 7")
        for r in range(16): A(E(S0 + r))
        A("s_nop 0")
        for r in range(8): A(C(P + r, S0 + 2 * r))
        A("s_nop 1")
        A(M(O, V0, P, O)); A(M(O, V1, P + 4, O))
        A(f"s_add_u32 s{S_T}, s{S_T}, 1")
        A(f"s_cmp_lt_u32 s{S_T}, 32")
        A(f"s_cbranch_scc1 {l2}")
        A("s_nop 7"); A("s_nop 7")
    release(A, None)

def finish(A, R):
    A("s_nop 7"); A("s_nop 3")
    pstamp(A, 6)
    R.bar("B2")
    pstamp(A, 20, "t")
    A(f"v_mov_b32 v{T+4}, {L_SAME}")
    A(f"ds_read_b32 v{T+5}, v{T+4}")
    lsw = A.newlabel("sw"); ld = A.newlabel("swd")
    A(f"s_lshl_b32 s{S_T}, s{S_WAVE}, 12")
    A(f"v_lshlrev_b32 v{T}, 4, v{V_LANE}")
    A(f"v_add_u32 v{T}, {PSLOT}, v{T}")
    A(f"v_add_u32 v{T+1}, s{S_T}, v{T}")
    A(f"s_xor_b32 s{S_T}, s{S_WAVE}, 4")
    A(f"s_lshl_b32 s{S_T}, s{S_T}, 12")
    A(f"v_add_u32 v{T+2}, s{S_T}, v{T}")
    A(f"s_cmp_eq_u32 s{S_FH}, 0"); A(f"s_cbranch_scc0 {lsw}")
    for q in range(3): A(f"ds_write_b128 v{T+1}, {vr(OB+4*q,4)} offset:{1024*q}")
    A(f"s_branch {ld}")
    A.label(lsw)
    for q in range(3): A(f"ds_write_b128 v{T+1}, {vr(OA+4*q,4)} offset:{1024*q}")
    A("s_nop 1")
    for r in range(12): A(f"v_mov_b32 v{OA+r}, v{OB+r}")
    A.label(ld)
    A("s_waitcnt lgkmcnt(0)")
    A(f"v_readfirstlane_b32 s87, v{T+5}")
    R.bar("B3")
    pstamp(A, 21, "t")
    for q in range(3): A(f"ds_read_b128 {vr(S0+4*q,4)}, v{T+2} offset:{1024*q}")
    A("s_waitcnt lgkmcnt(0)")
    for r in range(11): A(f"v_add_f32 v{OA+r}, v{OA+r}, v{S0+r}")
    A(f"v_mov_b32 v{T}, v{OA+10}")
    A(f"v_permlane32_swap_b32 v{OA+10}, v{T}")
    A(f"v_rcp_f32 v{T}, v{OA+10}")
    A("s_nop 0")
    for r in range(10): A(f"v_mul_f32 v{OA+r}, v{OA+r}, v{T}")
    for r in range(5): A(C(P + r, OA + 2 * r))
    A(f"s_lshl_b32 s{S_T}, s{S_FH}, 5")
    A(f"v_add_u32 v{T}, s{S_T}, v{V_I}")
    A(f"v_mul_u32_u24 v{T}, 144, v{T}")
    A(f"s_mul_i32 s{S_T}, s{S_TG}, 36"); A(f"s_add_u32 s{S_T}, s{S_T}, {OSTG}")
    A(f"v_add_u32 v{T}, s{S_T}, v{T}")
    A(f"v_lshl_add_u32 v{T+1}, v{V_H}, 4, v{T}")
    A(f"ds_write2_b32 v{T+1}, v{P}, v{P+1} offset0:0 offset1:1")
    A(f"ds_write2_b32 v{T+1}, v{P+2}, v{P+3} offset0:2 offset1:3")
    A(f"v_cmp_eq_u32 vcc, 0, v{V_H}")
    A(f"s_and_saveexec_b64 s[{S_EX}:{S_EX+1}], vcc")
    A(f"ds_write_b32 v{T}, v{P+4} offset:32")
    A(f"s_mov_b64 exec, s[{S_EX}:{S_EX+1}]")
    A("s_waitcnt lgkmcnt(0)")
    R.bar("B4")
    pstamp(A, 22, "t")

def store_rows(A, srd_i, sbase_fn, sc1):
    t = T
    for u8 in (0, 1):
        skip = None
        if u8:
            skip = A.newlabel("st8")
            A(f"s_cmp_lg_u32 s{S_WAVE}, 0"); A(f"s_cbranch_scc1 {skip}")
            A(f"v_add_u32 v{t}, 512, v{V_LANE}")
        else:
            A(f"s_lshl_b32 s{S_T}, s{S_WAVE}, 6")
            A(f"v_add_u32 v{t}, s{S_T}, v{V_LANE}")
        A(f"v_lshlrev_b32 v{t+1}, 4, v{t}")
        A(f"v_add_u32 v{t+1}, {OSTG}, v{t+1}")
        d = S0 + 4 * u8
        A(f"ds_read_b128 {vr(d,4)}, v{t+1}")
        A(f"v_mul_u32_u24 v{t+2}, 7282, v{t}")
        A(f"v_lshrrev_b32 v{t+2}, 16, v{t+2}")
        A(f"v_mul_u32_u24 v{t+3}, 9, v{t+2}")
        A(f"v_sub_u32 v{t+3}, v{t}, v{t+3}")
        A(f"v_mul_u32_u24 v{t+2}, {ROWB}, v{t+2}")
        A(f"v_lshl_add_u32 v{t+2}, v{t+3}, 4, v{t+2}")
        sbase_fn(A)
        A("s_waitcnt lgkmcnt(0)")
        A(f"buffer_store_dwordx4 {vr(d,4)}, v{t+2}, {srd(srd_i)}, s{S_T} offen" + (" sc1" if sc1 is True else (" " + sc1 if sc1 else "")))
        if skip: A.label(skip)
```

```python
from fcommon import *

V_LANE = 0
VX0, VX1, VW, VL16 = 1, 2, 3, 6
PR0, PR1 = 144, 145
HT = 8
DUAL = os.environ.get('DUAL', '0') == '1'
PSLEEP = int(os.environ.get('PSLEEP', '1'))
STAGGER = int(os.environ.get('STAGGER', '8'))
S_H = 39

def setup_x(A):
    t = HT
    A(f"v_lshrrev_b32 v{t}, 3, v{V_LANE}")
    A(f"v_mul_u32_u24 v{t}, {ROWB}, v{t}")
    A(f"v_and_b32 v{t+1}, 7, v{V_LANE}")
    A(f"v_lshrrev_b32 v{t+2}, 4, v{V_LANE}")
    A(f"v_xor_b32 v{t+1}, v{t+1}, v{t+2}")
    A(f"v_lshl_add_u32 v{VX0}, v{t+1}, 4, v{t}")
    A(f"v_xor_b32 v{VX1}, 64, v{VX0}")

def setup_w(A):
    t = HT
    for k in range(3):
        if k < 2:
            A(f"s_lshl_b32 s{S_T}, s{S_H}, 7"); A(f"s_add_u32 s{S_T}, s{S_T}, {64*k}")
            A(f"v_add_u32 v{t}, s{S_T}, v{V_LANE}")
        else:
            A(f"v_add_u32 v{t}, 512, v{V_LANE}")
        A(f"v_mul_u32_u24 v{t+1}, 7282, v{t}")
        A(f"v_lshrrev_b32 v{t+1}, 16, v{t+1}")
        A(f"v_mul_u32_u24 v{t+2}, 9, v{t+1}")
        A(f"v_sub_u32 v{t+2}, v{t}, v{t+2}")
        A(f"v_and_b32 v{t+3}, 0x38, v{t+1}")
        A(f"v_and_b32 v{t+4}, 1, v{t+1}")
        A(f"v_lshl_add_u32 v{t+3}, v{t+4}, 2, v{t+3}")
        A(f"v_bfe_u32 v{t+4}, v{t+1}, 1, 2")
        A(f"v_add_u32 v{t+3}, v{t+3}, v{t+4}")
        A(f"v_mul_u32_u24 v{t+3}, {ROWB}, v{t+3}")
        A(f"v_lshl_add_u32 v{VW+k}, v{t+2}, 4, v{t+3}")
    A(f"v_lshlrev_b32 v{VL16}, 4, v{V_LANE}")

def dma(A, vreg, srd_i, ssoff, m0_expr, sc1=False):
    A(m0_expr)
    A("s_nop 0")
    A(f"buffer_load_dwordx4 v{vreg}, {srd(srd_i)}, s{ssoff} offen{' sc1' if sc1 else ''} lds")

def issue_x(A, vm, chunks, sc1, tagf, xb=XB):
    for cc in chunks:
        for o in range(2):
            A(f"s_mul_i32 s{S_T}, s{S_H}, {16*ROWB}")
            A(f"s_add_u32 s{S_T}, s{S_T}, s{S_T3}")
            A(f"s_add_u32 s{S_T}, s{S_T}, {o*8*ROWB + cc*128}")
            A(f"s_lshl_b32 s{S_T2}, s{S_H}, 11")
            dma(A, VX0 + o, SRD_A, S_T, f"s_add_u32 m0, s{S_T2}, {xb + cc*8192 + o*1024}", sc1)
            vm.issue(tagf(cc))

def issue_w(A, vm, h3, reps, tagf, wb=WB):
    for a_ in reps:
        A(f"s_mul_i32 s{S_T}, s{S_HG}, 144")
        A(f"s_add_u32 s{S_T}, s{S_T}, {a_*64*ROWB}")
        for k in range(3 if h3 else 2):
            if k < 2:
                A(f"s_lshl_b32 s{S_T2}, s{S_H}, 11")
                dma(A, VW + k, SRD_W, S_T, f"s_add_u32 m0, s{S_T2}, {wb + (9*a_ + k)*1024}")
            else:
                dma(A, VW + 2, SRD_W, S_T, f"s_mov_b32 m0, {wb + (9*a_ + 8)*1024}")
            vm.issue(tagf(a_))

PRI = 146
def init_issue(A):
    skip = A.newlabel("iissue")
    A(f"v_mov_b32 v{PRI+1}, {DBG_INIT}")
    A(f"s_cmp_lg_u32 s{S_H}, 0"); A(f"s_cbranch_scc1 {skip}")
    A(f"buffer_load_dword v{PRI}, v{PRI+1}, {srd(SRD_DBG)}, 0 offen")
    A.label(skip)

def init_check(A):
    skip = A.newlabel("icheck"); lp = A.newlabel("icheckp")
    A(f"s_cmp_lg_u32 s{S_H}, 0"); A(f"s_cbranch_scc1 {skip}")
    A("s_waitcnt vmcnt(0)")
    A(f"s_mov_b32 s80, 0")
    A.label(lp)
    A(f"v_readfirstlane_b32 s81, v{PRI}")
    A(f"s_cmp_ge_u32 s81, 32"); A(f"s_cbranch_scc1 {skip}")
    A("s_sleep 8")
    A(f"buffer_load_dword v{PRI}, v{PRI+1}, {srd(SRD_DBG)}, 0 offen sc1")
    A("s_waitcnt vmcnt(0)")
    A(f"s_add_u32 s80, s80, 1")
    A(f"s_cmp_lt_u32 s80, 0x40000"); A(f"s_cbranch_scc1 {lp}")
    A.label(skip)

def poll_issue(A, voff):
    t = HT
    skip = A.newlabel("pissue")
    A(f"s_cmp_lg_u32 s{S_H}, 0"); A(f"s_cbranch_scc1 {skip}")
    voff(A, t)
    A(f"buffer_load_dword v{PR0}, v{t}, {srd(SRD_WS)}, 0 offen sc1")
    A.label(skip)

def poll(A, voff, nlanes, cmpval, name, ge=False, preissued=False):
    if DUAL: return poll2(A, voff, nlanes, cmpval, name, ge, preissued)
    t = HT
    skip = A.newlabel(name + "skip"); lp = A.newlabel(name + "lp"); done = A.newlabel(name + "ok")
    chk = A.newlabel(name + "chk")
    A(f"s_cmp_lg_u32 s{S_H}, 0"); A(f"s_cbranch_scc1 {skip}")
    A(f"s_mov_b32 s80, 0")
    if preissued: A(f"s_branch {chk}")
    else: voff(A, t)
    A.label(lp)
    A(f"buffer_load_dword v{PR0}, v{t}, {srd(SRD_WS)}, 0 offen sc1")
    A.label(chk)
    A("s_waitcnt vmcnt(0)")
    A(f"v_mov_b32 v{t+2}, {cmpval}")
    A(f"v_cmp_{'le' if ge else 'eq'}_u32 vcc, v{t+2}, v{PR0}")
    A("s_nop 1")
    A(f"s_not_b64 s[82:83], vcc")
    A(f"s_cmp_eq_u64 s[82:83], 0")
    A(f"s_cbranch_scc1 {done}")
    A(f"s_sleep {PSLEEP}")
    A(f"s_add_u32 s80, s80, 1")
    A(f"s_cmp_lt_u32 s80, 0x80000"); A(f"s_cbranch_scc1 {lp}")
    A.label(done)
    A.label(skip)

def poll2(A, voff, nlanes, cmpval, name, ge=False, preissued=False):
    t = HT
    skip = A.newlabel(name + "skip"); lp = A.newlabel(name + "lp"); done = A.newlabel(name + "ok")
    A(f"s_cmp_lg_u32 s{S_H}, 0"); A(f"s_cbranch_scc1 {skip}")
    A(f"s_mov_b32 s80, 0")
    ld = lambda r: A(f"buffer_load_dword v{r}, v{t}, {srd(SRD_WS)}, 0 offen sc1")
    def check(r):
        A(f"v_cmp_{'le' if ge else 'eq'}_u32 vcc, v{t+2}, v{r}")
        A("s_nop 1")
        A(f"s_not_b64 s[82:83], vcc")
        A(f"s_cmp_eq_u64 s[82:83], 0")
        A(f"s_cbranch_scc1 {done}")
    if not preissued:
        voff(A, t)
        ld(PR0)
    A(f"v_mov_b32 v{t+2}, {cmpval}")
    if preissued:
        A("s_waitcnt vmcnt(0)"); check(PR0)
        ld(PR0)
    if STAGGER: A(f"s_sleep {STAGGER}")
    A.label(lp)
    ld(PR1)
    A("s_waitcnt vmcnt(1)"); check(PR0)
    ld(PR0)
    A("s_waitcnt vmcnt(1)"); check(PR1)
    A(f"s_add_u32 s80, s80, 1")
    A(f"s_cmp_lt_u32 s80, 0x40000"); A(f"s_cbranch_scc1 {lp}")
    A.label(done)
    A.label(skip)

KV_ST0 = 37
def issue_kv(A, first, last):
    A(f"s_lshl_b32 s{S_T2}, s{S_H}, 10")
    for u in range(first, last, 4):
        n = min(4, last - u)
        skip = None
        if n < 4:
            skip = A.newlabel("kvt")
            A(f"s_cmp_ge_u32 s{S_H}, {n}"); A(f"s_cbranch_scc1 {skip}")
        A(f"s_add_u32 s{S_T}, s{S_T2}, {u*1024}")
        dma(A, VL16, SRD_KV, S_T, f"s_mov_b32 m0, s{S_T}", sc1=not PLAIN)
        if skip: A.label(skip)

def key_norm(A):
    t = HT
    skip = A.newlabel("nokn")
    A(f"s_cmp_lg_u32 s{S_H}, 1"); A(f"s_cbranch_scc1 {skip}")
    A(f"v_and_b32 v{t}, 31, v{V_LANE}"); A(f"v_lshlrev_b32 v{t}, 2, v{t}")
    A(f"v_add_u32 v{t}, {FW_KN}, v{t}")
    A(f"buffer_load_dword v{t+1}, v{t}, {srd(SRD_WS)}, 0 offen{HSC}")
    A("s_waitcnt vmcnt(0)")
    for sh in (1, 2, 4, 8):
        A(f"v_max_f32_dpp v{t+1}, v{t+1}, v{t+1} row_ror:{sh} row_mask:0xf bank_mask:0xf")
    A(f"v_readlane_b32 s80, v{t+1}, 0"); A(f"v_readlane_b32 s81, v{t+1}, 16")
    A(f"s_max_u32 s80, s80, s81")
    A(f"v_mov_b32 v{t}, {L_KN}"); A(f"v_mov_b32 v{t+1}, s80")
    A(f"ds_write_b32 v{t}, v{t+1}")
    A.label(skip)

F_W = 24
F_X = 96
F_KEY = 148
F_A = 152
F_ACC = 160
S_M, S_KH, S_SL = 84, 85, 86

def lds_sync(A, idx, name, sleep=1):
    t = HT + 12
    A("s_waitcnt lgkmcnt(0)")
    A(f"v_mov_b32 v{t}, {L_CNT + 4*idx}")
    A(f"v_mov_b32 v{t+1}, 1")
    A(f"s_mov_b64 s[{S_EX}:{S_EX+1}], exec")
    A("s_mov_b64 exec, 1")
    A(f"ds_add_u32 v{t}, v{t+1}")
    A(f"s_mov_b64 exec, s[{S_EX}:{S_EX+1}]")
    lp = A.newlabel(name); done = A.newlabel(name + "d")
    A(f"s_mov_b32 s80, 0")
    A.label(lp)
    A(f"ds_read_b32 v{t+1}, v{t}")
    A("s_waitcnt lgkmcnt(0)")
    A(f"v_readfirstlane_b32 s81, v{t+1}")
    A(f"s_cmp_ge_u32 s81, 4"); A(f"s_cbranch_scc1 {done}")
    A(f"s_sleep {sleep}")
    A(f"s_add_u32 s80, s80, 1")
    A(f"s_cmp_lt_u32 s80, 0x100000"); A(f"s_cbranch_scc1 {lp}")
    A.label(done)

def wait_released(A):
    t = HT + 12
    lp = A.newlabel("rel"); done = A.newlabel("reld")
    A(f"v_mov_b32 v{t}, {L_CNT + 12}")
    A(f"s_mov_b32 s80, 0")
    A.label(lp)
    A(f"ds_read_b32 v{t+1}, v{t}")
    A("s_waitcnt lgkmcnt(0)")
    A(f"v_readfirstlane_b32 s81, v{t+1}")
    A(f"s_cmp_ge_u32 s81, 512"); A(f"s_cbranch_scc1 {done}")
    A("s_sleep 16")
    A(f"s_add_u32 s80, s80, 1")
    A(f"s_cmp_lt_u32 s80, 0x400000"); A(f"s_cbranch_scc1 {lp}")
    A.label(done)

def select_top2(A):
    t = HT
    m1, m2 = t, t + 1
    A(f"v_max_u32 v{m1}, v{F_KEY}, v{F_KEY+1}")
    A(f"v_min_u32 v{m2}, v{F_KEY}, v{F_KEY+1}")
    for i in range(2, 4):
        A(f"v_med3_u32 v{m2}, v{m1}, v{m2}, v{F_KEY+i}")
        A(f"v_max_u32 v{m1}, v{m1}, v{F_KEY+i}")
    def wave_max(reg, sdst):
        A(f"v_mov_b32 v{t+2}, v{reg}")
        for sh in (1, 2, 4, 8):
            A(f"v_max_u32_dpp v{t+2}, v{t+2}, v{t+2} row_ror:{sh} row_mask:0xf bank_mask:0xf")
        A(f"v_readlane_b32 s{sdst}, v{t+2}, 0")
        for ln in (16, 32, 48):
            A(f"v_readlane_b32 s{S_T}, v{t+2}, {ln}")
            A(f"s_max_u32 s{sdst}, s{sdst}, s{S_T}")
    wave_max(m1, 80)
    A(f"v_cmp_eq_u32 vcc, s80, v{m1}")
    A(f"v_cndmask_b32 v{m1}, v{m1}, v{m2}, vcc")
    wave_max(m1, 81)
    for j in range(2):
        A(f"s_and_b32 s{S_T}, s{80+j}, 0xffff")
        A(f"s_sub_u32 s{S_IDX0+j}, 0xffff, s{S_T}")
        A(f"s_min_u32 s{S_IDX0+j}, s{S_IDX0+j}, {S_TOK-1}")
    nosel = A.newlabel("nosel")
    A(f"s_cmp_lg_u32 s{S_H}, 0"); A(f"s_cbranch_scc1 {nosel}")
    A(f"v_mov_b32 v{t}, s80"); A(f"v_mov_b32 v{t+1}, s81")
    A(f"v_cmp_eq_u32 vcc, 1, v{V_LANE}")
    A(f"v_cndmask_b32 v{t}, v{t}, v{t+1}, vcc")
    A(f"v_lshrrev_b32 v{t+1}, 16, v{t}")
    A(f"v_xor_b32 v{t+2}, 0x8000, v{t+1}")
    A(f"v_xor_b32 v{t+3}, 0xffff, v{t+1}")
    A(f"v_cmp_lt_u32 vcc, 0x7fff, v{t+1}")
    A(f"v_cndmask_b32 v{t+1}, v{t+3}, v{t+2}, vcc")
    A(f"v_lshlrev_b32 v{t+1}, 16, v{t+1}")
    A(f"v_mul_f32 v{t+1}, {f32(-LOG2E)}, v{t+1}")
    A(f"v_exp_f32 v{t+1}, v{t+1}")
    A(f"v_add_f32 v{t+1}, 1.0, v{t+1}")
    A(f"v_rcp_f32 v{t+1}, v{t+1}")
    A(f"v_cvt_pk_bf16_f32 v{t+1}, v{t+1}, v{t+1}")
    A(f"v_and_b32 v{t+1}, 0xffff0000, v{t+1}")
    A(f"v_and_b32 v{t}, 0xffff, v{t}")
    A(f"v_sub_u32 v{t}, 0xffff, v{t}")
    A(f"v_min_u32 v{t}, {S_TOK-1}, v{t}")
    A(f"v_lshlrev_b32 v{t+2}, 2, v{V_LANE}")
    A(f"v_add_u32 v{t+2}, {L_SEL}, v{t+2}")
    A(f"v_cmp_gt_u32 vcc, 2, v{V_LANE}")
    A(f"s_and_saveexec_b64 s[{S_EX}:{S_EX+1}], vcc")
    A(f"ds_write_b32 v{t+2}, v{t}")
    A(f"ds_write_b32 v{t+2}, v{t+1} offset:8")
    A(f"s_mov_b64 exec, s[{S_EX}:{S_EX+1}]")
    A.label(nosel)

def ffn(A):
    t = HT; WS = srd(SRD_WS)
    FT, FG = t + 14, t + 15
    A(f"v_and_b32 v{FT}, 15, v{V_LANE}"); A(f"v_lshrrev_b32 v{FG}, 4, v{V_LANE}")
    A(f"s_and_b32 s{S_M}, s{S_H}, 1"); A(f"s_lshr_b32 s{S_KH}, s{S_H}, 1")
    A(f"s_cmp_eq_u32 s{S_M}, 0")
    A(f"s_cselect_b32 s{SRD_E}, s{S_WG}, s{S_WU}")
    A(f"s_cselect_b32 s{SRD_E+1}, s{S_WG+1}, s{S_WU+1}")
    A(f"s_and_b32 s{SRD_E+1}, s{SRD_E+1}, 0xffff")
    A(f"s_mov_b32 s{SRD_E+2}, {D*F*2}"); A(f"s_mov_b32 s{SRD_E+3}, 0x20000")
    mk_srd(A, SRD_F, S_WD, F * ROWB)
    A(f"v_lshrrev_b32 v{t}, 2, v{V_LANE}")
    A(f"v_and_b32 v{t+1}, 3, v{V_LANE}")
    A(f"v_lshlrev_b32 v{t+1}, 4, v{t+1}")
    A(f"v_mul_u32_u24 v{t+2}, {ROWB}, v{t}")
    A(f"v_add_u32 v{t+2}, v{t+2}, v{t+1}")
    A(f"v_mul_u32_u24 v{t}, {F*2}, v{t}")
    A(f"v_add_u32 v{t}, v{t}, v{t+1}")
    A(f"s_mul_i32 s{S_T}, s{S_KH}, {9*32*F*2}")
    A(f"s_lshl_b32 s{S_T2}, s{S_SL}, 6")
    A(f"s_add_u32 s{S_T}, s{S_T}, s{S_T2}")
    for s_ in range(9):
        for hf in range(2):
            A(f"buffer_load_dwordx4 {vr(F_W+8*s_+4*hf,4)}, v{t}, {srd(SRD_E)}, s{S_T} offen")
            A(f"s_add_u32 s{S_T}, s{S_T}, {16*F*2}")
    A(f"v_mov_b32 v{t}, s{S_IDX0}"); A(f"v_mov_b32 v{t+1}, s{S_IDX1}")
    A(f"v_cmp_eq_u32 vcc, 1, v{FT}")
    A(f"v_cndmask_b32 v{t}, v{t}, v{t+1}, vcc")
    A(f"v_mul_u32_u24 v{t}, {ROWB}, v{t}")
    A(f"v_lshl_add_u32 v{t}, v{FG}, 4, v{t}")
    A(f"s_mul_i32 s{S_T}, s{S_KH}, {9*64}")
    for s_ in range(9):
        A(f"buffer_load_dwordx4 {vr(F_X+4*s_,4)}, v{t}, {srd(SRD_A)}, s{S_T} offen offset:{64*s_}")
    wr, r1 = t + 3, t + 4
    A(f"s_lshl_b32 s{S_T}, s{S_H}, 11"); A(f"s_add_u32 s{S_T}, s{S_T}, {H_STG}")
    A(f"v_add_u32 v{wr}, s{S_T}, v{VL16}")
    A(f"v_bfe_u32 v{t+5}, v{V_LANE}, 2, 2")
    A(f"v_lshl_add_u32 v{t+5}, v{FG}, 3, v{t+5}")
    A(f"v_and_b32 v{t+6}, 3, v{V_LANE}")
    A(f"v_lshlrev_b32 v{t+6}, 3, v{t+6}")
    A(f"v_lshl_add_u32 v{r1}, v{t+5}, 6, v{t+6}")
    A(f"v_add_u32 v{r1}, s{S_T}, v{r1}")
    def through_lds(src, ntile):
        A(f"ds_write_b128 v{wr}, {vr(src,4)}")
        A(f"ds_write_b128 v{wr}, {vr(src+4,4)} offset:1024")
        A("s_waitcnt lgkmcnt(0)")
        for tile in range(ntile):
            for q in range(2):
                A(f"ds_read_b64_tr_b16 {vr(F_A+4*tile+2*q,2)}, v{r1} offset:{32*tile + 256*q}")
        A("s_waitcnt lgkmcnt(0)")
    A("s_waitcnt vmcnt(0)")
    for s_ in range(9):
        through_lds(F_W + 8 * s_, 2)
        for tile in range(2):
            c = "0" if s_ == 0 else vr(F_ACC + 4 * tile, 4)
            A(f"v_mfma_f32_16x16x32_bf16 {vr(F_ACC+4*tile,4)}, {vr(F_A+4*tile,4)}, {vr(F_X+4*s_,4)}, {c}")
        if s_ == 4:
            A(f"s_mul_i32 s{S_T}, s{S_SL}, {32*ROWB}")
            A(f"s_mul_i32 s{S_T2}, s{S_H}, 288")
            A(f"s_add_u32 s{S_T}, s{S_T}, s{S_T2}")
            A(f"s_add_u32 s{S_T2}, s{S_T}, {16*ROWB}")
            for rd in range(5):
                A(f"buffer_load_dwordx4 {vr(F_W+8*rd,4)}, v{t+2}, {srd(SRD_F)}, s{S_T} offen offset:{64*rd}")
                A(f"buffer_load_dwordx4 {vr(F_W+8*rd+4,4)}, v{t+2}, {srd(SRD_F)}, s{S_T2} offen offset:{64*rd}")
    A("s_nop 7")
    A(f"v_lshlrev_b32 v{t+5}, 1, v{FG}")
    A(f"v_add_u32 v{t+5}, v{t+5}, v{FT}")
    A(f"v_lshlrev_b32 v{t+5}, 4, v{t+5}")
    A(f"v_add_u32 v{t+7}, {H_RED}, v{t+5}")
    A(f"s_lshl_b32 s{S_T}, s{S_H}, 8")
    A(f"v_add_u32 v{t+6}, s{S_T}, v{t+7}")
    A(f"v_cmp_gt_u32 vcc, 2, v{FT}")
    A(f"s_and_saveexec_b64 s[{S_EX}:{S_EX+1}], vcc")
    A(f"ds_write_b128 v{t+6}, {vr(F_ACC,4)}")
    A(f"ds_write_b128 v{t+6}, {vr(F_ACC+4,4)} offset:128")
    A(f"s_mov_b64 exec, s[{S_EX}:{S_EX+1}]")
    lds_sync(A, 0, "hs0")
    noh = A.newlabel("noh")
    A(f"s_cmp_lg_u32 s{S_H}, 0"); A(f"s_cbranch_scc1 {noh}")
    B0 = F_X
    A(f"v_cmp_gt_u32 vcc, 2, v{FT}")
    A(f"s_and_saveexec_b64 s[{S_EX}:{S_EX+1}], vcc")
    for tile in range(2):
        for w in range(4):
            A(f"ds_read_b128 {vr(B0+16*tile+4*w,4)}, v{t+7} offset:{256*w + 128*tile}")
    A("s_waitcnt lgkmcnt(0)")
    for tile in range(2):
        b = B0 + 16 * tile
        for r in range(4):
            gq = b + r; uq = b + 4 + r
            A(f"v_add_f32 v{gq}, v{gq}, v{b+8+r}")
            A(f"v_add_f32 v{uq}, v{uq}, v{b+12+r}")
            A(f"v_cvt_pk_bf16_f32 v{gq}, v{gq}, v{uq}")
            A(f"v_and_b32 v{uq}, 0xffff0000, v{gq}")
            A(f"v_lshlrev_b32 v{gq}, 16, v{gq}")
            A(f"v_mul_f32 v{b+8+r}, {f32(-LOG2E)}, v{gq}")
            A(f"v_exp_f32 v{b+8+r}, v{b+8+r}")
            A(f"v_add_f32 v{b+8+r}, 1.0, v{b+8+r}")
            A(f"v_rcp_f32 v{b+8+r}, v{b+8+r}")
            A(f"v_mul_f32 v{gq}, v{gq}, v{b+8+r}")
            A(f"v_cvt_pk_bf16_f32 v{gq}, v{gq}, v{gq}")
            A(f"v_and_b32 v{gq}, 0xffff0000, v{gq}")
            A(f"v_mul_f32 v{gq}, v{gq}, v{uq}")
        A(f"v_cvt_pk_bf16_f32 v{b}, v{b}, v{b+1}")
        A(f"v_cvt_pk_bf16_f32 v{b+1}, v{b+2}, v{b+3}")
    A(f"v_lshlrev_b32 v{t+5}, 6, v{FT}")
    A(f"v_lshl_add_u32 v{t+5}, v{FG}, 3, v{t+5}")
    A(f"v_add_u32 v{t+5}, {H_H}, v{t+5}")
    A(f"ds_write_b64 v{t+5}, {vr(B0,2)}")
    A(f"ds_write_b64 v{t+5}, {vr(B0+16,2)} offset:32")
    A(f"s_mov_b64 exec, s[{S_EX}:{S_EX+1}]")
    A.label(noh)
    lds_sync(A, 1, "hs1")
    HA = F_X + 16
    A(f"v_and_b32 v{t+5}, 3, v{FT}")
    A(f"v_lshrrev_b32 v{t+6}, 2, v{FT}")
    A(f"v_lshlrev_b32 v{t+7}, 6, v{t+5}")
    A(f"v_lshl_add_u32 v{t+7}, v{FG}, 4, v{t+7}")
    A(f"v_add_u32 v{t+7}, {H_H}, v{t+7}")
    A(f"v_mov_b32 v{t+8}, {OOR}")
    A(f"v_cmp_gt_u32 vcc, 2, v{t+5}")
    A(f"v_cndmask_b32 v{t+7}, v{t+8}, v{t+7}, vcc")
    for j in range(4):
        A(f"v_cmp_eq_u32 vcc, {j}, v{t+6}")
        A(f"v_cndmask_b32 v{t+5}, v{t+8}, v{t+7}, vcc")
        A(f"ds_read_b128 {vr(HA+4*j,4)}, v{t+5}")
    A("s_waitcnt vmcnt(0)")
    DY = F_X
    for rd in range(5):
        nt = 2 if rd < 4 else 1
        through_lds(F_W + 8 * rd, nt)
        for tile in range(nt):
            u, j = divmod(2 * rd + tile, 4)
            c = "0" if j == 0 else vr(DY + 4 * u, 4)
            A(f"v_mfma_f32_16x16x32_bf16 {vr(DY+4*u,4)}, {vr(HA+4*j,4)}, {vr(F_A+4*tile,4)}, {c}")
    A("s_nop 7")
    A(f"s_and_b32 s{S_T}, s2, {Y_REP-1}")
    A(f"s_mul_i32 s{S_T}, s{S_T}, {2*D*4}")
    A(f"s_mul_i32 s{S_T2}, s{S_H}, {144*4}")
    A(f"s_add_u32 s{S_T}, s{S_T}, s{S_T2}")
    A(f"s_add_u32 s{S_T}, s{S_T}, {FW_YACC}")
    A(f"s_add_u32 s{S_T2}, s{S_T}, {D*4}")
    A(f"v_lshlrev_b32 v{t+5}, 2, v{V_LANE}")
    for u in range(3):
        if u == 2: A("s_mov_b64 exec, 0xffff")
        A(f"buffer_atomic_add_f32 v{DY+4*u}, v{t+5}, {WS}, s{S_T} offen offset:{256*u}")
        A(f"buffer_atomic_add_f32 v{DY+4*u+1}, v{t+5}, {WS}, s{S_T2} offen offset:{256*u}")
    A("s_mov_b64 exec, -1")
    A("s_waitcnt vmcnt(0)")
    lds_sync(A, 2, "hs2")
    nof = A.newlabel("nof")
    A(f"s_cmp_lg_u32 s{S_H}, 0"); A(f"s_cbranch_scc1 {nof}")
    A(f"v_mov_b32 v{t}, {FW_FFNC}"); A(f"v_mov_b32 v{t+1}, 1")
    A("s_mov_b64 exec, 1")
    A(f"buffer_atomic_add v{t+1}, v{t}, {WS}, 0 offen sc1")
    A("s_mov_b64 exec, -1")
    A.label(nof)

def routed_update(A):
    t = HT; WS = srd(SRD_WS)
    skip = A.newlabel("noupd")
    A(f"s_cmp_lg_u32 s{S_H}, 1"); A(f"s_cbranch_scc1 {skip}")
    A(f"s_sub_u32 s84, s{S_IDX0}, s{S_ROW0}"); A(f"s_sub_u32 s85, s{S_IDX1}, s{S_ROW0}")
    A(f"s_min_u32 s86, s84, s85")
    A(f"s_cmp_lt_u32 s86, 64"); A(f"s_cbranch_scc0 {skip}")
    lp = A.newlabel("ypoll"); done = A.newlabel("ydone")
    A(f"s_mov_b32 s80, 0")
    A(f"v_mov_b32 v{t}, {FW_FFNC}")
    A.label(lp)
    A(f"buffer_load_dword v{t+1}, v{t}, {WS}, 0 offen sc1")
    A("s_waitcnt vmcnt(0)")
    A(f"v_readfirstlane_b32 s81, v{t+1}")
    A(f"s_cmp_ge_u32 s81, 144"); A(f"s_cbranch_scc1 {done}")
    A("s_sleep 8")
    A(f"s_add_u32 s80, s80, 1")
    A(f"s_cmp_lt_u32 s80, 0x40000"); A(f"s_cbranch_scc1 {lp}")
    A.label(done)
    Y = F_W
    A(f"v_lshlrev_b32 v{t}, 3, v{V_LANE}")
    A(f"s_mul_i32 s{S_T}, s{S_HG}, 288"); A(f"s_add_u32 s{S_T}, s{S_T}, {FW_YACC}")
    A(f"v_mov_b32 v{t+2}, {L_SEL+8}")
    A(f"ds_read_b64 {vr(t+4,2)}, v{t+2}")
    A(f"v_cmp_gt_u32 vcc, 36, v{V_LANE}")
    A(f"s_and_saveexec_b64 s[{S_EX}:{S_EX+1}], vcc")
    for j in range(2):
        for rp in range(Y_REP):
            A(f"s_add_u32 s{S_T2}, s{S_T}, {rp*2*D*4 + j*D*4}")
            A(f"buffer_load_dwordx2 {vr(Y+16*j+2*rp,2)}, v{t}, {WS}, s{S_T2} offen sc1")
    A("s_waitcnt vmcnt(0) lgkmcnt(0)")
    for j in range(2):
        b = Y + 16 * j
        for rp in range(1, Y_REP):
            A(f"v_add_f32 v{b}, v{b}, v{b+2*rp}"); A(f"v_add_f32 v{b+1}, v{b+1}, v{b+2*rp+1}")
        for e in range(2):
            y = b + e
            A(f"v_cvt_pk_bf16_f32 v{y}, v{y}, v{y}")
            A(f"v_and_b32 v{y}, 0xffff0000, v{y}")
            A(f"v_mul_f32 v{y}, v{t+4+j}, v{y}")
            A(f"v_cvt_pk_bf16_f32 v{y}, v{y}, v{y}")
            A(f"v_and_b32 v{y}, 0xffff0000, v{y}")
        A(f"v_add_u32 v{t+2}, {L_UPD + 288*j}, v{t}")
        A(f"ds_write_b64 v{t+2}, {vr(b,2)}")
    A("s_mov_b64 exec, -1")
    A("s_waitcnt lgkmcnt(0)")
    A.label(skip)
```

```python
from fcommon import *
import sys
import f_gemm as G, f_attn as AT, f_out as FO, f_help as HP

NWAVES = 12
XFIRST = os.environ.get('XFIRST', '0') == '1'
FLAG_STAGE = int(os.environ.get('FLAG_STAGE', '2'))

def stop_here(A, name):
    if STOP == name:
        A("s_waitcnt vmcnt(0) lgkmcnt(0)")
        A("s_endpgm")
        return True
    return False

S_RAISED = 87
def try_raise(A, duty, blocking):
    nf = A.newlabel("noflag")
    A(f"s_cmp_lg_u32 s{S_WAVE}, 0"); A(f"s_cbranch_scc1 {nf}")
    A(f"s_cmp_lg_u32 s{S_RAISED}, 0"); A(f"s_cbranch_scc1 {nf}")
    if not blocking:
        A(f"s_getreg_b32 s{S_T}, hwreg(HW_REG_IB_STS, 0, 4)")
        A(f"s_cmp_lg_u32 s{S_T}, 0"); A(f"s_cbranch_scc1 {nf}")
    pstamp(A, 3, "p1")
    G.raise_flag(A, duty)
    pstamp(A, 4, "p1")
    A(f"s_mov_b32 s{S_RAISED}, 1")
    A.label(nf)

def compute_p1(A, R, duty):
    if duty:
        if duty in ("k", "v"):
            mk_srd(A, SRD_E, S_WK if duty == "k" else S_WV, 576 * 36)
        else:
            mk_srd(A, SRD_E, S_GW, ROWB); mk_srd(A, SRD_F, S_WR, ROWB)
        G.duty_loads(A, duty)
    G.gemm_addresses(A)
    if duty:
        G.duty_addresses(A)
        G.duty_writes(A, duty)
    A("s_waitcnt lgkmcnt(0)")
    R.bar("b1")
    pstamp(A, 1, "p1")
    if not duty: G.residual_x(A)
    if duty:
        {"k": G.k_stage, "v": G.v_stage, "g": G.g_stage}[duty](A)
        A("s_waitcnt lgkmcnt(0)")
        R.bar("b2")
        pstamp(A, 2, "p1")
        np_ = A.newlabel("nopub")
        A(f"s_cmp_lg_u32 s{S_WAVE}, 0"); A(f"s_cbranch_scc1 {np_}")
        G.publish(A, duty)
        G.init_probe(A)
        A(f"s_mov_b32 s{S_RAISED}, 0")
        A.label(np_)
        G.residual_x(A)
    lf = A.newlabel("p1f1"); le = A.newlabel("p1e")
    bars0 = list(R.bars)
    A(f"s_cmp_eq_u32 s{S_FH}, 0"); A(f"s_cbranch_scc0 {lf}")
    stages = [list(range(0, 4)), list(range(4, 8)), list(range(8, 12)), list(range(12, 18))]
    for nt in (3, 2):
        if nt == 2:
            A.label(lf); R.bars = list(bars0)
        gm = G.Gemm(A, nt, 4)
        for q, steps in enumerate(stages):
            if q >= 1 and duty and nt == 3: try_raise(A, duty, False)
            R.bar(f"bW{q}")
            if q == 3: pstamp(A, 5, "p1")
            gm.steps(steps, steps[-1] + 1, 18, la_a=1, burst=True)
        A("s_nop 7")
        G.q_epilogue(A, nt)
        if duty and nt == 3: try_raise(A, duty, True)
        if nt == 3: A(f"s_branch {le}")
    A.label(le)
    A("s_waitcnt lgkmcnt(0)")
    R.bar("bQ")

def compute_role(A):
    R = Role(A)
    A(f"s_and_b32 s{S_TG}, s{S_WAVE}, 3"); A(f"s_lshr_b32 s{S_FH}, s{S_WAVE}, 2")
    G.lane_setup(A)
    A(f"v_mov_b32 v{G.GT}, {L_CNT}"); A(f"v_mov_b32 v{G.GT+2}, 0"); A(f"v_mov_b32 v{G.GT+3}, 0")
    A(f"v_mov_b32 v{G.GT+4}, 0"); A(f"v_mov_b32 v{G.GT+5}, 0")
    A(f"ds_write_b128 v{G.GT}, {vr(G.GT+2,4)}")
    A(f"ds_write_b128 v{G.GT}, {vr(G.GT+2,4)} offset:16")
    G.clear_flag_lines(A)
    lk = A.newlabel("dk"); lv = A.newlabel("dv"); lg = A.newlabel("dg"); lj = A.newlabel("dj")
    A(f"s_cmp_eq_u32 s{S_HG}, 0"); A(f"s_cbranch_scc1 {lk}")
    A(f"s_cmp_eq_u32 s{S_HG}, 1"); A(f"s_cbranch_scc1 {lv}")
    A(f"s_cmp_eq_u32 s{S_HG}, 2"); A(f"s_cbranch_scc1 {lg}")
    seqs = {}
    for duty, lab in ((None, None), ("k", lk), ("v", lv), ("g", lg)):
        if lab: A.label(lab)
        R.bars = []
        compute_p1(A, R, duty)
        seqs[duty] = list(R.bars)
        if duty != "g": A(f"s_branch {lj}")
    A.label(lj)
    R.bars = []
    pstamp(A, 1)
    AT.q_fragments(A)
    AT.lds_addresses(A)
    pstamp(A, 6, "p1")
    R.bar("bKV")
    pstamp(A, 7, "p1")
    t = AT.T
    AT.q_norm(A)
    AT.gate_address(A)
    R.bar("B0")
    pstamp(A, 2)
    lf = A.newlabel("fallback"); le = A.newlabel("attdone")
    AT.fast_path(A, R, lf)
    A(f"s_branch {le}")
    A.label(lf)
    AT.fallback_path(A, R)
    A.label(le)
    AT.finish(A, R)
    def sbase(A):
        A(f"s_mul_i32 s{S_T}, s{S_ROW0}, {ROWB}")
        A(f"s_mul_i32 s{S_T2}, s{S_HG}, 144")
        A(f"s_add_u32 s{S_T}, s{S_T}, s{S_T2}")
        A(f"s_add_u32 s{S_T}, s{S_T}, {FW_O}")
    AT.store_rows(A, SRD_WS, sbase, True)
    A("s_waitcnt vmcnt(0)")
    pstamp(A, 1, "t")
    R.bar("B5")
    nf = A.newlabel("nogrp")
    A(f"s_cmp_lg_u32 s{S_WAVE}, 0"); A(f"s_cbranch_scc1 {nf}")
    A(f"s_lshl_b32 s{S_T}, s{S_TB}, 10"); A(f"s_add_u32 s{S_T}, s{S_T}, {FW_FLAG + FL_GRP}")
    A(f"v_mov_b32 v{t}, s{S_T}"); A(f"v_mov_b32 v{t+1}, 1")
    A("s_mov_b64 exec, 1")
    A(f"buffer_atomic_add v{t+1}, v{t}, {srd(SRD_WS)}, 0 offen sc1")
    A("s_mov_b64 exec, -1")
    A.label(nf)
    FO.out_phase(A, R)
    if STAMPS: A("s_waitcnt vmcnt(0)")
    pstamp(A, 7)
    if os.environ.get("DBGSTAMP"):
        nd = A.newlabel("nodbg")
        A(f"s_cmp_lg_u32 s2, {int(os.environ['DBGSTAMP'])}"); A(f"s_cbranch_scc1 {nd}")
        A(f"s_cmp_lg_u32 s{S_WAVE}, 4"); A(f"s_cbranch_scc1 {nd}")
        A(f"v_mbcnt_lo_u32_b32 v{AT.T}, -1, 0")
        A(f"v_lshlrev_b32 v{AT.T}, 2, v{AT.T}")
        A(f"v_add_u32 v{AT.T}, 32, v{AT.T}")
        A("s_mov_b64 exec, 0xff")
        A(f"buffer_store_dword v{V_ST}, v{AT.T}, {srd(SRD_DBG)}, 0 offen")
        A.label(nd)
    else:
        pstamp_flush(A, S_WAVE, S_WS, WS_STAMP, AT.T)
    A("s_endpgm")
    return seqs, R.bars

def flag_off(A, t):
    A(f"v_min_u32 v{t}, 23, v{HP.V_LANE}")
    A(f"v_and_b32 v{t+1}, 3, v{t}"); A(f"v_lshrrev_b32 v{t}, 2, v{t}")
    A(f"v_lshlrev_b32 v{t}, 7, v{t}"); A(f"v_lshl_add_u32 v{t}, v{t+1}, 2, v{t}")
    A(f"s_lshl_b32 s{S_T}, s{S_TB}, 10"); A(f"s_add_u32 s{S_T}, s{S_T}, {FW_FLAG}")
    A(f"v_add_u32 v{t}, s{S_T}, v{t}")

def flag0_off(A, t):
    A(f"v_and_b32 v{t}, 1, v{HP.V_LANE}"); A(f"v_lshlrev_b32 v{t}, 2, v{t}")
    A(f"v_and_b32 v{t+1}, 2, v{HP.V_LANE}"); A(f"v_lshl_add_u32 v{t}, v{t+1}, 7, v{t}")
    A(f"s_lshl_b32 s{S_T}, s{S_TB}, 10"); A(f"s_add_u32 s{S_T}, s{S_T}, {FW_FLAG}")
    A(f"v_add_u32 v{t}, s{S_T}, v{t}")

def helper_p1(A, R, duty, h3):
    vm = VmTrack()
    vm.issue("x", 18)
    HP.issue_w(A, vm, h3, range(6), lambda a_: f"w{a_//2}")
    if not duty: HP.issue_w(A, vm, h3, range(6, 9), lambda a_: "w3")
    A(f"s_waitcnt vmcnt({vm.after('x')})")
    R.bar("b1")
    if duty:
        R.bar("b2")
        if os.environ.get("B2SLEEP"): A(f"s_sleep {os.environ['B2SLEEP']}")
        HP.issue_w(A, vm, h3, range(6, 9), lambda a_: "w3")
    for q in range(4):
        A(f"s_waitcnt vmcnt({vm.after(f'w{q}')})")
        R.bar(f"bW{q}")
        if q == 2: HP.init_issue(A)
    HP.init_check(A)
    HP.poll_issue(A, flag0_off)
    R.bar("bQ")

def helper_rest(A, R, h3):
    pstamp(A, 1)
    HP.poll(A, flag0_off, 4, "0x01010101", "kv0", preissued=True)
    pstamp(A, 2)
    R.bar("bKV")
    HP.issue_kv(A, 0, HP.KV_ST0)
    A("s_waitcnt vmcnt(0)")
    R.bar("B0")
    HP.poll(A, flag_off, 24, "0x01010101", "kvp")
    HP.lds_sync(A, 4, "hsall", sleep=4)
    A(f"s_mov_b32 s{S_T}, {FW_KEYS}")
    A(f"buffer_load_dwordx4 {vr(HP.F_KEY,4)}, v{HP.VL16}, {srd(SRD_WS)}, s{S_T} offen{HSC}")
    HP.key_norm(A)
    HP.issue_kv(A, HP.KV_ST0, 148)
    A("s_waitcnt vmcnt(0)")
    HP.select_top2(A)
    A("s_waitcnt vmcnt(0) lgkmcnt(0)")
    R.bar("B1")
    nof = A.newlabel("noffn")
    A(f"s_cmp_lt_u32 s{S_HG}, 3"); A(f"s_cbranch_scc1 {nof}")
    A(f"s_lshr_b32 s{S_T}, s2, 6"); A(f"s_mul_i32 s{S_T}, s{S_T}, 5")
    A(f"s_add_u32 s{S_T}, s{S_T}, s{S_HG}"); A(f"s_sub_u32 s{S_T}, s{S_T}, 3")
    A(f"s_cmp_ge_u32 s{S_T}, 18"); A(f"s_cbranch_scc1 {nof}")
    A(f"s_and_b32 s{S_T2}, s2, 7"); A(f"s_mul_i32 s{S_T2}, s{S_T2}, 18")
    A(f"s_add_u32 s{HP.S_SL}, s{S_T2}, s{S_T}")
    pstamp(A, 3)
    if not os.environ.get("NOFFN"): HP.ffn(A)
    else:
        nf2 = A.newlabel("nof2")
        A(f"s_cmp_lg_u32 s{HP.S_H}, 0"); A(f"s_cbranch_scc1 {nf2}")
        A(f"v_mov_b32 v8, {FW_FFNC}"); A(f"v_mov_b32 v9, 1")
        A("s_mov_b64 exec, 1")
        A(f"buffer_atomic_add v9, v8, {srd(SRD_WS)}, 0 offen sc1")
        A("s_mov_b64 exec, -1")
        A.label(nf2)
    A.label(nof)
    pstamp(A, 4)
    mk_srd(A, SRD_W, S_WO, D * ROWB)
    mk_srd(A, SRD_A, S_WS, S_TOK * ROWB, add=FW_O)
    vm = VmTrack()
    HP.wait_released(A)
    HP.issue_w(A, vm, h3, range(9), lambda a_: "w", wb=WB3)
    HP.routed_update(A)
    A("s_waitcnt vmcnt(0)")
    R.bar("B2"); R.bar("B3"); R.bar("B4"); R.bar("B5")
    def grp_off(A, t):
        A(f"s_lshl_b32 s{S_T}, s{S_TB}, 10"); A(f"s_add_u32 s{S_T}, s{S_T}, {FW_FLAG + FL_GRP}")
        A(f"v_mov_b32 v{t}, s{S_T}")
    pstamp(A, 5)
    HP.poll(A, grp_off, 1, "8", "grp", ge=True)
    pstamp(A, 6)
    R.bar("B6")
    if stop_here(A, "attn"): return
    vm = VmTrack()
    A(f"s_mul_i32 s{S_T3}, s{S_ROW0}, {ROWB}")
    HP.issue_x(A, vm, range(9), not PLAIN, lambda cc: f"x{cc//3}", xb=XB3)
    for q in range(3):
        A(f"s_waitcnt vmcnt({vm.after(f'x{q}')})")
        R.bar(f"bX{q}")
    R.bar("B7")
    pstamp(A, 7)
    if not os.environ.get("DBGSTAMP"): pstamp_flush(A, S_WAVE, S_WS, WS_STAMP, HP.HT)
    A("s_endpgm")

def helper_role(A):
    R = Role(A)
    A(f"s_setprio {os.environ.get('HPRIO', '3')}")
    A(f"s_sub_u32 s{HP.S_H}, s{S_WAVE}, 8")
    A(f"v_and_b32 v{HP.V_LANE}, 63, v0")
    HP.setup_x(A)
    if not XFIRST: HP.setup_w(A)
    A(f"s_mul_i32 s{S_T3}, s{S_ROW0}, {ROWB}")
    vmx = VmTrack()
    HP.issue_x(A, vmx, range(9), False, lambda cc: "x")
    if XFIRST: HP.setup_w(A)
    l3 = A.newlabel("h3")
    A(f"s_cmp_eq_u32 s{HP.S_H}, 3"); A(f"s_cbranch_scc1 {l3}")
    seqs = {}
    for h3 in (False, True):
        if h3: A.label(l3)
        ld = A.newlabel("hduty"); lj = A.newlabel("hj")
        A(f"s_cmp_lt_u32 s{S_HG}, 3"); A(f"s_cbranch_scc1 {ld}")
        R.bars = []; helper_p1(A, R, False, h3); seqs[None] = list(R.bars)
        A(f"s_branch {lj}")
        A.label(ld)
        R.bars = []; helper_p1(A, R, True, h3); seqs["d"] = list(R.bars)
        A.label(lj)
        R.bars = []
        helper_rest(A, R, h3)
    return seqs, R.bars

def gen(name):
    A = Asm()
    end = "L_end"
    A("s_cmp_ge_u32 s2, 256"); A(f"s_cbranch_scc1 {end}")
    pstamp_init(A); pstamp(A, 0)
    load_kernargs(A)
    A(f"v_lshrrev_b32 v1, 6, v0")
    A(f"v_and_b32 v{G.V_LANE}, 63, v0")
    A(f"v_readfirstlane_b32 s{S_WAVE}, v1")
    A(f"s_and_b32 s{S_T}, s2, 7"); A(f"s_lshr_b32 s{S_T2}, s2, 3")
    A(f"s_and_b32 s{S_HG}, s{S_T2}, 7"); A(f"s_lshr_b32 s{S_T2}, s{S_T2}, 3")
    A(f"s_lshl_b32 s{S_T}, s{S_T}, 2"); A(f"s_add_u32 s{S_TB}, s{S_T}, s{S_T2}")
    A(f"s_lshl_b32 s{S_ROW0}, s{S_TB}, 6")
    A("s_waitcnt lgkmcnt(0)")
    mk_srd(A, SRD_A, S_X, S_TOK * ROWB)
    mk_srd(A, SRD_W, S_WQ, D * ROWB)
    mk_srd(A, SRD_WS, S_WS, FW_SIZE)
    mk_srd(A, SRD_KV, S_WS, KV_IMG, add=FW_KV)
    mk_srd(A, SRD_OUT, S_OUT, S_TOK * ROWB)
    mk_srd(A, SRD_DBG, S_DBG, 256)
    lh = A.newlabel("helper")
    A(f"s_cmp_ge_u32 s{S_WAVE}, 8"); A(f"s_cbranch_scc1 {lh}")
    cs, cb = compute_role(A)
    A.label(lh)
    hs, hb = helper_role(A)
    assert cs[None] == hs[None], (cs[None], hs[None])
    for d in "kvg": assert cs[d] == hs["d"], (cs[d], hs["d"])
    assert cb == hb, (cb, hb)
    A.label(end); A("s_endpgm")
    return A, 168, LDS_BYTES, 64 * NWAVES

def build(out):
    n = NAME + "_kernel"
    A, nv, lds, blk = gen(n)
    hdr = open("cdna_kernels/" + NAME + ".s.ref").read().split("; Override launch")[0]
    txt = hdr + f"; @launch grid=(256,1,1) block=({blk},1,1) lds={lds}\n"
    txt += '.amdgcn_target "amdgcn-amd-amdhsa--gfx950"\n'
    rep = []
    body = A.finish(rep)
    if "-v" in sys.argv:
        print(len(rep), "nop insertions")
        for r in rep: print("   ", r)
    txt += kernel_header(n) + body + kernel_desc(n, nv, nsgpr=102)
    open(out, "w").write(txt)
    print("wrote", out, len(txt), "bytes")

if __name__ == "__main__":
    import sys
    build(sys.argv[1])
```

```python
from fcommon import *

ACC, DACC, AF, BF = 0, 12, 16, 40
AW0, AW1, AX0, AX1, AE0, AE1, AE3 = 148, 149, 150, 151, 52, 53, 54
RB0, NRB = 12, 3
RA0 = 24
EL = 56
GT = 72
V_LANE, V_I, V_H, V_T, V_G, GATE = 156, 157, 158, 159, 160, 161
XRES = 162
QSCALE = LOG2E / (DH ** 0.5)

def lane_setup(A):
    A(f"v_and_b32 v{V_T}, 15, v{V_LANE}")
    A(f"v_lshrrev_b32 v{V_G}, 4, v{V_LANE}")
    A(f"v_and_b32 v{V_I}, 31, v{V_LANE}")
    A(f"v_lshrrev_b32 v{V_H}, 5, v{V_LANE}")

def gemm_addresses(A, xb=XB, wb=WB):
    t = GT
    A(f"s_lshl_b32 s{S_T}, s{S_TG}, 4")
    A(f"v_add_u32 v{t}, s{S_T}, v{V_T}")
    A(f"v_lshlrev_b32 v{t}, 7, v{t}")
    A(f"v_lshrrev_b32 v{t+1}, 1, v{V_T}")
    A(f"v_xor_b32 v{t+1}, v{t+1}, v{V_G}")
    A(f"v_lshl_add_u32 v{AX0}, v{t+1}, 4, v{t}")
    A(f"v_xor_b32 v{AX1}, 64, v{AX0}")
    if xb:
        A(f"v_add_u32 v{AX0}, {xb}, v{AX0}"); A(f"v_add_u32 v{AX1}, {xb}, v{AX1}")
    A(f"v_bfe_u32 v{t}, v{V_LANE}, 2, 2")
    A(f"v_lshlrev_b32 v{t}, 1, v{t}")
    A(f"v_lshl_add_u32 v{t}, v{V_G}, 3, v{t}")
    A(f"v_mul_u32_u24 v{t}, 144, v{t}")
    A(f"v_and_b32 v{t+1}, 3, v{V_LANE}")
    A(f"v_lshl_add_u32 v{t}, v{t+1}, 3, v{t}")
    A(f"s_mul_i32 s{S_T}, s{S_FH}, 96")
    A(f"s_add_u32 s{S_T}, s{S_T}, {wb}")
    A(f"v_add_u32 v{AW0}, s{S_T}, v{t}")
    A(f"v_add_u32 v{AW1}, {9*W_STEP}, v{AW0}")

class Gemm:
    def __init__(self, A, nt, ra):
        self.A, self.nt, self.ra = A, nt, ra
        self.na = self.nb = 0; self.log = []; self.bumped = False
    def rd_b(self):
        s = self.nb; A = self.A; cc = s >> 1
        if s == 16:
            A(f"v_add_u32 v{AX0}, 8192, v{AX0}"); A(f"v_add_u32 v{AX1}, 8192, v{AX1}")
        A(f"ds_read_b128 {vr(RB0+4*(s%NRB),4)}, v{AX0+(s&1)} offset:{cc*8192 if cc < 8 else 7*8192}")
        self.log.append(("b", s)); self.nb += 1
    def rd_a(self):
        s = self.na; A = self.A
        base = RA0 + 4 * self.nt * (s % self.ra)
        reg = AW0 if s < 9 else AW1
        for j in range(self.nt):
            for q in range(2):
                A(f"ds_read_b64_tr_b16 {vr(base+4*j+2*q,2)}, v{reg} offset:{(s%9)*W_STEP + 144*q + 32*j}")
                self.log.append(("a", s))
        self.na += 1
    def preload_a(self, upto):
        while self.na < upto: self.rd_a()
    def steps(self, steps, avail_a, avail_b, la_a=2, burst=False):
        A = self.A
        for s in steps:
            while self.nb < min(avail_b, s + NRB): self.rd_b()
            while self.na < min(avail_a, s + 1): self.rd_a()
            if burst:
                while self.na < min(avail_a, s + la_a + 1, s + self.ra): self.rd_a()
            elif self.na < min(avail_a, s + la_a + 1, s + self.ra): self.rd_a()
            last = max(i for i, (k, st) in enumerate(self.log) if st == s)
            n = len(self.log) - 1 - last
            A(f"s_waitcnt lgkmcnt({min(n, 15)})")
            base = RA0 + 4 * self.nt * (s % self.ra)
            for j in range(self.nt):
                c = "0" if s == 0 else vr(ACC + 4 * j, 4)
                A(f"v_mfma_f32_16x16x32_bf16 {vr(ACC+4*j,4)}, {vr(base+4*j,4)}, {vr(RB0+4*(s%NRB),4)}, {c}")

def restore_x_addresses(A):
    A(f"v_subrev_u32 v{AX0}, 8192, v{AX0}"); A(f"v_subrev_u32 v{AX1}, 8192, v{AX1}")

def duty_loads(A, duty):
    t = GT
    if duty in ("k", "v"):
        for rd in range(4):
            skip = None
            if rd == 3:
                skip = A.newlabel("elskip")
                A(f"s_cmp_ge_u32 s{S_WAVE}, 3"); A(f"s_cbranch_scc1 {skip}")
            A(f"s_lshl_b32 s{S_T}, s{S_WAVE}, 6")
            A(f"s_add_u32 s{S_T}, s{S_T}, {512*rd}")
            A(f"v_add_u32 v{t}, s{S_T}, v{V_LANE}")
            A(f"v_mul_u32_u24 v{t}, 12, v{t}")
            A(f"buffer_load_dwordx3 {vr(EL+3*rd+ (rd&1),3)}, v{t}, {srd(SRD_E)}, 0 offen" if False else
              f"buffer_load_dwordx3 v[{ELR(rd)}:{ELR(rd)+2}], v{t}, {srd(SRD_E)}, 0 offen")
            if skip: A.label(skip)
    else:
        for rd in range(2):
            skip = None
            if rd == 1:
                skip = A.newlabel("elskip")
                A(f"s_cmp_lg_u32 s{S_WAVE}, 0"); A(f"s_cbranch_scc1 {skip}")
            A(f"s_lshl_b32 s{S_T}, s{S_WAVE}, 6")
            A(f"s_add_u32 s{S_T}, s{S_T}, {512*rd}")
            A(f"v_add_u32 v{t}, s{S_T}, v{V_LANE}")
            A(f"v_lshlrev_b32 v{t}, 1, v{t}")
            A(f"buffer_load_ushort v{ELR(rd)}, v{t}, {srd(SRD_E)}, 0 offen")
            A(f"buffer_load_ushort v{ELR(rd)+1}, v{t}, {srd(SRD_F)}, 0 offen")
            if skip: A.label(skip)

def ELR(rd): return EL + 4 * rd

def duty_writes(A, duty):
    t = GT + 4
    A("s_waitcnt vmcnt(0)")
    if duty in ("k", "v"):
        for rd in range(4):
            skip = None
            if rd == 3:
                skip = A.newlabel("ewskip")
                A(f"s_cmp_ge_u32 s{S_WAVE}, 3"); A(f"s_cbranch_scc1 {skip}")
            A(f"s_lshl_b32 s{S_T}, s{S_WAVE}, 6")
            A(f"s_add_u32 s{S_T}, s{S_T}, {512*rd}")
            A(f"v_add_u32 v{t}, s{S_T}, v{V_LANE}")
            A(f"v_mul_u32_u24 v{t+1}, 21846, v{t}")
            A(f"v_lshrrev_b32 v{t+1}, 16, v{t+1}")
            A(f"v_mul_u32_u24 v{t+2}, 3, v{t+1}")
            A(f"v_sub_u32 v{t+2}, v{t}, v{t+2}")
            A(f"v_lshrrev_b32 v{t+3}, 1, v{t+1}")
            A(f"v_and_b32 v{t+3}, 4, v{t+3}")
            A(f"v_xor_b32 v{t+3}, v{t+1}, v{t+3}")
            A(f"v_lshlrev_b32 v{t+3}, 5, v{t+3}")
            A(f"v_mul_u32_u24 v{t+4}, 12, v{t+2}")
            A(f"v_add3_u32 v{t+3}, v{t+3}, v{t+4}, s{S_T3}") if False else None
            A(f"v_add_u32 v{t+3}, v{t+3}, v{t+4}")
            A(f"v_add_u32 v{t+3}, {E2B}, v{t+3}")
            A(f"v_lshlrev_b32 v{t+4}, 3, v{t+1}")
            A(f"v_add_u32 v{t+4}, {E3B}, v{t+4}")
            A(f"v_add_u32 v{t+5}, 8, v{t+3}")
            A(f"v_cmp_eq_u32 vcc, 2, v{t+2}")
            A(f"v_cndmask_b32 v{t+4}, v{t+5}, v{t+4}, vcc")
            A(f"ds_write2_b32 v{t+3}, v{ELR(rd)}, v{ELR(rd)+1} offset0:0 offset1:1")
            A(f"ds_write_b32 v{t+4}, v{ELR(rd)+2}")
            if skip: A.label(skip)
    else:
        for rd in range(2):
            skip = None
            if rd == 1:
                skip = A.newlabel("ewskip")
                A(f"s_cmp_lg_u32 s{S_WAVE}, 0"); A(f"s_cbranch_scc1 {skip}")
            A(f"s_lshl_b32 s{S_T}, s{S_WAVE}, 6")
            A(f"s_add_u32 s{S_T}, s{S_T}, {512*rd}")
            A(f"v_add_u32 v{t}, s{S_T}, v{V_LANE}")
            A(f"v_lshlrev_b32 v{t}, 3, v{t}")
            A(f"v_add_u32 v{t}, {E3B}, v{t}")
            A(f"v_lshl_or_b32 v{ELR(rd)}, v{ELR(rd)+1}, 16, v{ELR(rd)}")
            A(f"ds_write_b32 v{t}, v{ELR(rd)}")
            if skip: A.label(skip)

def duty_addresses(A):
    t = GT
    A(f"v_bfe_u32 v{t}, v{V_LANE}, 2, 2")
    A(f"v_lshl_add_u32 v{t}, v{V_G}, 3, v{t}")
    A(f"v_and_b32 v{t+1}, 1, v{V_G}")
    A(f"v_lshl_add_u32 v{t+2}, v{t+1}, 2, v{t}")
    A(f"v_xor_b32 v{t+1}, 1, v{t+1}")
    A(f"v_lshl_add_u32 v{t+3}, v{t+1}, 2, v{t}")
    A(f"v_and_b32 v{t+1}, 3, v{V_LANE}")
    A(f"v_lshlrev_b32 v{t+1}, 3, v{t+1}")
    A(f"v_lshl_add_u32 v{AE0}, v{t+2}, 5, v{t+1}")
    A(f"v_lshl_add_u32 v{AE1}, v{t+3}, 5, v{t+1}")
    A(f"v_add_u32 v{AE0}, {E2B}, v{AE0}")
    A(f"v_add_u32 v{AE1}, {E2B}, v{AE1}")
    A(f"v_lshlrev_b32 v{AE3}, 3, v{t}")
    A(f"v_add_u32 v{AE3}, {E3B}, v{AE3}")

def duty_gemm(A, which):
    DA, DB, DEP = 16, 32, 4
    def rd(s):
        b = DA + 4 * (s % DEP)
        reg = AX0 + (s & 1); cc = s >> 1
        if s == 16:
            A(f"v_add_u32 v{AX0}, 8192, v{AX0}"); A(f"v_add_u32 v{AX1}, 8192, v{AX1}")
        A(f"ds_read_b128 {vr(DB+4*(s%DEP),4)}, v{reg} offset:{cc*8192 if cc < 8 else 7*8192}")
        for q in range(2):
            if which == 2: A(f"ds_read_b64_tr_b16 {vr(b+2*q,2)}, v{AE0+q} offset:{s*1024}")
            else: A(f"ds_read_b64_tr_b16 {vr(b+2*q,2)}, v{AE3} offset:{s*256 + 32*q}")
    for s in range(DEP): rd(s)
    for s in range(18):
        ahead = min(DEP - 1, 17 - s)
        A(f"s_waitcnt lgkmcnt({3*ahead})")
        c = "0" if s == 0 else vr(DACC, 4)
        A(f"v_mfma_f32_16x16x32_bf16 {vr(DACC,4)}, {vr(DA+4*(s%DEP),4)}, {vr(DB+4*(s%DEP),4)}, {c}")
        if s + DEP < 18: rd(s + DEP)
    restore_x_addresses(A)
    A("s_nop 7")

def k_stage(A):
    t = GT; d = GT + 10
    l1 = A.newlabel("k1"); le = A.newlabel("ke")
    A(f"s_lshr_b32 s{S_T2}, s{S_TG}, 1")
    A(f"s_cmp_eq_u32 s{S_FH}, 0"); A(f"s_cbranch_scc0 {l1}")
    duty_gemm(A, 2)
    A(f"s_and_b32 s{S_T}, s{S_TG}, 1"); A(f"s_lshl_b32 s{S_T}, s{S_T}, 4")
    A(f"v_add_u32 v{t}, s{S_T}, v{V_T}")
    A(f"v_lshrrev_b32 v{t+1}, 1, v{V_G}")
    A(f"v_lshl_add_u32 v{t+1}, v{t+1}, 5, v{t}")
    A(f"v_lshlrev_b32 v{t+1}, 4, v{t+1}")
    A(f"v_and_b32 v{t+2}, 1, v{V_G}")
    A(f"v_lshl_add_u32 v{t+1}, v{t+2}, 3, v{t+1}")
    A(f"s_lshl_b32 s{S_T}, s{S_T2}, 10"); A(f"s_add_u32 s{S_T}, s{S_T}, {STG}")
    A(f"v_add_u32 v{t+1}, s{S_T}, v{t+1}")
    A(f"v_cvt_pk_bf16_f32 v{d}, v{DACC}, v{DACC+1}")
    A(f"v_cvt_pk_bf16_f32 v{d+1}, v{DACC+2}, v{DACC+3}")
    A(f"ds_write_b64 v{t+1}, {vr(d,2)}")
    A(f"s_branch {le}")
    A.label(l1)
    duty_gemm(A, 3)
    A(f"s_and_b32 s{S_T}, s{S_TG}, 1"); A(f"s_lshl_b32 s{S_T}, s{S_T}, 4")
    A(f"v_add_u32 v{t}, s{S_T}, v{V_T}")
    A(f"v_lshlrev_b32 v{t+1}, 3, v{t}")
    A(f"s_lshl_b32 s{S_T}, s{S_T2}, 2"); A(f"s_add_u32 s{S_T}, s{S_T}, {STG+TB_KEXT}")
    A(f"v_add_u32 v{t+1}, s{S_T}, v{t+1}")
    A(f"v_cvt_pk_bf16_f32 v{d}, v{DACC}, v{DACC+1}")
    A(f"v_cmp_eq_u32 vcc, 0, v{V_G}")
    A(f"s_and_saveexec_b64 s[{S_EX}:{S_EX+1}], vcc")
    A(f"ds_write_b32 v{t+1}, v{d}")
    A(f"s_mov_b64 exec, s[{S_EX}:{S_EX+1}]")
    A.label(le)

def k_norm(A):
    t = GT; n = t + 3
    l1 = A.newlabel("kn1"); le = A.newlabel("kne")
    A(f"s_cmp_eq_u32 s{S_FH}, 0"); A(f"s_cbranch_scc0 {l1}")
    A(f"v_mul_f32 v{n}, v{DACC}, v{DACC}")
    for r in range(1, 4): A(f"v_fma_f32 v{n}, v{DACC+r}, v{DACC+r}, v{n}")
    A(f"ds_swizzle_b32 v{n+1}, v{n} offset:0x401F")
    A("s_waitcnt lgkmcnt(0)")
    A(f"v_add_f32 v{n}, v{n}, v{n+1}")
    A(f"v_mov_b32 v{n+1}, v{n}")
    A(f"v_permlane32_swap_b32 v{n}, v{n+1}")
    A(f"v_add_f32 v{n}, v{n}, v{n+1}")
    A(f"s_lshl_b32 s{S_T}, s{S_TG}, 2"); A(f"s_add_u32 s{S_T}, s{S_T}, {STG_N}")
    A(f"s_branch {le}")
    A.label(l1)
    A(f"v_mul_f32 v{n}, v{DACC}, v{DACC}")
    A(f"v_fma_f32 v{n}, v{DACC+1}, v{DACC+1}, v{n}")
    A(f"s_lshl_b32 s{S_T}, s{S_TG}, 2"); A(f"s_add_u32 s{S_T}, s{S_T}, {STG_N+16}")
    A.label(le)
    for sh in (1, 2, 4, 8):
        A(f"v_max_f32_dpp v{n}, v{n}, v{n} row_ror:{sh} row_mask:0xf bank_mask:0xf")
    A(f"v_mov_b32 v{n+1}, s{S_T}")
    A(f"v_cmp_eq_u32 vcc, 0, v{V_LANE}")
    A(f"s_and_saveexec_b64 s[{S_EX}:{S_EX+1}], vcc")
    A(f"ds_write_b32 v{n+1}, v{n}")
    A(f"s_mov_b64 exec, s[{S_EX}:{S_EX+1}]")

def publish_kn(A):
    t = GT; a_ = 76; b_ = 80
    A(f"v_mov_b32 v{t+2}, {STG_N}")
    A(f"ds_read_b128 {vr(a_,4)}, v{t+2}")
    A(f"ds_read_b128 {vr(b_,4)}, v{t+2} offset:16")
    A("s_waitcnt lgkmcnt(0)")
    A(f"v_max3_f32 v{a_}, v{a_}, v{a_+1}, v{a_+2}"); A(f"v_max_f32 v{a_}, v{a_}, v{a_+3}")
    A(f"v_max3_f32 v{b_}, v{b_}, v{b_+1}, v{b_+2}"); A(f"v_max_f32 v{b_}, v{b_}, v{b_+3}")
    A(f"v_add_f32 v{a_}, v{a_}, v{b_}")
    A(f"v_mul_f32 v{a_}, {f32(1.02)}, v{a_}")
    A(f"v_or_b32 v{a_}, 1, v{a_}")
    A(f"s_lshl_b32 s{S_T}, s{S_TB}, 2"); A(f"s_add_u32 s{S_T}, s{S_T}, {FW_FLAG + FL_KN}")
    A(f"v_lshlrev_b32 v{t+2}, 10, v{V_LANE}")
    A(f"v_cmp_gt_u32 vcc, 32, v{V_LANE}")
    A(f"s_and_saveexec_b64 s[{S_EX}:{S_EX+1}], vcc")
    A(f"buffer_store_dword v{a_}, v{t+2}, {srd(SRD_WS)}, s{S_T} offen sc1")
    A(f"s_mov_b64 exec, s[{S_EX}:{S_EX+1}]")

def v_stage(A):
    t = GT; d = GT + 10
    l1 = A.newlabel("v1"); le = A.newlabel("ve")
    def base():
        A(f"s_mul_i32 s{S_T3}, s{S_TG}, {V_TILE//2}"); A(f"s_add_u32 s{S_T3}, s{S_T3}, {STG}")
        A(f"v_bfe_u32 v{t}, v{V_T}, 2, 1")
        A(f"v_mul_u32_u24 v{t}, {VROWS*16}, v{t}")
        A(f"v_lshrrev_b32 v{t+1}, 3, v{V_T}")
        A(f"v_and_b32 v{t+2}, 3, v{V_T}")
        A(f"v_lshl_add_u32 v{t+1}, v{t+1}, 2, v{t+2}")
        A(f"v_lshl_add_u32 v{t}, v{t+1}, 1, v{t}")
        A(f"v_add_u32 v{t}, s{S_T3}, v{t}")
    A(f"s_cmp_eq_u32 s{S_FH}, 0"); A(f"s_cbranch_scc0 {l1}")
    duty_gemm(A, 2)
    base()
    A(f"v_and_b32 v{t+1}, 1, v{V_G}")
    A(f"v_lshrrev_b32 v{t+2}, 1, v{V_G}")
    A(f"v_lshl_add_u32 v{t+1}, v{t+1}, 1, v{t+2}")
    A(f"v_lshl_add_u32 v{t+1}, v{t+1}, 6, v{t}")
    A(f"v_cvt_pk_bf16_f32 v{d}, v{DACC}, v{DACC+1}")
    A(f"v_cvt_pk_bf16_f32 v{d+1}, v{DACC+2}, v{DACC+3}")
    A(f"ds_write_b16 v{t+1}, v{d}")
    A(f"ds_write_b16_d16_hi v{t+1}, v{d} offset:16")
    A(f"ds_write_b16 v{t+1}, v{d+1} offset:32")
    A(f"ds_write_b16_d16_hi v{t+1}, v{d+1} offset:48")
    A(f"s_branch {le}")
    A.label(l1)
    duty_gemm(A, 3)
    base()
    A(f"v_cvt_pk_bf16_f32 v{d}, v{DACC}, v{DACC+1}")
    A(f"v_mov_b32 v{d+1}, 0x3f80")
    A(f"v_cmp_eq_u32 vcc, 0, v{V_G}")
    A(f"s_and_saveexec_b64 s[{S_EX}:{S_EX+1}], vcc")
    A(f"ds_write_b16 v{t}, v{d} offset:{16*16}")
    A(f"ds_write_b16_d16_hi v{t}, v{d} offset:{17*16}")
    A(f"ds_write_b16 v{t}, v{d+1} offset:{18*16}")
    A(f"s_mov_b64 exec, s[{S_EX}:{S_EX+1}]")
    A.label(le)

def g_stage(A):
    t = GT
    le = A.newlabel("ge")
    A(f"s_cmp_eq_u32 s{S_FH}, 0"); A(f"s_cbranch_scc1 {le}")
    duty_gemm(A, 3)
    A(f"v_cvt_pk_bf16_f32 v{t}, v{DACC}, v{DACC}")
    A(f"v_and_b32 v{t}, 0xffff0000, v{t}")
    A(f"v_mul_f32 v{t}, {f32(-LOG2E)}, v{t}")
    A(f"v_exp_f32 v{t}, v{t}")
    A(f"v_add_f32 v{t}, 1.0, v{t}")
    A(f"v_rcp_f32 v{t}, v{t}")
    A(f"v_cvt_pk_bf16_f32 v{t}, v{t}, v{t}")
    A(f"v_and_b32 v{t}, 0xffff0000, v{t}")
    A(f"s_lshl_b32 s{S_T}, s{S_TG}, 4")
    A(f"v_add_u32 v{t+1}, s{S_T}, v{V_T}")
    A(f"v_lshlrev_b32 v{t+2}, 2, v{t+1}")
    A(f"v_add_u32 v{t+2}, {STG}, v{t+2}")
    k = t + 3; k2 = t + 4; u = t + 5
    A(f"v_cvt_pk_bf16_f32 v{k}, v{DACC+1}, v{DACC+1}")
    A(f"v_and_b32 v{k}, 0xffff, v{k}")
    A(f"v_xor_b32 v{k2}, 0x8000, v{k}")
    A(f"v_xor_b32 v{u}, 0xffff, v{k}")
    A(f"v_cmp_lt_u32 vcc, 0x7fff, v{k}")
    A(f"v_cndmask_b32 v{k}, v{k2}, v{u}, vcc")
    A(f"v_add_u32 v{k2}, s{S_ROW0}, v{t+1}")
    A(f"v_sub_u32 v{k2}, 0xffff, v{k2}")
    A(f"v_lshl_or_b32 v{k}, v{k}, 16, v{k2}")
    A(f"v_mov_b32 v{k2}, v{k}")
    for sh in (1, 2, 4, 8):
        A(f"v_max_u32_dpp v{k2}, v{k2}, v{k2} row_ror:{sh} row_mask:0xf bank_mask:0xf")
    A(f"v_cmp_eq_u32 vcc, v{k}, v{k2}")
    A(f"v_mov_b32 v{u}, 0")
    A(f"v_cndmask_b32 v{k}, v{k}, v{u}, vcc")
    for sh in (1, 2, 4, 8):
        A(f"v_max_u32_dpp v{k}, v{k}, v{k} row_ror:{sh} row_mask:0xf bank_mask:0xf")
    A(f"s_lshl_b32 s{S_T}, s{S_TG}, 3"); A(f"s_add_u32 s{S_T}, s{S_T}, {STG+256}")
    A(f"v_mov_b32 v{u}, s{S_T}")
    A(f"v_cmp_eq_u32 vcc, 0, v{V_G}")
    A(f"s_and_saveexec_b64 s[{S_EX}:{S_EX+1}], vcc")
    A(f"ds_write_b32 v{t+2}, v{t}")
    A(f"v_cmp_eq_u32 vcc, 0, v{V_LANE}")
    A(f"s_and_b64 exec, exec, vcc")
    A(f"ds_write2_b32 v{u}, v{k2}, v{k} offset0:0 offset1:1")
    A(f"s_mov_b64 exec, s[{S_EX}:{S_EX+1}]")
    A.label(le)

def publish(A, duty):
    t = GT; WS = srd(SRD_WS)
    A(f"v_lshlrev_b32 v{t}, 4, v{V_LANE}")
    if duty in ("k", "v"):
        nbytes = TB_V if duty == "k" else TB_BYTES - TB_V
        A(f"s_mul_i32 s{S_T}, s{S_TB}, {TB_BYTES}")
        A(f"s_add_u32 s{S_T}, s{S_T}, {FW_KV + (0 if duty == 'k' else TB_V)}")
        A(f"v_add_u32 v{t+1}, {STG}, v{t}")
        for u in range(3):
            A(f"ds_read_b128 {vr(AF+4*u,4)}, v{t+1} offset:{1024*u}")
        A("s_waitcnt lgkmcnt(0)")
        A(f"buffer_store_dwordx4 {vr(AF,4)}, v{t}, {WS}, s{S_T} offen sc1")
        A(f"buffer_store_dwordx4 {vr(AF+4,4)}, v{t}, {WS}, s{S_T} offen offset:1024 sc1")
        A(f"v_cmp_gt_u32 vcc, {(nbytes-2048)//16}, v{V_LANE}")
        A(f"s_and_saveexec_b64 s[{S_EX}:{S_EX+1}], vcc")
        A(f"buffer_store_dwordx4 {vr(AF+8,4)}, v{t}, {WS}, s{S_T} offen offset:2048 sc1")
        A(f"s_mov_b64 exec, s[{S_EX}:{S_EX+1}]")
    else:
        A(f"v_lshlrev_b32 v{t+1}, 2, v{V_LANE}")
        A(f"v_add_u32 v{t+2}, {STG}, v{t+1}")
        A(f"ds_read_b32 v{AF}, v{t+2}")
        A(f"ds_read_b32 v{AF+1}, v{t+2} offset:256")
        for r in range(4): A(f"v_mov_b32 v{AF+4+r}, 0")
        A("s_waitcnt lgkmcnt(0)")
        A(f"s_lshl_b32 s{S_T}, s{S_ROW0}, 2"); A(f"s_add_u32 s{S_T}, s{S_T}, {FW_G}")
        A(f"buffer_store_dword v{AF}, v{t+1}, {WS}, s{S_T} offen sc1")
        A(f"s_mul_i32 s{S_T}, s{S_TB}, 1152"); A(f"s_add_u32 s{S_T}, s{S_T}, {FW_YACC}")
        A(f"buffer_store_dwordx4 {vr(AF+4,4)}, v{t}, {WS}, s{S_T} offen sc1")
        A(f"v_cmp_gt_u32 vcc, 8, v{V_LANE}")
        A(f"s_and_saveexec_b64 s[{S_EX}:{S_EX+1}], vcc")
        A(f"buffer_store_dwordx4 {vr(AF+4,4)}, v{t}, {WS}, s{S_T} offen offset:1024 sc1")
        A(f"s_lshl_b32 s{S_T}, s{S_TB}, 5"); A(f"s_add_u32 s{S_T}, s{S_T}, {FW_KEYS}")
        A(f"buffer_store_dword v{AF+1}, v{t+1}, {WS}, s{S_T} offen sc1")
        A(f"s_mov_b64 exec, s[{S_EX}:{S_EX+1}]")

V_INIT = 92
def init_probe(A):
    A(f"v_mov_b32 v{V_INIT+1}, {DBG_INIT}")
    A(f"buffer_load_dword v{V_INIT}, v{V_INIT+1}, {srd(SRD_DBG)}, 0 offen sc1")

def raise_flag(A, duty):
    t = GT
    base = {"k": FL_K, "v": FL_V, "g": FL_G}[duty]
    lp = A.newlabel("initp"); done = A.newlabel("initok")
    A("s_waitcnt vmcnt(0)")
    A(f"v_readfirstlane_b32 s81, v{V_INIT}")
    A(f"s_cmp_ge_u32 s81, 32"); A(f"s_cbranch_scc1 {done}")
    A(f"v_mov_b32 v{t}, {DBG_INIT}")
    A(f"s_mov_b32 s80, 0")
    A.label(lp)
    A(f"buffer_load_dword v{t+1}, v{t}, {srd(SRD_DBG)}, 0 offen sc1")
    A("s_waitcnt vmcnt(0)")
    A(f"v_readfirstlane_b32 s81, v{t+1}")
    A(f"s_cmp_ge_u32 s81, 32"); A(f"s_cbranch_scc1 {done}")
    A("s_sleep 4")
    A(f"s_add_u32 s80, s80, 1")
    A(f"s_cmp_lt_u32 s80, 0x40000"); A(f"s_cbranch_scc1 {lp}")
    A.label(done)
    A(f"s_add_u32 s{S_T}, s{S_TB}, {base}")
    A(f"s_lshr_b32 s{S_T2}, s{S_T}, 4"); A(f"s_lshl_b32 s{S_T2}, s{S_T2}, 7")
    A(f"s_and_b32 s{S_T}, s{S_T}, 15"); A(f"s_add_u32 s{S_T}, s{S_T}, s{S_T2}"); A(f"s_add_u32 s{S_T}, s{S_T}, {FW_FLAG}")
    A(f"v_lshlrev_b32 v{t}, 10, v{V_LANE}")
    A(f"v_add_u32 v{t}, s{S_T}, v{t}")
    A(f"v_mov_b32 v{t+1}, 1")
    A(f"v_cmp_gt_u32 vcc, 32, v{V_LANE}")
    A(f"s_and_saveexec_b64 s[{S_EX}:{S_EX+1}], vcc")
    A(f"buffer_store_byte v{t+1}, v{t}, {srd(SRD_WS)}, 0 offen sc1")
    A(f"s_mov_b64 exec, s[{S_EX}:{S_EX+1}]")

def clear_flag_lines(A):
    t = GT
    skip = A.newlabel("noclr")
    A(f"s_cmp_lg_u32 s{S_HG}, 7"); A(f"s_cbranch_scc1 {skip}")
    A(f"s_cmp_lg_u32 s{S_WAVE}, 0"); A(f"s_cbranch_scc1 {skip}")
    for r in range(4): A(f"v_mov_b32 v{t+2+r}, 0")
    A(f"s_lshl_b32 s{S_T}, s{S_TB}, 10"); A(f"s_add_u32 s{S_T}, s{S_T}, {FW_FLAG}")
    A(f"v_lshlrev_b32 v{t}, 4, v{V_LANE}")
    A(f"buffer_store_dwordx4 {vr(t+2,4)}, v{t}, {srd(SRD_WS)}, s{S_T} offen sc1")
    A(f"s_mov_b32 s{S_T}, {FW_FFNC}")
    A(f"s_cmp_eq_u32 s{S_TB}, 0")
    l2 = A.newlabel("noffc")
    A(f"s_cbranch_scc0 {l2}")
    A("s_mov_b64 exec, 1")
    A(f"buffer_store_dwordx4 {vr(t+2,4)}, v{t}, {srd(SRD_WS)}, s{S_T} offen sc1")
    A.label(l2)
    A("s_waitcnt vmcnt(0)")
    A("s_mov_b64 exec, 1")
    A(f"v_mov_b32 v{t}, {DBG_INIT}"); A(f"v_mov_b32 v{t+1}, 1")
    A(f"buffer_atomic_add v{t+1}, v{t}, {srd(SRD_DBG)}, 0 offen sc1")
    A("s_mov_b64 exec, -1")
    A.label(skip)

def residual_x(A):
    t = GT
    A(f"s_mul_i32 s{S_T}, s{S_HG}, 144")
    A(f"s_mul_i32 s{S_T2}, s{S_FH}, 96")
    A(f"s_add_u32 s{S_T}, s{S_T}, s{S_T2}")
    A(f"s_lshl_b32 s{S_T2}, s{S_TG}, 4")
    A(f"v_add_u32 v{t}, s{S_T2}, v{V_T}")
    A(f"v_lshlrev_b32 v{t}, 7, v{t}")
    A(f"v_lshrrev_b32 v{t+1}, 1, v{V_T}")
    for j in range(3):
        A(f"v_lshlrev_b32 v{t+2}, 3, v{V_G}")
        A(f"v_add_u32 v{t+2}, s{S_T}, v{t+2}")
        if j: A(f"v_add_u32 v{t+2}, {32*j}, v{t+2}")
        A(f"v_lshrrev_b32 v{t+3}, 7, v{t+2}")
        A(f"v_lshl_add_u32 v{t+3}, v{t+3}, 13, v{t}")
        A(f"v_bfe_u32 v{t+4}, v{t+2}, 4, 3")
        A(f"v_xor_b32 v{t+4}, v{t+4}, v{t+1}")
        A(f"v_lshl_add_u32 v{t+3}, v{t+4}, 4, v{t+3}")
        A(f"v_and_b32 v{t+2}, 8, v{t+2}")
        A(f"v_add_u32 v{t+3}, v{t+3}, v{t+2}")
        A(f"ds_read_b64 {vr(XRES+2*j,2)}, v{t+3}")

def stage_rows(A, base, vals):
    t = GT + 8
    A(f"s_lshl_b32 s{S_T}, s{S_TG}, 4")
    A(f"v_add_u32 v{t}, s{S_T}, v{V_T}")
    A(f"v_mul_u32_u24 v{t}, 144, v{t}")
    A(f"v_lshl_add_u32 v{t}, v{V_G}, 3, v{t}")
    A(f"s_mul_i32 s{S_T}, s{S_FH}, 96")
    A(f"s_add_u32 s{S_T}, s{S_T}, {base}")
    A(f"v_add_u32 v{t}, s{S_T}, v{t}")
    return t

def q_epilogue(A, nt):
    ad = stage_rows(A, QS, None)
    A(f"s_mov_b32 s{S_T}, {f32(QSCALE)}")
    t = GT
    for j in range(nt):
        a_ = ACC + 4 * j; d = AF + 2 * j
        for r in range(4): A(f"v_mul_f32 v{t+r}, s{S_T}, v{a_+r}")
        A(f"v_cvt_pk_bf16_f32 v{d}, v{t}, v{t+1}")
        A(f"v_cvt_pk_bf16_f32 v{d+1}, v{t+2}, v{t+3}")
        last = (nt == 2 and j == 1)
        if last:
            A(f"v_cmp_gt_u32 vcc, 2, v{V_G}")
            A(f"s_and_saveexec_b64 s[{S_EX}:{S_EX+1}], vcc")
        A(f"ds_write_b64 v{ad}, {vr(d,2)} offset:{32*j}")
        if last: A(f"s_mov_b64 exec, s[{S_EX}:{S_EX+1}]")
```

```python
from fcommon import *

V_LANE = 0
VX0, VX1, VW, VL16 = 1, 2, 3, 6
PR0, PR1 = 144, 145
HT = 8
DUAL = os.environ.get('DUAL', '0') == '1'
PSLEEP = int(os.environ.get('PSLEEP', '1'))
STAGGER = int(os.environ.get('STAGGER', '8'))
S_H = 39

def setup_x(A):
    t = HT
    A(f"v_lshrrev_b32 v{t}, 3, v{V_LANE}")
    A(f"v_mul_u32_u24 v{t}, {ROWB}, v{t}")
    A(f"v_and_b32 v{t+1}, 7, v{V_LANE}")
    A(f"v_lshrrev_b32 v{t+2}, 4, v{V_LANE}")
    A(f"v_xor_b32 v{t+1}, v{t+1}, v{t+2}")
    A(f"v_lshl_add_u32 v{VX0}, v{t+1}, 4, v{t}")
    A(f"v_xor_b32 v{VX1}, 64, v{VX0}")

def setup_w(A):
    t = HT
    for k in range(3):
        if k < 2:
            A(f"s_lshl_b32 s{S_T}, s{S_H}, 7"); A(f"s_add_u32 s{S_T}, s{S_T}, {64*k}")
            A(f"v_add_u32 v{t}, s{S_T}, v{V_LANE}")
        else:
            A(f"v_add_u32 v{t}, 512, v{V_LANE}")
        A(f"v_mul_u32_u24 v{t+1}, 7282, v{t}")
        A(f"v_lshrrev_b32 v{t+1}, 16, v{t+1}")
        A(f"v_mul_u32_u24 v{t+2}, 9, v{t+1}")
        A(f"v_sub_u32 v{t+2}, v{t}, v{t+2}")
        A(f"v_and_b32 v{t+3}, 0x38, v{t+1}")
        A(f"v_and_b32 v{t+4}, 1, v{t+1}")
        A(f"v_lshl_add_u32 v{t+3}, v{t+4}, 2, v{t+3}")
        A(f"v_bfe_u32 v{t+4}, v{t+1}, 1, 2")
        A(f"v_add_u32 v{t+3}, v{t+3}, v{t+4}")
        A(f"v_mul_u32_u24 v{t+3}, {ROWB}, v{t+3}")
        A(f"v_lshl_add_u32 v{VW+k}, v{t+2}, 4, v{t+3}")
    A(f"v_lshlrev_b32 v{VL16}, 4, v{V_LANE}")

def dma(A, vreg, srd_i, ssoff, m0_expr, sc1=False):
    A(m0_expr)
    A("s_nop 0")
    A(f"buffer_load_dwordx4 v{vreg}, {srd(srd_i)}, s{ssoff} offen{' sc1' if sc1 else ''} lds")

def issue_x(A, vm, chunks, sc1, tagf, xb=XB):
    for cc in chunks:
        for o in range(2):
            A(f"s_mul_i32 s{S_T}, s{S_H}, {16*ROWB}")
            A(f"s_add_u32 s{S_T}, s{S_T}, s{S_T3}")
            A(f"s_add_u32 s{S_T}, s{S_T}, {o*8*ROWB + cc*128}")
            A(f"s_lshl_b32 s{S_T2}, s{S_H}, 11")
            dma(A, VX0 + o, SRD_A, S_T, f"s_add_u32 m0, s{S_T2}, {xb + cc*8192 + o*1024}", sc1)
            vm.issue(tagf(cc))

def issue_w(A, vm, h3, reps, tagf, wb=WB):
    for a_ in reps:
        A(f"s_mul_i32 s{S_T}, s{S_HG}, 144")
        A(f"s_add_u32 s{S_T}, s{S_T}, {a_*64*ROWB}")
        for k in range(3 if h3 else 2):
            if k < 2:
                A(f"s_lshl_b32 s{S_T2}, s{S_H}, 11")
                dma(A, VW + k, SRD_W, S_T, f"s_add_u32 m0, s{S_T2}, {wb + (9*a_ + k)*1024}")
            else:
                dma(A, VW + 2, SRD_W, S_T, f"s_mov_b32 m0, {wb + (9*a_ + 8)*1024}")
            vm.issue(tagf(a_))

PRI = 146
def init_issue(A):
    skip = A.newlabel("iissue")
    A(f"v_mov_b32 v{PRI+1}, {DBG_INIT}")
    A(f"s_cmp_lg_u32 s{S_H}, 0"); A(f"s_cbranch_scc1 {skip}")
    A(f"buffer_load_dword v{PRI}, v{PRI+1}, {srd(SRD_DBG)}, 0 offen")
    A.label(skip)

def init_check(A):
    skip = A.newlabel("icheck"); lp = A.newlabel("icheckp")
    A(f"s_cmp_lg_u32 s{S_H}, 0"); A(f"s_cbranch_scc1 {skip}")
    A("s_waitcnt vmcnt(0)")
    A(f"s_mov_b32 s80, 0")
    A.label(lp)
    A(f"v_readfirstlane_b32 s81, v{PRI}")
    A(f"s_cmp_ge_u32 s81, 32"); A(f"s_cbranch_scc1 {skip}")
    A("s_sleep 8")
    A(f"buffer_load_dword v{PRI}, v{PRI+1}, {srd(SRD_DBG)}, 0 offen sc1")
    A("s_waitcnt vmcnt(0)")
    A(f"s_add_u32 s80, s80, 1")
    A(f"s_cmp_lt_u32 s80, 0x40000"); A(f"s_cbranch_scc1 {lp}")
    A.label(skip)

def poll_issue(A, voff):
    t = HT
    skip = A.newlabel("pissue")
    A(f"s_cmp_lg_u32 s{S_H}, 0"); A(f"s_cbranch_scc1 {skip}")
    voff(A, t)
    A(f"buffer_load_dword v{PR0}, v{t}, {srd(SRD_WS)}, 0 offen sc1")
    A.label(skip)

def poll(A, voff, nlanes, cmpval, name, ge=False, preissued=False):
    if DUAL: return poll2(A, voff, nlanes, cmpval, name, ge, preissued)
    t = HT
    skip = A.newlabel(name + "skip"); lp = A.newlabel(name + "lp"); done = A.newlabel(name + "ok")
    chk = A.newlabel(name + "chk")
    A(f"s_cmp_lg_u32 s{S_H}, 0"); A(f"s_cbranch_scc1 {skip}")
    A(f"s_mov_b32 s80, 0")
    if preissued: A(f"s_branch {chk}")
    else: voff(A, t)
    A.label(lp)
    A(f"buffer_load_dword v{PR0}, v{t}, {srd(SRD_WS)}, 0 offen sc1")
    A.label(chk)
    A("s_waitcnt vmcnt(0)")
    A(f"v_mov_b32 v{t+2}, {cmpval}")
    A(f"v_cmp_{'le' if ge else 'eq'}_u32 vcc, v{t+2}, v{PR0}")
    A("s_nop 1")
    A(f"s_not_b64 s[82:83], vcc")
    A(f"s_cmp_eq_u64 s[82:83], 0")
    A(f"s_cbranch_scc1 {done}")
    A(f"s_sleep {PSLEEP}")
    A(f"s_add_u32 s80, s80, 1")
    A(f"s_cmp_lt_u32 s80, 0x80000"); A(f"s_cbranch_scc1 {lp}")
    A.label(done)
    A.label(skip)

def poll2(A, voff, nlanes, cmpval, name, ge=False, preissued=False):
    t = HT
    skip = A.newlabel(name + "skip"); lp = A.newlabel(name + "lp"); done = A.newlabel(name + "ok")
    A(f"s_cmp_lg_u32 s{S_H}, 0"); A(f"s_cbranch_scc1 {skip}")
    A(f"s_mov_b32 s80, 0")
    ld = lambda r: A(f"buffer_load_dword v{r}, v{t}, {srd(SRD_WS)}, 0 offen sc1")
    def check(r):
        A(f"v_cmp_{'le' if ge else 'eq'}_u32 vcc, v{t+2}, v{r}")
        A("s_nop 1")
        A(f"s_not_b64 s[82:83], vcc")
        A(f"s_cmp_eq_u64 s[82:83], 0")
        A(f"s_cbranch_scc1 {done}")
    if not preissued:
        voff(A, t)
        ld(PR0)
    A(f"v_mov_b32 v{t+2}, {cmpval}")
    if preissued:
        A("s_waitcnt vmcnt(0)"); check(PR0)
        ld(PR0)
    if STAGGER: A(f"s_sleep {STAGGER}")
    A.label(lp)
    ld(PR1)
    A("s_waitcnt vmcnt(1)"); check(PR0)
    ld(PR0)
    A("s_waitcnt vmcnt(1)"); check(PR1)
    A(f"s_add_u32 s80, s80, 1")
    A(f"s_cmp_lt_u32 s80, 0x40000"); A(f"s_cbranch_scc1 {lp}")
    A.label(done)
    A.label(skip)

KV_ST0 = 37
def issue_kv(A, first, last):
    A(f"s_lshl_b32 s{S_T2}, s{S_H}, 10")
    for u in range(first, last, 4):
        n = min(4, last - u)
        skip = None
        if n < 4:
            skip = A.newlabel("kvt")
            A(f"s_cmp_ge_u32 s{S_H}, {n}"); A(f"s_cbranch_scc1 {skip}")
        A(f"s_add_u32 s{S_T}, s{S_T2}, {u*1024}")
        dma(A, VL16, SRD_KV, S_T, f"s_mov_b32 m0, s{S_T}", sc1=not PLAIN)
        if skip: A.label(skip)

def key_norm(A):
    t = HT
    skip = A.newlabel("nokn"); lp = A.newlabel("knp"); done = A.newlabel("knd")
    A(f"v_and_b32 v{t}, 31, v{V_LANE}"); A(f"v_lshlrev_b32 v{t}, 2, v{t}")
    A(f"s_lshl_b32 s{S_T}, s{S_TB}, 10"); A(f"s_add_u32 s{S_T}, s{S_T}, {FW_FLAG + FL_KN}")
    A(f"v_add_u32 v{t}, s{S_T}, v{t}")
    A(f"s_cmp_lg_u32 s{S_H}, 1"); A(f"s_cbranch_scc1 {skip}")
    A(f"s_mov_b32 s80, 0")
    A.label(lp)
    A(f"buffer_load_dword v{t+1}, v{t}, {srd(SRD_WS)}, 0 offen sc1")
    A("s_waitcnt vmcnt(0)")
    A(f"v_cmp_eq_u32 vcc, 0, v{t+1}")
    A("s_nop 1")
    A(f"s_cmp_eq_u64 vcc, 0"); A(f"s_cbranch_scc1 {done}")
    A("s_sleep 4")
    A(f"s_add_u32 s80, s80, 1")
    A(f"s_cmp_lt_u32 s80, 0x40000"); A(f"s_cbranch_scc1 {lp}")
    A.label(done)
    for sh in (1, 2, 4, 8):
        A(f"v_max_f32_dpp v{t+1}, v{t+1}, v{t+1} row_ror:{sh} row_mask:0xf bank_mask:0xf")
    A(f"v_readlane_b32 s80, v{t+1}, 0"); A(f"v_readlane_b32 s81, v{t+1}, 16")
    A(f"s_max_u32 s80, s80, s81")
    A(f"v_mov_b32 v{t}, {L_KN}"); A(f"v_mov_b32 v{t+1}, s80")
    A(f"ds_write_b32 v{t}, v{t+1}")
    A.label(skip)

F_W = 24
F_X = 96
F_KEY = 148
F_A = 152
F_ACC = 160
S_M, S_KH, S_SL = 84, 85, 86

def lds_sync(A, idx, name, sleep=1):
    t = HT + 12
    A("s_waitcnt lgkmcnt(0)")
    A(f"v_mov_b32 v{t}, {L_CNT + 4*idx}")
    A(f"v_mov_b32 v{t+1}, 1")
    A(f"s_mov_b64 s[{S_EX}:{S_EX+1}], exec")
    A("s_mov_b64 exec, 1")
    A(f"ds_add_u32 v{t}, v{t+1}")
    A(f"s_mov_b64 exec, s[{S_EX}:{S_EX+1}]")
    lp = A.newlabel(name); done = A.newlabel(name + "d")
    A(f"s_mov_b32 s80, 0")
    A.label(lp)
    A(f"ds_read_b32 v{t+1}, v{t}")
    A("s_waitcnt lgkmcnt(0)")
    A(f"v_readfirstlane_b32 s81, v{t+1}")
    A(f"s_cmp_ge_u32 s81, 4"); A(f"s_cbranch_scc1 {done}")
    A(f"s_sleep {sleep}")
    A(f"s_add_u32 s80, s80, 1")
    A(f"s_cmp_lt_u32 s80, 0x100000"); A(f"s_cbranch_scc1 {lp}")
    A.label(done)

def wait_released(A):
    t = HT + 12
    lp = A.newlabel("rel"); done = A.newlabel("reld")
    A(f"v_mov_b32 v{t}, {L_CNT + 12}")
    A(f"s_mov_b32 s80, 0")
    A.label(lp)
    A(f"ds_read_b32 v{t+1}, v{t}")
    A("s_waitcnt lgkmcnt(0)")
    A(f"v_readfirstlane_b32 s81, v{t+1}")
    A(f"s_cmp_ge_u32 s81, 512"); A(f"s_cbranch_scc1 {done}")
    A("s_sleep 16")
    A(f"s_add_u32 s80, s80, 1")
    A(f"s_cmp_lt_u32 s80, 0x400000"); A(f"s_cbranch_scc1 {lp}")
    A.label(done)

def select_top2(A):
    t = HT
    nosel = A.newlabel("nosel")
    A(f"s_cmp_lg_u32 s{S_H}, 0"); A(f"s_cbranch_scc1 {nosel}")
    m1, m2 = t, t + 1
    A(f"v_max_u32 v{m1}, v{F_KEY}, v{F_KEY+1}")
    A(f"v_min_u32 v{m2}, v{F_KEY}, v{F_KEY+1}")
    for i in range(2, 4):
        A(f"v_med3_u32 v{m2}, v{m1}, v{m2}, v{F_KEY+i}")
        A(f"v_max_u32 v{m1}, v{m1}, v{F_KEY+i}")
    def wave_max(reg, sdst):
        A(f"v_mov_b32 v{t+2}, v{reg}")
        for sh in (1, 2, 4, 8):
            A(f"v_max_u32_dpp v{t+2}, v{t+2}, v{t+2} row_ror:{sh} row_mask:0xf bank_mask:0xf")
        A(f"v_readlane_b32 s{sdst}, v{t+2}, 0")
        for ln in (16, 32, 48):
            A(f"v_readlane_b32 s{S_T}, v{t+2}, {ln}")
            A(f"s_max_u32 s{sdst}, s{sdst}, s{S_T}")
    wave_max(m1, 80)
    A(f"v_cmp_eq_u32 vcc, s80, v{m1}")
    A(f"v_cndmask_b32 v{m1}, v{m1}, v{m2}, vcc")
    wave_max(m1, 81)
    A(f"v_mov_b32 v{t}, s80"); A(f"v_mov_b32 v{t+1}, s81")
    A(f"v_cmp_eq_u32 vcc, 1, v{V_LANE}")
    A(f"v_cndmask_b32 v{t}, v{t}, v{t+1}, vcc")
    A(f"v_lshrrev_b32 v{t+1}, 16, v{t}")
    A(f"v_xor_b32 v{t+2}, 0x8000, v{t+1}")
    A(f"v_xor_b32 v{t+3}, 0xffff, v{t+1}")
    A(f"v_cmp_lt_u32 vcc, 0x7fff, v{t+1}")
    A(f"v_cndmask_b32 v{t+1}, v{t+3}, v{t+2}, vcc")
    A(f"v_lshlrev_b32 v{t+1}, 16, v{t+1}")
    A(f"v_mul_f32 v{t+1}, {f32(-LOG2E)}, v{t+1}")
    A(f"v_exp_f32 v{t+1}, v{t+1}")
    A(f"v_add_f32 v{t+1}, 1.0, v{t+1}")
    A(f"v_rcp_f32 v{t+1}, v{t+1}")
    A(f"v_cvt_pk_bf16_f32 v{t+1}, v{t+1}, v{t+1}")
    A(f"v_and_b32 v{t+1}, 0xffff0000, v{t+1}")
    A(f"v_and_b32 v{t}, 0xffff, v{t}")
    A(f"v_sub_u32 v{t}, 0xffff, v{t}")
    A(f"v_min_u32 v{t}, {S_TOK-1}, v{t}")
    A(f"v_lshlrev_b32 v{t+2}, 2, v{V_LANE}")
    A(f"v_add_u32 v{t+2}, {L_SEL}, v{t+2}")
    A(f"v_cmp_gt_u32 vcc, 2, v{V_LANE}")
    A(f"s_and_saveexec_b64 s[{S_EX}:{S_EX+1}], vcc")
    A(f"ds_write_b32 v{t+2}, v{t}")
    A(f"ds_write_b32 v{t+2}, v{t+1} offset:8")
    A(f"s_mov_b64 exec, s[{S_EX}:{S_EX+1}]")
    A.label(nosel)

def read_selection(A):
    t = HT
    A(f"v_mov_b32 v{t}, {L_SEL}")
    A(f"ds_read_b64 {vr(t+2,2)}, v{t}")
    A("s_waitcnt lgkmcnt(0)")
    A(f"v_readfirstlane_b32 s{S_IDX0}, v{t+2}")
    A(f"v_readfirstlane_b32 s{S_IDX1}, v{t+3}")

def ffn(A):
    t = HT; WS = srd(SRD_WS)
    FT, FG = t + 14, t + 15
    A(f"v_and_b32 v{FT}, 15, v{V_LANE}"); A(f"v_lshrrev_b32 v{FG}, 4, v{V_LANE}")
    A(f"s_and_b32 s{S_M}, s{S_H}, 1"); A(f"s_lshr_b32 s{S_KH}, s{S_H}, 1")
    A(f"s_cmp_eq_u32 s{S_M}, 0")
    A(f"s_cselect_b32 s{SRD_E}, s{S_WG}, s{S_WU}")
    A(f"s_cselect_b32 s{SRD_E+1}, s{S_WG+1}, s{S_WU+1}")
    A(f"s_and_b32 s{SRD_E+1}, s{SRD_E+1}, 0xffff")
    A(f"s_mov_b32 s{SRD_E+2}, {D*F*2}"); A(f"s_mov_b32 s{SRD_E+3}, 0x20000")
    mk_srd(A, SRD_F, S_WD, F * ROWB)
    A(f"v_lshrrev_b32 v{t}, 2, v{V_LANE}")
    A(f"v_and_b32 v{t+1}, 3, v{V_LANE}")
    A(f"v_lshlrev_b32 v{t+1}, 4, v{t+1}")
    A(f"v_mul_u32_u24 v{t+2}, {ROWB}, v{t}")
    A(f"v_add_u32 v{t+2}, v{t+2}, v{t+1}")
    A(f"v_mul_u32_u24 v{t}, {F*2}, v{t}")
    A(f"v_add_u32 v{t}, v{t}, v{t+1}")
    A(f"s_mul_i32 s{S_T}, s{S_KH}, {9*32*F*2}")
    A(f"s_lshl_b32 s{S_T2}, s{S_SL}, 6")
    A(f"s_add_u32 s{S_T}, s{S_T}, s{S_T2}")
    for s_ in range(9):
        for hf in range(2):
            A(f"buffer_load_dwordx4 {vr(F_W+8*s_+4*hf,4)}, v{t}, {srd(SRD_E)}, s{S_T} offen")
            A(f"s_add_u32 s{S_T}, s{S_T}, {16*F*2}")
    A(f"v_mov_b32 v{t}, s{S_IDX0}"); A(f"v_mov_b32 v{t+1}, s{S_IDX1}")
    A(f"v_cmp_eq_u32 vcc, 1, v{FT}")
    A(f"v_cndmask_b32 v{t}, v{t}, v{t+1}, vcc")
    A(f"v_mul_u32_u24 v{t}, {ROWB}, v{t}")
    A(f"v_lshl_add_u32 v{t}, v{FG}, 4, v{t}")
    A(f"s_mul_i32 s{S_T}, s{S_KH}, {9*64}")
    for s_ in range(9):
        A(f"buffer_load_dwordx4 {vr(F_X+4*s_,4)}, v{t}, {srd(SRD_A)}, s{S_T} offen offset:{64*s_}")
    wr, r1 = t + 3, t + 4
    A(f"s_lshl_b32 s{S_T}, s{S_H}, 11"); A(f"s_add_u32 s{S_T}, s{S_T}, {H_STG}")
    A(f"v_add_u32 v{wr}, s{S_T}, v{VL16}")
    A(f"v_bfe_u32 v{t+5}, v{V_LANE}, 2, 2")
    A(f"v_lshl_add_u32 v{t+5}, v{FG}, 3, v{t+5}")
    A(f"v_and_b32 v{t+6}, 3, v{V_LANE}")
    A(f"v_lshlrev_b32 v{t+6}, 3, v{t+6}")
    A(f"v_lshl_add_u32 v{r1}, v{t+5}, 6, v{t+6}")
    A(f"v_add_u32 v{r1}, s{S_T}, v{r1}")
    def through_lds(src, ntile):
        A(f"ds_write_b128 v{wr}, {vr(src,4)}")
        A(f"ds_write_b128 v{wr}, {vr(src+4,4)} offset:1024")
        A("s_waitcnt lgkmcnt(0)")
        for tile in range(ntile):
            for q in range(2):
                A(f"ds_read_b64_tr_b16 {vr(F_A+4*tile+2*q,2)}, v{r1} offset:{32*tile + 256*q}")
        A("s_waitcnt lgkmcnt(0)")
    A("s_waitcnt vmcnt(0)")
    for s_ in range(9):
        through_lds(F_W + 8 * s_, 2)
        for tile in range(2):
            c = "0" if s_ == 0 else vr(F_ACC + 4 * tile, 4)
            A(f"v_mfma_f32_16x16x32_bf16 {vr(F_ACC+4*tile,4)}, {vr(F_A+4*tile,4)}, {vr(F_X+4*s_,4)}, {c}")
        if s_ == 4:
            A(f"s_mul_i32 s{S_T}, s{S_SL}, {32*ROWB}")
            A(f"s_mul_i32 s{S_T2}, s{S_H}, 288")
            A(f"s_add_u32 s{S_T}, s{S_T}, s{S_T2}")
            A(f"s_add_u32 s{S_T2}, s{S_T}, {16*ROWB}")
            for rd in range(5):
                A(f"buffer_load_dwordx4 {vr(F_W+8*rd,4)}, v{t+2}, {srd(SRD_F)}, s{S_T} offen offset:{64*rd}")
                A(f"buffer_load_dwordx4 {vr(F_W+8*rd+4,4)}, v{t+2}, {srd(SRD_F)}, s{S_T2} offen offset:{64*rd}")
    A("s_nop 7")
    A(f"v_lshlrev_b32 v{t+5}, 1, v{FG}")
    A(f"v_add_u32 v{t+5}, v{t+5}, v{FT}")
    A(f"v_lshlrev_b32 v{t+5}, 4, v{t+5}")
    A(f"v_add_u32 v{t+7}, {H_RED}, v{t+5}")
    A(f"s_lshl_b32 s{S_T}, s{S_H}, 8")
    A(f"v_add_u32 v{t+6}, s{S_T}, v{t+7}")
    A(f"v_cmp_gt_u32 vcc, 2, v{FT}")
    A(f"s_and_saveexec_b64 s[{S_EX}:{S_EX+1}], vcc")
    A(f"ds_write_b128 v{t+6}, {vr(F_ACC,4)}")
    A(f"ds_write_b128 v{t+6}, {vr(F_ACC+4,4)} offset:128")
    A(f"s_mov_b64 exec, s[{S_EX}:{S_EX+1}]")
    lds_sync(A, 0, "hs0")
    noh = A.newlabel("noh")
    A(f"s_cmp_lg_u32 s{S_H}, 3"); A(f"s_cbranch_scc1 {noh}")
    B0 = F_X
    A(f"v_lshrrev_b32 v{t+5}, 5, v{V_LANE}")
    A(f"v_bfe_u32 v{t+6}, v{V_LANE}, 4, 1")
    A(f"v_bfe_u32 v{t+7}, v{V_LANE}, 2, 2")
    A(f"v_and_b32 v{t+8}, 3, v{V_LANE}")
    A(f"v_lshl_add_u32 v{t+7}, v{t+7}, 1, v{t+5}")
    A(f"v_lshlrev_b32 v{t+7}, 4, v{t+7}")
    A(f"v_lshl_add_u32 v{t+7}, v{t+6}, 7, v{t+7}")
    A(f"v_lshl_add_u32 v{t+7}, v{t+8}, 2, v{t+7}")
    A(f"v_add_u32 v{t+7}, {H_RED}, v{t+7}")
    for w in range(4): A(f"ds_read_b32 v{B0+w}, v{t+7} offset:{256*w}")
    A(f"v_lshlrev_b32 v{t+6}, 1, v{V_LANE}")
    A(f"v_add_u32 v{t+6}, {H_H}, v{t+6}")
    A("s_waitcnt lgkmcnt(0)")
    gq, uq, e = B0, B0 + 1, B0 + 4
    A(f"v_add_f32 v{gq}, v{gq}, v{B0+2}")
    A(f"v_add_f32 v{uq}, v{uq}, v{B0+3}")
    A(f"v_cvt_pk_bf16_f32 v{gq}, v{gq}, v{uq}")
    A(f"v_and_b32 v{uq}, 0xffff0000, v{gq}")
    A(f"v_lshlrev_b32 v{gq}, 16, v{gq}")
    A(f"v_mul_f32 v{e}, {f32(-LOG2E)}, v{gq}")
    A(f"v_exp_f32 v{e}, v{e}")
    A(f"v_add_f32 v{e}, 1.0, v{e}")
    A(f"v_rcp_f32 v{e}, v{e}")
    A(f"v_mul_f32 v{gq}, v{gq}, v{e}")
    A(f"v_cvt_pk_bf16_f32 v{gq}, v{gq}, v{gq}")
    A(f"v_and_b32 v{gq}, 0xffff0000, v{gq}")
    A(f"v_mul_f32 v{gq}, v{gq}, v{uq}")
    A(f"v_cvt_pk_bf16_f32 v{gq}, v{gq}, v{gq}")
    A(f"ds_write_b16 v{t+6}, v{gq}")
    A.label(noh)
    lds_sync(A, 1, "hs1")
    HA = F_X + 16
    A(f"v_and_b32 v{t+5}, 3, v{FT}")
    A(f"v_lshrrev_b32 v{t+6}, 2, v{FT}")
    A(f"v_lshlrev_b32 v{t+7}, 6, v{t+5}")
    A(f"v_lshl_add_u32 v{t+7}, v{FG}, 4, v{t+7}")
    A(f"v_add_u32 v{t+7}, {H_H}, v{t+7}")
    A(f"v_mov_b32 v{t+8}, {OOR}")
    A(f"v_cmp_gt_u32 vcc, 2, v{t+5}")
    A(f"v_cndmask_b32 v{t+7}, v{t+8}, v{t+7}, vcc")
    for j in range(4):
        A(f"v_cmp_eq_u32 vcc, {j}, v{t+6}")
        A(f"v_cndmask_b32 v{t+5}, v{t+8}, v{t+7}, vcc")
        A(f"ds_read_b128 {vr(HA+4*j,4)}, v{t+5}")
    A("s_waitcnt vmcnt(0)")
    DY = F_X
    for rd in range(5):
        nt = 2 if rd < 4 else 1
        through_lds(F_W + 8 * rd, nt)
        for tile in range(nt):
            u, j = divmod(2 * rd + tile, 4)
            c = "0" if j == 0 else vr(DY + 4 * u, 4)
            A(f"v_mfma_f32_16x16x32_bf16 {vr(DY+4*u,4)}, {vr(HA+4*j,4)}, {vr(F_A+4*tile,4)}, {c}")
    A("s_nop 7")
    A(f"s_and_b32 s{S_T}, s2, {Y_REP-1}")
    A(f"s_mul_i32 s{S_T}, s{S_T}, {2*D*4}")
    A(f"s_mul_i32 s{S_T2}, s{S_H}, {144*4}")
    A(f"s_add_u32 s{S_T}, s{S_T}, s{S_T2}")
    A(f"s_add_u32 s{S_T}, s{S_T}, {FW_YACC}")
    A(f"s_add_u32 s{S_T2}, s{S_T}, {D*4}")
    A(f"v_lshlrev_b32 v{t+5}, 2, v{V_LANE}")
    for u in range(3):
        if u == 2: A("s_mov_b64 exec, 0xffff")
        A(f"buffer_atomic_add_f32 v{DY+4*u}, v{t+5}, {WS}, s{S_T} offen offset:{256*u}")
        A(f"buffer_atomic_add_f32 v{DY+4*u+1}, v{t+5}, {WS}, s{S_T2} offen offset:{256*u}")
    A("s_mov_b64 exec, -1")
    A("s_waitcnt vmcnt(0)")
    lds_sync(A, 2, "hs2")
    nof = A.newlabel("nof")
    A(f"s_cmp_lg_u32 s{S_H}, 0"); A(f"s_cbranch_scc1 {nof}")
    A(f"v_mov_b32 v{t}, {FW_FFNC}"); A(f"v_mov_b32 v{t+1}, 1")
    A("s_mov_b64 exec, 1")
    A(f"buffer_atomic_add v{t+1}, v{t}, {WS}, 0 offen sc1")
    A("s_mov_b64 exec, -1")
    A.label(nof)

def routed_update(A):
    t = HT; WS = srd(SRD_WS)
    skip = A.newlabel("noupd")
    A(f"s_cmp_lg_u32 s{S_H}, 1"); A(f"s_cbranch_scc1 {skip}")
    A(f"s_sub_u32 s84, s{S_IDX0}, s{S_ROW0}"); A(f"s_sub_u32 s85, s{S_IDX1}, s{S_ROW0}")
    A(f"s_min_u32 s86, s84, s85")
    A(f"s_cmp_lt_u32 s86, 64"); A(f"s_cbranch_scc0 {skip}")
    lp = A.newlabel("ypoll"); done = A.newlabel("ydone")
    A(f"s_mov_b32 s80, 0")
    A(f"v_mov_b32 v{t}, {FW_FFNC}")
    A.label(lp)
    A(f"buffer_load_dword v{t+1}, v{t}, {WS}, 0 offen sc1")
    A("s_waitcnt vmcnt(0)")
    A(f"v_readfirstlane_b32 s81, v{t+1}")
    A(f"s_cmp_ge_u32 s81, 144"); A(f"s_cbranch_scc1 {done}")
    A("s_sleep 8")
    A(f"s_add_u32 s80, s80, 1")
    A(f"s_cmp_lt_u32 s80, 0x40000"); A(f"s_cbranch_scc1 {lp}")
    A.label(done)
    Y = F_W
    A(f"v_lshlrev_b32 v{t}, 3, v{V_LANE}")
    A(f"s_mul_i32 s{S_T}, s{S_HG}, 288"); A(f"s_add_u32 s{S_T}, s{S_T}, {FW_YACC}")
    A(f"v_mov_b32 v{t+2}, {L_SEL+8}")
    A(f"ds_read_b64 {vr(t+4,2)}, v{t+2}")
    A(f"v_cmp_gt_u32 vcc, 36, v{V_LANE}")
    A(f"s_and_saveexec_b64 s[{S_EX}:{S_EX+1}], vcc")
    for j in range(2):
        for rp in range(Y_REP):
            A(f"s_add_u32 s{S_T2}, s{S_T}, {rp*2*D*4 + j*D*4}")
            A(f"buffer_load_dwordx2 {vr(Y+16*j+2*rp,2)}, v{t}, {WS}, s{S_T2} offen sc1")
    A("s_waitcnt vmcnt(0) lgkmcnt(0)")
    for j in range(2):
        b = Y + 16 * j
        for rp in range(1, Y_REP):
            A(f"v_add_f32 v{b}, v{b}, v{b+2*rp}"); A(f"v_add_f32 v{b+1}, v{b+1}, v{b+2*rp+1}")
        for e in range(2):
            y = b + e
            A(f"v_cvt_pk_bf16_f32 v{y}, v{y}, v{y}")
            A(f"v_and_b32 v{y}, 0xffff0000, v{y}")
            A(f"v_mul_f32 v{y}, v{t+4+j}, v{y}")
            A(f"v_cvt_pk_bf16_f32 v{y}, v{y}, v{y}")
            A(f"v_and_b32 v{y}, 0xffff0000, v{y}")
        A(f"v_add_u32 v{t+2}, {L_UPD + 288*j}, v{t}")
        A(f"ds_write_b64 v{t+2}, {vr(b,2)}")
    A("s_mov_b64 exec, -1")
    A("s_waitcnt lgkmcnt(0)")
    A.label(skip)

def xcc_publish(A):
    t = HT
    skip = A.newlabel("noxp")
    A(f"s_cmp_lg_u32 s{S_H}, 2"); A(f"s_cbranch_scc1 {skip}")
    A(f"s_getreg_b32 s{S_T}, hwreg(HW_REG_XCC_ID, 0, 4)")
    A(f"s_add_u32 s{S_T}, s{S_T}, 1")
    A(f"s_lshl_b32 s{S_T2}, s{S_TB}, 10"); A(f"s_add_u32 s{S_T2}, s{S_T2}, s{S_HG}"); A(f"s_add_u32 s{S_T2}, s{S_T2}, {FW_FLAG + FL_XCC}")
    A(f"v_mov_b32 v{t}, s{S_T2}"); A(f"v_mov_b32 v{t+1}, s{S_T}")
    A("s_mov_b64 exec, 1")
    A(f"buffer_store_byte v{t+1}, v{t}, {srd(SRD_WS)}, 0 offen sc1")
    A("s_mov_b64 exec, -1")
    A.label(skip)

def xcc_compare(A):
    t = HT
    skip = A.newlabel("noxc"); lp = A.newlabel("xcp"); done = A.newlabel("xcd")
    A(f"s_lshl_b32 s{S_T2}, s{S_TB}, 10"); A(f"s_add_u32 s{S_T2}, s{S_T2}, {FW_FLAG + FL_XCC}")
    A(f"v_mov_b32 v{t}, s{S_T2}")
    A(f"s_cmp_lg_u32 s{S_H}, 2"); A(f"s_cbranch_scc1 {skip}")
    A(f"s_mov_b32 s80, 0"); A(f"s_mov_b32 s83, 0")
    A.label(lp)
    A(f"buffer_load_dwordx2 {vr(t+2,2)}, v{t}, {srd(SRD_WS)}, 0 offen sc1")
    A("s_waitcnt vmcnt(0)")
    A(f"v_readfirstlane_b32 s81, v{t+2}"); A(f"v_readfirstlane_b32 s82, v{t+3}")
    A(f"s_sub_u32 s84, s81, 0x01010101"); A(f"s_andn2_b32 s84, s84, s81")
    A(f"s_sub_u32 s85, s82, 0x01010101"); A(f"s_andn2_b32 s85, s85, s82")
    A(f"s_or_b32 s84, s84, s85"); A(f"s_and_b32 s84, s84, 0x80808080")
    A(f"s_cmp_eq_u32 s84, 0"); A(f"s_cbranch_scc1 {done}")
    A("s_sleep 8")
    A(f"s_add_u32 s80, s80, 1")
    A(f"s_cmp_lt_u32 s80, 0x40000"); A(f"s_cbranch_scc1 {lp}")
    A(f"s_mov_b32 s81, 1"); A(f"s_mov_b32 s82, 2")
    A.label(done)
    A(f"s_and_b32 s84, s81, 0xff"); A(f"s_mul_i32 s84, s84, 0x01010101")
    A(f"s_cmp_eq_u32 s84, s81"); A(f"s_cselect_b32 s83, 1, 0")
    A(f"s_cmp_eq_u32 s84, s82"); A(f"s_cselect_b32 s83, s83, 0")
    A(f"v_mov_b32 v{t}, {L_SAME}"); A(f"v_mov_b32 v{t+1}, s83")
    A(f"ds_write_b32 v{t}, v{t+1}")
    A("s_waitcnt lgkmcnt(0)")
    A.label(skip)
```

```python
from fcommon import *
import sys
import f_gemm as G, f_attn as AT, f_out as FO, f_help as HP

NWAVES = 12
SAMEXCD = os.environ.get('SAMEXCD', '1') == '1'
LA1 = int(os.environ.get('LA1', '2'))
XFIRST = os.environ.get('XFIRST', '0') == '1'
FLAG_STAGE = int(os.environ.get('FLAG_STAGE', '2'))

def busy_delay(A, env):
    n = int(os.environ.get(env, "0"))
    if not n: return
    l = A.newlabel("dly")
    A("s_memrealtime s[88:89]"); A("s_waitcnt lgkmcnt(0)")
    A.label(l)
    A("s_memrealtime s[90:91]"); A("s_waitcnt lgkmcnt(0)")
    A("s_sub_u32 s90, s90, s88"); A(f"s_cmp_lt_u32 s90, {n}"); A(f"s_cbranch_scc1 {l}")

def stop_here(A, name):
    if STOP == name:
        A("s_waitcnt vmcnt(0) lgkmcnt(0)")
        A("s_endpgm")
        return True
    return False

S_RAISED = 87
def try_raise(A, duty, blocking):
    nf = A.newlabel("noflag")
    A(f"s_cmp_lg_u32 s{S_WAVE}, 0"); A(f"s_cbranch_scc1 {nf}")
    A(f"s_cmp_lg_u32 s{S_RAISED}, 0"); A(f"s_cbranch_scc1 {nf}")
    if not blocking:
        A(f"s_getreg_b32 s{S_T}, hwreg(HW_REG_IB_STS, 0, 4)")
        A(f"s_cmp_lg_u32 s{S_T}, 0"); A(f"s_cbranch_scc1 {nf}")
    pstamp(A, 3, "p1")
    G.raise_flag(A, duty)
    if duty == "k": G.publish_kn(A)
    pstamp(A, 4, "p1")
    A(f"s_mov_b32 s{S_RAISED}, 1")
    A.label(nf)

def compute_p1(A, R, duty):
    if duty:
        if duty in ("k", "v"):
            mk_srd(A, SRD_E, S_WK if duty == "k" else S_WV, 576 * 36)
        else:
            mk_srd(A, SRD_E, S_GW, ROWB); mk_srd(A, SRD_F, S_WR, ROWB)
        G.duty_loads(A, duty)
    G.gemm_addresses(A)
    if duty:
        G.duty_addresses(A)
        G.duty_writes(A, duty)
    A("s_waitcnt lgkmcnt(0)")
    R.bar("b1")
    pstamp(A, 1, "p1")
    if not duty: G.residual_x(A)
    if duty:
        {"k": G.k_stage, "v": G.v_stage, "g": G.g_stage}[duty](A)
        A("s_waitcnt lgkmcnt(0)")
        R.bar("b2")
        pstamp(A, 2, "p1")
        np_ = A.newlabel("nopub")
        A(f"s_cmp_lg_u32 s{S_WAVE}, 0"); A(f"s_cbranch_scc1 {np_}")
        G.publish(A, duty)
        G.init_probe(A)
        A(f"s_mov_b32 s{S_RAISED}, 0")
        A.label(np_)
        if duty == "k": G.k_norm(A)
        G.residual_x(A)
        A("s_waitcnt lgkmcnt(0)")
    lf = A.newlabel("p1f1"); le = A.newlabel("p1e")
    bars0 = list(R.bars)
    A(f"s_cmp_eq_u32 s{S_FH}, 0"); A(f"s_cbranch_scc0 {lf}")
    if duty: stages = [("bW2", list(range(0, 12))), ("bW3", list(range(12, 18)))]
    else: stages = [(f"bW{q}", list(range(4 * q, 4 * q + 4))) for q in range(3)] + [("bW3", list(range(12, 18)))]
    for nt in (3, 2):
        if nt == 2:
            A.label(lf); R.bars = list(bars0)
        gm = G.Gemm(A, nt, 4)
        for name, steps in stages:
            if name == "bW3":
                if duty and nt == 3: try_raise(A, duty, False)
                pstamp(A, 9, "w")
            R.bar(name)
            if name == "bW3": pstamp(A, 5, "p1")
            else: pstamp(A, int(name[2]), "w")
            if duty and name == "bW2":
                for part in (steps[:5], steps[5:9], steps[9:]):
                    gm.steps(part, 12, 18, la_a=LA1, burst=True)
                    if nt == 3 and part is not None and part[-1] != 11: try_raise(A, duty, False)
            else:
                gm.steps(steps, steps[-1] + 1, 18, la_a=LA1, burst=True)
        A("s_nop 7")
        G.q_epilogue(A, nt)
        if duty and nt == 3: try_raise(A, duty, True)
        if nt == 3: A(f"s_branch {le}")
    A.label(le)
    A("s_waitcnt lgkmcnt(0)")
    R.bar("bQ")

def compute_role(A):
    R = Role(A)
    A(f"s_and_b32 s{S_TG}, s{S_WAVE}, 3"); A(f"s_lshr_b32 s{S_FH}, s{S_WAVE}, 2")
    G.lane_setup(A)
    A(f"v_mov_b32 v{G.GT}, {L_CNT}"); A(f"v_mov_b32 v{G.GT+2}, 0"); A(f"v_mov_b32 v{G.GT+3}, 0")
    A(f"v_mov_b32 v{G.GT+4}, 0"); A(f"v_mov_b32 v{G.GT+5}, 0")
    A(f"ds_write_b128 v{G.GT}, {vr(G.GT+2,4)}")
    A(f"ds_write_b128 v{G.GT}, {vr(G.GT+2,4)} offset:16")
    G.clear_flag_lines(A)
    lk = A.newlabel("dk"); lv = A.newlabel("dv"); lg = A.newlabel("dg"); lj = A.newlabel("dj")
    A(f"s_cmp_eq_u32 s{S_HG}, 0"); A(f"s_cbranch_scc1 {lk}")
    A(f"s_cmp_eq_u32 s{S_HG}, 1"); A(f"s_cbranch_scc1 {lv}")
    A(f"s_cmp_eq_u32 s{S_HG}, 2"); A(f"s_cbranch_scc1 {lg}")
    seqs = {}
    for duty, lab in ((None, None), ("k", lk), ("v", lv), ("g", lg)):
        if lab: A.label(lab)
        R.bars = []
        compute_p1(A, R, duty)
        seqs[duty] = list(R.bars)
        if duty != "g": A(f"s_branch {lj}")
    A.label(lj)
    R.bars = []
    pstamp(A, 1)
    AT.q_fragments(A)
    AT.lds_addresses(A)
    pstamp(A, 6, "p1")
    R.bar("bKV")
    pstamp(A, 7, "p1")
    t = AT.T
    AT.q_norm(A)
    AT.gate_address(A)
    busy_delay(A, "DELAY0")
    R.bar("B0")
    pstamp(A, 2)
    lf = A.newlabel("fallback"); le = A.newlabel("attdone")
    AT.fast_path(A, R, lf)
    A(f"s_branch {le}")
    A.label(lf)
    AT.fallback_path(A, R)
    A.label(le)
    busy_delay(A, "DELAY1")
    AT.finish(A, R)
    def sbase(A):
        A(f"s_mul_i32 s{S_T}, s{S_ROW0}, {ROWB}")
        A(f"s_mul_i32 s{S_T2}, s{S_HG}, 144")
        A(f"s_add_u32 s{S_T}, s{S_T}, s{S_T2}")
        A(f"s_add_u32 s{S_T}, s{S_T}, {FW_O}")
    if SAMEXCD:
        lx = A.newlabel("wthru"); lxe = A.newlabel("wdone")
        A(f"s_cmp_eq_u32 s87, 0"); A(f"s_cbranch_scc1 {lx}")
        AT.store_rows(A, SRD_WS, sbase, False)
        A(f"s_branch {lxe}")
        A.label(lx)
        AT.store_rows(A, SRD_WS, sbase, True)
        A.label(lxe)
    else:
        AT.store_rows(A, SRD_WS, sbase, True)
    A("s_waitcnt vmcnt(0)")
    pstamp(A, 1, "t")
    R.bar("B5")
    nf = A.newlabel("nogrp")
    A(f"s_cmp_lg_u32 s{S_WAVE}, 0"); A(f"s_cbranch_scc1 {nf}")
    A(f"s_lshl_b32 s{S_T}, s{S_TB}, 10"); A(f"s_add_u32 s{S_T}, s{S_T}, {FW_FLAG + FL_GRP}")
    A(f"v_mov_b32 v{t}, s{S_T}"); A(f"v_mov_b32 v{t+1}, 1")
    A("s_mov_b64 exec, 1")
    A(f"buffer_atomic_add v{t+1}, v{t}, {srd(SRD_WS)}, 0 offen sc1")
    A("s_mov_b64 exec, -1")
    A.label(nf)
    FO.out_phase(A, R)
    if STAMPS: A("s_waitcnt vmcnt(0)")
    pstamp(A, 7)
    if os.environ.get("DBGSTAMP"):
        nd = A.newlabel("nodbg")
        A(f"s_cmp_lg_u32 s2, {int(os.environ['DBGSTAMP'])}"); A(f"s_cbranch_scc1 {nd}")
        A(f"s_cmp_lg_u32 s{S_WAVE}, 4"); A(f"s_cbranch_scc1 {nd}")
        A(f"v_mbcnt_lo_u32_b32 v{AT.T}, -1, 0")
        A(f"v_lshlrev_b32 v{AT.T}, 2, v{AT.T}")
        A(f"v_add_u32 v{AT.T}, 32, v{AT.T}")
        A("s_mov_b64 exec, 0xff")
        A(f"buffer_store_dword v{V_ST}, v{AT.T}, {srd(SRD_DBG)}, 0 offen")
        A.label(nd)
    else:
        pstamp_flush(A, S_WAVE, S_WS, WS_STAMP, AT.T)
    A("s_endpgm")
    return seqs, R.bars

def flag_off(A, t):
    A(f"v_min_u32 v{t}, 23, v{HP.V_LANE}")
    A(f"v_and_b32 v{t+1}, 3, v{t}"); A(f"v_lshrrev_b32 v{t}, 2, v{t}")
    A(f"v_lshlrev_b32 v{t}, 7, v{t}"); A(f"v_lshl_add_u32 v{t}, v{t+1}, 2, v{t}")
    A(f"s_lshl_b32 s{S_T}, s{S_TB}, 10"); A(f"s_add_u32 s{S_T}, s{S_T}, {FW_FLAG}")
    A(f"v_add_u32 v{t}, s{S_T}, v{t}")

def flag0_off(A, t):
    A(f"v_and_b32 v{t}, 1, v{HP.V_LANE}"); A(f"v_lshlrev_b32 v{t}, 2, v{t}")
    A(f"v_and_b32 v{t+1}, 2, v{HP.V_LANE}"); A(f"v_lshl_add_u32 v{t}, v{t+1}, 7, v{t}")
    A(f"s_lshl_b32 s{S_T}, s{S_TB}, 10"); A(f"s_add_u32 s{S_T}, s{S_T}, {FW_FLAG}")
    A(f"v_add_u32 v{t}, s{S_T}, v{t}")

def helper_p1(A, R, duty, h3):
    vm = VmTrack()
    vm.issue("x", 18)
    HP.issue_w(A, vm, h3, range(6), lambda a_: f"w{a_//2}")
    if not duty: HP.issue_w(A, vm, h3, range(6, 9), lambda a_: "w3")
    A(f"s_waitcnt vmcnt({vm.after('x')})")
    R.bar("b1")
    if duty:
        R.bar("b2")
        if os.environ.get("B2SLEEP"): A(f"s_sleep {os.environ['B2SLEEP']}")
        HP.issue_w(A, vm, h3, range(6, 9), lambda a_: "w3")
    for q in range(4):
        if duty and q < 2: continue
        A(f"s_waitcnt vmcnt({vm.after(f'w{q}')})")
        R.bar(f"bW{q}")
        if q == 2: HP.init_issue(A)
    HP.init_check(A)
    HP.poll_issue(A, flag0_off)
    R.bar("bQ")

def helper_rest(A, R, h3):
    pstamp(A, 1)
    HP.poll(A, flag0_off, 4, "0x01010101", "kv0", preissued=True)
    pstamp(A, 2)
    R.bar("bKV")
    HP.issue_kv(A, 0, HP.KV_ST0)
    A("s_waitcnt vmcnt(0)")
    R.bar("B0")
    HP.poll(A, flag_off, 24, "0x01010101", "kvp")
    HP.lds_sync(A, 4, "hsall", sleep=4)
    A(f"s_mov_b32 s{S_T}, {FW_KEYS}")
    A(f"buffer_load_dwordx4 {vr(HP.F_KEY,4)}, v{HP.VL16}, {srd(SRD_WS)}, s{S_T} offen{HSC}")
    HP.issue_kv(A, HP.KV_ST0, 148)
    HP.key_norm(A)
    A("s_waitcnt vmcnt(0)")
    HP.select_top2(A)
    A("s_waitcnt vmcnt(0) lgkmcnt(0)")
    R.bar("B1")
    HP.read_selection(A)
    HP.xcc_publish(A)
    nof = A.newlabel("noffn")
    A(f"s_cmp_lt_u32 s{S_HG}, 3"); A(f"s_cbranch_scc1 {nof}")
    A(f"s_lshr_b32 s{S_T}, s2, 6"); A(f"s_mul_i32 s{S_T}, s{S_T}, 5")
    A(f"s_add_u32 s{S_T}, s{S_T}, s{S_HG}"); A(f"s_sub_u32 s{S_T}, s{S_T}, 3")
    A(f"s_cmp_ge_u32 s{S_T}, 18"); A(f"s_cbranch_scc1 {nof}")
    A(f"s_and_b32 s{S_T2}, s2, 7"); A(f"s_mul_i32 s{S_T2}, s{S_T2}, 18")
    A(f"s_add_u32 s{HP.S_SL}, s{S_T2}, s{S_T}")
    pstamp(A, 3)
    if not os.environ.get("NOFFN"): HP.ffn(A)
    else:
        nf2 = A.newlabel("nof2")
        A(f"s_cmp_lg_u32 s{HP.S_H}, 0"); A(f"s_cbranch_scc1 {nf2}")
        A(f"v_mov_b32 v8, {FW_FFNC}"); A(f"v_mov_b32 v9, 1")
        A("s_mov_b64 exec, 1")
        A(f"buffer_atomic_add v9, v8, {srd(SRD_WS)}, 0 offen sc1")
        A("s_mov_b64 exec, -1")
        A.label(nf2)
    A.label(nof)
    pstamp(A, 4)
    mk_srd(A, SRD_W, S_WO, D * ROWB)
    mk_srd(A, SRD_A, S_WS, S_TOK * ROWB, add=FW_O)
    vm = VmTrack()
    HP.wait_released(A)
    HP.issue_w(A, vm, h3, range(9), lambda a_: "w", wb=WB3)
    HP.routed_update(A)
    HP.xcc_compare(A)
    A("s_waitcnt vmcnt(0)")
    R.bar("B2"); R.bar("B3"); R.bar("B4"); R.bar("B5")
    def grp_off(A, t):
        A(f"s_lshl_b32 s{S_T}, s{S_TB}, 10"); A(f"s_add_u32 s{S_T}, s{S_T}, {FW_FLAG + FL_GRP}")
        A(f"v_mov_b32 v{t}, s{S_T}")
    pstamp(A, 5)
    HP.poll(A, grp_off, 1, "8", "grp", ge=True)
    pstamp(A, 6)
    R.bar("B6")
    if stop_here(A, "attn"): return
    vm = VmTrack()
    A(f"s_mul_i32 s{S_T3}, s{S_ROW0}, {ROWB}")
    HP.issue_x(A, vm, range(9), not PLAIN, lambda cc: f"x{cc//3}", xb=XB3)
    for q in range(3):
        A(f"s_waitcnt vmcnt({vm.after(f'x{q}')})")
        R.bar(f"bX{q}")
    R.bar("B7")
    pstamp(A, 7)
    if not os.environ.get("DBGSTAMP"): pstamp_flush(A, S_WAVE, S_WS, WS_STAMP, HP.HT)
    A("s_endpgm")

def helper_role(A):
    R = Role(A)
    A(f"s_setprio {os.environ.get('HPRIO', '3')}")
    A(f"s_sub_u32 s{HP.S_H}, s{S_WAVE}, 8")
    A(f"v_and_b32 v{HP.V_LANE}, 63, v0")
    HP.setup_x(A)
    if not XFIRST: HP.setup_w(A)
    A(f"s_mul_i32 s{S_T3}, s{S_ROW0}, {ROWB}")
    vmx = VmTrack()
    HP.issue_x(A, vmx, range(9), False, lambda cc: "x")
    if XFIRST: HP.setup_w(A)
    l3 = A.newlabel("h3")
    A(f"s_cmp_eq_u32 s{HP.S_H}, 3"); A(f"s_cbranch_scc1 {l3}")
    seqs = {}
    for h3 in (False, True):
        if h3: A.label(l3)
        ld = A.newlabel("hduty"); lj = A.newlabel("hj")
        A(f"s_cmp_lt_u32 s{S_HG}, 3"); A(f"s_cbranch_scc1 {ld}")
        R.bars = []; helper_p1(A, R, False, h3); seqs[None] = list(R.bars)
        A(f"s_branch {lj}")
        A.label(ld)
        R.bars = []; helper_p1(A, R, True, h3); seqs["d"] = list(R.bars)
        A.label(lj)
        R.bars = []
        helper_rest(A, R, h3)
    return seqs, R.bars

def gen(name):
    A = Asm()
    end = "L_end"
    A("s_cmp_ge_u32 s2, 256"); A(f"s_cbranch_scc1 {end}")
    pstamp_init(A); pstamp(A, 0)
    load_kernargs(A)
    A(f"v_lshrrev_b32 v1, 6, v0")
    A(f"v_and_b32 v{G.V_LANE}, 63, v0")
    A(f"v_readfirstlane_b32 s{S_WAVE}, v1")
    A(f"s_and_b32 s{S_T}, s2, 7"); A(f"s_lshr_b32 s{S_T2}, s2, 3")
    A(f"s_and_b32 s{S_HG}, s{S_T2}, 7"); A(f"s_lshr_b32 s{S_T2}, s{S_T2}, 3")
    A(f"s_lshl_b32 s{S_T}, s{S_T}, 2"); A(f"s_add_u32 s{S_TB}, s{S_T}, s{S_T2}")
    A(f"s_lshl_b32 s{S_ROW0}, s{S_TB}, 6")
    A("s_waitcnt lgkmcnt(0)")
    mk_srd(A, SRD_A, S_X, S_TOK * ROWB)
    mk_srd(A, SRD_W, S_WQ, D * ROWB)
    mk_srd(A, SRD_WS, S_WS, FW_SIZE)
    mk_srd(A, SRD_KV, S_WS, KV_IMG, add=FW_KV)
    mk_srd(A, SRD_OUT, S_OUT, S_TOK * ROWB)
    mk_srd(A, SRD_DBG, S_DBG, 256)
    lh = A.newlabel("helper")
    A(f"s_cmp_ge_u32 s{S_WAVE}, 8"); A(f"s_cbranch_scc1 {lh}")
    cs, cb = compute_role(A)
    A.label(lh)
    hs, hb = helper_role(A)
    assert cs[None] == hs[None], (cs[None], hs[None])
    for d in "kvg": assert cs[d] == hs["d"], (cs[d], hs["d"])
    assert cb == hb, (cb, hb)
    A.label(end); A("s_endpgm")
    return A, 168, LDS_BYTES, 64 * NWAVES

def build(out):
    n = NAME + "_kernel"
    A, nv, lds, blk = gen(n)
    hdr = open("cdna_kernels/" + NAME + ".s.ref").read().split("; Override launch")[0]
    txt = hdr + f"; @launch grid=(256,1,1) block=({blk},1,1) lds={lds}\n"
    txt += '.amdgcn_target "amdgcn-amd-amdhsa--gfx950"\n'
    rep = []
    body = A.finish(rep)
    if "-v" in sys.argv:
        print(len(rep), "nop insertions")
        for r in rep: print("   ", r)
    txt += kernel_header(n) + body + kernel_desc(n, nv, nsgpr=102)
    open(out, "w").write(txt)
    print("wrote", out, len(txt), "bytes")

if __name__ == "__main__":
    import sys
    build(sys.argv[1])
```

```python
from fcommon import *
from f_gemm import V_LANE, V_I, V_H, GATE, V_T, V_G, XRES
XADDR = 147

S0, S1 = 0, 16
P = 32
OA, OB = 40, 56
QA, QEA = 72, 76
QB, QEB = 80, 84
K, KE = 88, 92
V0, V1 = 96, 100
A_K, A_KE, A_V = 104, 105, 106
T = 110
NEGM = 112
S_QN, S_KN = 78, 79
T_SAFE = 60.0
HALF = 4 * TB_BYTES
BUMP = 8 * TB_BYTES
B1_STEP = 7

def M(d, a, b, c):
    cs = "0" if c is None else vr(c, 16)
    return f"v_mfma_f32_32x32x16_bf16 {vr(d,16)}, {vr(a,4)}, {vr(b,4)}, {cs}"
def M8(d, a, b, c):
    return f"v_mfma_f32_32x32x8bf16_1k {vr(d,16)}, {vr(a,2)}, {vr(b,2)}, {vr(c,16)}"
def E(r): return f"v_exp_f32 v{r}, v{r}"
PACK = os.environ.get("PACK", "cvt")
S_SEL = 86
def C(d, a): return f"v_cvt_pk_bf16_f32 v{d}, v{a}, v{a+1}"
def CP(d, a):
    if PACK == "perm": return f"v_perm_b32 v{d}, v{a+1}, v{a}, s{S_SEL}"
    return C(d, a)

def q_fragments(A):
    t = T
    A(f"s_mul_i32 s{S_T}, s{S_TG}, 36")
    A(f"s_add_u32 s{S_T}, s{S_T}, {QS}")
    A(f"v_mul_u32_u24 v{t}, 144, v{V_I}")
    A(f"v_add_u32 v{t}, s{S_T}, v{t}")
    A(f"v_lshl_add_u32 v{t+1}, v{V_H}, 4, v{t}")
    A(f"v_add_u32 v{t+2}, {32*144}, v{t+1}")
    A(f"v_add_u32 v{t}, 32, v{t}")
    A(f"v_mov_b32 v{t+3}, {OOR}")
    A(f"v_cmp_eq_u32 vcc, 0, v{V_H}")
    A(f"v_cndmask_b32 v{t}, v{t+3}, v{t}, vcc")
    for (Q, QE, ad, off) in ((QA, QEA, t + 1, 0), (QB, QEB, t + 2, 32 * 144)):
        A(f"ds_read2_b32 {vr(Q,2)}, v{ad} offset0:0 offset1:1")
        A(f"ds_read2_b32 {vr(Q+2,2)}, v{ad} offset0:2 offset1:3")
        A(f"ds_read_b32 v{QE}, v{t} offset:{off}")
    A("s_waitcnt lgkmcnt(0)")
    for QE in (QEA, QEB):
        A(f"v_mov_b32 v{QE+1}, 0"); A(f"v_mov_b32 v{QE+2}, 0"); A(f"v_mov_b32 v{QE+3}, v{QE}")

def lds_addresses(A):
    A(f"s_mul_i32 s{S_T}, s{S_FH}, {HALF}")
    A(f"v_lshlrev_b32 v{A_K}, 4, v{V_LANE}")
    A(f"v_add_u32 v{A_K}, s{S_T}, v{A_K}")
    A(f"s_add_u32 s{S_T2}, s{S_T}, {TB_KEXT}")
    A(f"v_lshlrev_b32 v{A_KE}, 3, v{V_I}")
    A(f"v_add_u32 v{A_KE}, s{S_T2}, v{A_KE}")
    A(f"v_mul_u32_u24 v{T+2}, {VROWS}, v{V_H}")
    A(f"v_add_u32 v{T+1}, v{V_I}, v{T+2}")
    A(f"s_add_u32 s{S_T2}, s{S_T}, {TB_V}")
    A(f"v_lshlrev_b32 v{A_V}, 4, v{T+1}")
    A(f"v_add_u32 v{A_V}, s{S_T2}, v{A_V}")
    A(f"v_mov_b32 v{T+2}, 3"); A(f"v_mov_b32 v{T+3}, 4")
    A(f"v_cmp_lt_u32 vcc, 19, v{V_I}")
    A(f"v_cndmask_b32 v{T+2}, v{T+2}, v{T+3}, vcc")
    A(f"v_mov_b32 v{T+3}, 3")
    A(f"v_cmp_lt_u32 vcc, 27, v{V_I}")
    A(f"v_cndmask_b32 v{T+2}, v{T+2}, v{T+3}, vcc")
    A(f"v_mul_u32_u24 v{T+3}, {VROWS}, v{V_H}")
    A(f"v_add_u32 v{T+2}, v{T+2}, v{T+3}")
    A(f"v_lshlrev_b32 v{T+2}, 4, v{T+2}")
    A(f"v_add_u32 v{T+2}, {OOR}, v{T+2}")
    A(f"v_cmp_lt_u32 vcc, 18, v{V_I}")
    A(f"v_cndmask_b32 v{A_V}, v{A_V}, v{T+2}, vcc")
    A(f"v_mov_b32 v{T+2}, {OOR}")
    A(f"v_cmp_eq_u32 vcc, 1, v{V_H}")
    A(f"v_cndmask_b32 v{A_KE}, v{A_KE}, v{T+2}, vcc")

def q_norm(A):
    for k_, (Q, QE) in enumerate(((QA, QEA), (QB, QEB))):
        n = T + 8 + k_
        A(f"v_dot2_f32_bf16 v{n}, v{Q}, v{Q}, 0")
        for r in range(1, 4): A(f"v_dot2_f32_bf16 v{n}, v{Q+r}, v{Q+r}, v{n}")
        A(f"v_dot2_f32_bf16 v{n}, v{QE}, v{QE}, v{n}")
    A("s_nop 2")
    for k_ in range(2):
        n = T + 8 + k_
        A(f"v_mov_b32 v{T+10}, v{n}")
        A(f"v_permlane32_swap_b32 v{n}, v{T+10}")
        A(f"v_add_f32 v{n}, v{n}, v{T+10}")
    A(f"v_max_f32 v{T+8}, v{T+8}, v{T+9}")
    for sh in (1, 2, 4, 8):
        A(f"v_max_f32_dpp v{T+8}, v{T+8}, v{T+8} row_ror:{sh} row_mask:0xf bank_mask:0xf")
    A(f"v_readlane_b32 s{S_QN}, v{T+8}, 0")
    A(f"v_readlane_b32 s{S_T}, v{T+8}, 16")
    A(f"s_max_u32 s{S_QN}, s{S_QN}, s{S_T}")

def range_check(A, fallback):
    A(f"v_mov_b32 v{T}, {L_KN}")
    A(f"ds_read_b32 v{T+1}, v{T}")
    A(f"v_mov_b32 v{T+2}, {f32(T_SAFE*T_SAFE)}")
    A("s_waitcnt lgkmcnt(0)")
    A(f"v_mul_f32 v{T+1}, s{S_QN}, v{T+1}")
    A(f"v_cmp_le_f32 vcc, v{T+1}, v{T+2}")
    A("s_nop 4")
    A(f"s_cbranch_vccz {fallback}")

class Streams:
    def __init__(self): self.seg = {}
    def off(self, reg, j, L):
        while self.seg.get(reg, 0) < (j >> 3):
            L.append(f"v_add_u32 v{reg}, {BUMP}, v{reg}"); self.seg[reg] = self.seg.get(reg, 0) + 1
        return j & 7
    def K(self, j):
        L = []; jj = self.off(A_K, j, L)
        return L + [f"ds_read_b128 {vr(K,4)}, v{A_K} offset:{(jj>>1)*TB_BYTES + (jj&1)*1024}"]
    def KE(self, j):
        L = []; jj = self.off(A_KE, j, L)
        return L + [f"ds_read_b64 {vr(KE,2)}, v{A_KE} offset:{(jj>>1)*TB_BYTES}"]
    def V(self, reg, j, m):
        L = []; jj = self.off(A_V, j, L)
        return L + [f"ds_read_b128 {vr(reg,4)}, v{A_V} offset:{(jj>>1)*TB_BYTES + (jj&1)*V_TILE + m*(V_TILE//2)}"]

EXPT = os.environ.get("EXPT", "")
ALIGN8 = os.environ.get("ALIGN8", "")
WAITPOS = os.environ.get("WAITPOS", "") == "1"
def sub_step(A, Scur, Snxt, Qn, QEn, e, Oprev, Ocur, first_prev, first_cur, do_qk, wait_pre, loads, wait_pv0=None, wait_tail=None):
    if wait_pre is not None: A(f"s_waitcnt lgkmcnt({wait_pre})")
    if do_qk: A(M(Snxt, K, Qn, None))
    for x in loads.get(0, []): A(x)
    for r in range(0, 4): A(E(Scur + r))
    A(CP(P + 0, Scur + 0)); A(CP(P + 1, Scur + 2))
    if not first_prev: A(M(Oprev, V1, P + 4, Oprev))
    for x in loads.get(1, []): A(x)
    for r in range(4, 8): A(E(Scur + r))
    A(CP(P + 2, Scur + 4)); A(CP(P + 3, Scur + 6))
    if do_qk: A(M8(Snxt, KE, QEn + 2 * e, Snxt))
    for x in loads.get(2, []): A(x)
    for r in range(8, 12): A(E(Scur + r))
    if wait_pv0 is not None: A(f"s_waitcnt lgkmcnt({wait_pv0})")
    A(M(Ocur, V0, P, None if first_cur else Ocur))
    for x in loads.get(3, []): A(x)
    A(CP(P + 4, Scur + 8)); A(CP(P + 5, Scur + 10))
    for r in range(12, 16):
        A(E(Scur + r))
        if r == 13 and wait_tail is not None: A(f"s_waitcnt lgkmcnt({wait_tail})")
    A(CP(P + 6, Scur + 12)); A(CP(P + 7, Scur + 14))

def gate_address(A):
    t = T
    A(f"s_lshl_b32 s{S_T}, s{S_TG}, 4"); A(f"s_add_u32 s{S_T}, s{S_T}, s{S_ROW0}")
    A(f"v_add_u32 v{GATE}, s{S_T}, v{V_T}")
    A(f"v_lshlrev_b32 v{GATE}, 2, v{GATE}")
    A(f"v_add_u32 v{GATE}, {FW_G}, v{GATE}")

def gate_load(A):
    A(f"buffer_load_dword v{GATE}, v{GATE}, {srd(SRD_WS)}, 0 offen{HSC}")


def release(A, fh):
    skip = None
    if fh is not None:
        skip = A.newlabel("norel")
        A(f"s_cmp_lg_u32 s{S_FH}, {fh}"); A(f"s_cbranch_scc1 {skip}")
    A(f"v_mov_b32 v{T}, {L_CNT+12}"); A(f"v_mov_b32 v{T+1}, 1")
    A(f"ds_add_u32 v{T}, v{T+1}")
    if skip: A.label(skip)

def isize(t):
    mn = t.split()[0]
    if t.endswith(":") or t.startswith(";"): return 0
    if mn.startswith("v_mfma") or mn.startswith("ds_") or mn.startswith("v_cvt_pk") or mn == "v_perm_b32" or mn.endswith("_e64"): return 8
    if mn in ("v_exp_f32", "s_waitcnt", "s_barrier", "s_nop", "s_cmp_lg_u32", "s_cbranch_scc1", "s_memrealtime") or mn.startswith("s_cbranch"):
        return 8 if mn == "s_memrealtime" else 4
    if mn in ("v_add_u32", "v_mov_b32"):
        ops = t.split(",")
        lit = ops[1].strip()
        if lit.startswith("v") or lit in ("0", "1"): return 4
        return 8
    raise ValueError(t)

def align8(A, start):
    phase = 0; last4 = None
    i = start
    while i < len(A.out):
        t = A.out[i]; n = isize(t)
        if n == 8 and phase == 4:
            if last4 is not None:
                A.out[last4] = A.out[last4].replace("v_exp_f32 ", "v_exp_f32_e64 "); phase = 0
        if n == 4:
            phase ^= 4
            if t.startswith("v_exp_f32 "): last4 = i
        elif n == 8 and phase == 0:
            last4 = None
        i += 1

def fast_path(A, R, fallback, NK=32):
    st = Streams()
    if PACK == "perm": A(f"s_mov_b32 s{S_SEL}, 0x07060302")
    for x in st.K(0) + st.KE(0) + st.V(V0, 0, 0): A(x)
    A("s_waitcnt lgkmcnt(1)")
    A(M(S0, K, QA, None))
    A(M8(S0, KE, QEA, S0))
    A("s_nop 7"); A("s_nop 3")
    if ALIGN8:
        A(".p2align 6")
        if ALIGN8 == "4": A("s_nop 0")
    start = len(A.out)
    for j in range(NK):
        if j == B1_STEP:
            R.bar("B1")
            range_check(A, fallback)
            gate_load(A)
        if j in (11, 18): pstamp(A, {11: 4, 18: 5}[j])
        if j == 17: release(A, 1)
        if j == 21: release(A, 0)
        e = j % 2
        last = j == NK - 1
        ld = {0: [] if last else st.K(j + 1), 1: st.V(V1, j, 1)}
        if e == 1 and not last: ld[2] = st.KE(j + 1)
        if WAITPOS:
            nds = sum(1 for v_ in (0, 1, 2) for x in ld.get(v_, []) if x.startswith("ds_"))
            sub_step(A, S0, S1, QB, QEB, e, OB, OA, j == 0, j == 0, True, None, ld, wait_pv0=nds, wait_tail=0)
        else:
            sub_step(A, S0, S1, QB, QEB, e, OB, OA, j == 0, j == 0, True, 0 if j else None, ld)
        ld = {3: [] if last else st.V(V0, j + 1, 0)}
        sub_step(A, S1, S0, QA, QEA, (j + 1) % 2, OA, OB, False, j == 0, not last, None if WAITPOS else 0, ld)
    A(M(OB, V1, P + 4, OB))
    if ALIGN8: align8(A, start)

def fallback_path(A, R):
    gate_load(A)
    A(f"v_mov_b32 v{KE+1}, 0")
    for (Q, QE, O, tag) in ((QA, QEA, OA, "a"), (QB, QEB, OB, "b")):
        mx = T
        A(f"v_mov_b32 v{mx}, 0xff800000")
        A(f"s_mov_b32 s{S_T}, 0")
        l1 = A.newlabel("fb1" + tag)
        A.label(l1)
        A(f"s_lshr_b32 s{S_T2}, s{S_T}, 1"); A(f"s_mul_i32 s{S_T2}, s{S_T2}, {TB_BYTES}")
        A(f"s_and_b32 s{S_T3}, s{S_T}, 1")
        A(f"v_lshlrev_b32 v{T+1}, 4, v{V_LANE}")
        A(f"v_add_u32 v{T+1}, s{S_T2}, v{T+1}")
        A(f"s_lshl_b32 s80, s{S_T3}, 10")
        A(f"v_add_u32 v{T+1}, s80, v{T+1}")
        A(f"v_lshlrev_b32 v{P}, 3, v{V_I}")
        A(f"s_lshl_b32 s80, s{S_T3}, 2"); A(f"s_add_u32 s80, s80, s{S_T2}"); A(f"s_add_u32 s80, s80, {TB_KEXT}")
        A(f"v_add_u32 v{P}, s80, v{P}")
        A(f"ds_read_b128 {vr(K,4)}, v{T+1}")
        A(f"ds_read_b32 v{KE}, v{P}")
        A("s_waitcnt lgkmcnt(0)")
        A(M(S0, K, Q, None))
        A(M8(S0, KE, QE, S0))
        A("s_nop 7"); A("s_nop 7")
        for r in range(0, 16, 2): A(f"v_max3_f32 v{mx}, v{S0+r}, v{S0+r+1}, v{mx}")
        A(f"s_add_u32 s{S_T}, s{S_T}, 1")
        A(f"s_cmp_lt_u32 s{S_T}, 64")
        A(f"s_cbranch_scc1 {l1}")
        A(f"v_mov_b32 v{T+1}, v{mx}")
        A(f"v_permlane32_swap_b32 v{mx}, v{T+1}")
        A(f"v_max_f32 v{mx}, v{mx}, v{T+1}")
        A(f"v_sub_f32 v{mx}, 0, v{mx}")
        for r in range(16): A(f"v_mov_b32 v{NEGM+r}, v{mx}")
        A(f"s_mov_b32 s{S_T}, 0")
        for r in range(16): A(f"v_mov_b32 v{O+r}, 0")
        l2 = A.newlabel("fb2" + tag)
        A.label(l2)
        A(f"s_lshr_b32 s{S_T2}, s{S_T}, 3"); A(f"s_lshl_b32 s{S_T2}, s{S_T2}, 3")
        A(f"s_lshr_b32 s{S_T3}, s{S_T}, 1"); A(f"s_and_b32 s{S_T3}, s{S_T3}, 3")
        A(f"s_add_u32 s{S_T2}, s{S_T2}, s{S_T3}"); A(f"s_mul_i32 s{S_T2}, s{S_T2}, {TB_BYTES}")
        A(f"s_and_b32 s{S_T3}, s{S_T}, 1")
        A(f"s_lshl_b32 s80, s{S_T3}, 10"); A(f"s_add_u32 s80, s80, s{S_T2}")
        A(f"v_add_u32 v{S1}, s80, v{A_K}")
        A(f"s_lshl_b32 s80, s{S_T3}, 2"); A(f"s_add_u32 s80, s80, s{S_T2}")
        A(f"v_add_u32 v{S1+1}, s80, v{A_KE}")
        A(f"s_mul_i32 s80, s{S_T3}, {V_TILE}"); A(f"s_add_u32 s80, s80, s{S_T2}")
        A(f"v_add_u32 v{S1+2}, s80, v{A_V}")
        A(f"ds_read_b128 {vr(K,4)}, v{S1}")
        A(f"ds_read_b32 v{KE}, v{S1+1}")
        A(f"ds_read_b128 {vr(V0,4)}, v{S1+2}")
        A(f"ds_read_b128 {vr(V1,4)}, v{S1+2} offset:{V_TILE//2}")
        A("s_waitcnt lgkmcnt(0)")
        A(M(S0, K, Q, NEGM))
        A(M8(S0, KE, QE, S0))
        A("s_nop 7"); A("s_nop 7")
        for r in range(16): A(E(S0 + r))
        A("s_nop 0")
        for r in range(8): A(C(P + r, S0 + 2 * r))
        A("s_nop 1")
        A(M(O, V0, P, O)); A(M(O, V1, P + 4, O))
        A(f"s_add_u32 s{S_T}, s{S_T}, 1")
        A(f"s_cmp_lt_u32 s{S_T}, 32")
        A(f"s_cbranch_scc1 {l2}")
        A("s_nop 7"); A("s_nop 7")
    release(A, None)

PS_OWN, PS_PART, OS_W, ST_L, ST_G = 144, 145, 146, 152, 153

def row_store_addresses(A, lane, n_base, vl, vg, t):
    if isinstance(n_base, int): A(f"v_add_u32 v{t}, {n_base}, v{lane}")
    else: A(f"v_add_u32 v{t}, {n_base}, v{lane}")
    A(f"v_lshlrev_b32 v{vl}, 4, v{t}")
    A(f"v_add_u32 v{vl}, {OSTG}, v{vl}")
    A(f"v_mul_u32_u24 v{t+1}, 7282, v{t}")
    A(f"v_lshrrev_b32 v{t+1}, 16, v{t+1}")
    A(f"v_mul_u32_u24 v{t+2}, 9, v{t+1}")
    A(f"v_sub_u32 v{t+2}, v{t}, v{t+2}")
    A(f"v_mul_u32_u24 v{t+1}, {ROWB}, v{t+1}")
    A(f"v_lshl_add_u32 v{vg}, v{t+2}, 4, v{t+1}")

def tail_addresses(A):
    A(f"v_lshlrev_b32 v{T}, 4, v{V_LANE}")
    A(f"v_add_u32 v{T}, {PSLOT}, v{T}")
    A(f"s_lshl_b32 s{S_T}, s{S_WAVE}, 12")
    A(f"v_add_u32 v{PS_OWN}, s{S_T}, v{T}")
    A(f"s_xor_b32 s{S_T}, s{S_WAVE}, 4"); A(f"s_lshl_b32 s{S_T}, s{S_T}, 12")
    A(f"v_add_u32 v{PS_PART}, s{S_T}, v{T}")
    A(f"s_lshl_b32 s{S_T}, s{S_FH}, 5")
    A(f"v_add_u32 v{T}, s{S_T}, v{V_I}")
    A(f"v_mul_u32_u24 v{T}, 144, v{T}")
    A(f"s_mul_i32 s{S_T}, s{S_TG}, 36"); A(f"s_add_u32 s{S_T}, s{S_T}, {OSTG}")
    A(f"v_add_u32 v{T}, s{S_T}, v{T}")
    A(f"v_lshl_add_u32 v{OS_W}, v{V_H}, 4, v{T}")
    A(f"s_lshl_b32 s{S_T}, s{S_WAVE}, 6")
    row_store_addresses(A, V_LANE, f"s{S_T}", ST_L, ST_G, T)

def finish(A, R):
    A("s_nop 7"); A("s_nop 3")
    pstamp(A, 6)
    R.bar("B2")
    pstamp(A, 20, "t")
    lsw = A.newlabel("sw"); ld = A.newlabel("swd")
    bars0 = list(R.bars)
    A(f"s_cmp_eq_u32 s{S_FH}, 0"); A(f"s_cbranch_scc0 {lsw}")
    for (keep, send) in ((OA, OB), (OB, OA)):
        if keep == OB:
            A.label(lsw); R.bars = list(bars0)
        for q in range(3): A(f"ds_write_b128 v{PS_OWN}, {vr(send+4*q,4)} offset:{1024*q}")
        A("s_waitcnt lgkmcnt(0)")
        R.bar("B3")
        pstamp(A, 21, "t")
        for q in range(3): A(f"ds_read_b128 {vr(S0+4*q,4)}, v{PS_PART} offset:{1024*q}")
        A("s_waitcnt lgkmcnt(0)")
        A(f"v_add_f32 v{keep+10}, v{keep+10}, v{S0+10}")
        for r in range(10): A(f"v_add_f32 v{keep+r}, v{keep+r}, v{S0+r}")
        A(f"v_mov_b32 v{T}, v{keep+10}")
        A(f"v_permlane32_swap_b32 v{keep+10}, v{T}")
        A(f"v_rcp_f32 v{T}, v{keep+10}")
        A("s_nop 0")
        for r in range(10): A(f"v_mul_f32 v{keep+r}, v{keep+r}, v{T}")
        for r in range(5): A(C(P + r, keep + 2 * r))
        A(f"ds_write2_b32 v{OS_W}, v{P}, v{P+1} offset0:0 offset1:1")
        A(f"ds_write2_b32 v{OS_W}, v{P+2}, v{P+3} offset0:2 offset1:3")
        A(f"v_cmp_eq_u32 vcc, 0, v{V_H}")
        A(f"s_and_saveexec_b64 s[{S_EX}:{S_EX+1}], vcc")
        A(f"ds_write_b32 v{OS_W}, v{P+4} offset:32")
        A(f"s_mov_b64 exec, s[{S_EX}:{S_EX+1}]")
        if keep == OA: A(f"s_branch {ld}")
    A.label(ld)
    A("s_waitcnt lgkmcnt(0)")
    R.bar("B4")
    pstamp(A, 22, "t")

def store_rows(A, srd_i, sbase, mod, vl=ST_L, vg=ST_G, d=S0):
    A(f"ds_read_b128 {vr(d,4)}, v{vl}")
    A("s_waitcnt lgkmcnt(0)")
    A(f"buffer_store_dwordx4 {vr(d,4)}, v{vg}, {srd(srd_i)}, s{sbase} offen" + (" " + mod if mod else ""))
```

```python
from fcommon import *
from f_gemm import *
import f_attn

X_STAGES = eval(os.environ.get('X_STAGES', '[[0,1],[2,3,4],[5,6,7,8]]'))
OUT_W, OUT_OG = 144, 145

def out_epilogue(A, R, nt):
    t = GT; WS = srd(SRD_WS)
    g = GATE; og = OUT_OG
    X = AF
    for j in range(nt):
        for q in range(2):
            src = XRES + 2 * j + q; d = X + 4 * j + 2 * q
            A(f"v_lshlrev_b32 v{d}, 16, v{src}")
            A(f"v_and_b32 v{d+1}, 0xffff0000, v{src}")
    for jr in range(2):
        skip = A.newlabel("nort")
        A(f"s_lshl_b32 s{S_T}, s{S_TG}, 4")
        A(f"s_add_u32 s{S_T}, s{S_T}, s{S_ROW0}")
        A(f"s_sub_u32 s84, s{80+jr}, s{S_T}")
        A(f"s_cmp_lt_u32 s84, 16")
        A(f"s_cbranch_scc0 {skip}")
        A(f"s_mul_i32 s{S_T2}, s{S_FH}, 192"); A(f"s_add_u32 s{S_T2}, s{S_T2}, {L_UPD + 288*jr}")
        A(f"v_lshlrev_b32 v{t}, 4, v{V_G}")
        A(f"v_add_u32 v{t}, s{S_T2}, v{t}")
        Y = 40
        for j in range(nt): A(f"ds_read_b128 {vr(Y+4*j,4)}, v{t} offset:{64*j}")
        A(f"v_cmp_eq_u32 vcc, s84, v{V_T}")
        A("s_waitcnt lgkmcnt(0)")
        for j in range(nt):
            for r in range(4):
                y = Y + 4 * j + r; x = X + 4 * j + r
                A(f"v_add_f32 v{y}, v{x}, v{y}")
                A(f"v_cvt_pk_bf16_f32 v{y}, v{y}, v{y}")
                A(f"v_and_b32 v{y}, 0xffff0000, v{y}")
                A(f"v_cndmask_b32 v{x}, v{x}, v{y}, vcc")
        A.label(skip)
    ad = OUT_W
    for j in range(nt):
        a_ = ACC + 4 * j; x = X + 4 * j; d = GT + 2 * j
        for r in range(4):
            A(f"v_mul_f32 v{x+r}, v{og}, v{x+r}")
            A(f"v_fma_f32 v{x+r}, v{g}, v{a_+r}, v{x+r}")
        A(f"v_cvt_pk_bf16_f32 v{d}, v{x}, v{x+1}")
        A(f"v_cvt_pk_bf16_f32 v{d+1}, v{x+2}, v{x+3}")
        last = (nt == 2 and j == 1)
        if last:
            A(f"v_cmp_gt_u32 vcc, 2, v{V_G}")
            A(f"s_and_saveexec_b64 s[{S_EX}:{S_EX+1}], vcc")
        A(f"ds_write_b64 v{ad}, {vr(d,2)} offset:{32*j}")
        if last: A(f"s_mov_b64 exec, s[{S_EX}:{S_EX+1}]")
    A("s_waitcnt lgkmcnt(0)")

def out_phase(A, R):
    gemm_addresses(A, XB3, WB3)
    ad = stage_rows(A, OUTSTG, None)
    A(f"v_subrev_u32 v{f_attn.ST_L}, {OSTG - OUTSTG}, v{f_attn.ST_L}")
    A(f"v_mov_b32 v{OUT_W}, v{ad}")
    A(f"v_sub_f32 v{OUT_OG}, 1.0, v{GATE}")
    A(f"v_cvt_pk_bf16_f32 v{OUT_OG}, v{OUT_OG}, v{OUT_OG}")
    A(f"v_and_b32 v{OUT_OG}, 0xffff0000, v{OUT_OG}")
    A(f"v_mov_b32 v{GT}, {L_SEL}")
    A(f"ds_read_b64 {vr(GT+4,2)}, v{GT}")
    A("s_waitcnt lgkmcnt(0)")
    for e in range(2): A(f"v_readfirstlane_b32 s{80+e}, v{GT+4+e}")
    lf = A.newlabel("p3f1"); le = A.newlabel("p3e")
    bars0 = list(R.bars)
    A(f"s_cmp_eq_u32 s{S_FH}, 0"); A(f"s_cbranch_scc0 {lf}")
    for nt in (3, 2):
        if nt == 2:
            A.label(lf); R.bars = list(bars0)
        ra = 10 if nt == 3 else 15
        gm = Gemm(A, nt, ra)
        gm.preload_a(ra)
        R.bar("B6")
        pstamp(A, 2, "t")
        for q, ccs in enumerate(X_STAGES):
            R.bar(f"bX{q}")
            if q < 3: pstamp(A, 10 + q, "t")
            gm.steps(list(range(2 * ccs[0], 2 * ccs[-1] + 2)), 18, 2 * ccs[-1] + 2, la_a=ra)
        pstamp(A, 13, "t")
        A("s_nop 7")
        out_epilogue(A, R, nt)
        if nt == 3: A(f"s_branch {le}")
    A.label(le)
    n_ = int(os.environ.get("DELAY3", "0"))
    if n_:
        l_ = A.newlabel("dly3")
        A(f"s_mov_b32 s88, {n_}"); A.label(l_)
        A("s_sub_u32 s88, s88, 1"); A("s_cmp_lg_u32 s88, 0"); A(f"s_cbranch_scc1 {l_}")
    pstamp(A, 3, "t")
    R.bar("B7")
    f_attn.store_rows(A, SRD_OUT, 42, os.environ.get('OUTMOD', ''))
```

```python
from fcommon import *
import sys
import f_gemm as G, f_attn as AT, f_out as FO, f_help as HP

NWAVES = 12
SAMEXCD = os.environ.get('SAMEXCD', '1') == '1'
LA1 = int(os.environ.get('LA1', '2'))
XFIRST = os.environ.get('XFIRST', '0') == '1'
FLAG_STAGE = int(os.environ.get('FLAG_STAGE', '2'))

def busy_delay(A, env):
    n = int(os.environ.get(env, "0"))
    if not n: return
    l = A.newlabel("dly")
    A(f"s_mov_b32 s88, {n}")
    A.label(l)
    A("s_sub_u32 s88, s88, 1"); A("s_cmp_lg_u32 s88, 0"); A(f"s_cbranch_scc1 {l}")

def stop_here(A, name):
    if STOP == name:
        A("s_waitcnt vmcnt(0) lgkmcnt(0)")
        A("s_endpgm")
        return True
    return False

S_RAISED = 87
S_OUTOFF, S_OOFF = 42, 43
def try_raise(A, duty, blocking):
    nf = A.newlabel("noflag")
    A(f"s_cmp_lg_u32 s{S_WAVE}, 0"); A(f"s_cbranch_scc1 {nf}")
    A(f"s_cmp_lg_u32 s{S_RAISED}, 0"); A(f"s_cbranch_scc1 {nf}")
    if not blocking:
        A(f"s_getreg_b32 s{S_T}, hwreg(HW_REG_IB_STS, 0, 4)")
        A(f"s_cmp_lg_u32 s{S_T}, 0"); A(f"s_cbranch_scc1 {nf}")
    pstamp(A, 3, "p1")
    G.raise_flag(A, duty)
    if duty == "k": G.publish_kn(A)
    pstamp(A, 4, "p1")
    A(f"s_mov_b32 s{S_RAISED}, 1")
    A.label(nf)

def compute_p1(A, R, duty):
    if duty:
        if duty in ("k", "v"):
            mk_srd(A, SRD_E, S_WK if duty == "k" else S_WV, 576 * 36)
        else:
            mk_srd(A, SRD_E, S_GW, ROWB); mk_srd(A, SRD_F, S_WR, ROWB)
        G.duty_loads(A, duty)
    G.gemm_addresses(A)
    if duty:
        G.duty_addresses(A)
        G.duty_writes(A, duty)
    A("s_waitcnt lgkmcnt(0)")
    R.bar("b1")
    pstamp(A, 1, "p1")
    if not duty: G.residual_x(A)
    if duty:
        {"k": G.k_stage, "v": G.v_stage, "g": G.g_stage}[duty](A)
        A("s_waitcnt lgkmcnt(0)")
        R.bar("b2")
        pstamp(A, 2, "p1")
        np_ = A.newlabel("nopub")
        A(f"s_cmp_lg_u32 s{S_WAVE}, 0"); A(f"s_cbranch_scc1 {np_}")
        G.publish(A, duty)
        G.init_probe(A)
        A(f"s_mov_b32 s{S_RAISED}, 0")
        A.label(np_)
        if duty == "k": G.k_norm(A)
        G.residual_x(A)
        A("s_waitcnt lgkmcnt(0)")
    lf = A.newlabel("p1f1"); le = A.newlabel("p1e")
    bars0 = list(R.bars)
    A(f"s_cmp_eq_u32 s{S_FH}, 0"); A(f"s_cbranch_scc0 {lf}")
    if duty: stages = [("bW2", list(range(0, 12))), ("bW3", list(range(12, 18)))]
    else: stages = [(f"bW{q}", list(range(4 * q, 4 * q + 4))) for q in range(3)] + [("bW3", list(range(12, 18)))]
    for nt in (3, 2):
        if nt == 2:
            A.label(lf); R.bars = list(bars0)
        gm = G.Gemm(A, nt, 4)
        for name, steps in stages:
            if name == "bW3":
                if duty and nt == 3: try_raise(A, duty, False)
                pstamp(A, 9, "w")
            R.bar(name)
            if name == "bW3": pstamp(A, 5, "p1")
            else: pstamp(A, int(name[2]), "w")
            if duty and name == "bW2":
                for part in (steps[:5], steps[5:9], steps[9:]):
                    gm.steps(part, 12, 18, la_a=LA1, burst=True)
                    if nt == 3 and part is not None and part[-1] != 11: try_raise(A, duty, False)
            else:
                gm.steps(steps, steps[-1] + 1, 18, la_a=LA1, burst=True)
        A("s_nop 7")
        G.q_epilogue(A, nt)
        if duty and nt == 3: try_raise(A, duty, True)
        if nt == 3: A(f"s_branch {le}")
    A.label(le)
    A("s_waitcnt lgkmcnt(0)")
    R.bar("bQ")

def compute_role(A):
    R = Role(A)
    A(f"s_and_b32 s{S_TG}, s{S_WAVE}, 3"); A(f"s_lshr_b32 s{S_FH}, s{S_WAVE}, 2")
    G.lane_setup(A)
    A(f"v_mov_b32 v{G.GT}, {L_CNT}"); A(f"v_mov_b32 v{G.GT+2}, 0"); A(f"v_mov_b32 v{G.GT+3}, 0")
    A(f"v_mov_b32 v{G.GT+4}, 0"); A(f"v_mov_b32 v{G.GT+5}, 0")
    A(f"ds_write_b128 v{G.GT}, {vr(G.GT+2,4)}")
    A(f"ds_write_b128 v{G.GT}, {vr(G.GT+2,4)} offset:16")
    G.clear_flag_lines(A)
    lk = A.newlabel("dk"); lv = A.newlabel("dv"); lg = A.newlabel("dg"); lj = A.newlabel("dj")
    A(f"s_cmp_eq_u32 s{S_HG}, 0"); A(f"s_cbranch_scc1 {lk}")
    A(f"s_cmp_eq_u32 s{S_HG}, 1"); A(f"s_cbranch_scc1 {lv}")
    A(f"s_cmp_eq_u32 s{S_HG}, 2"); A(f"s_cbranch_scc1 {lg}")
    seqs = {}
    for duty, lab in ((None, None), ("k", lk), ("v", lv), ("g", lg)):
        if lab: A.label(lab)
        R.bars = []
        compute_p1(A, R, duty)
        seqs[duty] = list(R.bars)
        if duty != "g": A(f"s_branch {lj}")
    A.label(lj)
    R.bars = []
    pstamp(A, 1)
    AT.q_fragments(A)
    AT.lds_addresses(A)
    pstamp(A, 6, "p1")
    R.bar("bKV")
    pstamp(A, 7, "p1")
    t = AT.T
    AT.q_norm(A)
    AT.gate_address(A)
    AT.tail_addresses(A)
    A(f"s_mul_i32 s{S_OUTOFF}, s{S_ROW0}, {ROWB}"); A(f"s_mul_i32 s{S_T}, s{S_HG}, 144")
    A(f"s_add_u32 s{S_OUTOFF}, s{S_OUTOFF}, s{S_T}"); A(f"s_add_u32 s{S_OOFF}, s{S_OUTOFF}, {FW_O}")
    busy_delay(A, "DELAY0")
    R.bar("B0")
    pstamp(A, 2)
    lf = A.newlabel("fallback"); le = A.newlabel("attdone")
    AT.fast_path(A, R, lf)
    A(f"s_branch {le}")
    A.label(lf)
    AT.fallback_path(A, R)
    A.label(le)
    busy_delay(A, "DELAY1")
    AT.finish(A, R)
    AT.store_rows(A, SRD_WS, S_OOFF, "sc1")
    A("s_waitcnt vmcnt(0)")
    pstamp(A, 1, "t")
    R.bar("B5")
    nf = A.newlabel("nogrp")
    A(f"s_cmp_lg_u32 s{S_WAVE}, 0"); A(f"s_cbranch_scc1 {nf}")
    A(f"s_lshl_b32 s{S_T}, s{S_TB}, 10"); A(f"s_add_u32 s{S_T}, s{S_T}, {FW_FLAG + FL_GRP}")
    A(f"v_mov_b32 v{t}, s{S_T}"); A(f"v_mov_b32 v{t+1}, 1")
    A("s_mov_b64 exec, 1")
    A(f"buffer_atomic_add v{t+1}, v{t}, {srd(SRD_WS)}, 0 offen sc1")
    A("s_mov_b64 exec, -1")
    A.label(nf)
    busy_delay(A, "DELAY2")
    FO.out_phase(A, R)
    if STAMPS: A("s_waitcnt vmcnt(0)")
    pstamp(A, 7)
    if os.environ.get("DBGSTAMP"):
        nd = A.newlabel("nodbg")
        A(f"s_cmp_lg_u32 s2, {int(os.environ['DBGSTAMP'])}"); A(f"s_cbranch_scc1 {nd}")
        A(f"s_cmp_lg_u32 s{S_WAVE}, 4"); A(f"s_cbranch_scc1 {nd}")
        A(f"v_mbcnt_lo_u32_b32 v{AT.T}, -1, 0")
        A(f"v_lshlrev_b32 v{AT.T}, 2, v{AT.T}")
        A(f"v_add_u32 v{AT.T}, 32, v{AT.T}")
        A("s_mov_b64 exec, 0xff")
        A(f"buffer_store_dword v{V_ST}, v{AT.T}, {srd(SRD_DBG)}, 0 offen")
        A.label(nd)
    else:
        pstamp_flush(A, S_WAVE, S_WS, WS_STAMP, AT.T)
    A("s_endpgm")
    return seqs, R.bars

def flag_off(A, t):
    A(f"v_min_u32 v{t}, 23, v{HP.V_LANE}")
    A(f"v_and_b32 v{t+1}, 3, v{t}"); A(f"v_lshrrev_b32 v{t}, 2, v{t}")
    A(f"v_lshlrev_b32 v{t}, 7, v{t}"); A(f"v_lshl_add_u32 v{t}, v{t+1}, 2, v{t}")
    A(f"s_lshl_b32 s{S_T}, s{S_TB}, 10"); A(f"s_add_u32 s{S_T}, s{S_T}, {FW_FLAG}")
    A(f"v_add_u32 v{t}, s{S_T}, v{t}")

def flag0_off(A, t):
    A(f"v_and_b32 v{t}, 1, v{HP.V_LANE}"); A(f"v_lshlrev_b32 v{t}, 2, v{t}")
    A(f"v_and_b32 v{t+1}, 2, v{HP.V_LANE}"); A(f"v_lshl_add_u32 v{t}, v{t+1}, 7, v{t}")
    A(f"s_lshl_b32 s{S_T}, s{S_TB}, 10"); A(f"s_add_u32 s{S_T}, s{S_T}, {FW_FLAG}")
    A(f"v_add_u32 v{t}, s{S_T}, v{t}")

def helper_p1(A, R, duty, h3):
    vm = VmTrack()
    vm.issue("x", 18)
    HP.issue_w(A, vm, h3, range(6), lambda a_: f"w{a_//2}")
    if not duty: HP.issue_w(A, vm, h3, range(6, 9), lambda a_: "w3")
    A(f"s_waitcnt vmcnt({vm.after('x')})")
    R.bar("b1")
    if duty:
        R.bar("b2")
        if os.environ.get("B2SLEEP"): A(f"s_sleep {os.environ['B2SLEEP']}")
        HP.issue_w(A, vm, h3, range(6, 9), lambda a_: "w3")
    for q in range(4):
        if duty and q < 2: continue
        A(f"s_waitcnt vmcnt({vm.after(f'w{q}')})")
        R.bar(f"bW{q}")
        if q == 2: HP.init_issue(A)
    HP.init_check(A)
    HP.poll_issue(A, flag0_off)
    R.bar("bQ")

def helper_rest(A, R, h3):
    pstamp(A, 1)
    HP.poll(A, flag0_off, 4, "0x01010101", "kv0", preissued=True)
    pstamp(A, 2)
    R.bar("bKV")
    HP.issue_kv(A, 0, HP.KV_ST0)
    A("s_waitcnt vmcnt(0)")
    R.bar("B0")
    HP.poll(A, flag_off, 24, "0x01010101", "kvp")
    HP.lds_sync(A, 4, "hsall", sleep=4)
    A(f"s_mov_b32 s{S_T}, {FW_KEYS}")
    A(f"buffer_load_dwordx4 {vr(HP.F_KEY,4)}, v{HP.VL16}, {srd(SRD_WS)}, s{S_T} offen{HSC}")
    HP.issue_kv(A, HP.KV_ST0, 148)
    HP.key_norm(A)
    A("s_waitcnt vmcnt(0)")
    HP.select_top2(A)
    A("s_waitcnt vmcnt(0) lgkmcnt(0)")
    R.bar("B1")
    HP.read_selection(A)
    nof = A.newlabel("noffn")
    A(f"s_cmp_lt_u32 s{S_HG}, 3"); A(f"s_cbranch_scc1 {nof}")
    A(f"s_lshr_b32 s{S_T}, s2, 6"); A(f"s_mul_i32 s{S_T}, s{S_T}, 5")
    A(f"s_add_u32 s{S_T}, s{S_T}, s{S_HG}"); A(f"s_sub_u32 s{S_T}, s{S_T}, 3")
    A(f"s_cmp_ge_u32 s{S_T}, 18"); A(f"s_cbranch_scc1 {nof}")
    A(f"s_and_b32 s{S_T2}, s2, 7"); A(f"s_mul_i32 s{S_T2}, s{S_T2}, 18")
    A(f"s_add_u32 s{HP.S_SL}, s{S_T2}, s{S_T}")
    pstamp(A, 3)
    if not os.environ.get("NOFFN"): HP.ffn(A)
    else:
        nf2 = A.newlabel("nof2")
        A(f"s_cmp_lg_u32 s{HP.S_H}, 0"); A(f"s_cbranch_scc1 {nf2}")
        A(f"v_mov_b32 v8, {FW_FFNC}"); A(f"v_mov_b32 v9, 1")
        A("s_mov_b64 exec, 1")
        A(f"buffer_atomic_add v9, v8, {srd(SRD_WS)}, 0 offen sc1")
        A("s_mov_b64 exec, -1")
        A.label(nf2)
    A.label(nof)
    pstamp(A, 4)
    mk_srd(A, SRD_W, S_WO, D * ROWB)
    mk_srd(A, SRD_A, S_WS, S_TOK * ROWB, add=FW_O)
    vm = VmTrack()
    HP.wait_released(A)
    HP.issue_w(A, vm, h3, range(9), lambda a_: "w", wb=WB3)
    HP.routed_update(A)
    A("s_waitcnt vmcnt(0)")
    AT.row_store_addresses(A, HP.V_LANE, 512, 24, 25, 26)
    A(f"s_mul_i32 s84, s{S_ROW0}, {ROWB}"); A(f"s_mul_i32 s{S_T}, s{S_HG}, 144")
    A(f"s_add_u32 s84, s84, s{S_T}"); A(f"s_add_u32 s85, s84, {FW_O}")
    R.bar("B2"); R.bar("B3"); R.bar("B4")
    n8 = A.newlabel("no8")
    A(f"s_cmp_lg_u32 s{HP.S_H}, 1"); A(f"s_cbranch_scc1 {n8}")
    AT.store_rows(A, SRD_WS, 85, "sc1", vl=24, vg=25, d=28)
    A("s_waitcnt vmcnt(0)")
    A.label(n8)
    R.bar("B5")
    def grp_off(A, t):
        A(f"s_lshl_b32 s{S_T}, s{S_TB}, 10"); A(f"s_add_u32 s{S_T}, s{S_T}, {FW_FLAG + FL_GRP}")
        A(f"v_mov_b32 v{t}, s{S_T}")
    pstamp(A, 5)
    HP.poll(A, grp_off, 1, "8", "grp", ge=True)
    pstamp(A, 6)
    R.bar("B6")
    if stop_here(A, "attn"): return
    vm = VmTrack()
    A(f"s_mul_i32 s{S_T3}, s{S_ROW0}, {ROWB}")
    stage_of = {cc: q for q, ccs in enumerate(FO.X_STAGES) for cc in ccs}
    HP.issue_x(A, vm, range(9), not PLAIN, lambda cc: f"x{stage_of[cc]}", xb=XB3)
    for q in range(len(FO.X_STAGES)):
        A(f"s_waitcnt vmcnt({vm.after(f'x{q}')})")
        R.bar(f"bX{q}")
    R.bar("B7")
    n9 = A.newlabel("no9")
    A(f"s_cmp_lg_u32 s{HP.S_H}, 1"); A(f"s_cbranch_scc1 {n9}")
    A(f"v_subrev_u32 v24, {OSTG - OUTSTG}, v24")
    AT.store_rows(A, SRD_OUT, 84, "", vl=24, vg=25, d=28)
    A.label(n9)
    pstamp(A, 7)
    if not os.environ.get("DBGSTAMP"): pstamp_flush(A, S_WAVE, S_WS, WS_STAMP, HP.HT)
    A("s_endpgm")

def helper_role(A):
    R = Role(A)
    A(f"s_setprio {os.environ.get('HPRIO', '3')}")
    A(f"s_sub_u32 s{HP.S_H}, s{S_WAVE}, 8")
    A(f"v_and_b32 v{HP.V_LANE}, 63, v0")
    HP.setup_x(A)
    if not XFIRST: HP.setup_w(A)
    A(f"s_mul_i32 s{S_T3}, s{S_ROW0}, {ROWB}")
    vmx = VmTrack()
    HP.issue_x(A, vmx, range(9), False, lambda cc: "x")
    if XFIRST: HP.setup_w(A)
    l3 = A.newlabel("h3")
    A(f"s_cmp_eq_u32 s{HP.S_H}, 3"); A(f"s_cbranch_scc1 {l3}")
    seqs = {}
    for h3 in (False, True):
        if h3: A.label(l3)
        ld = A.newlabel("hduty"); lj = A.newlabel("hj")
        A(f"s_cmp_lt_u32 s{S_HG}, 3"); A(f"s_cbranch_scc1 {ld}")
        R.bars = []; helper_p1(A, R, False, h3); seqs[None] = list(R.bars)
        A(f"s_branch {lj}")
        A.label(ld)
        R.bars = []; helper_p1(A, R, True, h3); seqs["d"] = list(R.bars)
        A.label(lj)
        R.bars = []
        helper_rest(A, R, h3)
    return seqs, R.bars

def gen(name):
    A = Asm()
    end = "L_end"
    A("s_cmp_ge_u32 s2, 256"); A(f"s_cbranch_scc1 {end}")
    pstamp_init(A); pstamp(A, 0)
    load_kernargs(A)
    A(f"v_lshrrev_b32 v1, 6, v0")
    A(f"v_and_b32 v{G.V_LANE}, 63, v0")
    A(f"v_readfirstlane_b32 s{S_WAVE}, v1")
    A(f"s_and_b32 s{S_T}, s2, 7"); A(f"s_lshr_b32 s{S_T2}, s2, 3")
    A(f"s_and_b32 s{S_HG}, s{S_T2}, 7"); A(f"s_lshr_b32 s{S_T2}, s{S_T2}, 3")
    A(f"s_lshl_b32 s{S_T}, s{S_T}, 2"); A(f"s_add_u32 s{S_TB}, s{S_T}, s{S_T2}")
    A(f"s_lshl_b32 s{S_ROW0}, s{S_TB}, 6")
    A("s_waitcnt lgkmcnt(0)")
    mk_srd(A, SRD_A, S_X, S_TOK * ROWB)
    mk_srd(A, SRD_W, S_WQ, D * ROWB)
    mk_srd(A, SRD_WS, S_WS, FW_SIZE)
    mk_srd(A, SRD_KV, S_WS, KV_IMG, add=FW_KV)
    mk_srd(A, SRD_OUT, S_OUT, S_TOK * ROWB)
    mk_srd(A, SRD_DBG, S_DBG, 256)
    lh = A.newlabel("helper")
    A(f"s_cmp_ge_u32 s{S_WAVE}, 8"); A(f"s_cbranch_scc1 {lh}")
    cs, cb = compute_role(A)
    A.label(lh)
    hs, hb = helper_role(A)
    assert cs[None] == hs[None], (cs[None], hs[None])
    for d in "kvg": assert cs[d] == hs["d"], (cs[d], hs["d"])
    assert cb == hb, (cb, hb)
    A.label(end); A("s_endpgm")
    return A, 168, LDS_BYTES, 64 * NWAVES

def build(out):
    n = NAME + "_kernel"
    A, nv, lds, blk = gen(n)
    hdr = open("cdna_kernels/" + NAME + ".s.ref").read().split("; Override launch")[0]
    txt = hdr + f"; @launch grid=(256,1,1) block=({blk},1,1) lds={lds}\n"
    txt += '.amdgcn_target "amdgcn-amd-amdhsa--gfx950"\n'
    rep = []
    body = A.finish(rep)
    if "-v" in sys.argv:
        print(len(rep), "nop insertions")
        for r in rep: print("   ", r)
    txt += kernel_header(n) + body + kernel_desc(n, nv, nsgpr=102)
    open(out, "w").write(txt)
    print("wrote", out, len(txt), "bytes")

if __name__ == "__main__":
    import sys
    build(sys.argv[1])
```

```python
from fcommon import *

ACC, DACC, AF, BF = 0, 12, 16, 40
AW0, AW1, AX0, AX1, AE0, AE1, AE3 = 148, 149, 150, 151, 52, 53, 54
RB0, NRB = 12, 3
RA0 = 24
EL = 56
GT = 72
V_LANE, V_I, V_H, V_T, V_G, GATE = 156, 157, 158, 159, 160, 161
XRES = 162
QSCALE = LOG2E / (DH ** 0.5)

def lane_setup(A):
    A(f"v_and_b32 v{V_T}, 15, v{V_LANE}")
    A(f"v_lshrrev_b32 v{V_G}, 4, v{V_LANE}")
    A(f"v_and_b32 v{V_I}, 31, v{V_LANE}")
    A(f"v_lshrrev_b32 v{V_H}, 5, v{V_LANE}")

def gemm_addresses(A, xb=XB, wb=WB):
    t = GT
    A(f"s_lshl_b32 s{S_T}, s{S_TG}, 4")
    A(f"v_add_u32 v{t}, s{S_T}, v{V_T}")
    A(f"v_lshlrev_b32 v{t}, 7, v{t}")
    A(f"v_lshrrev_b32 v{t+1}, 1, v{V_T}")
    A(f"v_xor_b32 v{t+1}, v{t+1}, v{V_G}")
    A(f"v_lshl_add_u32 v{AX0}, v{t+1}, 4, v{t}")
    A(f"v_xor_b32 v{AX1}, 64, v{AX0}")
    if xb:
        A(f"v_add_u32 v{AX0}, {xb}, v{AX0}"); A(f"v_add_u32 v{AX1}, {xb}, v{AX1}")
    A(f"v_bfe_u32 v{t}, v{V_LANE}, 2, 2")
    A(f"v_lshlrev_b32 v{t}, 1, v{t}")
    A(f"v_lshl_add_u32 v{t}, v{V_G}, 3, v{t}")
    A(f"v_mul_u32_u24 v{t}, 144, v{t}")
    A(f"v_and_b32 v{t+1}, 3, v{V_LANE}")
    A(f"v_lshl_add_u32 v{t}, v{t+1}, 3, v{t}")
    A(f"s_mul_i32 s{S_T}, s{S_FH}, 96")
    A(f"s_add_u32 s{S_T}, s{S_T}, {wb}")
    A(f"v_add_u32 v{AW0}, s{S_T}, v{t}")
    A(f"v_add_u32 v{AW1}, {9*W_STEP}, v{AW0}")

class Gemm:
    def __init__(self, A, nt, ra):
        self.A, self.nt, self.ra = A, nt, ra
        self.na = self.nb = 0; self.log = []; self.bumped = False
    def rd_b(self):
        s = self.nb; A = self.A; cc = s >> 1
        if s == 16:
            A(f"v_add_u32 v{AX0}, 8192, v{AX0}"); A(f"v_add_u32 v{AX1}, 8192, v{AX1}")
        A(f"ds_read_b128 {vr(RB0+4*(s%NRB),4)}, v{AX0+(s&1)} offset:{cc*8192 if cc < 8 else 7*8192}")
        self.log.append(("b", s)); self.nb += 1
    def rd_a(self):
        s = self.na; A = self.A
        base = RA0 + 4 * self.nt * (s % self.ra)
        reg = AW0 if s < 9 else AW1
        for j in range(self.nt):
            for q in range(2):
                A(f"ds_read_b64_tr_b16 {vr(base+4*j+2*q,2)}, v{reg} offset:{(s%9)*W_STEP + 144*q + 32*j}")
                self.log.append(("a", s))
        self.na += 1
    def preload_a(self, upto):
        while self.na < upto: self.rd_a()
    def steps(self, steps, avail_a, avail_b, la_a=2, burst=False):
        A = self.A
        for s in steps:
            while self.nb < min(avail_b, s + NRB): self.rd_b()
            while self.na < min(avail_a, s + 1): self.rd_a()
            if burst:
                while self.na < min(avail_a, s + la_a + 1, s + self.ra): self.rd_a()
            elif self.na < min(avail_a, s + la_a + 1, s + self.ra): self.rd_a()
            last = max(i for i, (k, st) in enumerate(self.log) if st == s)
            n = len(self.log) - 1 - last
            A(f"s_waitcnt lgkmcnt({min(n, 15)})")
            base = RA0 + 4 * self.nt * (s % self.ra)
            for j in range(self.nt):
                c = "0" if s == 0 else vr(ACC + 4 * j, 4)
                A(f"v_mfma_f32_16x16x32_bf16 {vr(ACC+4*j,4)}, {vr(base+4*j,4)}, {vr(RB0+4*(s%NRB),4)}, {c}")

def restore_x_addresses(A):
    A(f"v_subrev_u32 v{AX0}, 8192, v{AX0}"); A(f"v_subrev_u32 v{AX1}, 8192, v{AX1}")

def duty_loads(A, duty):
    t = GT
    if duty in ("k", "v"):
        for rd in range(4):
            skip = None
            if rd == 3:
                skip = A.newlabel("elskip")
                A(f"s_cmp_ge_u32 s{S_WAVE}, 3"); A(f"s_cbranch_scc1 {skip}")
            A(f"s_lshl_b32 s{S_T}, s{S_WAVE}, 6")
            A(f"s_add_u32 s{S_T}, s{S_T}, {512*rd}")
            A(f"v_add_u32 v{t}, s{S_T}, v{V_LANE}")
            A(f"v_mul_u32_u24 v{t}, 12, v{t}")
            A(f"buffer_load_dwordx3 {vr(EL+3*rd+ (rd&1),3)}, v{t}, {srd(SRD_E)}, 0 offen" if False else
              f"buffer_load_dwordx3 v[{ELR(rd)}:{ELR(rd)+2}], v{t}, {srd(SRD_E)}, 0 offen")
            if skip: A.label(skip)
    else:
        for rd in range(2):
            skip = None
            if rd == 1:
                skip = A.newlabel("elskip")
                A(f"s_cmp_lg_u32 s{S_WAVE}, 0"); A(f"s_cbranch_scc1 {skip}")
            A(f"s_lshl_b32 s{S_T}, s{S_WAVE}, 6")
            A(f"s_add_u32 s{S_T}, s{S_T}, {512*rd}")
            A(f"v_add_u32 v{t}, s{S_T}, v{V_LANE}")
            A(f"v_lshlrev_b32 v{t}, 1, v{t}")
            A(f"buffer_load_ushort v{ELR(rd)}, v{t}, {srd(SRD_E)}, 0 offen")
            A(f"buffer_load_ushort v{ELR(rd)+1}, v{t}, {srd(SRD_F)}, 0 offen")
            if skip: A.label(skip)

def ELR(rd): return EL + 4 * rd

EWA = 32
def duty_writes(A, duty):
    t = GT + 4
    def guarded(rd, last, cond, body):
        skip = None
        if rd == last:
            skip = A.newlabel("ewskip")
            A(cond); A(f"s_cbranch_scc1 {skip}")
        body()
        if skip: A.label(skip)
    if duty in ("k", "v"):
        for rd in range(4):
            a0, a1 = EWA + 2 * rd, EWA + 2 * rd + 1
            A(f"s_lshl_b32 s{S_T}, s{S_WAVE}, 6")
            A(f"s_add_u32 s{S_T}, s{S_T}, {512*rd}")
            A(f"v_add_u32 v{t}, s{S_T}, v{V_LANE}")
            A(f"v_mul_u32_u24 v{t+1}, 21846, v{t}")
            A(f"v_lshrrev_b32 v{t+1}, 16, v{t+1}")
            A(f"v_mul_u32_u24 v{t+2}, 3, v{t+1}")
            A(f"v_sub_u32 v{t+2}, v{t}, v{t+2}")
            A(f"v_lshrrev_b32 v{t+3}, 1, v{t+1}")
            A(f"v_and_b32 v{t+3}, 4, v{t+3}")
            A(f"v_xor_b32 v{t+3}, v{t+1}, v{t+3}")
            A(f"v_lshlrev_b32 v{t+3}, 5, v{t+3}")
            A(f"v_mul_u32_u24 v{t+4}, 12, v{t+2}")
            A(f"v_add_u32 v{t+3}, v{t+3}, v{t+4}")
            A(f"v_add_u32 v{a0}, {E2B}, v{t+3}")
            A(f"v_lshlrev_b32 v{t+4}, 3, v{t+1}")
            A(f"v_add_u32 v{t+4}, {E3B}, v{t+4}")
            A(f"v_add_u32 v{t+5}, 8, v{a0}")
            A(f"v_cmp_eq_u32 vcc, 2, v{t+2}")
            A(f"v_cndmask_b32 v{a1}, v{t+5}, v{t+4}, vcc")
        A("s_waitcnt vmcnt(0)")
        pstamp(A, 1, "e")
        for rd in range(4):
            def body(rd=rd):
                A(f"ds_write2_b32 v{EWA+2*rd}, v{ELR(rd)}, v{ELR(rd)+1} offset0:0 offset1:1")
                A(f"ds_write_b32 v{EWA+2*rd+1}, v{ELR(rd)+2}")
            guarded(rd, 3, f"s_cmp_ge_u32 s{S_WAVE}, 3", body)
    else:
        for rd in range(2):
            A(f"s_lshl_b32 s{S_T}, s{S_WAVE}, 6")
            A(f"s_add_u32 s{S_T}, s{S_T}, {512*rd}")
            A(f"v_add_u32 v{t}, s{S_T}, v{V_LANE}")
            A(f"v_lshlrev_b32 v{t}, 3, v{t}")
            A(f"v_add_u32 v{EWA+rd}, {E3B}, v{t}")
        A("s_waitcnt vmcnt(0)")
        pstamp(A, 1, "e")
        for rd in range(2):
            def body(rd=rd):
                A(f"v_lshl_or_b32 v{ELR(rd)}, v{ELR(rd)+1}, 16, v{ELR(rd)}")
                A(f"ds_write_b32 v{EWA+rd}, v{ELR(rd)}")
            guarded(rd, 1, f"s_cmp_lg_u32 s{S_WAVE}, 0", body)

DSA = 55
DSB = 68
def duty_stage_addresses(A, duty):
    t = GT
    if duty == "k":
        l1 = A.newlabel("ka1"); le = A.newlabel("kae")
        A(f"s_lshr_b32 s{S_T2}, s{S_TG}, 1")
        A(f"s_and_b32 s{S_T}, s{S_TG}, 1"); A(f"s_lshl_b32 s{S_T}, s{S_T}, 4")
        A(f"v_add_u32 v{t}, s{S_T}, v{V_T}")
        A(f"s_cmp_eq_u32 s{S_FH}, 0"); A(f"s_cbranch_scc0 {l1}")
        A(f"v_lshrrev_b32 v{t+1}, 1, v{V_G}")
        A(f"v_lshl_add_u32 v{t+1}, v{t+1}, 5, v{t}")
        A(f"v_lshlrev_b32 v{t+1}, 4, v{t+1}")
        A(f"v_and_b32 v{t+2}, 1, v{V_G}")
        A(f"v_lshl_add_u32 v{t+1}, v{t+2}, 3, v{t+1}")
        A(f"s_lshl_b32 s{S_T}, s{S_T2}, 10"); A(f"s_add_u32 s{S_T}, s{S_T}, {STG}")
        A(f"v_add_u32 v{DSA}, s{S_T}, v{t+1}")
        A(f"s_branch {le}")
        A.label(l1)
        A(f"v_lshlrev_b32 v{t+1}, 3, v{t}")
        A(f"s_lshl_b32 s{S_T}, s{S_T2}, 2"); A(f"s_add_u32 s{S_T}, s{S_T}, {STG+TB_KEXT}")
        A(f"v_add_u32 v{DSA}, s{S_T}, v{t+1}")
        A.label(le)
    elif duty == "v":
        A(f"s_mul_i32 s{S_T3}, s{S_TG}, {V_TILE//2}"); A(f"s_add_u32 s{S_T3}, s{S_T3}, {STG}")
        A(f"v_bfe_u32 v{t}, v{V_T}, 2, 1")
        A(f"v_mul_u32_u24 v{t}, {VROWS*16}, v{t}")
        A(f"v_lshrrev_b32 v{t+1}, 3, v{V_T}")
        A(f"v_and_b32 v{t+2}, 3, v{V_T}")
        A(f"v_lshl_add_u32 v{t+1}, v{t+1}, 2, v{t+2}")
        A(f"v_lshl_add_u32 v{t}, v{t+1}, 1, v{t}")
        A(f"v_add_u32 v{DSA}, s{S_T3}, v{t}")
        le = A.newlabel("vae")
        A(f"s_cmp_eq_u32 s{S_FH}, 0"); A(f"s_cbranch_scc0 {le}")
        A(f"v_and_b32 v{t+1}, 1, v{V_G}")
        A(f"v_lshrrev_b32 v{t+2}, 1, v{V_G}")
        A(f"v_lshl_add_u32 v{t+1}, v{t+1}, 1, v{t+2}")
        A(f"v_lshl_add_u32 v{DSA}, v{t+1}, 6, v{DSA}")
        A.label(le)

def duty_addresses(A):
    t = GT
    A(f"v_bfe_u32 v{t}, v{V_LANE}, 2, 2")
    A(f"v_lshl_add_u32 v{t}, v{V_G}, 3, v{t}")
    A(f"v_and_b32 v{t+1}, 1, v{V_G}")
    A(f"v_lshl_add_u32 v{t+2}, v{t+1}, 2, v{t}")
    A(f"v_xor_b32 v{t+1}, 1, v{t+1}")
    A(f"v_lshl_add_u32 v{t+3}, v{t+1}, 2, v{t}")
    A(f"v_and_b32 v{t+1}, 3, v{V_LANE}")
    A(f"v_lshlrev_b32 v{t+1}, 3, v{t+1}")
    A(f"v_lshl_add_u32 v{AE0}, v{t+2}, 5, v{t+1}")
    A(f"v_lshl_add_u32 v{AE1}, v{t+3}, 5, v{t+1}")
    A(f"v_add_u32 v{AE0}, {E2B}, v{AE0}")
    A(f"v_add_u32 v{AE1}, {E2B}, v{AE1}")
    A(f"v_lshlrev_b32 v{AE3}, 3, v{t}")
    A(f"v_add_u32 v{AE3}, {E3B}, v{AE3}")

def duty_gemm(A, which):
    DA, DB, DEP = 16, 32, 4
    def rd(s):
        b = DA + 4 * (s % DEP)
        reg = AX0 + (s & 1); cc = s >> 1
        if s == 16:
            A(f"v_add_u32 v{AX0}, 8192, v{AX0}"); A(f"v_add_u32 v{AX1}, 8192, v{AX1}")
        A(f"ds_read_b128 {vr(DB+4*(s%DEP),4)}, v{reg} offset:{cc*8192 if cc < 8 else 7*8192}")
        for q in range(2):
            if which == 2: A(f"ds_read_b64_tr_b16 {vr(b+2*q,2)}, v{AE0+q} offset:{s*1024}")
            else: A(f"ds_read_b64_tr_b16 {vr(b+2*q,2)}, v{AE3} offset:{s*256 + 32*q}")
    for s in range(DEP): rd(s)
    for s in range(18):
        ahead = min(DEP - 1, 17 - s)
        A(f"s_waitcnt lgkmcnt({3*ahead})")
        c = "0" if s == 0 else vr(DACC, 4)
        A(f"v_mfma_f32_16x16x32_bf16 {vr(DACC,4)}, {vr(DA+4*(s%DEP),4)}, {vr(DB+4*(s%DEP),4)}, {c}")
        if s + DEP < 18: rd(s + DEP)
    restore_x_addresses(A)
    A("s_nop 7")

def k_stage(A):
    d = GT + 10
    l1 = A.newlabel("k1"); le = A.newlabel("ke")
    A(f"s_cmp_eq_u32 s{S_FH}, 0"); A(f"s_cbranch_scc0 {l1}")
    duty_gemm(A, 2)
    A(f"v_cvt_pk_bf16_f32 v{d}, v{DACC}, v{DACC+1}")
    A(f"v_cvt_pk_bf16_f32 v{d+1}, v{DACC+2}, v{DACC+3}")
    A(f"ds_write_b64 v{DSA}, {vr(d,2)}")
    A(f"s_branch {le}")
    A.label(l1)
    duty_gemm(A, 3)
    A(f"v_cvt_pk_bf16_f32 v{d}, v{DACC}, v{DACC+1}")
    A(f"v_cmp_eq_u32 vcc, 0, v{V_G}")
    A(f"s_and_saveexec_b64 s[{S_EX}:{S_EX+1}], vcc")
    A(f"ds_write_b32 v{DSA}, v{d}")
    A(f"s_mov_b64 exec, s[{S_EX}:{S_EX+1}]")
    A.label(le)

KSAVE = 152
def k_norm(A):
    t = GT; n = t + 3
    l1 = A.newlabel("kn1"); le = A.newlabel("kne")
    A(f"s_cmp_eq_u32 s{S_FH}, 0"); A(f"s_cbranch_scc0 {l1}")
    A(f"v_mul_f32 v{n}, v{KSAVE}, v{KSAVE}")
    for r in range(1, 4): A(f"v_fma_f32 v{n}, v{KSAVE+r}, v{KSAVE+r}, v{n}")
    A(f"ds_swizzle_b32 v{n+1}, v{n} offset:0x401F")
    A("s_waitcnt lgkmcnt(0)")
    A(f"v_add_f32 v{n}, v{n}, v{n+1}")
    A(f"v_mov_b32 v{n+1}, v{n}")
    A(f"v_permlane32_swap_b32 v{n}, v{n+1}")
    A(f"v_add_f32 v{n}, v{n}, v{n+1}")
    A(f"s_lshl_b32 s{S_T}, s{S_TG}, 2"); A(f"s_add_u32 s{S_T}, s{S_T}, {STG_N}")
    A(f"s_branch {le}")
    A.label(l1)
    A(f"v_mul_f32 v{n}, v{KSAVE}, v{KSAVE}")
    A(f"v_fma_f32 v{n}, v{KSAVE+1}, v{KSAVE+1}, v{n}")
    A(f"s_lshl_b32 s{S_T}, s{S_TG}, 2"); A(f"s_add_u32 s{S_T}, s{S_T}, {STG_N+16}")
    A.label(le)
    for sh in (1, 2, 4, 8):
        A(f"v_max_f32_dpp v{n}, v{n}, v{n} row_ror:{sh} row_mask:0xf bank_mask:0xf")
    A(f"v_mov_b32 v{n+1}, s{S_T}")
    A(f"v_cmp_eq_u32 vcc, 0, v{V_LANE}")
    A(f"s_and_saveexec_b64 s[{S_EX}:{S_EX+1}], vcc")
    A(f"ds_write_b32 v{n+1}, v{n}")
    A(f"s_mov_b64 exec, s[{S_EX}:{S_EX+1}]")

def publish_kn(A):
    t = 0; a_ = 4; b_ = 8
    A(f"v_mov_b32 v{t+2}, {STG_N}")
    A(f"ds_read_b128 {vr(a_,4)}, v{t+2}")
    A(f"ds_read_b128 {vr(b_,4)}, v{t+2} offset:16")
    A("s_waitcnt lgkmcnt(0)")
    A(f"v_max3_f32 v{a_}, v{a_}, v{a_+1}, v{a_+2}"); A(f"v_max_f32 v{a_}, v{a_}, v{a_+3}")
    A(f"v_max3_f32 v{b_}, v{b_}, v{b_+1}, v{b_+2}"); A(f"v_max_f32 v{b_}, v{b_}, v{b_+3}")
    A(f"v_add_f32 v{a_}, v{a_}, v{b_}")
    A(f"v_mul_f32 v{a_}, {f32(1.02)}, v{a_}")
    A(f"v_or_b32 v{a_}, 1, v{a_}")
    A(f"s_lshl_b32 s{S_T}, s{S_TB}, 2"); A(f"s_add_u32 s{S_T}, s{S_T}, {FW_FLAG + FL_KN}")
    A(f"v_lshlrev_b32 v{t+2}, 10, v{V_LANE}")
    A(f"v_cmp_gt_u32 vcc, 32, v{V_LANE}")
    A(f"s_and_saveexec_b64 s[{S_EX}:{S_EX+1}], vcc")
    A(f"buffer_store_dword v{a_}, v{t+2}, {srd(SRD_WS)}, s{S_T} offen sc1")
    A(f"s_mov_b64 exec, s[{S_EX}:{S_EX+1}]")

def v_stage(A):
    d = GT + 10
    l1 = A.newlabel("v1"); le = A.newlabel("ve")
    A(f"s_cmp_eq_u32 s{S_FH}, 0"); A(f"s_cbranch_scc0 {l1}")
    duty_gemm(A, 2)
    A(f"v_cvt_pk_bf16_f32 v{d}, v{DACC}, v{DACC+1}")
    A(f"v_cvt_pk_bf16_f32 v{d+1}, v{DACC+2}, v{DACC+3}")
    A(f"ds_write_b16 v{DSA}, v{d}")
    A(f"ds_write_b16_d16_hi v{DSA}, v{d} offset:16")
    A(f"ds_write_b16 v{DSA}, v{d+1} offset:32")
    A(f"ds_write_b16_d16_hi v{DSA}, v{d+1} offset:48")
    A(f"s_branch {le}")
    A.label(l1)
    duty_gemm(A, 3)
    A(f"v_cvt_pk_bf16_f32 v{d}, v{DACC}, v{DACC+1}")
    A(f"v_mov_b32 v{d+1}, 0x3f80")
    A(f"v_cmp_eq_u32 vcc, 0, v{V_G}")
    A(f"s_and_saveexec_b64 s[{S_EX}:{S_EX+1}], vcc")
    A(f"ds_write_b16 v{DSA}, v{d} offset:{16*16}")
    A(f"ds_write_b16_d16_hi v{DSA}, v{d} offset:{17*16}")
    A(f"ds_write_b16 v{DSA}, v{d+1} offset:{18*16}")
    A(f"s_mov_b64 exec, s[{S_EX}:{S_EX+1}]")
    A.label(le)

def g_stage(A):
    t = GT
    le = A.newlabel("ge")
    A(f"s_cmp_eq_u32 s{S_FH}, 0"); A(f"s_cbranch_scc1 {le}")
    duty_gemm(A, 3)
    A(f"v_cvt_pk_bf16_f32 v{t}, v{DACC}, v{DACC}")
    A(f"v_and_b32 v{t}, 0xffff0000, v{t}")
    A(f"v_mul_f32 v{t}, {f32(-LOG2E)}, v{t}")
    A(f"v_exp_f32 v{t}, v{t}")
    A(f"v_add_f32 v{t}, 1.0, v{t}")
    A(f"v_rcp_f32 v{t}, v{t}")
    A(f"v_cvt_pk_bf16_f32 v{t}, v{t}, v{t}")
    A(f"v_and_b32 v{t}, 0xffff0000, v{t}")
    A(f"s_lshl_b32 s{S_T}, s{S_TG}, 4")
    A(f"v_add_u32 v{t+1}, s{S_T}, v{V_T}")
    A(f"v_lshlrev_b32 v{t+2}, 2, v{t+1}")
    A(f"v_add_u32 v{t+2}, {STG}, v{t+2}")
    k = t + 3; k2 = t + 4; u = t + 5
    A(f"v_cvt_pk_bf16_f32 v{k}, v{DACC+1}, v{DACC+1}")
    A(f"v_and_b32 v{k}, 0xffff, v{k}")
    A(f"v_xor_b32 v{k2}, 0x8000, v{k}")
    A(f"v_xor_b32 v{u}, 0xffff, v{k}")
    A(f"v_cmp_lt_u32 vcc, 0x7fff, v{k}")
    A(f"v_cndmask_b32 v{k}, v{k2}, v{u}, vcc")
    A(f"v_add_u32 v{k2}, s{S_ROW0}, v{t+1}")
    A(f"v_sub_u32 v{k2}, 0xffff, v{k2}")
    A(f"v_lshl_or_b32 v{k}, v{k}, 16, v{k2}")
    A(f"v_mov_b32 v{k2}, v{k}")
    for sh in (1, 2, 4, 8):
        A(f"v_max_u32_dpp v{k2}, v{k2}, v{k2} row_ror:{sh} row_mask:0xf bank_mask:0xf")
    A(f"v_cmp_eq_u32 vcc, v{k}, v{k2}")
    A(f"v_mov_b32 v{u}, 0")
    A(f"v_cndmask_b32 v{k}, v{k}, v{u}, vcc")
    for sh in (1, 2, 4, 8):
        A(f"v_max_u32_dpp v{k}, v{k}, v{k} row_ror:{sh} row_mask:0xf bank_mask:0xf")
    A(f"s_lshl_b32 s{S_T}, s{S_TG}, 3"); A(f"s_add_u32 s{S_T}, s{S_T}, {STG+256}")
    A(f"v_mov_b32 v{u}, s{S_T}")
    A(f"v_cmp_eq_u32 vcc, 0, v{V_G}")
    A(f"s_and_saveexec_b64 s[{S_EX}:{S_EX+1}], vcc")
    A(f"ds_write_b32 v{t+2}, v{t}")
    A(f"v_cmp_eq_u32 vcc, 0, v{V_LANE}")
    A(f"s_and_b64 exec, exec, vcc")
    A(f"ds_write2_b32 v{u}, v{k2}, v{k} offset0:0 offset1:1")
    A(f"s_mov_b64 exec, s[{S_EX}:{S_EX+1}]")
    A.label(le)

def publish(A, duty):
    t = GT; WS = srd(SRD_WS)
    A(f"v_lshlrev_b32 v{t}, 4, v{V_LANE}")
    if duty in ("k", "v"):
        nbytes = TB_V if duty == "k" else TB_BYTES - TB_V
        A(f"s_mul_i32 s{S_T}, s{S_TB}, {TB_BYTES}")
        A(f"s_add_u32 s{S_T}, s{S_T}, {FW_KV + (0 if duty == 'k' else TB_V)}")
        A(f"v_add_u32 v{t+1}, {STG}, v{t}")
        for u in range(3):
            A(f"ds_read_b128 {vr(AF+4*u,4)}, v{t+1} offset:{1024*u}")
        A("s_waitcnt lgkmcnt(0)")
        A(f"buffer_store_dwordx4 {vr(AF,4)}, v{t}, {WS}, s{S_T} offen sc1")
        A(f"buffer_store_dwordx4 {vr(AF+4,4)}, v{t}, {WS}, s{S_T} offen offset:1024 sc1")
        A(f"v_cmp_gt_u32 vcc, {(nbytes-2048)//16}, v{V_LANE}")
        A(f"s_and_saveexec_b64 s[{S_EX}:{S_EX+1}], vcc")
        A(f"buffer_store_dwordx4 {vr(AF+8,4)}, v{t}, {WS}, s{S_T} offen offset:2048 sc1")
        A(f"s_mov_b64 exec, s[{S_EX}:{S_EX+1}]")
    else:
        A(f"v_lshlrev_b32 v{t+1}, 2, v{V_LANE}")
        A(f"v_add_u32 v{t+2}, {STG}, v{t+1}")
        A(f"ds_read_b32 v{AF}, v{t+2}")
        A(f"ds_read_b32 v{AF+1}, v{t+2} offset:256")
        for r in range(4): A(f"v_mov_b32 v{AF+4+r}, 0")
        A("s_waitcnt lgkmcnt(0)")
        A(f"s_lshl_b32 s{S_T}, s{S_ROW0}, 2"); A(f"s_add_u32 s{S_T}, s{S_T}, {FW_G}")
        A(f"buffer_store_dword v{AF}, v{t+1}, {WS}, s{S_T} offen sc1")
        A(f"s_mul_i32 s{S_T}, s{S_TB}, 1152"); A(f"s_add_u32 s{S_T}, s{S_T}, {FW_YACC}")
        A(f"buffer_store_dwordx4 {vr(AF+4,4)}, v{t}, {WS}, s{S_T} offen sc1")
        A(f"v_cmp_gt_u32 vcc, 8, v{V_LANE}")
        A(f"s_and_saveexec_b64 s[{S_EX}:{S_EX+1}], vcc")
        A(f"buffer_store_dwordx4 {vr(AF+4,4)}, v{t}, {WS}, s{S_T} offen offset:1024 sc1")
        A(f"s_lshl_b32 s{S_T}, s{S_TB}, 5"); A(f"s_add_u32 s{S_T}, s{S_T}, {FW_KEYS}")
        A(f"buffer_store_dword v{AF+1}, v{t+1}, {WS}, s{S_T} offen sc1")
        A(f"s_mov_b64 exec, s[{S_EX}:{S_EX+1}]")

V_INIT = 154
def init_probe(A):
    A(f"v_mov_b32 v{V_INIT+1}, {DBG_INIT}")
    A(f"buffer_load_dword v{V_INIT}, v{V_INIT+1}, {srd(SRD_DBG)}, 0 offen sc1")

def raise_flag(A, duty):
    t = 152
    base = {"k": FL_K, "v": FL_V, "g": FL_G}[duty]
    lp = A.newlabel("initp"); done = A.newlabel("initok")
    A("s_waitcnt vmcnt(0)")
    A(f"v_readfirstlane_b32 s81, v{V_INIT}")
    A(f"s_cmp_ge_u32 s81, 32"); A(f"s_cbranch_scc1 {done}")
    A(f"v_mov_b32 v{t}, {DBG_INIT}")
    A(f"s_mov_b32 s80, 0")
    A.label(lp)
    A(f"buffer_load_dword v{t+1}, v{t}, {srd(SRD_DBG)}, 0 offen sc1")
    A("s_waitcnt vmcnt(0)")
    A(f"v_readfirstlane_b32 s81, v{t+1}")
    A(f"s_cmp_ge_u32 s81, 32"); A(f"s_cbranch_scc1 {done}")
    A("s_sleep 4")
    A(f"s_add_u32 s80, s80, 1")
    A(f"s_cmp_lt_u32 s80, 0x40000"); A(f"s_cbranch_scc1 {lp}")
    A.label(done)
    A(f"s_add_u32 s{S_T}, s{S_TB}, {base}")
    A(f"s_lshr_b32 s{S_T2}, s{S_T}, 4"); A(f"s_lshl_b32 s{S_T2}, s{S_T2}, 7")
    A(f"s_and_b32 s{S_T}, s{S_T}, 15"); A(f"s_add_u32 s{S_T}, s{S_T}, s{S_T2}"); A(f"s_add_u32 s{S_T}, s{S_T}, {FW_FLAG}")
    A(f"v_lshlrev_b32 v{t}, 10, v{V_LANE}")
    A(f"v_add_u32 v{t}, s{S_T}, v{t}")
    A(f"v_mov_b32 v{t+1}, 1")
    A(f"v_cmp_gt_u32 vcc, 32, v{V_LANE}")
    A(f"s_and_saveexec_b64 s[{S_EX}:{S_EX+1}], vcc")
    A(f"buffer_store_byte v{t+1}, v{t}, {srd(SRD_WS)}, 0 offen sc1")
    A(f"s_mov_b64 exec, s[{S_EX}:{S_EX+1}]")

def clear_flag_lines(A):
    t = GT
    skip = A.newlabel("noclr")
    A(f"s_cmp_lg_u32 s{S_HG}, 7"); A(f"s_cbranch_scc1 {skip}")
    A(f"s_cmp_lg_u32 s{S_WAVE}, 0"); A(f"s_cbranch_scc1 {skip}")
    for r in range(4): A(f"v_mov_b32 v{t+2+r}, 0")
    A(f"s_lshl_b32 s{S_T}, s{S_TB}, 10"); A(f"s_add_u32 s{S_T}, s{S_T}, {FW_FLAG}")
    A(f"v_lshlrev_b32 v{t}, 4, v{V_LANE}")
    A(f"buffer_store_dwordx4 {vr(t+2,4)}, v{t}, {srd(SRD_WS)}, s{S_T} offen sc1")
    A(f"s_mov_b32 s{S_T}, {FW_FFNC}")
    A(f"s_cmp_eq_u32 s{S_TB}, 0")
    l2 = A.newlabel("noffc")
    A(f"s_cbranch_scc0 {l2}")
    A("s_mov_b64 exec, 1")
    A(f"buffer_store_dwordx4 {vr(t+2,4)}, v{t}, {srd(SRD_WS)}, s{S_T} offen sc1")
    A.label(l2)
    A("s_waitcnt vmcnt(0)")
    A("s_mov_b64 exec, 1")
    A(f"v_mov_b32 v{t}, {DBG_INIT}"); A(f"v_mov_b32 v{t+1}, 1")
    A(f"buffer_atomic_add v{t+1}, v{t}, {srd(SRD_DBG)}, 0 offen sc1")
    A("s_mov_b64 exec, -1")
    A.label(skip)

def residual_x(A):
    t = GT
    A(f"s_mul_i32 s{S_T}, s{S_HG}, 144")
    A(f"s_mul_i32 s{S_T2}, s{S_FH}, 96")
    A(f"s_add_u32 s{S_T}, s{S_T}, s{S_T2}")
    A(f"s_lshl_b32 s{S_T2}, s{S_TG}, 4")
    A(f"v_add_u32 v{t}, s{S_T2}, v{V_T}")
    A(f"v_lshlrev_b32 v{t}, 7, v{t}")
    A(f"v_lshrrev_b32 v{t+1}, 1, v{V_T}")
    for j in range(3):
        A(f"v_lshlrev_b32 v{t+2}, 3, v{V_G}")
        A(f"v_add_u32 v{t+2}, s{S_T}, v{t+2}")
        if j: A(f"v_add_u32 v{t+2}, {32*j}, v{t+2}")
        A(f"v_lshrrev_b32 v{t+3}, 7, v{t+2}")
        A(f"v_lshl_add_u32 v{t+3}, v{t+3}, 13, v{t}")
        A(f"v_bfe_u32 v{t+4}, v{t+2}, 4, 3")
        A(f"v_xor_b32 v{t+4}, v{t+4}, v{t+1}")
        A(f"v_lshl_add_u32 v{t+3}, v{t+4}, 4, v{t+3}")
        A(f"v_and_b32 v{t+2}, 8, v{t+2}")
        A(f"v_add_u32 v{t+3}, v{t+3}, v{t+2}")
        A(f"ds_read_b64 {vr(XRES+2*j,2)}, v{t+3}")

def stage_rows(A, base, vals):
    t = GT + 8
    A(f"s_lshl_b32 s{S_T}, s{S_TG}, 4")
    A(f"v_add_u32 v{t}, s{S_T}, v{V_T}")
    A(f"v_mul_u32_u24 v{t}, 144, v{t}")
    A(f"v_lshl_add_u32 v{t}, v{V_G}, 3, v{t}")
    A(f"s_mul_i32 s{S_T}, s{S_FH}, 96")
    A(f"s_add_u32 s{S_T}, s{S_T}, {base}")
    A(f"v_add_u32 v{t}, s{S_T}, v{t}")
    return t

def q_epilogue(A, nt):
    ad = stage_rows(A, QS, None)
    A(f"s_mov_b32 s{S_T}, {f32(QSCALE)}")
    t = GT
    for j in range(nt):
        a_ = ACC + 4 * j; d = AF + 2 * j
        for r in range(4): A(f"v_mul_f32 v{t+r}, s{S_T}, v{a_+r}")
        A(f"v_cvt_pk_bf16_f32 v{d}, v{t}, v{t+1}")
        A(f"v_cvt_pk_bf16_f32 v{d+1}, v{t+2}, v{t+3}")
        last = (nt == 2 and j == 1)
        if last:
            A(f"v_cmp_gt_u32 vcc, 2, v{V_G}")
            A(f"s_and_saveexec_b64 s[{S_EX}:{S_EX+1}], vcc")
        A(f"ds_write_b64 v{ad}, {vr(d,2)} offset:{32*j}")
        if last: A(f"s_mov_b64 exec, s[{S_EX}:{S_EX+1}]")
```

```python
from fcommon import *
import sys
import f_gemm as G, f_attn as AT, f_out as FO, f_help as HP

NWAVES = 12
SAMEXCD = os.environ.get('SAMEXCD', '1') == '1'
LA1 = int(os.environ.get('LA1', '2'))
XFIRST = os.environ.get('XFIRST', '0') == '1'
FLAG_STAGE = int(os.environ.get('FLAG_STAGE', '2'))

def busy_delay(A, env):
    n = int(os.environ.get(env, "0"))
    if not n: return
    l = A.newlabel("dly")
    A(f"s_mov_b32 s88, {n}")
    A.label(l)
    A("s_sub_u32 s88, s88, 1"); A("s_cmp_lg_u32 s88, 0"); A(f"s_cbranch_scc1 {l}")

def stop_here(A, name):
    if STOP == name:
        A("s_waitcnt vmcnt(0) lgkmcnt(0)")
        A("s_endpgm")
        return True
    return False

S_RAISED = 87
S_OUTOFF, S_OOFF = 42, 43
def try_raise(A, duty, blocking):
    nf = A.newlabel("noflag")
    A(f"s_cmp_lg_u32 s{S_WAVE}, 0"); A(f"s_cbranch_scc1 {nf}")
    A(f"s_cmp_lg_u32 s{S_RAISED}, 0"); A(f"s_cbranch_scc1 {nf}")
    if not blocking:
        A(f"s_getreg_b32 s{S_T}, hwreg(HW_REG_IB_STS, 0, 4)")
        A(f"s_cmp_lg_u32 s{S_T}, 0"); A(f"s_cbranch_scc1 {nf}")
    pstamp(A, 3, "p1")
    G.raise_flag(A, duty)
    pstamp(A, 4, "p1")
    A(f"s_mov_b32 s{S_RAISED}, 1")
    A.label(nf)

def compute_p1(A, R, duty):
    if duty:
        if duty in ("k", "v"):
            mk_srd(A, SRD_E, S_WK if duty == "k" else S_WV, 576 * 36)
        else:
            mk_srd(A, SRD_E, S_GW, ROWB); mk_srd(A, SRD_F, S_WR, ROWB)
        G.duty_loads(A, duty)
    G.gemm_addresses(A)
    if duty:
        G.duty_addresses(A)
        G.duty_stage_addresses(A, duty)
        G.duty_writes(A, duty)
    A("s_waitcnt lgkmcnt(0)")
    R.bar("b1")
    pstamp(A, 1, "p1")
    if duty:
        {"k": G.k_stage, "v": G.v_stage, "g": G.g_stage}[duty](A)
        A("s_waitcnt lgkmcnt(0)")
        R.bar("b2")
        pstamp(A, 2, "p1")
        np_ = A.newlabel("nopub")
        A(f"s_cmp_lg_u32 s{S_WAVE}, 0"); A(f"s_cbranch_scc1 {np_}")
        G.publish(A, duty)
        G.init_probe(A)
        A(f"s_mov_b32 s{S_RAISED}, 0")
        A.label(np_)
        if duty == "k":
            for r in range(4): A(f"v_mov_b32 v{G.KSAVE+r}, v{G.DACC+r}")
    lf = A.newlabel("p1f1"); le = A.newlabel("p1e")
    bars0 = list(R.bars)
    A(f"s_cmp_eq_u32 s{S_FH}, 0"); A(f"s_cbranch_scc0 {lf}")
    if duty: stages = [("bW2", list(range(0, 12))), ("bW3", list(range(12, 18)))]
    else: stages = [(f"bW{q}", list(range(4 * q, 4 * q + 4))) for q in range(3)] + [("bW3", list(range(12, 18)))]
    for nt in (3, 2):
        if nt == 2:
            A.label(lf); R.bars = list(bars0)
        gm = G.Gemm(A, nt, 4)
        for name, steps in stages:
            if name == "bW3":
                if duty and nt == 3: try_raise(A, duty, False)
                pstamp(A, 9, "w")
            R.bar(name)
            if name == "bW3": pstamp(A, 5, "p1")
            else: pstamp(A, int(name[2]), "w")
            if duty and name == "bW2":
                for part in (steps[:5], steps[5:9], steps[9:]):
                    gm.steps(part, 12, 18, la_a=LA1, burst=True)
                    if nt == 3 and part is not None and part[-1] != 11: try_raise(A, duty, False)
            else:
                gm.steps(steps, steps[-1] + 1, 18, la_a=LA1, burst=True)
        A("s_nop 7")
        G.q_epilogue(A, nt)
        if duty and nt == 3: try_raise(A, duty, True)
        if nt == 3: A(f"s_branch {le}")
    A.label(le)
    A("s_waitcnt lgkmcnt(0)")
    R.bar("bQ")
    G.residual_x(A)
    if duty == "k": G.k_norm(A)

def compute_role(A):
    R = Role(A)
    A(f"s_and_b32 s{S_TG}, s{S_WAVE}, 3"); A(f"s_lshr_b32 s{S_FH}, s{S_WAVE}, 2")
    G.lane_setup(A)
    A(f"v_mov_b32 v{G.GT}, {L_CNT}"); A(f"v_mov_b32 v{G.GT+2}, 0"); A(f"v_mov_b32 v{G.GT+3}, 0")
    A(f"v_mov_b32 v{G.GT+4}, 0"); A(f"v_mov_b32 v{G.GT+5}, 0")
    A(f"ds_write_b128 v{G.GT}, {vr(G.GT+2,4)}")
    A(f"ds_write_b128 v{G.GT}, {vr(G.GT+2,4)} offset:16")
    G.clear_flag_lines(A)
    lk = A.newlabel("dk"); lv = A.newlabel("dv"); lg = A.newlabel("dg"); lj = A.newlabel("dj")
    A(f"s_cmp_eq_u32 s{S_HG}, 0"); A(f"s_cbranch_scc1 {lk}")
    A(f"s_cmp_eq_u32 s{S_HG}, 1"); A(f"s_cbranch_scc1 {lv}")
    A(f"s_cmp_eq_u32 s{S_HG}, 2"); A(f"s_cbranch_scc1 {lg}")
    seqs = {}
    for duty, lab in ((None, None), ("k", lk), ("v", lv), ("g", lg)):
        if lab: A.label(lab)
        R.bars = []
        compute_p1(A, R, duty)
        seqs[duty] = list(R.bars)
        if duty != "g": A(f"s_branch {lj}")
    A.label(lj)
    R.bars = []
    pstamp(A, 1)
    AT.q_fragments(A)
    AT.lds_addresses(A)
    pstamp(A, 6, "p1")
    A("s_waitcnt lgkmcnt(0)")
    R.bar("bKV")
    pstamp(A, 7, "p1")
    nk = A.newlabel("nokn")
    A(f"s_cmp_lg_u32 s{S_HG}, 0"); A(f"s_cbranch_scc1 {nk}")
    A(f"s_cmp_lg_u32 s{S_WAVE}, 0"); A(f"s_cbranch_scc1 {nk}")
    G.publish_kn(A)
    A.label(nk)
    t = AT.T
    AT.q_norm(A)
    AT.gate_address(A)
    AT.tail_addresses(A)
    A(f"s_mul_i32 s{S_OUTOFF}, s{S_ROW0}, {ROWB}"); A(f"s_mul_i32 s{S_T}, s{S_HG}, 144")
    A(f"s_add_u32 s{S_OUTOFF}, s{S_OUTOFF}, s{S_T}"); A(f"s_add_u32 s{S_OOFF}, s{S_OUTOFF}, {FW_O}")
    busy_delay(A, "DELAY0")
    R.bar("B0")
    pstamp(A, 2)
    lf = A.newlabel("fallback"); le = A.newlabel("attdone")
    AT.fast_path(A, R, lf)
    A(f"s_branch {le}")
    A.label(lf)
    AT.fallback_path(A, R)
    A.label(le)
    busy_delay(A, "DELAY1")
    AT.finish(A, R)
    AT.store_rows(A, SRD_WS, S_OOFF, "sc1")
    A("s_waitcnt vmcnt(0)")
    pstamp(A, 1, "t")
    R.bar("B5")
    nf = A.newlabel("nogrp")
    A(f"s_cmp_lg_u32 s{S_WAVE}, 0"); A(f"s_cbranch_scc1 {nf}")
    A(f"s_lshl_b32 s{S_T}, s{S_TB}, 10"); A(f"s_add_u32 s{S_T}, s{S_T}, {FW_FLAG + FL_GRP}")
    A(f"v_mov_b32 v{t}, s{S_T}"); A(f"v_mov_b32 v{t+1}, 1")
    A("s_mov_b64 exec, 1")
    A(f"buffer_atomic_add v{t+1}, v{t}, {srd(SRD_WS)}, 0 offen sc1")
    A("s_mov_b64 exec, -1")
    A.label(nf)
    busy_delay(A, "DELAY2")
    FO.out_phase(A, R)
    if STAMPS: A("s_waitcnt vmcnt(0)")
    pstamp(A, 7)
    if os.environ.get("DBGSTAMP"):
        nd = A.newlabel("nodbg")
        A(f"s_cmp_lg_u32 s2, {int(os.environ['DBGSTAMP'])}"); A(f"s_cbranch_scc1 {nd}")
        A(f"s_cmp_lg_u32 s{S_WAVE}, 4"); A(f"s_cbranch_scc1 {nd}")
        A(f"v_mbcnt_lo_u32_b32 v{AT.T}, -1, 0")
        A(f"v_lshlrev_b32 v{AT.T}, 2, v{AT.T}")
        A(f"v_add_u32 v{AT.T}, 32, v{AT.T}")
        A("s_mov_b64 exec, 0xff")
        A(f"buffer_store_dword v{V_ST}, v{AT.T}, {srd(SRD_DBG)}, 0 offen")
        A.label(nd)
    else:
        pstamp_flush(A, S_WAVE, S_WS, WS_STAMP, AT.T)
    A("s_endpgm")
    return seqs, R.bars

def flag_off(A, t):
    A(f"v_min_u32 v{t}, 23, v{HP.V_LANE}")
    A(f"v_and_b32 v{t+1}, 3, v{t}"); A(f"v_lshrrev_b32 v{t}, 2, v{t}")
    A(f"v_lshlrev_b32 v{t}, 7, v{t}"); A(f"v_lshl_add_u32 v{t}, v{t+1}, 2, v{t}")
    A(f"s_lshl_b32 s{S_T}, s{S_TB}, 10"); A(f"s_add_u32 s{S_T}, s{S_T}, {FW_FLAG}")
    A(f"v_add_u32 v{t}, s{S_T}, v{t}")

def flag0_off(A, t):
    A(f"v_and_b32 v{t}, 1, v{HP.V_LANE}"); A(f"v_lshlrev_b32 v{t}, 2, v{t}")
    A(f"v_and_b32 v{t+1}, 2, v{HP.V_LANE}"); A(f"v_lshl_add_u32 v{t}, v{t+1}, 7, v{t}")
    A(f"s_lshl_b32 s{S_T}, s{S_TB}, 10"); A(f"s_add_u32 s{S_T}, s{S_T}, {FW_FLAG}")
    A(f"v_add_u32 v{t}, s{S_T}, v{t}")

def helper_p1(A, R, duty, h3):
    vm = VmTrack()
    vm.issue("x", 18)
    HP.issue_w(A, vm, h3, range(6), lambda a_: f"w{a_//2}")
    if not duty: HP.issue_w(A, vm, h3, range(6, 9), lambda a_: "w3")
    A(f"s_waitcnt vmcnt({vm.after('x')})")
    R.bar("b1")
    if duty:
        R.bar("b2")
        if os.environ.get("B2SLEEP"): A(f"s_sleep {os.environ['B2SLEEP']}")
        HP.issue_w(A, vm, h3, range(6, 9), lambda a_: "w3")
    for q in range(4):
        if duty and q < 2: continue
        A(f"s_waitcnt vmcnt({vm.after(f'w{q}')})")
        R.bar(f"bW{q}")
        if q == 2: HP.init_issue(A)
    HP.init_check(A)
    HP.poll_issue(A, flag0_off)
    R.bar("bQ")

def helper_rest(A, R, h3):
    pstamp(A, 1)
    HP.poll(A, flag0_off, 4, "0x01010101", "kv0", preissued=True)
    pstamp(A, 2)
    R.bar("bKV")
    HP.issue_kv(A, 0, HP.KV_ST0)
    A("s_waitcnt vmcnt(0)")
    R.bar("B0")
    HP.poll(A, flag_off, 24, "0x01010101", "kvp")
    HP.lds_sync(A, 4, "hsall", sleep=4)
    A(f"s_mov_b32 s{S_T}, {FW_KEYS}")
    A(f"buffer_load_dwordx4 {vr(HP.F_KEY,4)}, v{HP.VL16}, {srd(SRD_WS)}, s{S_T} offen{HSC}")
    HP.issue_kv(A, HP.KV_ST0, 148)
    HP.key_norm(A)
    A("s_waitcnt vmcnt(0)")
    HP.select_top2(A)
    A("s_waitcnt vmcnt(0) lgkmcnt(0)")
    R.bar("B1")
    HP.read_selection(A)
    nof = A.newlabel("noffn")
    A(f"s_cmp_lt_u32 s{S_HG}, 3"); A(f"s_cbranch_scc1 {nof}")
    A(f"s_lshr_b32 s{S_T}, s2, 6"); A(f"s_mul_i32 s{S_T}, s{S_T}, 5")
    A(f"s_add_u32 s{S_T}, s{S_T}, s{S_HG}"); A(f"s_sub_u32 s{S_T}, s{S_T}, 3")
    A(f"s_cmp_ge_u32 s{S_T}, 18"); A(f"s_cbranch_scc1 {nof}")
    A(f"s_and_b32 s{S_T2}, s2, 7"); A(f"s_mul_i32 s{S_T2}, s{S_T2}, 18")
    A(f"s_add_u32 s{HP.S_SL}, s{S_T2}, s{S_T}")
    pstamp(A, 3)
    if not os.environ.get("NOFFN"): HP.ffn(A)
    else:
        nf2 = A.newlabel("nof2")
        A(f"s_cmp_lg_u32 s{HP.S_H}, 0"); A(f"s_cbranch_scc1 {nf2}")
        A(f"v_mov_b32 v8, {FW_FFNC}"); A(f"v_mov_b32 v9, 1")
        A("s_mov_b64 exec, 1")
        A(f"buffer_atomic_add v9, v8, {srd(SRD_WS)}, 0 offen sc1")
        A("s_mov_b64 exec, -1")
        A.label(nf2)
    A.label(nof)
    pstamp(A, 4)
    mk_srd(A, SRD_W, S_WO, D * ROWB)
    mk_srd(A, SRD_A, S_WS, S_TOK * ROWB, add=FW_O)
    vm = VmTrack()
    HP.wait_released(A)
    HP.issue_w(A, vm, h3, range(9), lambda a_: "w", wb=WB3)
    HP.routed_update(A)
    A("s_waitcnt vmcnt(0)")
    AT.row_store_addresses(A, HP.V_LANE, 512, 24, 25, 26)
    A(f"s_mul_i32 s84, s{S_ROW0}, {ROWB}"); A(f"s_mul_i32 s{S_T}, s{S_HG}, 144")
    A(f"s_add_u32 s84, s84, s{S_T}"); A(f"s_add_u32 s85, s84, {FW_O}")
    R.bar("B2"); R.bar("B3"); R.bar("B4")
    n8 = A.newlabel("no8")
    A(f"s_cmp_lg_u32 s{HP.S_H}, 1"); A(f"s_cbranch_scc1 {n8}")
    AT.store_rows(A, SRD_WS, 85, "sc1", vl=24, vg=25, d=28)
    A("s_waitcnt vmcnt(0)")
    A.label(n8)
    R.bar("B5")
    def grp_off(A, t):
        A(f"s_lshl_b32 s{S_T}, s{S_TB}, 10"); A(f"s_add_u32 s{S_T}, s{S_T}, {FW_FLAG + FL_GRP}")
        A(f"v_mov_b32 v{t}, s{S_T}")
    pstamp(A, 5)
    HP.poll(A, grp_off, 1, "8", "grp", ge=True)
    pstamp(A, 6)
    R.bar("B6")
    if stop_here(A, "attn"): return
    vm = VmTrack()
    A(f"s_mul_i32 s{S_T3}, s{S_ROW0}, {ROWB}")
    stage_of = {cc: q for q, ccs in enumerate(FO.X_STAGES) for cc in ccs}
    HP.issue_x(A, vm, range(9), not PLAIN, lambda cc: f"x{stage_of[cc]}", xb=XB3)
    for q in range(len(FO.X_STAGES)):
        A(f"s_waitcnt vmcnt({vm.after(f'x{q}')})")
        R.bar(f"bX{q}")
    R.bar("B7")
    n9 = A.newlabel("no9")
    A(f"s_cmp_lg_u32 s{HP.S_H}, 1"); A(f"s_cbranch_scc1 {n9}")
    A(f"v_subrev_u32 v24, {OSTG - OUTSTG}, v24")
    AT.store_rows(A, SRD_OUT, 84, "", vl=24, vg=25, d=28)
    A.label(n9)
    pstamp(A, 7)
    if not os.environ.get("DBGSTAMP"): pstamp_flush(A, S_WAVE, S_WS, WS_STAMP, HP.HT)
    A("s_endpgm")

def helper_role(A):
    R = Role(A)
    A(f"s_setprio {os.environ.get('HPRIO', '3')}")
    A(f"s_sub_u32 s{HP.S_H}, s{S_WAVE}, 8")
    A(f"v_and_b32 v{HP.V_LANE}, 63, v0")
    HP.setup_x(A)
    if not XFIRST: HP.setup_w(A)
    A(f"s_mul_i32 s{S_T3}, s{S_ROW0}, {ROWB}")
    vmx = VmTrack()
    HP.issue_x(A, vmx, range(9), False, lambda cc: "x")
    if XFIRST: HP.setup_w(A)
    l3 = A.newlabel("h3")
    A(f"s_cmp_eq_u32 s{HP.S_H}, 3"); A(f"s_cbranch_scc1 {l3}")
    seqs = {}
    for h3 in (False, True):
        if h3: A.label(l3)
        ld = A.newlabel("hduty"); lj = A.newlabel("hj")
        A(f"s_cmp_lt_u32 s{S_HG}, 3"); A(f"s_cbranch_scc1 {ld}")
        R.bars = []; helper_p1(A, R, False, h3); seqs[None] = list(R.bars)
        A(f"s_branch {lj}")
        A.label(ld)
        R.bars = []; helper_p1(A, R, True, h3); seqs["d"] = list(R.bars)
        A.label(lj)
        R.bars = []
        helper_rest(A, R, h3)
    return seqs, R.bars

def gen(name):
    A = Asm()
    end = "L_end"
    A("s_cmp_ge_u32 s2, 256"); A(f"s_cbranch_scc1 {end}")
    pstamp_init(A); pstamp(A, 0)
    load_kernargs(A)
    A(f"v_lshrrev_b32 v1, 6, v0")
    A(f"v_and_b32 v{G.V_LANE}, 63, v0")
    A(f"v_readfirstlane_b32 s{S_WAVE}, v1")
    A(f"s_and_b32 s{S_T}, s2, 7"); A(f"s_lshr_b32 s{S_T2}, s2, 3")
    A(f"s_and_b32 s{S_HG}, s{S_T2}, 7"); A(f"s_lshr_b32 s{S_T2}, s{S_T2}, 3")
    A(f"s_lshl_b32 s{S_T}, s{S_T}, 2"); A(f"s_add_u32 s{S_TB}, s{S_T}, s{S_T2}")
    A(f"s_lshl_b32 s{S_ROW0}, s{S_TB}, 6")
    A("s_waitcnt lgkmcnt(0)")
    mk_srd(A, SRD_A, S_X, S_TOK * ROWB)
    mk_srd(A, SRD_W, S_WQ, D * ROWB)
    mk_srd(A, SRD_WS, S_WS, FW_SIZE)
    mk_srd(A, SRD_KV, S_WS, KV_IMG, add=FW_KV)
    mk_srd(A, SRD_OUT, S_OUT, S_TOK * ROWB)
    mk_srd(A, SRD_DBG, S_DBG, 256)
    lh = A.newlabel("helper")
    A(f"s_cmp_ge_u32 s{S_WAVE}, 8"); A(f"s_cbranch_scc1 {lh}")
    cs, cb = compute_role(A)
    A.label(lh)
    hs, hb = helper_role(A)
    assert cs[None] == hs[None], (cs[None], hs[None])
    for d in "kvg": assert cs[d] == hs["d"], (cs[d], hs["d"])
    assert cb == hb, (cb, hb)
    A.label(end); A("s_endpgm")
    return A, 168, LDS_BYTES, 64 * NWAVES

def build(out):
    n = NAME + "_kernel"
    A, nv, lds, blk = gen(n)
    hdr = open("cdna_kernels/" + NAME + ".s.ref").read().split("; Override launch")[0]
    txt = hdr + f"; @launch grid=(256,1,1) block=({blk},1,1) lds={lds}\n"
    txt += '.amdgcn_target "amdgcn-amd-amdhsa--gfx950"\n'
    rep = []
    body = A.finish(rep)
    if "-v" in sys.argv:
        print(len(rep), "nop insertions")
        for r in rep: print("   ", r)
    txt += kernel_header(n) + body + kernel_desc(n, nv, nsgpr=102)
    open(out, "w").write(txt)
    print("wrote", out, len(txt), "bytes")

if __name__ == "__main__":
    import sys
    build(sys.argv[1])
```

```python
from fcommon import *

V_LANE = 0
VX0, VX1, VW, VL16 = 1, 2, 3, 6
PR0, PR1 = 144, 145
HT = 8
DUAL = os.environ.get('DUAL', '0') == '1'
PSLEEP = int(os.environ.get('PSLEEP', '1'))
STAGGER = int(os.environ.get('STAGGER', '8'))
S_H = 39

def setup_x(A):
    t = HT
    A(f"v_lshrrev_b32 v{t}, 3, v{V_LANE}")
    A(f"v_mul_u32_u24 v{t}, {ROWB}, v{t}")
    A(f"v_and_b32 v{t+1}, 7, v{V_LANE}")
    A(f"v_lshrrev_b32 v{t+2}, 4, v{V_LANE}")
    A(f"v_xor_b32 v{t+1}, v{t+1}, v{t+2}")
    A(f"v_lshl_add_u32 v{VX0}, v{t+1}, 4, v{t}")
    A(f"v_xor_b32 v{VX1}, 64, v{VX0}")

def setup_w(A):
    t = HT
    for k in range(3):
        if k < 2:
            A(f"s_lshl_b32 s{S_T}, s{S_H}, 7"); A(f"s_add_u32 s{S_T}, s{S_T}, {64*k}")
            A(f"v_add_u32 v{t}, s{S_T}, v{V_LANE}")
        else:
            A(f"v_add_u32 v{t}, 512, v{V_LANE}")
        A(f"v_mul_u32_u24 v{t+1}, 7282, v{t}")
        A(f"v_lshrrev_b32 v{t+1}, 16, v{t+1}")
        A(f"v_mul_u32_u24 v{t+2}, 9, v{t+1}")
        A(f"v_sub_u32 v{t+2}, v{t}, v{t+2}")
        A(f"v_and_b32 v{t+3}, 0x38, v{t+1}")
        A(f"v_and_b32 v{t+4}, 1, v{t+1}")
        A(f"v_lshl_add_u32 v{t+3}, v{t+4}, 2, v{t+3}")
        A(f"v_bfe_u32 v{t+4}, v{t+1}, 1, 2")
        A(f"v_add_u32 v{t+3}, v{t+3}, v{t+4}")
        A(f"v_mul_u32_u24 v{t+3}, {ROWB}, v{t+3}")
        A(f"v_lshl_add_u32 v{VW+k}, v{t+2}, 4, v{t+3}")
    A(f"v_lshlrev_b32 v{VL16}, 4, v{V_LANE}")

def dma(A, vreg, srd_i, ssoff, m0_expr, sc1=False):
    A(m0_expr)
    A("s_nop 0")
    A(f"buffer_load_dwordx4 v{vreg}, {srd(srd_i)}, s{ssoff} offen{' sc1' if sc1 else ''} lds")

def issue_x(A, vm, chunks, sc1, tagf, xb=XB):
    for cc in chunks:
        for o in range(2):
            A(f"s_mul_i32 s{S_T}, s{S_H}, {16*ROWB}")
            A(f"s_add_u32 s{S_T}, s{S_T}, s{S_T3}")
            A(f"s_add_u32 s{S_T}, s{S_T}, {o*8*ROWB + cc*128}")
            A(f"s_lshl_b32 s{S_T2}, s{S_H}, 11")
            dma(A, VX0 + o, SRD_A, S_T, f"s_add_u32 m0, s{S_T2}, {xb + cc*8192 + o*1024}", sc1)
            vm.issue(tagf(cc))

def issue_w(A, vm, h3, reps, tagf, wb=WB):
    for a_ in reps:
        A(f"s_mul_i32 s{S_T}, s{S_HG}, 144")
        A(f"s_add_u32 s{S_T}, s{S_T}, {a_*64*ROWB}")
        for k in range(3 if h3 else 2):
            if k < 2:
                A(f"s_lshl_b32 s{S_T2}, s{S_H}, 11")
                dma(A, VW + k, SRD_W, S_T, f"s_add_u32 m0, s{S_T2}, {wb + (9*a_ + k)*1024}")
            else:
                dma(A, VW + 2, SRD_W, S_T, f"s_mov_b32 m0, {wb + (9*a_ + 8)*1024}")
            vm.issue(tagf(a_))

PRI = 146
def init_issue(A):
    skip = A.newlabel("iissue")
    A(f"v_mov_b32 v{PRI+1}, {DBG_INIT}")
    A(f"s_cmp_lg_u32 s{S_H}, 0"); A(f"s_cbranch_scc1 {skip}")
    A(f"buffer_load_dword v{PRI}, v{PRI+1}, {srd(SRD_DBG)}, 0 offen")
    A.label(skip)

def init_check(A):
    skip = A.newlabel("icheck"); lp = A.newlabel("icheckp")
    A(f"s_cmp_lg_u32 s{S_H}, 0"); A(f"s_cbranch_scc1 {skip}")
    A("s_waitcnt vmcnt(0)")
    A(f"s_mov_b32 s80, 0")
    A.label(lp)
    A(f"v_readfirstlane_b32 s81, v{PRI}")
    A(f"s_cmp_ge_u32 s81, 32"); A(f"s_cbranch_scc1 {skip}")
    A("s_sleep 8")
    A(f"buffer_load_dword v{PRI}, v{PRI+1}, {srd(SRD_DBG)}, 0 offen sc1")
    A("s_waitcnt vmcnt(0)")
    A(f"s_add_u32 s80, s80, 1")
    A(f"s_cmp_lt_u32 s80, 0x40000"); A(f"s_cbranch_scc1 {lp}")
    A.label(skip)

def poll_issue(A, voff):
    t = HT
    skip = A.newlabel("pissue")
    A(f"s_cmp_lg_u32 s{S_H}, 0"); A(f"s_cbranch_scc1 {skip}")
    voff(A, t)
    A(f"buffer_load_dword v{PR0}, v{t}, {srd(SRD_WS)}, 0 offen sc1")
    A.label(skip)

def poll(A, voff, nlanes, cmpval, name, ge=False, preissued=False):
    if DUAL: return poll2(A, voff, nlanes, cmpval, name, ge, preissued)
    t = HT
    skip = A.newlabel(name + "skip"); lp = A.newlabel(name + "lp"); done = A.newlabel(name + "ok")
    chk = A.newlabel(name + "chk")
    A(f"s_cmp_lg_u32 s{S_H}, 0"); A(f"s_cbranch_scc1 {skip}")
    A(f"s_mov_b32 s80, 0")
    if preissued: A(f"s_branch {chk}")
    else: voff(A, t)
    A.label(lp)
    A(f"buffer_load_dword v{PR0}, v{t}, {srd(SRD_WS)}, 0 offen sc1")
    A.label(chk)
    A("s_waitcnt vmcnt(0)")
    A(f"v_mov_b32 v{t+2}, {cmpval}")
    A(f"v_cmp_{'le' if ge else 'eq'}_u32 vcc, v{t+2}, v{PR0}")
    A("s_nop 1")
    A(f"s_not_b64 s[82:83], vcc")
    A(f"s_cmp_eq_u64 s[82:83], 0")
    A(f"s_cbranch_scc1 {done}")
    A(f"s_sleep {PSLEEP}")
    A(f"s_add_u32 s80, s80, 1")
    A(f"s_cmp_lt_u32 s80, 0x80000"); A(f"s_cbranch_scc1 {lp}")
    A.label(done)
    A.label(skip)

def poll2(A, voff, nlanes, cmpval, name, ge=False, preissued=False):
    t = HT
    skip = A.newlabel(name + "skip"); lp = A.newlabel(name + "lp"); done = A.newlabel(name + "ok")
    A(f"s_cmp_lg_u32 s{S_H}, 0"); A(f"s_cbranch_scc1 {skip}")
    A(f"s_mov_b32 s80, 0")
    ld = lambda r: A(f"buffer_load_dword v{r}, v{t}, {srd(SRD_WS)}, 0 offen sc1")
    def check(r):
        A(f"v_cmp_{'le' if ge else 'eq'}_u32 vcc, v{t+2}, v{r}")
        A("s_nop 1")
        A(f"s_not_b64 s[82:83], vcc")
        A(f"s_cmp_eq_u64 s[82:83], 0")
        A(f"s_cbranch_scc1 {done}")
    if not preissued:
        voff(A, t)
        ld(PR0)
    A(f"v_mov_b32 v{t+2}, {cmpval}")
    if preissued:
        A("s_waitcnt vmcnt(0)"); check(PR0)
        ld(PR0)
    if STAGGER: A(f"s_sleep {STAGGER}")
    A.label(lp)
    ld(PR1)
    A("s_waitcnt vmcnt(1)"); check(PR0)
    ld(PR0)
    A("s_waitcnt vmcnt(1)"); check(PR1)
    A(f"s_add_u32 s80, s80, 1")
    A(f"s_cmp_lt_u32 s80, 0x40000"); A(f"s_cbranch_scc1 {lp}")
    A.label(done)
    A.label(skip)

KV_ST0 = 37
def issue_kv(A, first, last):
    A(f"s_lshl_b32 s{S_T2}, s{S_H}, 10")
    for u in range(first, last, 4):
        n = min(4, last - u)
        skip = None
        if n < 4:
            skip = A.newlabel("kvt")
            A(f"s_cmp_ge_u32 s{S_H}, {n}"); A(f"s_cbranch_scc1 {skip}")
        A(f"s_add_u32 s{S_T}, s{S_T2}, {u*1024}")
        dma(A, VL16, SRD_KV, S_T, f"s_mov_b32 m0, s{S_T}", sc1=not PLAIN)
        if skip: A.label(skip)

def publish_key_norm(A):
    t = HT; d = 28
    skip = A.newlabel("nopk")
    A(f"s_cmp_lg_u32 s{S_HG}, 0"); A(f"s_cbranch_scc1 {skip}")
    A(f"s_cmp_lg_u32 s{S_H}, 3"); A(f"s_cbranch_scc1 {skip}")
    A(f"v_lshrrev_b32 v{t}, 5, v{V_LANE}"); A(f"v_and_b32 v{t+1}, 31, v{V_LANE}")
    A(f"v_lshlrev_b32 v{t+2}, 10, v{t}"); A(f"v_lshl_add_u32 v{t+2}, v{t+1}, 4, v{t+2}")
    A(f"v_add_u32 v{t+2}, {STG}, v{t+2}")
    A(f"v_lshlrev_b32 v{t+3}, 3, v{t+1}"); A(f"v_lshl_add_u32 v{t+3}, v{t}, 2, v{t+3}")
    A(f"v_add_u32 v{t+3}, {STG + TB_KEXT}, v{t+3}")
    A(f"ds_read_b128 {vr(d,4)}, v{t+2}")
    A(f"ds_read_b128 {vr(d+4,4)}, v{t+2} offset:512")
    A(f"ds_read_b32 v{d+8}, v{t+3}")
    A("s_waitcnt lgkmcnt(0)")
    A(f"v_dot2_f32_bf16 v{t}, v{d}, v{d}, 0")
    for r in range(1, 9): A(f"v_dot2_f32_bf16 v{t}, v{d+r}, v{d+r}, v{t}")
    A("s_nop 2")
    for sh in (1, 2, 4, 8):
        A(f"v_max_f32_dpp v{t}, v{t}, v{t} row_ror:{sh} row_mask:0xf bank_mask:0xf")
    A(f"v_readlane_b32 s80, v{t}, 0")
    for ln in (16, 32, 48):
        A(f"v_readlane_b32 s81, v{t}, {ln}"); A(f"s_max_u32 s80, s80, s81")
    A(f"v_mov_b32 v{t}, s80")
    A(f"v_mul_f32 v{t}, {f32(1.001)}, v{t}")
    A(f"v_or_b32 v{t}, 1, v{t}")
    A(f"s_lshl_b32 s{S_T}, s{S_TB}, 2"); A(f"s_add_u32 s{S_T}, s{S_T}, {FW_FLAG + FL_KN}")
    A(f"v_lshlrev_b32 v{t+1}, 10, v{V_LANE}")
    A(f"v_cmp_gt_u32 vcc, 32, v{V_LANE}")
    A(f"s_and_saveexec_b64 s[{S_EX}:{S_EX+1}], vcc")
    A(f"buffer_store_dword v{t}, v{t+1}, {srd(SRD_WS)}, s{S_T} offen sc1")
    A(f"s_mov_b64 exec, s[{S_EX}:{S_EX+1}]")
    A.label(skip)

def key_norm(A):
    t = HT
    skip = A.newlabel("nokn"); lp = A.newlabel("knp"); done = A.newlabel("knd")
    A(f"v_and_b32 v{t}, 31, v{V_LANE}"); A(f"v_lshlrev_b32 v{t}, 2, v{t}")
    A(f"s_lshl_b32 s{S_T}, s{S_TB}, 10"); A(f"s_add_u32 s{S_T}, s{S_T}, {FW_FLAG + FL_KN}")
    A(f"v_add_u32 v{t}, s{S_T}, v{t}")
    A(f"s_cmp_lg_u32 s{S_H}, 1"); A(f"s_cbranch_scc1 {skip}")
    A(f"s_mov_b32 s80, 0")
    A.label(lp)
    A(f"buffer_load_dword v{t+1}, v{t}, {srd(SRD_WS)}, 0 offen sc1")
    A("s_waitcnt vmcnt(0)")
    A(f"v_cmp_eq_u32 vcc, 0, v{t+1}")
    A("s_nop 1")
    A(f"s_cmp_eq_u64 vcc, 0"); A(f"s_cbranch_scc1 {done}")
    A("s_sleep 4")
    A(f"s_add_u32 s80, s80, 1")
    A(f"s_cmp_lt_u32 s80, 0x40000"); A(f"s_cbranch_scc1 {lp}")
    A.label(done)
    for sh in (1, 2, 4, 8):
        A(f"v_max_f32_dpp v{t+1}, v{t+1}, v{t+1} row_ror:{sh} row_mask:0xf bank_mask:0xf")
    A(f"v_readlane_b32 s80, v{t+1}, 0"); A(f"v_readlane_b32 s81, v{t+1}, 16")
    A(f"s_max_u32 s80, s80, s81")
    A(f"v_mov_b32 v{t}, {L_KN}"); A(f"v_mov_b32 v{t+1}, s80")
    A(f"ds_write_b32 v{t}, v{t+1}")
    A.label(skip)

F_W = 24
F_X = 96
F_KEY = 148
F_A = 152
F_ACC = 160
S_M, S_KH, S_SL = 84, 85, 86

def lds_sync(A, idx, name, sleep=1):
    t = HT + 12
    A("s_waitcnt lgkmcnt(0)")
    A(f"v_mov_b32 v{t}, {L_CNT + 4*idx}")
    A(f"v_mov_b32 v{t+1}, 1")
    A(f"s_mov_b64 s[{S_EX}:{S_EX+1}], exec")
    A("s_mov_b64 exec, 1")
    A(f"ds_add_u32 v{t}, v{t+1}")
    A(f"s_mov_b64 exec, s[{S_EX}:{S_EX+1}]")
    lp = A.newlabel(name); done = A.newlabel(name + "d")
    A(f"s_mov_b32 s80, 0")
    A.label(lp)
    A(f"ds_read_b32 v{t+1}, v{t}")
    A("s_waitcnt lgkmcnt(0)")
    A(f"v_readfirstlane_b32 s81, v{t+1}")
    A(f"s_cmp_ge_u32 s81, 4"); A(f"s_cbranch_scc1 {done}")
    A(f"s_sleep {sleep}")
    A(f"s_add_u32 s80, s80, 1")
    A(f"s_cmp_lt_u32 s80, 0x100000"); A(f"s_cbranch_scc1 {lp}")
    A.label(done)

def wait_released(A):
    t = HT + 12
    lp = A.newlabel("rel"); done = A.newlabel("reld")
    A(f"v_mov_b32 v{t}, {L_CNT + 12}")
    A(f"s_mov_b32 s80, 0")
    A.label(lp)
    A(f"ds_read_b32 v{t+1}, v{t}")
    A("s_waitcnt lgkmcnt(0)")
    A(f"v_readfirstlane_b32 s81, v{t+1}")
    A(f"s_cmp_ge_u32 s81, 512"); A(f"s_cbranch_scc1 {done}")
    A("s_sleep 16")
    A(f"s_add_u32 s80, s80, 1")
    A(f"s_cmp_lt_u32 s80, 0x400000"); A(f"s_cbranch_scc1 {lp}")
    A.label(done)

def select_top2(A):
    t = HT
    nosel = A.newlabel("nosel")
    A(f"s_cmp_lg_u32 s{S_H}, 0"); A(f"s_cbranch_scc1 {nosel}")
    m1, m2 = t, t + 1
    A(f"v_max_u32 v{m1}, v{F_KEY}, v{F_KEY+1}")
    A(f"v_min_u32 v{m2}, v{F_KEY}, v{F_KEY+1}")
    for i in range(2, 4):
        A(f"v_med3_u32 v{m2}, v{m1}, v{m2}, v{F_KEY+i}")
        A(f"v_max_u32 v{m1}, v{m1}, v{F_KEY+i}")
    def wave_max(reg, sdst):
        A(f"v_mov_b32 v{t+2}, v{reg}")
        for sh in (1, 2, 4, 8):
            A(f"v_max_u32_dpp v{t+2}, v{t+2}, v{t+2} row_ror:{sh} row_mask:0xf bank_mask:0xf")
        A(f"v_readlane_b32 s{sdst}, v{t+2}, 0")
        for ln in (16, 32, 48):
            A(f"v_readlane_b32 s{S_T}, v{t+2}, {ln}")
            A(f"s_max_u32 s{sdst}, s{sdst}, s{S_T}")
    wave_max(m1, 80)
    A(f"v_cmp_eq_u32 vcc, s80, v{m1}")
    A(f"v_cndmask_b32 v{m1}, v{m1}, v{m2}, vcc")
    wave_max(m1, 81)
    A(f"v_mov_b32 v{t}, s80"); A(f"v_mov_b32 v{t+1}, s81")
    A(f"v_cmp_eq_u32 vcc, 1, v{V_LANE}")
    A(f"v_cndmask_b32 v{t}, v{t}, v{t+1}, vcc")
    A(f"v_lshrrev_b32 v{t+1}, 16, v{t}")
    A(f"v_xor_b32 v{t+2}, 0x8000, v{t+1}")
    A(f"v_xor_b32 v{t+3}, 0xffff, v{t+1}")
    A(f"v_cmp_lt_u32 vcc, 0x7fff, v{t+1}")
    A(f"v_cndmask_b32 v{t+1}, v{t+3}, v{t+2}, vcc")
    A(f"v_lshlrev_b32 v{t+1}, 16, v{t+1}")
    A(f"v_mul_f32 v{t+1}, {f32(-LOG2E)}, v{t+1}")
    A(f"v_exp_f32 v{t+1}, v{t+1}")
    A(f"v_add_f32 v{t+1}, 1.0, v{t+1}")
    A(f"v_rcp_f32 v{t+1}, v{t+1}")
    A(f"v_cvt_pk_bf16_f32 v{t+1}, v{t+1}, v{t+1}")
    A(f"v_and_b32 v{t+1}, 0xffff0000, v{t+1}")
    A(f"v_and_b32 v{t}, 0xffff, v{t}")
    A(f"v_sub_u32 v{t}, 0xffff, v{t}")
    A(f"v_min_u32 v{t}, {S_TOK-1}, v{t}")
    A(f"v_lshlrev_b32 v{t+2}, 2, v{V_LANE}")
    A(f"v_add_u32 v{t+2}, {L_SEL}, v{t+2}")
    A(f"v_cmp_gt_u32 vcc, 2, v{V_LANE}")
    A(f"s_and_saveexec_b64 s[{S_EX}:{S_EX+1}], vcc")
    A(f"ds_write_b32 v{t+2}, v{t}")
    A(f"ds_write_b32 v{t+2}, v{t+1} offset:8")
    A(f"s_mov_b64 exec, s[{S_EX}:{S_EX+1}]")
    A.label(nosel)

def read_selection(A):
    t = HT
    A(f"v_mov_b32 v{t}, {L_SEL}")
    A(f"ds_read_b64 {vr(t+2,2)}, v{t}")
    A("s_waitcnt lgkmcnt(0)")
    A(f"v_readfirstlane_b32 s{S_IDX0}, v{t+2}")
    A(f"v_readfirstlane_b32 s{S_IDX1}, v{t+3}")

def ffn(A):
    t = HT; WS = srd(SRD_WS)
    FT, FG = t + 14, t + 15
    A(f"v_and_b32 v{FT}, 15, v{V_LANE}"); A(f"v_lshrrev_b32 v{FG}, 4, v{V_LANE}")
    A(f"s_and_b32 s{S_M}, s{S_H}, 1"); A(f"s_lshr_b32 s{S_KH}, s{S_H}, 1")
    A(f"s_cmp_eq_u32 s{S_M}, 0")
    A(f"s_cselect_b32 s{SRD_E}, s{S_WG}, s{S_WU}")
    A(f"s_cselect_b32 s{SRD_E+1}, s{S_WG+1}, s{S_WU+1}")
    A(f"s_and_b32 s{SRD_E+1}, s{SRD_E+1}, 0xffff")
    A(f"s_mov_b32 s{SRD_E+2}, {D*F*2}"); A(f"s_mov_b32 s{SRD_E+3}, 0x20000")
    mk_srd(A, SRD_F, S_WD, F * ROWB)
    A(f"v_lshrrev_b32 v{t}, 2, v{V_LANE}")
    A(f"v_and_b32 v{t+1}, 3, v{V_LANE}")
    A(f"v_lshlrev_b32 v{t+1}, 4, v{t+1}")
    A(f"v_mul_u32_u24 v{t+2}, {ROWB}, v{t}")
    A(f"v_add_u32 v{t+2}, v{t+2}, v{t+1}")
    A(f"v_mul_u32_u24 v{t}, {F*2}, v{t}")
    A(f"v_add_u32 v{t}, v{t}, v{t+1}")
    A(f"s_mul_i32 s{S_T}, s{S_KH}, {9*32*F*2}")
    A(f"s_lshl_b32 s{S_T2}, s{S_SL}, 6")
    A(f"s_add_u32 s{S_T}, s{S_T}, s{S_T2}")
    for s_ in range(9):
        for hf in range(2):
            A(f"buffer_load_dwordx4 {vr(F_W+8*s_+4*hf,4)}, v{t}, {srd(SRD_E)}, s{S_T} offen")
            A(f"s_add_u32 s{S_T}, s{S_T}, {16*F*2}")
    A(f"v_mov_b32 v{t}, s{S_IDX0}"); A(f"v_mov_b32 v{t+1}, s{S_IDX1}")
    A(f"v_cmp_eq_u32 vcc, 1, v{FT}")
    A(f"v_cndmask_b32 v{t}, v{t}, v{t+1}, vcc")
    A(f"v_mul_u32_u24 v{t}, {ROWB}, v{t}")
    A(f"v_lshl_add_u32 v{t}, v{FG}, 4, v{t}")
    A(f"s_mul_i32 s{S_T}, s{S_KH}, {9*64}")
    for s_ in range(9):
        A(f"buffer_load_dwordx4 {vr(F_X+4*s_,4)}, v{t}, {srd(SRD_A)}, s{S_T} offen offset:{64*s_}")
    wr, r1 = t + 3, t + 4
    A(f"s_lshl_b32 s{S_T}, s{S_H}, 11"); A(f"s_add_u32 s{S_T}, s{S_T}, {H_STG}")
    A(f"v_add_u32 v{wr}, s{S_T}, v{VL16}")
    A(f"v_bfe_u32 v{t+5}, v{V_LANE}, 2, 2")
    A(f"v_lshl_add_u32 v{t+5}, v{FG}, 3, v{t+5}")
    A(f"v_and_b32 v{t+6}, 3, v{V_LANE}")
    A(f"v_lshlrev_b32 v{t+6}, 3, v{t+6}")
    A(f"v_lshl_add_u32 v{r1}, v{t+5}, 6, v{t+6}")
    A(f"v_add_u32 v{r1}, s{S_T}, v{r1}")
    def through_lds(src, ntile):
        A(f"ds_write_b128 v{wr}, {vr(src,4)}")
        A(f"ds_write_b128 v{wr}, {vr(src+4,4)} offset:1024")
        A("s_waitcnt lgkmcnt(0)")
        for tile in range(ntile):
            for q in range(2):
                A(f"ds_read_b64_tr_b16 {vr(F_A+4*tile+2*q,2)}, v{r1} offset:{32*tile + 256*q}")
        A("s_waitcnt lgkmcnt(0)")
    A("s_waitcnt vmcnt(0)")
    for s_ in range(9):
        through_lds(F_W + 8 * s_, 2)
        for tile in range(2):
            c = "0" if s_ == 0 else vr(F_ACC + 4 * tile, 4)
            A(f"v_mfma_f32_16x16x32_bf16 {vr(F_ACC+4*tile,4)}, {vr(F_A+4*tile,4)}, {vr(F_X+4*s_,4)}, {c}")
        if s_ == 4:
            A(f"s_mul_i32 s{S_T}, s{S_SL}, {32*ROWB}")
            A(f"s_mul_i32 s{S_T2}, s{S_H}, 288")
            A(f"s_add_u32 s{S_T}, s{S_T}, s{S_T2}")
            A(f"s_add_u32 s{S_T2}, s{S_T}, {16*ROWB}")
            for rd in range(5):
                A(f"buffer_load_dwordx4 {vr(F_W+8*rd,4)}, v{t+2}, {srd(SRD_F)}, s{S_T} offen offset:{64*rd}")
                A(f"buffer_load_dwordx4 {vr(F_W+8*rd+4,4)}, v{t+2}, {srd(SRD_F)}, s{S_T2} offen offset:{64*rd}")
    A("s_nop 7")
    A(f"v_lshlrev_b32 v{t+5}, 1, v{FG}")
    A(f"v_add_u32 v{t+5}, v{t+5}, v{FT}")
    A(f"v_lshlrev_b32 v{t+5}, 4, v{t+5}")
    A(f"v_add_u32 v{t+7}, {H_RED}, v{t+5}")
    A(f"s_lshl_b32 s{S_T}, s{S_H}, 8")
    A(f"v_add_u32 v{t+6}, s{S_T}, v{t+7}")
    A(f"v_cmp_gt_u32 vcc, 2, v{FT}")
    A(f"s_and_saveexec_b64 s[{S_EX}:{S_EX+1}], vcc")
    A(f"ds_write_b128 v{t+6}, {vr(F_ACC,4)}")
    A(f"ds_write_b128 v{t+6}, {vr(F_ACC+4,4)} offset:128")
    A(f"s_mov_b64 exec, s[{S_EX}:{S_EX+1}]")
    lds_sync(A, 0, "hs0")
    noh = A.newlabel("noh")
    A(f"s_cmp_lg_u32 s{S_H}, 3"); A(f"s_cbranch_scc1 {noh}")
    B0 = F_X
    A(f"v_lshrrev_b32 v{t+5}, 5, v{V_LANE}")
    A(f"v_bfe_u32 v{t+6}, v{V_LANE}, 4, 1")
    A(f"v_bfe_u32 v{t+7}, v{V_LANE}, 2, 2")
    A(f"v_and_b32 v{t+8}, 3, v{V_LANE}")
    A(f"v_lshl_add_u32 v{t+7}, v{t+7}, 1, v{t+5}")
    A(f"v_lshlrev_b32 v{t+7}, 4, v{t+7}")
    A(f"v_lshl_add_u32 v{t+7}, v{t+6}, 7, v{t+7}")
    A(f"v_lshl_add_u32 v{t+7}, v{t+8}, 2, v{t+7}")
    A(f"v_add_u32 v{t+7}, {H_RED}, v{t+7}")
    for w in range(4): A(f"ds_read_b32 v{B0+w}, v{t+7} offset:{256*w}")
    A(f"v_lshlrev_b32 v{t+6}, 1, v{V_LANE}")
    A(f"v_add_u32 v{t+6}, {H_H}, v{t+6}")
    A("s_waitcnt lgkmcnt(0)")
    gq, uq, e = B0, B0 + 1, B0 + 4
    A(f"v_add_f32 v{gq}, v{gq}, v{B0+2}")
    A(f"v_add_f32 v{uq}, v{uq}, v{B0+3}")
    A(f"v_cvt_pk_bf16_f32 v{gq}, v{gq}, v{uq}")
    A(f"v_and_b32 v{uq}, 0xffff0000, v{gq}")
    A(f"v_lshlrev_b32 v{gq}, 16, v{gq}")
    A(f"v_mul_f32 v{e}, {f32(-LOG2E)}, v{gq}")
    A(f"v_exp_f32 v{e}, v{e}")
    A(f"v_add_f32 v{e}, 1.0, v{e}")
    A(f"v_rcp_f32 v{e}, v{e}")
    A(f"v_mul_f32 v{gq}, v{gq}, v{e}")
    A(f"v_cvt_pk_bf16_f32 v{gq}, v{gq}, v{gq}")
    A(f"v_and_b32 v{gq}, 0xffff0000, v{gq}")
    A(f"v_mul_f32 v{gq}, v{gq}, v{uq}")
    A(f"v_cvt_pk_bf16_f32 v{gq}, v{gq}, v{gq}")
    A(f"ds_write_b16 v{t+6}, v{gq}")
    A.label(noh)
    lds_sync(A, 1, "hs1")
    HA = F_X + 16
    A(f"v_and_b32 v{t+5}, 3, v{FT}")
    A(f"v_lshrrev_b32 v{t+6}, 2, v{FT}")
    A(f"v_lshlrev_b32 v{t+7}, 6, v{t+5}")
    A(f"v_lshl_add_u32 v{t+7}, v{FG}, 4, v{t+7}")
    A(f"v_add_u32 v{t+7}, {H_H}, v{t+7}")
    A(f"v_mov_b32 v{t+8}, {OOR}")
    A(f"v_cmp_gt_u32 vcc, 2, v{t+5}")
    A(f"v_cndmask_b32 v{t+7}, v{t+8}, v{t+7}, vcc")
    for j in range(4):
        A(f"v_cmp_eq_u32 vcc, {j}, v{t+6}")
        A(f"v_cndmask_b32 v{t+5}, v{t+8}, v{t+7}, vcc")
        A(f"ds_read_b128 {vr(HA+4*j,4)}, v{t+5}")
    A("s_waitcnt vmcnt(0)")
    DY = F_X
    for rd in range(5):
        nt = 2 if rd < 4 else 1
        through_lds(F_W + 8 * rd, nt)
        for tile in range(nt):
            u, j = divmod(2 * rd + tile, 4)
            c = "0" if j == 0 else vr(DY + 4 * u, 4)
            A(f"v_mfma_f32_16x16x32_bf16 {vr(DY+4*u,4)}, {vr(HA+4*j,4)}, {vr(F_A+4*tile,4)}, {c}")
    A("s_nop 7")
    A(f"s_and_b32 s{S_T}, s2, {Y_REP-1}")
    A(f"s_mul_i32 s{S_T}, s{S_T}, {2*D*4}")
    A(f"s_mul_i32 s{S_T2}, s{S_H}, {144*4}")
    A(f"s_add_u32 s{S_T}, s{S_T}, s{S_T2}")
    A(f"s_add_u32 s{S_T}, s{S_T}, {FW_YACC}")
    A(f"s_add_u32 s{S_T2}, s{S_T}, {D*4}")
    A(f"v_lshlrev_b32 v{t+5}, 2, v{V_LANE}")
    for u in range(3):
        if u == 2: A("s_mov_b64 exec, 0xffff")
        A(f"buffer_atomic_add_f32 v{DY+4*u}, v{t+5}, {WS}, s{S_T} offen offset:{256*u}")
        A(f"buffer_atomic_add_f32 v{DY+4*u+1}, v{t+5}, {WS}, s{S_T2} offen offset:{256*u}")
    A("s_mov_b64 exec, -1")
    A("s_waitcnt vmcnt(0)")
    lds_sync(A, 2, "hs2")
    nof = A.newlabel("nof")
    A(f"s_cmp_lg_u32 s{S_H}, 0"); A(f"s_cbranch_scc1 {nof}")
    A(f"v_mov_b32 v{t}, {FW_FFNC}"); A(f"v_mov_b32 v{t+1}, 1")
    A("s_mov_b64 exec, 1")
    A(f"buffer_atomic_add v{t+1}, v{t}, {WS}, 0 offen sc1")
    A("s_mov_b64 exec, -1")
    A.label(nof)

def routed_update(A):
    t = HT; WS = srd(SRD_WS)
    skip = A.newlabel("noupd")
    A(f"s_cmp_lg_u32 s{S_H}, 1"); A(f"s_cbranch_scc1 {skip}")
    A(f"s_sub_u32 s84, s{S_IDX0}, s{S_ROW0}"); A(f"s_sub_u32 s85, s{S_IDX1}, s{S_ROW0}")
    A(f"s_min_u32 s86, s84, s85")
    A(f"s_cmp_lt_u32 s86, 64"); A(f"s_cbranch_scc0 {skip}")
    lp = A.newlabel("ypoll"); done = A.newlabel("ydone")
    A(f"s_mov_b32 s80, 0")
    A(f"v_mov_b32 v{t}, {FW_FFNC}")
    A.label(lp)
    A(f"buffer_load_dword v{t+1}, v{t}, {WS}, 0 offen sc1")
    A("s_waitcnt vmcnt(0)")
    A(f"v_readfirstlane_b32 s81, v{t+1}")
    A(f"s_cmp_ge_u32 s81, 144"); A(f"s_cbranch_scc1 {done}")
    A("s_sleep 8")
    A(f"s_add_u32 s80, s80, 1")
    A(f"s_cmp_lt_u32 s80, 0x40000"); A(f"s_cbranch_scc1 {lp}")
    A.label(done)
    Y = F_W
    A(f"v_lshlrev_b32 v{t}, 3, v{V_LANE}")
    A(f"s_mul_i32 s{S_T}, s{S_HG}, 288"); A(f"s_add_u32 s{S_T}, s{S_T}, {FW_YACC}")
    A(f"v_mov_b32 v{t+2}, {L_SEL+8}")
    A(f"ds_read_b64 {vr(t+4,2)}, v{t+2}")
    A(f"v_cmp_gt_u32 vcc, 36, v{V_LANE}")
    A(f"s_and_saveexec_b64 s[{S_EX}:{S_EX+1}], vcc")
    for j in range(2):
        for rp in range(Y_REP):
            A(f"s_add_u32 s{S_T2}, s{S_T}, {rp*2*D*4 + j*D*4}")
            A(f"buffer_load_dwordx2 {vr(Y+16*j+2*rp,2)}, v{t}, {WS}, s{S_T2} offen sc1")
    A("s_waitcnt vmcnt(0) lgkmcnt(0)")
    for j in range(2):
        b = Y + 16 * j
        for rp in range(1, Y_REP):
            A(f"v_add_f32 v{b}, v{b}, v{b+2*rp}"); A(f"v_add_f32 v{b+1}, v{b+1}, v{b+2*rp+1}")
        for e in range(2):
            y = b + e
            A(f"v_cvt_pk_bf16_f32 v{y}, v{y}, v{y}")
            A(f"v_and_b32 v{y}, 0xffff0000, v{y}")
            A(f"v_mul_f32 v{y}, v{t+4+j}, v{y}")
            A(f"v_cvt_pk_bf16_f32 v{y}, v{y}, v{y}")
            A(f"v_and_b32 v{y}, 0xffff0000, v{y}")
        A(f"v_add_u32 v{t+2}, {L_UPD + 288*j}, v{t}")
        A(f"ds_write_b64 v{t+2}, {vr(b,2)}")
    A("s_mov_b64 exec, -1")
    A("s_waitcnt lgkmcnt(0)")
    A.label(skip)

def xcc_publish(A):
    t = HT
    skip = A.newlabel("noxp")
    A(f"s_cmp_lg_u32 s{S_H}, 2"); A(f"s_cbranch_scc1 {skip}")
    A(f"s_getreg_b32 s{S_T}, hwreg(HW_REG_XCC_ID, 0, 4)")
    A(f"s_add_u32 s{S_T}, s{S_T}, 1")
    A(f"s_lshl_b32 s{S_T2}, s{S_TB}, 10"); A(f"s_add_u32 s{S_T2}, s{S_T2}, s{S_HG}"); A(f"s_add_u32 s{S_T2}, s{S_T2}, {FW_FLAG + FL_XCC}")
    A(f"v_mov_b32 v{t}, s{S_T2}"); A(f"v_mov_b32 v{t+1}, s{S_T}")
    A("s_mov_b64 exec, 1")
    A(f"buffer_store_byte v{t+1}, v{t}, {srd(SRD_WS)}, 0 offen sc1")
    A("s_mov_b64 exec, -1")
    A.label(skip)

def xcc_compare(A):
    t = HT
    skip = A.newlabel("noxc"); lp = A.newlabel("xcp"); done = A.newlabel("xcd")
    A(f"s_lshl_b32 s{S_T2}, s{S_TB}, 10"); A(f"s_add_u32 s{S_T2}, s{S_T2}, {FW_FLAG + FL_XCC}")
    A(f"v_mov_b32 v{t}, s{S_T2}")
    A(f"s_cmp_lg_u32 s{S_H}, 2"); A(f"s_cbranch_scc1 {skip}")
    A(f"s_mov_b32 s80, 0"); A(f"s_mov_b32 s83, 0")
    A.label(lp)
    A(f"buffer_load_dwordx2 {vr(t+2,2)}, v{t}, {srd(SRD_WS)}, 0 offen sc1")
    A("s_waitcnt vmcnt(0)")
    A(f"v_readfirstlane_b32 s81, v{t+2}"); A(f"v_readfirstlane_b32 s82, v{t+3}")
    A(f"s_sub_u32 s84, s81, 0x01010101"); A(f"s_andn2_b32 s84, s84, s81")
    A(f"s_sub_u32 s85, s82, 0x01010101"); A(f"s_andn2_b32 s85, s85, s82")
    A(f"s_or_b32 s84, s84, s85"); A(f"s_and_b32 s84, s84, 0x80808080")
    A(f"s_cmp_eq_u32 s84, 0"); A(f"s_cbranch_scc1 {done}")
    A("s_sleep 8")
    A(f"s_add_u32 s80, s80, 1")
    A(f"s_cmp_lt_u32 s80, 0x40000"); A(f"s_cbranch_scc1 {lp}")
    A(f"s_mov_b32 s81, 1"); A(f"s_mov_b32 s82, 2")
    A.label(done)
    A(f"s_and_b32 s84, s81, 0xff"); A(f"s_mul_i32 s84, s84, 0x01010101")
    A(f"s_cmp_eq_u32 s84, s81"); A(f"s_cselect_b32 s83, 1, 0")
    A(f"s_cmp_eq_u32 s84, s82"); A(f"s_cselect_b32 s83, s83, 0")
    A(f"v_mov_b32 v{t}, {L_SAME}"); A(f"v_mov_b32 v{t+1}, s83")
    A(f"ds_write_b32 v{t}, v{t+1}")
    A("s_waitcnt lgkmcnt(0)")
    A.label(skip)
```

```python
from fcommon import *
import sys
import f_gemm as G, f_attn as AT, f_out as FO, f_help as HP

NWAVES = 12
RA1 = int(os.environ.get('RA1', '4'))
SAMEXCD = os.environ.get('SAMEXCD', '1') == '1'
LA1 = int(os.environ.get('LA1', '2'))
XFIRST = os.environ.get('XFIRST', '0') == '1'
FLAG_STAGE = int(os.environ.get('FLAG_STAGE', '2'))

def busy_delay(A, env):
    n = int(os.environ.get(env, "0"))
    if not n: return
    l = A.newlabel("dly")
    A(f"s_mov_b32 s88, {n}")
    A.label(l)
    A("s_sub_u32 s88, s88, 1"); A("s_cmp_lg_u32 s88, 0"); A(f"s_cbranch_scc1 {l}")

def stop_here(A, name):
    if STOP == name:
        A("s_waitcnt vmcnt(0) lgkmcnt(0)")
        A("s_endpgm")
        return True
    return False

S_RAISED = 87
S_OUTOFF, S_OOFF = 42, 43
def try_raise(A, duty, blocking):
    nf = A.newlabel("noflag")
    A(f"s_cmp_lg_u32 s{S_WAVE}, 0"); A(f"s_cbranch_scc1 {nf}")
    A(f"s_cmp_lg_u32 s{S_RAISED}, 0"); A(f"s_cbranch_scc1 {nf}")
    if not blocking:
        A(f"s_getreg_b32 s{S_T}, hwreg(HW_REG_IB_STS, 0, 4)")
        A(f"s_cmp_lg_u32 s{S_T}, 0"); A(f"s_cbranch_scc1 {nf}")
    pstamp(A, 3, "p1")
    G.raise_flag(A, duty)
    pstamp(A, 4, "p1")
    A(f"s_mov_b32 s{S_RAISED}, 1")
    A.label(nf)

def compute_p1(A, R, duty):
    if duty:
        if duty in ("k", "v"):
            mk_srd(A, SRD_E, S_WK if duty == "k" else S_WV, 576 * 36)
        else:
            mk_srd(A, SRD_E, S_GW, ROWB); mk_srd(A, SRD_F, S_WR, ROWB)
        G.duty_loads(A, duty)
    G.gemm_addresses(A)
    if duty:
        G.duty_addresses(A)
        G.duty_stage_addresses(A, duty)
        G.duty_writes(A, duty)
    A("s_waitcnt lgkmcnt(0)")
    R.bar("b1")
    pstamp(A, 1, "p1")
    if duty:
        {"k": G.k_stage, "v": G.v_stage, "g": G.g_stage}[duty](A)
        A("s_waitcnt lgkmcnt(0)")
        R.bar("b2")
        pstamp(A, 2, "p1")
        np_ = A.newlabel("nopub")
        A(f"s_cmp_lg_u32 s{S_WAVE}, 0"); A(f"s_cbranch_scc1 {np_}")
        G.publish(A, duty)
        G.init_probe(A)
        A(f"s_mov_b32 s{S_RAISED}, 0")
        A.label(np_)
    lf = A.newlabel("p1f1"); le = A.newlabel("p1e")
    bars0 = list(R.bars)
    A(f"s_cmp_eq_u32 s{S_FH}, 0"); A(f"s_cbranch_scc0 {lf}")
    if duty: stages = [("bW2", list(range(0, 12))), ("bW3", list(range(12, 18)))]
    else: stages = [(f"bW{q}", list(range(4 * q, 4 * q + 4))) for q in range(3)] + [("bW3", list(range(12, 18)))]
    for nt in (3, 2):
        if nt == 2:
            A.label(lf); R.bars = list(bars0)
        gm = G.Gemm(A, nt, RA1)
        for name, steps in stages:
            if name == "bW3":
                if duty and nt == 3: try_raise(A, duty, False)
                pstamp(A, 9, "w")
            R.bar(name)
            if name == "bW3": pstamp(A, 5, "p1")
            else: pstamp(A, int(name[2]), "w")
            if duty and name == "bW2":
                for part in (steps[:5], steps[5:9], steps[9:]):
                    gm.steps(part, 12, 18, la_a=LA1, burst=True)
                    if nt == 3 and part is not None and part[-1] != 11: try_raise(A, duty, False)
            else:
                gm.steps(steps, steps[-1] + 1, 18, la_a=LA1, burst=True)
        A("s_nop 7")
        G.q_epilogue(A, nt)
        if duty and nt == 3: try_raise(A, duty, True)
        if nt == 3: A(f"s_branch {le}")
    A.label(le)
    A("s_waitcnt lgkmcnt(0)")
    R.bar("bQ")
    G.residual_x(A)

def compute_role(A):
    R = Role(A)
    A(f"s_and_b32 s{S_TG}, s{S_WAVE}, 3"); A(f"s_lshr_b32 s{S_FH}, s{S_WAVE}, 2")
    G.lane_setup(A)
    A(f"v_mov_b32 v{G.GT}, {L_CNT}"); A(f"v_mov_b32 v{G.GT+2}, 0"); A(f"v_mov_b32 v{G.GT+3}, 0")
    A(f"v_mov_b32 v{G.GT+4}, 0"); A(f"v_mov_b32 v{G.GT+5}, 0")
    A(f"ds_write_b128 v{G.GT}, {vr(G.GT+2,4)}")
    A(f"ds_write_b128 v{G.GT}, {vr(G.GT+2,4)} offset:16")
    G.clear_flag_lines(A)
    lk = A.newlabel("dk"); lv = A.newlabel("dv"); lg = A.newlabel("dg"); lj = A.newlabel("dj")
    A(f"s_cmp_eq_u32 s{S_HG}, 0"); A(f"s_cbranch_scc1 {lk}")
    A(f"s_cmp_eq_u32 s{S_HG}, 1"); A(f"s_cbranch_scc1 {lv}")
    A(f"s_cmp_eq_u32 s{S_HG}, 2"); A(f"s_cbranch_scc1 {lg}")
    seqs = {}
    for duty, lab in ((None, None), ("k", lk), ("v", lv), ("g", lg)):
        if lab: A.label(lab)
        R.bars = []
        compute_p1(A, R, duty)
        seqs[duty] = list(R.bars)
        if duty != "g": A(f"s_branch {lj}")
    A.label(lj)
    R.bars = []
    pstamp(A, 1)
    AT.q_fragments(A)
    AT.lds_addresses(A)
    pstamp(A, 6, "p1")
    A("s_waitcnt lgkmcnt(0)")
    R.bar("bKV")
    pstamp(A, 7, "p1")
    t = AT.T
    AT.q_norm(A)
    AT.gate_address(A)
    AT.tail_addresses(A)
    A(f"s_mul_i32 s{S_OUTOFF}, s{S_ROW0}, {ROWB}"); A(f"s_mul_i32 s{S_T}, s{S_HG}, 144")
    A(f"s_add_u32 s{S_OUTOFF}, s{S_OUTOFF}, s{S_T}"); A(f"s_add_u32 s{S_OOFF}, s{S_OUTOFF}, {FW_O}")
    busy_delay(A, "DELAY0")
    R.bar("B0")
    pstamp(A, 2)
    lf = A.newlabel("fallback"); le = A.newlabel("attdone")
    AT.fast_path(A, R, lf)
    A(f"s_branch {le}")
    A.label(lf)
    AT.fallback_path(A, R)
    A.label(le)
    busy_delay(A, "DELAY1")
    AT.finish(A, R)
    AT.store_rows(A, SRD_WS, S_OOFF, "sc1")
    A("s_waitcnt vmcnt(0)")
    pstamp(A, 1, "t")
    R.bar("B5")
    nf = A.newlabel("nogrp")
    A(f"s_cmp_lg_u32 s{S_WAVE}, 0"); A(f"s_cbranch_scc1 {nf}")
    A(f"s_lshl_b32 s{S_T}, s{S_TB}, 10"); A(f"s_add_u32 s{S_T}, s{S_T}, {FW_FLAG + FL_GRP}")
    A(f"v_mov_b32 v{t}, s{S_T}"); A(f"v_mov_b32 v{t+1}, 1")
    A("s_mov_b64 exec, 1")
    A(f"buffer_atomic_add v{t+1}, v{t}, {srd(SRD_WS)}, 0 offen sc1")
    A("s_mov_b64 exec, -1")
    A.label(nf)
    busy_delay(A, "DELAY2")
    FO.out_phase(A, R)
    if STAMPS: A("s_waitcnt vmcnt(0)")
    pstamp(A, 7)
    if os.environ.get("DBGSTAMP"):
        nd = A.newlabel("nodbg")
        A(f"s_cmp_lg_u32 s2, {int(os.environ['DBGSTAMP'])}"); A(f"s_cbranch_scc1 {nd}")
        A(f"s_cmp_lg_u32 s{S_WAVE}, 4"); A(f"s_cbranch_scc1 {nd}")
        A(f"v_mbcnt_lo_u32_b32 v{AT.T}, -1, 0")
        A(f"v_lshlrev_b32 v{AT.T}, 2, v{AT.T}")
        A(f"v_add_u32 v{AT.T}, 32, v{AT.T}")
        A("s_mov_b64 exec, 0xff")
        A(f"buffer_store_dword v{V_ST}, v{AT.T}, {srd(SRD_DBG)}, 0 offen")
        A.label(nd)
    else:
        pstamp_flush(A, S_WAVE, S_WS, WS_STAMP, AT.T)
    A("s_endpgm")
    return seqs, R.bars

def flag_off(A, t):
    A(f"v_min_u32 v{t}, 23, v{HP.V_LANE}")
    A(f"v_and_b32 v{t+1}, 3, v{t}"); A(f"v_lshrrev_b32 v{t}, 2, v{t}")
    A(f"v_lshlrev_b32 v{t}, 7, v{t}"); A(f"v_lshl_add_u32 v{t}, v{t+1}, 2, v{t}")
    A(f"s_lshl_b32 s{S_T}, s{S_TB}, 10"); A(f"s_add_u32 s{S_T}, s{S_T}, {FW_FLAG}")
    A(f"v_add_u32 v{t}, s{S_T}, v{t}")

def flag0_off(A, t):
    A(f"v_and_b32 v{t}, 1, v{HP.V_LANE}"); A(f"v_lshlrev_b32 v{t}, 2, v{t}")
    A(f"v_and_b32 v{t+1}, 2, v{HP.V_LANE}"); A(f"v_lshl_add_u32 v{t}, v{t+1}, 7, v{t}")
    A(f"s_lshl_b32 s{S_T}, s{S_TB}, 10"); A(f"s_add_u32 s{S_T}, s{S_T}, {FW_FLAG}")
    A(f"v_add_u32 v{t}, s{S_T}, v{t}")

def helper_p1(A, R, duty, h3):
    vm = VmTrack()
    vm.issue("x", 18)
    HP.issue_w(A, vm, h3, range(6), lambda a_: f"w{a_//2}")
    if not duty: HP.issue_w(A, vm, h3, range(6, 9), lambda a_: "w3")
    A(f"s_waitcnt vmcnt({vm.after('x')})")
    R.bar("b1")
    if duty:
        R.bar("b2")
        if os.environ.get("B2SLEEP"): A(f"s_sleep {os.environ['B2SLEEP']}")
        HP.issue_w(A, vm, h3, range(6, 9), lambda a_: "w3")
    for q in range(4):
        if duty and q < 2: continue
        A(f"s_waitcnt vmcnt({vm.after(f'w{q}')})")
        R.bar(f"bW{q}")
        if q == 2: HP.init_issue(A)
    HP.init_check(A)
    if duty: HP.publish_key_norm(A)
    HP.poll_issue(A, flag0_off)
    R.bar("bQ")

def helper_rest(A, R, h3):
    pstamp(A, 1)
    HP.poll(A, flag0_off, 4, "0x01010101", "kv0", preissued=True)
    pstamp(A, 2)
    R.bar("bKV")
    HP.issue_kv(A, 0, HP.KV_ST0)
    A("s_waitcnt vmcnt(0)")
    R.bar("B0")
    HP.poll(A, flag_off, 24, "0x01010101", "kvp")
    HP.lds_sync(A, 4, "hsall", sleep=4)
    A(f"s_mov_b32 s{S_T}, {FW_KEYS}")
    A(f"buffer_load_dwordx4 {vr(HP.F_KEY,4)}, v{HP.VL16}, {srd(SRD_WS)}, s{S_T} offen{HSC}")
    HP.issue_kv(A, HP.KV_ST0, 148)
    HP.key_norm(A)
    A("s_waitcnt vmcnt(0)")
    HP.select_top2(A)
    A("s_waitcnt vmcnt(0) lgkmcnt(0)")
    R.bar("B1")
    HP.read_selection(A)
    nof = A.newlabel("noffn")
    A(f"s_cmp_lt_u32 s{S_HG}, 3"); A(f"s_cbranch_scc1 {nof}")
    A(f"s_lshr_b32 s{S_T}, s2, 6"); A(f"s_mul_i32 s{S_T}, s{S_T}, 5")
    A(f"s_add_u32 s{S_T}, s{S_T}, s{S_HG}"); A(f"s_sub_u32 s{S_T}, s{S_T}, 3")
    A(f"s_cmp_ge_u32 s{S_T}, 18"); A(f"s_cbranch_scc1 {nof}")
    A(f"s_and_b32 s{S_T2}, s2, 7"); A(f"s_mul_i32 s{S_T2}, s{S_T2}, 18")
    A(f"s_add_u32 s{HP.S_SL}, s{S_T2}, s{S_T}")
    pstamp(A, 3)
    if not os.environ.get("NOFFN"): HP.ffn(A)
    else:
        nf2 = A.newlabel("nof2")
        A(f"s_cmp_lg_u32 s{HP.S_H}, 0"); A(f"s_cbranch_scc1 {nf2}")
        A(f"v_mov_b32 v8, {FW_FFNC}"); A(f"v_mov_b32 v9, 1")
        A("s_mov_b64 exec, 1")
        A(f"buffer_atomic_add v9, v8, {srd(SRD_WS)}, 0 offen sc1")
        A("s_mov_b64 exec, -1")
        A.label(nf2)
    A.label(nof)
    pstamp(A, 4)
    mk_srd(A, SRD_W, S_WO, D * ROWB)
    mk_srd(A, SRD_A, S_WS, S_TOK * ROWB, add=FW_O)
    vm = VmTrack()
    HP.wait_released(A)
    HP.issue_w(A, vm, h3, range(9), lambda a_: "w", wb=WB3)
    HP.routed_update(A)
    A("s_waitcnt vmcnt(0)")
    AT.row_store_addresses(A, HP.V_LANE, 512, 24, 25, 26)
    A(f"s_mul_i32 s84, s{S_ROW0}, {ROWB}"); A(f"s_mul_i32 s{S_T}, s{S_HG}, 144")
    A(f"s_add_u32 s84, s84, s{S_T}"); A(f"s_add_u32 s85, s84, {FW_O}")
    R.bar("B2"); R.bar("B3"); R.bar("B4")
    n8 = A.newlabel("no8")
    A(f"s_cmp_lg_u32 s{HP.S_H}, 1"); A(f"s_cbranch_scc1 {n8}")
    AT.store_rows(A, SRD_WS, 85, "sc1", vl=24, vg=25, d=28)
    A("s_waitcnt vmcnt(0)")
    A.label(n8)
    R.bar("B5")
    def grp_off(A, t):
        A(f"s_lshl_b32 s{S_T}, s{S_TB}, 10"); A(f"s_add_u32 s{S_T}, s{S_T}, {FW_FLAG + FL_GRP}")
        A(f"v_mov_b32 v{t}, s{S_T}")
    pstamp(A, 5)
    HP.poll(A, grp_off, 1, "8", "grp", ge=True)
    pstamp(A, 6)
    R.bar("B6")
    if stop_here(A, "attn"): return
    vm = VmTrack()
    A(f"s_mul_i32 s{S_T3}, s{S_ROW0}, {ROWB}")
    stage_of = {cc: q for q, ccs in enumerate(FO.X_STAGES) for cc in ccs}
    HP.issue_x(A, vm, range(9), not PLAIN, lambda cc: f"x{stage_of[cc]}", xb=XB3)
    for q in range(len(FO.X_STAGES)):
        A(f"s_waitcnt vmcnt({vm.after(f'x{q}')})")
        R.bar(f"bX{q}")
    R.bar("B7")
    n9 = A.newlabel("no9")
    A(f"s_cmp_lg_u32 s{HP.S_H}, 1"); A(f"s_cbranch_scc1 {n9}")
    A(f"v_subrev_u32 v24, {OSTG - OUTSTG}, v24")
    AT.store_rows(A, SRD_OUT, 84, "", vl=24, vg=25, d=28)
    A.label(n9)
    pstamp(A, 7)
    if not os.environ.get("DBGSTAMP"): pstamp_flush(A, S_WAVE, S_WS, WS_STAMP, HP.HT)
    A("s_endpgm")

def helper_role(A):
    R = Role(A)
    A(f"s_setprio {os.environ.get('HPRIO', '3')}")
    A(f"s_sub_u32 s{HP.S_H}, s{S_WAVE}, 8")
    A(f"v_and_b32 v{HP.V_LANE}, 63, v0")
    HP.setup_x(A)
    if not XFIRST: HP.setup_w(A)
    A(f"s_mul_i32 s{S_T3}, s{S_ROW0}, {ROWB}")
    vmx = VmTrack()
    HP.issue_x(A, vmx, range(9), False, lambda cc: "x")
    if XFIRST: HP.setup_w(A)
    l3 = A.newlabel("h3")
    A(f"s_cmp_eq_u32 s{HP.S_H}, 3"); A(f"s_cbranch_scc1 {l3}")
    seqs = {}
    for h3 in (False, True):
        if h3: A.label(l3)
        ld = A.newlabel("hduty"); lj = A.newlabel("hj")
        A(f"s_cmp_lt_u32 s{S_HG}, 3"); A(f"s_cbranch_scc1 {ld}")
        R.bars = []; helper_p1(A, R, False, h3); seqs[None] = list(R.bars)
        A(f"s_branch {lj}")
        A.label(ld)
        R.bars = []; helper_p1(A, R, True, h3); seqs["d"] = list(R.bars)
        A.label(lj)
        R.bars = []
        helper_rest(A, R, h3)
    return seqs, R.bars

def gen(name):
    A = Asm()
    end = "L_end"
    A("s_cmp_ge_u32 s2, 256"); A(f"s_cbranch_scc1 {end}")
    pstamp_init(A); pstamp(A, 0)
    load_kernargs(A)
    A(f"v_lshrrev_b32 v1, 6, v0")
    A(f"v_and_b32 v{G.V_LANE}, 63, v0")
    A(f"v_readfirstlane_b32 s{S_WAVE}, v1")
    A(f"s_and_b32 s{S_T}, s2, 7"); A(f"s_lshr_b32 s{S_T2}, s2, 3")
    A(f"s_and_b32 s{S_HG}, s{S_T2}, 7"); A(f"s_lshr_b32 s{S_T2}, s{S_T2}, 3")
    A(f"s_lshl_b32 s{S_T}, s{S_T}, 2"); A(f"s_add_u32 s{S_TB}, s{S_T}, s{S_T2}")
    A(f"s_lshl_b32 s{S_ROW0}, s{S_TB}, 6")
    A("s_waitcnt lgkmcnt(0)")
    mk_srd(A, SRD_A, S_X, S_TOK * ROWB)
    mk_srd(A, SRD_W, S_WQ, D * ROWB)
    mk_srd(A, SRD_WS, S_WS, FW_SIZE)
    mk_srd(A, SRD_KV, S_WS, KV_IMG, add=FW_KV)
    mk_srd(A, SRD_OUT, S_OUT, S_TOK * ROWB)
    mk_srd(A, SRD_DBG, S_DBG, 256)
    lh = A.newlabel("helper")
    A(f"s_cmp_ge_u32 s{S_WAVE}, 8"); A(f"s_cbranch_scc1 {lh}")
    cs, cb = compute_role(A)
    A.label(lh)
    hs, hb = helper_role(A)
    assert cs[None] == hs[None], (cs[None], hs[None])
    for d in "kvg": assert cs[d] == hs["d"], (cs[d], hs["d"])
    assert cb == hb, (cb, hb)
    A.label(end); A("s_endpgm")
    return A, 168, LDS_BYTES, 64 * NWAVES

def build(out):
    n = NAME + "_kernel"
    A, nv, lds, blk = gen(n)
    hdr = open("cdna_kernels/" + NAME + ".s.ref").read().split("; Override launch")[0]
    txt = hdr + f"; @launch grid=(256,1,1) block=({blk},1,1) lds={lds}\n"
    txt += '.amdgcn_target "amdgcn-amd-amdhsa--gfx950"\n'
    rep = []
    body = A.finish(rep)
    if "-v" in sys.argv:
        print(len(rep), "nop insertions")
        for r in rep: print("   ", r)
    txt += kernel_header(n) + body + kernel_desc(n, nv, nsgpr=102)
    open(out, "w").write(txt)
    print("wrote", out, len(txt), "bytes")

if __name__ == "__main__":
    import sys
    build(sys.argv[1])
```

```python
from fcommon import *

V_LANE = 0
VX0, VX1, VW, VL16 = 1, 2, 3, 6
PR0, PR1 = 144, 145
HT = 8
DUAL = os.environ.get('DUAL', '0') == '1'
PSLEEP = int(os.environ.get('PSLEEP', '1'))
STAGGER = int(os.environ.get('STAGGER', '8'))
S_H = 39

def setup_x(A):
    t = HT
    A(f"v_lshrrev_b32 v{t}, 3, v{V_LANE}")
    A(f"v_mul_u32_u24 v{t}, {ROWB}, v{t}")
    A(f"v_and_b32 v{t+1}, 7, v{V_LANE}")
    A(f"v_lshrrev_b32 v{t+2}, 4, v{V_LANE}")
    A(f"v_xor_b32 v{t+1}, v{t+1}, v{t+2}")
    A(f"v_lshl_add_u32 v{VX0}, v{t+1}, 4, v{t}")
    A(f"v_xor_b32 v{VX1}, 64, v{VX0}")

def setup_w(A):
    t = HT
    for k in range(3):
        if k < 2:
            A(f"s_lshl_b32 s{S_T}, s{S_H}, 7"); A(f"s_add_u32 s{S_T}, s{S_T}, {64*k}")
            A(f"v_add_u32 v{t}, s{S_T}, v{V_LANE}")
        else:
            A(f"v_add_u32 v{t}, 512, v{V_LANE}")
        A(f"v_mul_u32_u24 v{t+1}, 7282, v{t}")
        A(f"v_lshrrev_b32 v{t+1}, 16, v{t+1}")
        A(f"v_mul_u32_u24 v{t+2}, 9, v{t+1}")
        A(f"v_sub_u32 v{t+2}, v{t}, v{t+2}")
        A(f"v_and_b32 v{t+3}, 0x38, v{t+1}")
        A(f"v_and_b32 v{t+4}, 1, v{t+1}")
        A(f"v_lshl_add_u32 v{t+3}, v{t+4}, 2, v{t+3}")
        A(f"v_bfe_u32 v{t+4}, v{t+1}, 1, 2")
        A(f"v_add_u32 v{t+3}, v{t+3}, v{t+4}")
        A(f"v_mul_u32_u24 v{t+3}, {ROWB}, v{t+3}")
        A(f"v_lshl_add_u32 v{VW+k}, v{t+2}, 4, v{t+3}")
    A(f"v_lshlrev_b32 v{VL16}, 4, v{V_LANE}")

def dma(A, vreg, srd_i, ssoff, m0_expr, sc1=False):
    A(m0_expr)
    A("s_nop 0")
    A(f"buffer_load_dwordx4 v{vreg}, {srd(srd_i)}, s{ssoff} offen{' sc1' if sc1 else ''} lds")

def issue_x(A, vm, chunks, sc1, tagf, xb=XB):
    for cc in chunks:
        for o in range(2):
            A(f"s_mul_i32 s{S_T}, s{S_H}, {16*ROWB}")
            A(f"s_add_u32 s{S_T}, s{S_T}, s{S_T3}")
            A(f"s_add_u32 s{S_T}, s{S_T}, {o*8*ROWB + cc*128}")
            A(f"s_lshl_b32 s{S_T2}, s{S_H}, 11")
            dma(A, VX0 + o, SRD_A, S_T, f"s_add_u32 m0, s{S_T2}, {xb + cc*8192 + o*1024}", sc1)
            vm.issue(tagf(cc))

def issue_w(A, vm, h3, reps, tagf, wb=WB):
    for a_ in reps:
        A(f"s_mul_i32 s{S_T}, s{S_HG}, 144")
        A(f"s_add_u32 s{S_T}, s{S_T}, {a_*64*ROWB}")
        for k in range(3 if h3 else 2):
            if k < 2:
                A(f"s_lshl_b32 s{S_T2}, s{S_H}, 11")
                dma(A, VW + k, SRD_W, S_T, f"s_add_u32 m0, s{S_T2}, {wb + (9*a_ + k)*1024}")
            else:
                dma(A, VW + 2, SRD_W, S_T, f"s_mov_b32 m0, {wb + (9*a_ + 8)*1024}")
            vm.issue(tagf(a_))

PRI = 146
def is_h03(A, skip):
    A(f"s_sub_u32 s{S_T}, s{S_H}, 1"); A(f"s_cmp_lt_u32 s{S_T}, 2"); A(f"s_cbranch_scc1 {skip}")

def init_issue(A):
    skip = A.newlabel("iissue")
    A(f"v_mov_b32 v{PRI+1}, {DBG_INIT}")
    is_h03(A, skip)
    A(f"buffer_load_dword v{PRI}, v{PRI+1}, {srd(SRD_DBG)}, 0 offen")
    A.label(skip)

def init_check(A):
    skip = A.newlabel("icheck"); lp = A.newlabel("icheckp")
    is_h03(A, skip)
    A("s_waitcnt vmcnt(0)")
    A(f"s_mov_b32 s80, 0")
    A.label(lp)
    A(f"v_readfirstlane_b32 s81, v{PRI}")
    A(f"s_cmp_ge_u32 s81, 32"); A(f"s_cbranch_scc1 {skip}")
    A("s_sleep 8")
    A(f"buffer_load_dword v{PRI}, v{PRI+1}, {srd(SRD_DBG)}, 0 offen sc1")
    A("s_waitcnt vmcnt(0)")
    A(f"s_add_u32 s80, s80, 1")
    A(f"s_cmp_lt_u32 s80, 0x40000"); A(f"s_cbranch_scc1 {lp}")
    A.label(skip)

def poll_issue(A, voff):
    t = HT
    skip = A.newlabel("pissue")
    A(f"s_cmp_lg_u32 s{S_H}, 0"); A(f"s_cbranch_scc1 {skip}")
    voff(A, t)
    A(f"buffer_load_dword v{PR0}, v{t}, {srd(SRD_WS)}, 0 offen sc1")
    A.label(skip)

def poll(A, voff, nlanes, cmpval, name, ge=False, preissued=False):
    if DUAL: return poll2(A, voff, nlanes, cmpval, name, ge, preissued)
    t = HT
    skip = A.newlabel(name + "skip"); lp = A.newlabel(name + "lp"); done = A.newlabel(name + "ok")
    chk = A.newlabel(name + "chk")
    A(f"s_cmp_lg_u32 s{S_H}, 0"); A(f"s_cbranch_scc1 {skip}")
    A(f"s_mov_b32 s80, 0")
    if preissued: A(f"s_branch {chk}")
    else: voff(A, t)
    A.label(lp)
    A(f"buffer_load_dword v{PR0}, v{t}, {srd(SRD_WS)}, 0 offen sc1")
    A.label(chk)
    A("s_waitcnt vmcnt(0)")
    A(f"v_mov_b32 v{t+2}, {cmpval}")
    A(f"v_cmp_{'le' if ge else 'eq'}_u32 vcc, v{t+2}, v{PR0}")
    A("s_nop 1")
    A(f"s_not_b64 s[82:83], vcc")
    A(f"s_cmp_eq_u64 s[82:83], 0")
    A(f"s_cbranch_scc1 {done}")
    A(f"s_sleep {PSLEEP}")
    A(f"s_add_u32 s80, s80, 1")
    A(f"s_cmp_lt_u32 s80, 0x80000"); A(f"s_cbranch_scc1 {lp}")
    A.label(done)
    A.label(skip)

def poll2(A, voff, nlanes, cmpval, name, ge=False, preissued=False):
    t = HT
    skip = A.newlabel(name + "skip"); lp = A.newlabel(name + "lp"); done = A.newlabel(name + "ok")
    A(f"s_cmp_lg_u32 s{S_H}, 0"); A(f"s_cbranch_scc1 {skip}")
    A(f"s_mov_b32 s80, 0")
    ld = lambda r: A(f"buffer_load_dword v{r}, v{t}, {srd(SRD_WS)}, 0 offen sc1")
    def check(r):
        A(f"v_cmp_{'le' if ge else 'eq'}_u32 vcc, v{t+2}, v{r}")
        A("s_nop 1")
        A(f"s_not_b64 s[82:83], vcc")
        A(f"s_cmp_eq_u64 s[82:83], 0")
        A(f"s_cbranch_scc1 {done}")
    if not preissued:
        voff(A, t)
        ld(PR0)
    A(f"v_mov_b32 v{t+2}, {cmpval}")
    if preissued:
        A("s_waitcnt vmcnt(0)"); check(PR0)
        ld(PR0)
    if STAGGER: A(f"s_sleep {STAGGER}")
    A.label(lp)
    ld(PR1)
    A("s_waitcnt vmcnt(1)"); check(PR0)
    ld(PR0)
    A("s_waitcnt vmcnt(1)"); check(PR1)
    A(f"s_add_u32 s80, s80, 1")
    A(f"s_cmp_lt_u32 s80, 0x40000"); A(f"s_cbranch_scc1 {lp}")
    A.label(done)
    A.label(skip)

KV_ST0 = 37
def issue_kv(A, first, last):
    A(f"s_lshl_b32 s{S_T2}, s{S_H}, 10")
    for u in range(first, last, 4):
        n = min(4, last - u)
        skip = None
        if n < 4:
            skip = A.newlabel("kvt")
            A(f"s_cmp_ge_u32 s{S_H}, {n}"); A(f"s_cbranch_scc1 {skip}")
        A(f"s_add_u32 s{S_T}, s{S_T2}, {u*1024}")
        dma(A, VL16, SRD_KV, S_T, f"s_mov_b32 m0, s{S_T}", sc1=not PLAIN)
        if skip: A.label(skip)

def publish_key_norm(A):
    t = HT; d = 28
    skip = A.newlabel("nopk")
    A(f"s_cmp_lg_u32 s{S_HG}, 0"); A(f"s_cbranch_scc1 {skip}")
    A(f"s_cmp_lg_u32 s{S_H}, 3"); A(f"s_cbranch_scc1 {skip}")
    A(f"v_lshrrev_b32 v{t}, 5, v{V_LANE}"); A(f"v_and_b32 v{t+1}, 31, v{V_LANE}")
    A(f"v_lshlrev_b32 v{t+2}, 10, v{t}"); A(f"v_lshl_add_u32 v{t+2}, v{t+1}, 4, v{t+2}")
    A(f"v_add_u32 v{t+2}, {STG}, v{t+2}")
    A(f"v_lshlrev_b32 v{t+3}, 3, v{t+1}"); A(f"v_lshl_add_u32 v{t+3}, v{t}, 2, v{t+3}")
    A(f"v_add_u32 v{t+3}, {STG + TB_KEXT}, v{t+3}")
    A(f"ds_read_b128 {vr(d,4)}, v{t+2}")
    A(f"ds_read_b128 {vr(d+4,4)}, v{t+2} offset:512")
    A(f"ds_read_b32 v{d+8}, v{t+3}")
    A("s_waitcnt lgkmcnt(0)")
    A(f"v_dot2_f32_bf16 v{t}, v{d}, v{d}, 0")
    for r in range(1, 9): A(f"v_dot2_f32_bf16 v{t}, v{d+r}, v{d+r}, v{t}")
    A("s_nop 2")
    for sh in (1, 2, 4, 8):
        A(f"v_max_f32_dpp v{t}, v{t}, v{t} row_ror:{sh} row_mask:0xf bank_mask:0xf")
    A(f"v_readlane_b32 s80, v{t}, 0")
    for ln in (16, 32, 48):
        A(f"v_readlane_b32 s81, v{t}, {ln}"); A(f"s_max_u32 s80, s80, s81")
    A(f"v_mov_b32 v{t}, s80")
    A(f"v_mul_f32 v{t}, {f32(1.001)}, v{t}")
    A(f"v_or_b32 v{t}, 1, v{t}")
    A(f"s_lshl_b32 s{S_T}, s{S_TB}, 2"); A(f"s_add_u32 s{S_T}, s{S_T}, {FW_FLAG + FL_KN}")
    A(f"v_lshlrev_b32 v{t+1}, 10, v{V_LANE}")
    A(f"v_cmp_gt_u32 vcc, 32, v{V_LANE}")
    A(f"s_and_saveexec_b64 s[{S_EX}:{S_EX+1}], vcc")
    A(f"buffer_store_dword v{t}, v{t+1}, {srd(SRD_WS)}, s{S_T} offen sc1")
    A(f"s_mov_b64 exec, s[{S_EX}:{S_EX+1}]")
    A.label(skip)

def key_norm(A):
    t = HT
    skip = A.newlabel("nokn"); lp = A.newlabel("knp"); done = A.newlabel("knd")
    A(f"v_and_b32 v{t}, 31, v{V_LANE}"); A(f"v_lshlrev_b32 v{t}, 2, v{t}")
    A(f"s_lshl_b32 s{S_T}, s{S_TB}, 10"); A(f"s_add_u32 s{S_T}, s{S_T}, {FW_FLAG + FL_KN}")
    A(f"v_add_u32 v{t}, s{S_T}, v{t}")
    A(f"s_cmp_lg_u32 s{S_H}, 1"); A(f"s_cbranch_scc1 {skip}")
    A(f"s_mov_b32 s80, 0")
    A.label(lp)
    A(f"buffer_load_dword v{t+1}, v{t}, {srd(SRD_WS)}, 0 offen sc1")
    A("s_waitcnt vmcnt(0)")
    A(f"v_cmp_eq_u32 vcc, 0, v{t+1}")
    A("s_nop 1")
    A(f"s_cmp_eq_u64 vcc, 0"); A(f"s_cbranch_scc1 {done}")
    A("s_sleep 4")
    A(f"s_add_u32 s80, s80, 1")
    A(f"s_cmp_lt_u32 s80, 0x40000"); A(f"s_cbranch_scc1 {lp}")
    A.label(done)
    for sh in (1, 2, 4, 8):
        A(f"v_max_f32_dpp v{t+1}, v{t+1}, v{t+1} row_ror:{sh} row_mask:0xf bank_mask:0xf")
    A(f"v_readlane_b32 s80, v{t+1}, 0"); A(f"v_readlane_b32 s81, v{t+1}, 16")
    A(f"s_max_u32 s80, s80, s81")
    A(f"v_mov_b32 v{t}, {L_KN}"); A(f"v_mov_b32 v{t+1}, s80")
    A(f"ds_write_b32 v{t}, v{t+1}")
    A.label(skip)

F_W = 24
F_X = 96
F_KEY = 148
F_A = 152
F_ACC = 160
S_M, S_KH, S_SL = 84, 85, 86

def lds_sync(A, idx, name, sleep=1):
    t = HT + 12
    A("s_waitcnt lgkmcnt(0)")
    A(f"v_mov_b32 v{t}, {L_CNT + 4*idx}")
    A(f"v_mov_b32 v{t+1}, 1")
    A(f"s_mov_b64 s[{S_EX}:{S_EX+1}], exec")
    A("s_mov_b64 exec, 1")
    A(f"ds_add_u32 v{t}, v{t+1}")
    A(f"s_mov_b64 exec, s[{S_EX}:{S_EX+1}]")
    lp = A.newlabel(name); done = A.newlabel(name + "d")
    A(f"s_mov_b32 s80, 0")
    A.label(lp)
    A(f"ds_read_b32 v{t+1}, v{t}")
    A("s_waitcnt lgkmcnt(0)")
    A(f"v_readfirstlane_b32 s81, v{t+1}")
    A(f"s_cmp_ge_u32 s81, 4"); A(f"s_cbranch_scc1 {done}")
    A(f"s_sleep {sleep}")
    A(f"s_add_u32 s80, s80, 1")
    A(f"s_cmp_lt_u32 s80, 0x100000"); A(f"s_cbranch_scc1 {lp}")
    A.label(done)

def wait_released(A):
    t = HT + 12
    lp = A.newlabel("rel"); done = A.newlabel("reld")
    A(f"v_mov_b32 v{t}, {L_CNT + 12}")
    A(f"s_mov_b32 s80, 0")
    A.label(lp)
    A(f"ds_read_b32 v{t+1}, v{t}")
    A("s_waitcnt lgkmcnt(0)")
    A(f"v_readfirstlane_b32 s81, v{t+1}")
    A(f"s_cmp_ge_u32 s81, 512"); A(f"s_cbranch_scc1 {done}")
    A("s_sleep 16")
    A(f"s_add_u32 s80, s80, 1")
    A(f"s_cmp_lt_u32 s80, 0x400000"); A(f"s_cbranch_scc1 {lp}")
    A.label(done)

def select_top2(A):
    t = HT
    nosel = A.newlabel("nosel")
    A(f"s_cmp_lg_u32 s{S_H}, 0"); A(f"s_cbranch_scc1 {nosel}")
    m1, m2 = t, t + 1
    A(f"v_max_u32 v{m1}, v{F_KEY}, v{F_KEY+1}")
    A(f"v_min_u32 v{m2}, v{F_KEY}, v{F_KEY+1}")
    for i in range(2, 4):
        A(f"v_med3_u32 v{m2}, v{m1}, v{m2}, v{F_KEY+i}")
        A(f"v_max_u32 v{m1}, v{m1}, v{F_KEY+i}")
    def wave_max(reg, sdst):
        A(f"v_mov_b32 v{t+2}, v{reg}")
        for sh in (1, 2, 4, 8):
            A(f"v_max_u32_dpp v{t+2}, v{t+2}, v{t+2} row_ror:{sh} row_mask:0xf bank_mask:0xf")
        A(f"v_readlane_b32 s{sdst}, v{t+2}, 0")
        for ln in (16, 32, 48):
            A(f"v_readlane_b32 s{S_T}, v{t+2}, {ln}")
            A(f"s_max_u32 s{sdst}, s{sdst}, s{S_T}")
    wave_max(m1, 80)
    A(f"v_cmp_eq_u32 vcc, s80, v{m1}")
    A(f"v_cndmask_b32 v{m1}, v{m1}, v{m2}, vcc")
    wave_max(m1, 81)
    A(f"v_mov_b32 v{t}, s80"); A(f"v_mov_b32 v{t+1}, s81")
    A(f"v_cmp_eq_u32 vcc, 1, v{V_LANE}")
    A(f"v_cndmask_b32 v{t}, v{t}, v{t+1}, vcc")
    A(f"v_lshrrev_b32 v{t+1}, 16, v{t}")
    A(f"v_xor_b32 v{t+2}, 0x8000, v{t+1}")
    A(f"v_xor_b32 v{t+3}, 0xffff, v{t+1}")
    A(f"v_cmp_lt_u32 vcc, 0x7fff, v{t+1}")
    A(f"v_cndmask_b32 v{t+1}, v{t+3}, v{t+2}, vcc")
    A(f"v_lshlrev_b32 v{t+1}, 16, v{t+1}")
    A(f"v_mul_f32 v{t+1}, {f32(-LOG2E)}, v{t+1}")
    A(f"v_exp_f32 v{t+1}, v{t+1}")
    A(f"v_add_f32 v{t+1}, 1.0, v{t+1}")
    A(f"v_rcp_f32 v{t+1}, v{t+1}")
    A(f"v_cvt_pk_bf16_f32 v{t+1}, v{t+1}, v{t+1}")
    A(f"v_and_b32 v{t+1}, 0xffff0000, v{t+1}")
    A(f"v_and_b32 v{t}, 0xffff, v{t}")
    A(f"v_sub_u32 v{t}, 0xffff, v{t}")
    A(f"v_min_u32 v{t}, {S_TOK-1}, v{t}")
    A(f"v_lshlrev_b32 v{t+2}, 2, v{V_LANE}")
    A(f"v_add_u32 v{t+2}, {L_SEL}, v{t+2}")
    A(f"v_cmp_gt_u32 vcc, 2, v{V_LANE}")
    A(f"s_and_saveexec_b64 s[{S_EX}:{S_EX+1}], vcc")
    A(f"ds_write_b32 v{t+2}, v{t}")
    A(f"ds_write_b32 v{t+2}, v{t+1} offset:8")
    A(f"s_mov_b64 exec, s[{S_EX}:{S_EX+1}]")
    A.label(nosel)

def read_selection(A):
    t = HT
    A(f"v_mov_b32 v{t}, {L_SEL}")
    A(f"ds_read_b64 {vr(t+2,2)}, v{t}")
    A("s_waitcnt lgkmcnt(0)")
    A(f"v_readfirstlane_b32 s{S_IDX0}, v{t+2}")
    A(f"v_readfirstlane_b32 s{S_IDX1}, v{t+3}")

def ffn(A):
    t = HT; WS = srd(SRD_WS)
    FT, FG = t + 14, t + 15
    A(f"v_and_b32 v{FT}, 15, v{V_LANE}"); A(f"v_lshrrev_b32 v{FG}, 4, v{V_LANE}")
    A(f"s_and_b32 s{S_M}, s{S_H}, 1"); A(f"s_lshr_b32 s{S_KH}, s{S_H}, 1")
    A(f"s_cmp_eq_u32 s{S_M}, 0")
    A(f"s_cselect_b32 s{SRD_E}, s{S_WG}, s{S_WU}")
    A(f"s_cselect_b32 s{SRD_E+1}, s{S_WG+1}, s{S_WU+1}")
    A(f"s_and_b32 s{SRD_E+1}, s{SRD_E+1}, 0xffff")
    A(f"s_mov_b32 s{SRD_E+2}, {D*F*2}"); A(f"s_mov_b32 s{SRD_E+3}, 0x20000")
    mk_srd(A, SRD_F, S_WD, F * ROWB)
    A(f"v_lshrrev_b32 v{t}, 2, v{V_LANE}")
    A(f"v_and_b32 v{t+1}, 3, v{V_LANE}")
    A(f"v_lshlrev_b32 v{t+1}, 4, v{t+1}")
    A(f"v_mul_u32_u24 v{t+2}, {ROWB}, v{t}")
    A(f"v_add_u32 v{t+2}, v{t+2}, v{t+1}")
    A(f"v_mul_u32_u24 v{t}, {F*2}, v{t}")
    A(f"v_add_u32 v{t}, v{t}, v{t+1}")
    A(f"s_mul_i32 s{S_T}, s{S_KH}, {9*32*F*2}")
    A(f"s_lshl_b32 s{S_T2}, s{S_SL}, 6")
    A(f"s_add_u32 s{S_T}, s{S_T}, s{S_T2}")
    for s_ in range(9):
        for hf in range(2):
            A(f"buffer_load_dwordx4 {vr(F_W+8*s_+4*hf,4)}, v{t}, {srd(SRD_E)}, s{S_T} offen")
            A(f"s_add_u32 s{S_T}, s{S_T}, {16*F*2}")
    A(f"v_mov_b32 v{t}, s{S_IDX0}"); A(f"v_mov_b32 v{t+1}, s{S_IDX1}")
    A(f"v_cmp_eq_u32 vcc, 1, v{FT}")
    A(f"v_cndmask_b32 v{t}, v{t}, v{t+1}, vcc")
    A(f"v_mul_u32_u24 v{t}, {ROWB}, v{t}")
    A(f"v_lshl_add_u32 v{t}, v{FG}, 4, v{t}")
    A(f"s_mul_i32 s{S_T}, s{S_KH}, {9*64}")
    for s_ in range(9):
        A(f"buffer_load_dwordx4 {vr(F_X+4*s_,4)}, v{t}, {srd(SRD_A)}, s{S_T} offen offset:{64*s_}")
    wr, r1 = t + 3, t + 4
    A(f"s_lshl_b32 s{S_T}, s{S_H}, 11"); A(f"s_add_u32 s{S_T}, s{S_T}, {H_STG}")
    A(f"v_add_u32 v{wr}, s{S_T}, v{VL16}")
    A(f"v_bfe_u32 v{t+5}, v{V_LANE}, 2, 2")
    A(f"v_lshl_add_u32 v{t+5}, v{FG}, 3, v{t+5}")
    A(f"v_and_b32 v{t+6}, 3, v{V_LANE}")
    A(f"v_lshlrev_b32 v{t+6}, 3, v{t+6}")
    A(f"v_lshl_add_u32 v{r1}, v{t+5}, 6, v{t+6}")
    A(f"v_add_u32 v{r1}, s{S_T}, v{r1}")
    def through_lds(src, ntile):
        A(f"ds_write_b128 v{wr}, {vr(src,4)}")
        A(f"ds_write_b128 v{wr}, {vr(src+4,4)} offset:1024")
        A("s_waitcnt lgkmcnt(0)")
        for tile in range(ntile):
            for q in range(2):
                A(f"ds_read_b64_tr_b16 {vr(F_A+4*tile+2*q,2)}, v{r1} offset:{32*tile + 256*q}")
        A("s_waitcnt lgkmcnt(0)")
    A("s_waitcnt vmcnt(0)")
    for s_ in range(9):
        through_lds(F_W + 8 * s_, 2)
        for tile in range(2):
            c = "0" if s_ == 0 else vr(F_ACC + 4 * tile, 4)
            A(f"v_mfma_f32_16x16x32_bf16 {vr(F_ACC+4*tile,4)}, {vr(F_A+4*tile,4)}, {vr(F_X+4*s_,4)}, {c}")
        if s_ == 4:
            A(f"s_mul_i32 s{S_T}, s{S_SL}, {32*ROWB}")
            A(f"s_mul_i32 s{S_T2}, s{S_H}, 288")
            A(f"s_add_u32 s{S_T}, s{S_T}, s{S_T2}")
            A(f"s_add_u32 s{S_T2}, s{S_T}, {16*ROWB}")
            for rd in range(5):
                A(f"buffer_load_dwordx4 {vr(F_W+8*rd,4)}, v{t+2}, {srd(SRD_F)}, s{S_T} offen offset:{64*rd}")
                A(f"buffer_load_dwordx4 {vr(F_W+8*rd+4,4)}, v{t+2}, {srd(SRD_F)}, s{S_T2} offen offset:{64*rd}")
    A("s_nop 7")
    A(f"v_lshlrev_b32 v{t+5}, 1, v{FG}")
    A(f"v_add_u32 v{t+5}, v{t+5}, v{FT}")
    A(f"v_lshlrev_b32 v{t+5}, 4, v{t+5}")
    A(f"v_add_u32 v{t+7}, {H_RED}, v{t+5}")
    A(f"s_lshl_b32 s{S_T}, s{S_H}, 8")
    A(f"v_add_u32 v{t+6}, s{S_T}, v{t+7}")
    A(f"v_cmp_gt_u32 vcc, 2, v{FT}")
    A(f"s_and_saveexec_b64 s[{S_EX}:{S_EX+1}], vcc")
    A(f"ds_write_b128 v{t+6}, {vr(F_ACC,4)}")
    A(f"ds_write_b128 v{t+6}, {vr(F_ACC+4,4)} offset:128")
    A(f"s_mov_b64 exec, s[{S_EX}:{S_EX+1}]")
    lds_sync(A, 0, "hs0")
    noh = A.newlabel("noh")
    A(f"s_cmp_lg_u32 s{S_H}, 3"); A(f"s_cbranch_scc1 {noh}")
    B0 = F_X
    A(f"v_lshrrev_b32 v{t+5}, 5, v{V_LANE}")
    A(f"v_bfe_u32 v{t+6}, v{V_LANE}, 4, 1")
    A(f"v_bfe_u32 v{t+7}, v{V_LANE}, 2, 2")
    A(f"v_and_b32 v{t+8}, 3, v{V_LANE}")
    A(f"v_lshl_add_u32 v{t+7}, v{t+7}, 1, v{t+5}")
    A(f"v_lshlrev_b32 v{t+7}, 4, v{t+7}")
    A(f"v_lshl_add_u32 v{t+7}, v{t+6}, 7, v{t+7}")
    A(f"v_lshl_add_u32 v{t+7}, v{t+8}, 2, v{t+7}")
    A(f"v_add_u32 v{t+7}, {H_RED}, v{t+7}")
    for w in range(4): A(f"ds_read_b32 v{B0+w}, v{t+7} offset:{256*w}")
    A(f"v_lshlrev_b32 v{t+6}, 1, v{V_LANE}")
    A(f"v_add_u32 v{t+6}, {H_H}, v{t+6}")
    A("s_waitcnt lgkmcnt(0)")
    gq, uq, e = B0, B0 + 1, B0 + 4
    A(f"v_add_f32 v{gq}, v{gq}, v{B0+2}")
    A(f"v_add_f32 v{uq}, v{uq}, v{B0+3}")
    A(f"v_cvt_pk_bf16_f32 v{gq}, v{gq}, v{uq}")
    A(f"v_and_b32 v{uq}, 0xffff0000, v{gq}")
    A(f"v_lshlrev_b32 v{gq}, 16, v{gq}")
    A(f"v_mul_f32 v{e}, {f32(-LOG2E)}, v{gq}")
    A(f"v_exp_f32 v{e}, v{e}")
    A(f"v_add_f32 v{e}, 1.0, v{e}")
    A(f"v_rcp_f32 v{e}, v{e}")
    A(f"v_mul_f32 v{gq}, v{gq}, v{e}")
    A(f"v_cvt_pk_bf16_f32 v{gq}, v{gq}, v{gq}")
    A(f"v_and_b32 v{gq}, 0xffff0000, v{gq}")
    A(f"v_mul_f32 v{gq}, v{gq}, v{uq}")
    A(f"v_cvt_pk_bf16_f32 v{gq}, v{gq}, v{gq}")
    A(f"ds_write_b16 v{t+6}, v{gq}")
    A.label(noh)
    lds_sync(A, 1, "hs1")
    HA = F_X + 16
    A(f"v_and_b32 v{t+5}, 3, v{FT}")
    A(f"v_lshrrev_b32 v{t+6}, 2, v{FT}")
    A(f"v_lshlrev_b32 v{t+7}, 6, v{t+5}")
    A(f"v_lshl_add_u32 v{t+7}, v{FG}, 4, v{t+7}")
    A(f"v_add_u32 v{t+7}, {H_H}, v{t+7}")
    A(f"v_mov_b32 v{t+8}, {OOR}")
    A(f"v_cmp_gt_u32 vcc, 2, v{t+5}")
    A(f"v_cndmask_b32 v{t+7}, v{t+8}, v{t+7}, vcc")
    for j in range(4):
        A(f"v_cmp_eq_u32 vcc, {j}, v{t+6}")
        A(f"v_cndmask_b32 v{t+5}, v{t+8}, v{t+7}, vcc")
        A(f"ds_read_b128 {vr(HA+4*j,4)}, v{t+5}")
    A("s_waitcnt vmcnt(0)")
    DY = F_X
    for rd in range(5):
        nt = 2 if rd < 4 else 1
        through_lds(F_W + 8 * rd, nt)
        for tile in range(nt):
            u, j = divmod(2 * rd + tile, 4)
            c = "0" if j == 0 else vr(DY + 4 * u, 4)
            A(f"v_mfma_f32_16x16x32_bf16 {vr(DY+4*u,4)}, {vr(HA+4*j,4)}, {vr(F_A+4*tile,4)}, {c}")
    A("s_nop 7")
    A(f"s_and_b32 s{S_T}, s2, {Y_REP-1}")
    A(f"s_mul_i32 s{S_T}, s{S_T}, {2*D*4}")
    A(f"s_mul_i32 s{S_T2}, s{S_H}, {144*4}")
    A(f"s_add_u32 s{S_T}, s{S_T}, s{S_T2}")
    A(f"s_add_u32 s{S_T}, s{S_T}, {FW_YACC}")
    A(f"s_add_u32 s{S_T2}, s{S_T}, {D*4}")
    A(f"v_lshlrev_b32 v{t+5}, 2, v{V_LANE}")
    for u in range(3):
        if u == 2: A("s_mov_b64 exec, 0xffff")
        A(f"buffer_atomic_add_f32 v{DY+4*u}, v{t+5}, {WS}, s{S_T} offen offset:{256*u}")
        A(f"buffer_atomic_add_f32 v{DY+4*u+1}, v{t+5}, {WS}, s{S_T2} offen offset:{256*u}")
    A("s_mov_b64 exec, -1")
    A("s_waitcnt vmcnt(0)")
    lds_sync(A, 2, "hs2")
    nof = A.newlabel("nof")
    A(f"s_cmp_lg_u32 s{S_H}, 0"); A(f"s_cbranch_scc1 {nof}")
    A(f"v_mov_b32 v{t}, {FW_FFNC}"); A(f"v_mov_b32 v{t+1}, 1")
    A("s_mov_b64 exec, 1")
    A(f"buffer_atomic_add v{t+1}, v{t}, {WS}, 0 offen sc1")
    A("s_mov_b64 exec, -1")
    A.label(nof)

def routed_update(A):
    t = HT; WS = srd(SRD_WS)
    skip = A.newlabel("noupd")
    A(f"s_cmp_lg_u32 s{S_H}, 1"); A(f"s_cbranch_scc1 {skip}")
    A(f"s_sub_u32 s84, s{S_IDX0}, s{S_ROW0}"); A(f"s_sub_u32 s85, s{S_IDX1}, s{S_ROW0}")
    A(f"s_min_u32 s86, s84, s85")
    A(f"s_cmp_lt_u32 s86, 64"); A(f"s_cbranch_scc0 {skip}")
    lp = A.newlabel("ypoll"); done = A.newlabel("ydone")
    A(f"s_mov_b32 s80, 0")
    A(f"v_mov_b32 v{t}, {FW_FFNC}")
    A.label(lp)
    A(f"buffer_load_dword v{t+1}, v{t}, {WS}, 0 offen sc1")
    A("s_waitcnt vmcnt(0)")
    A(f"v_readfirstlane_b32 s81, v{t+1}")
    A(f"s_cmp_ge_u32 s81, 144"); A(f"s_cbranch_scc1 {done}")
    A("s_sleep 8")
    A(f"s_add_u32 s80, s80, 1")
    A(f"s_cmp_lt_u32 s80, 0x40000"); A(f"s_cbranch_scc1 {lp}")
    A.label(done)
    Y = F_W
    A(f"v_lshlrev_b32 v{t}, 3, v{V_LANE}")
    A(f"s_mul_i32 s{S_T}, s{S_HG}, 288"); A(f"s_add_u32 s{S_T}, s{S_T}, {FW_YACC}")
    A(f"v_mov_b32 v{t+2}, {L_SEL+8}")
    A(f"ds_read_b64 {vr(t+4,2)}, v{t+2}")
    A(f"v_cmp_gt_u32 vcc, 36, v{V_LANE}")
    A(f"s_and_saveexec_b64 s[{S_EX}:{S_EX+1}], vcc")
    for j in range(2):
        for rp in range(Y_REP):
            A(f"s_add_u32 s{S_T2}, s{S_T}, {rp*2*D*4 + j*D*4}")
            A(f"buffer_load_dwordx2 {vr(Y+16*j+2*rp,2)}, v{t}, {WS}, s{S_T2} offen sc1")
    A("s_waitcnt vmcnt(0) lgkmcnt(0)")
    for j in range(2):
        b = Y + 16 * j
        for rp in range(1, Y_REP):
            A(f"v_add_f32 v{b}, v{b}, v{b+2*rp}"); A(f"v_add_f32 v{b+1}, v{b+1}, v{b+2*rp+1}")
        for e in range(2):
            y = b + e
            A(f"v_cvt_pk_bf16_f32 v{y}, v{y}, v{y}")
            A(f"v_and_b32 v{y}, 0xffff0000, v{y}")
            A(f"v_mul_f32 v{y}, v{t+4+j}, v{y}")
            A(f"v_cvt_pk_bf16_f32 v{y}, v{y}, v{y}")
            A(f"v_and_b32 v{y}, 0xffff0000, v{y}")
        A(f"v_add_u32 v{t+2}, {L_UPD + 288*j}, v{t}")
        A(f"ds_write_b64 v{t+2}, {vr(b,2)}")
    A("s_mov_b64 exec, -1")
    A("s_waitcnt lgkmcnt(0)")
    A.label(skip)

def xcc_publish(A):
    t = HT
    skip = A.newlabel("noxp")
    A(f"s_cmp_lg_u32 s{S_H}, 2"); A(f"s_cbranch_scc1 {skip}")
    A(f"s_getreg_b32 s{S_T}, hwreg(HW_REG_XCC_ID, 0, 4)")
    A(f"s_add_u32 s{S_T}, s{S_T}, 1")
    A(f"s_lshl_b32 s{S_T2}, s{S_TB}, 10"); A(f"s_add_u32 s{S_T2}, s{S_T2}, s{S_HG}"); A(f"s_add_u32 s{S_T2}, s{S_T2}, {FW_FLAG + FL_XCC}")
    A(f"v_mov_b32 v{t}, s{S_T2}"); A(f"v_mov_b32 v{t+1}, s{S_T}")
    A("s_mov_b64 exec, 1")
    A(f"buffer_store_byte v{t+1}, v{t}, {srd(SRD_WS)}, 0 offen sc1")
    A("s_mov_b64 exec, -1")
    A.label(skip)

def xcc_compare(A):
    t = HT
    skip = A.newlabel("noxc"); lp = A.newlabel("xcp"); done = A.newlabel("xcd")
    A(f"s_lshl_b32 s{S_T2}, s{S_TB}, 10"); A(f"s_add_u32 s{S_T2}, s{S_T2}, {FW_FLAG + FL_XCC}")
    A(f"v_mov_b32 v{t}, s{S_T2}")
    A(f"s_cmp_lg_u32 s{S_H}, 2"); A(f"s_cbranch_scc1 {skip}")
    A(f"s_mov_b32 s80, 0"); A(f"s_mov_b32 s83, 0")
    A.label(lp)
    A(f"buffer_load_dwordx2 {vr(t+2,2)}, v{t}, {srd(SRD_WS)}, 0 offen sc1")
    A("s_waitcnt vmcnt(0)")
    A(f"v_readfirstlane_b32 s81, v{t+2}"); A(f"v_readfirstlane_b32 s82, v{t+3}")
    A(f"s_sub_u32 s84, s81, 0x01010101"); A(f"s_andn2_b32 s84, s84, s81")
    A(f"s_sub_u32 s85, s82, 0x01010101"); A(f"s_andn2_b32 s85, s85, s82")
    A(f"s_or_b32 s84, s84, s85"); A(f"s_and_b32 s84, s84, 0x80808080")
    A(f"s_cmp_eq_u32 s84, 0"); A(f"s_cbranch_scc1 {done}")
    A("s_sleep 8")
    A(f"s_add_u32 s80, s80, 1")
    A(f"s_cmp_lt_u32 s80, 0x40000"); A(f"s_cbranch_scc1 {lp}")
    A(f"s_mov_b32 s81, 1"); A(f"s_mov_b32 s82, 2")
    A.label(done)
    A(f"s_and_b32 s84, s81, 0xff"); A(f"s_mul_i32 s84, s84, 0x01010101")
    A(f"s_cmp_eq_u32 s84, s81"); A(f"s_cselect_b32 s83, 1, 0")
    A(f"s_cmp_eq_u32 s84, s82"); A(f"s_cselect_b32 s83, s83, 0")
    A(f"v_mov_b32 v{t}, {L_SAME}"); A(f"v_mov_b32 v{t+1}, s83")
    A(f"ds_write_b32 v{t}, v{t+1}")
    A("s_waitcnt lgkmcnt(0)")
    A.label(skip)
```

```python
from fcommon import *

V_LANE = 0
VX0, VX1, VW, VL16 = 1, 2, 3, 6
PR0, PR1 = 144, 145
HT = 8
DUAL = os.environ.get('DUAL', '0') == '1'
PSLEEP = int(os.environ.get('PSLEEP', '1'))
STAGGER = int(os.environ.get('STAGGER', '8'))
S_H = 39

def setup_x(A):
    t = HT
    A(f"v_lshrrev_b32 v{t}, 3, v{V_LANE}")
    A(f"v_mul_u32_u24 v{t}, {ROWB}, v{t}")
    A(f"v_and_b32 v{t+1}, 7, v{V_LANE}")
    A(f"v_lshrrev_b32 v{t+2}, 4, v{V_LANE}")
    A(f"v_xor_b32 v{t+1}, v{t+1}, v{t+2}")
    A(f"v_lshl_add_u32 v{VX0}, v{t+1}, 4, v{t}")
    A(f"v_xor_b32 v{VX1}, 64, v{VX0}")

def setup_w(A):
    t = HT
    for k in range(3):
        if k < 2:
            A(f"s_lshl_b32 s{S_T}, s{S_H}, 7"); A(f"s_add_u32 s{S_T}, s{S_T}, {64*k}")
            A(f"v_add_u32 v{t}, s{S_T}, v{V_LANE}")
        else:
            A(f"v_add_u32 v{t}, 512, v{V_LANE}")
        A(f"v_mul_u32_u24 v{t+1}, 7282, v{t}")
        A(f"v_lshrrev_b32 v{t+1}, 16, v{t+1}")
        A(f"v_mul_u32_u24 v{t+2}, 9, v{t+1}")
        A(f"v_sub_u32 v{t+2}, v{t}, v{t+2}")
        A(f"v_and_b32 v{t+3}, 0x38, v{t+1}")
        A(f"v_and_b32 v{t+4}, 1, v{t+1}")
        A(f"v_lshl_add_u32 v{t+3}, v{t+4}, 2, v{t+3}")
        A(f"v_bfe_u32 v{t+4}, v{t+1}, 1, 2")
        A(f"v_add_u32 v{t+3}, v{t+3}, v{t+4}")
        A(f"v_mul_u32_u24 v{t+3}, {ROWB}, v{t+3}")
        A(f"v_lshl_add_u32 v{VW+k}, v{t+2}, 4, v{t+3}")
    A(f"v_lshlrev_b32 v{VL16}, 4, v{V_LANE}")

def dma(A, vreg, srd_i, ssoff, m0_expr, sc1=False):
    A(m0_expr)
    A("s_nop 0")
    A(f"buffer_load_dwordx4 v{vreg}, {srd(srd_i)}, s{ssoff} offen{' sc1' if sc1 else ''} lds")

def issue_x(A, vm, chunks, sc1, tagf, xb=XB):
    for cc in chunks:
        for o in range(2):
            A(f"s_mul_i32 s{S_T}, s{S_H}, {16*ROWB}")
            A(f"s_add_u32 s{S_T}, s{S_T}, s{S_T3}")
            A(f"s_add_u32 s{S_T}, s{S_T}, {o*8*ROWB + cc*128}")
            A(f"s_lshl_b32 s{S_T2}, s{S_H}, 11")
            dma(A, VX0 + o, SRD_A, S_T, f"s_add_u32 m0, s{S_T2}, {xb + cc*8192 + o*1024}", sc1)
            vm.issue(tagf(cc))

def issue_x_rotated(A, xb=XB):
    A(f"s_mul_i32 s84, s{S_H}, {16*ROWB}"); A(f"s_add_u32 s84, s84, s{S_T3}")
    A(f"s_lshl_b32 s85, s{S_H}, 11"); A(f"s_add_u32 s85, s85, {xb}")
    A(f"s_mov_b32 s86, s{S_HG}")
    for k in range(9):
        A(f"s_lshl_b32 s{S_T}, s86, 7"); A(f"s_add_u32 s{S_T}, s{S_T}, s84")
        A(f"s_lshl_b32 s{S_T2}, s86, 13"); A(f"s_add_u32 s{S_T2}, s{S_T2}, s85")
        dma(A, VX0, SRD_A, S_T, f"s_mov_b32 m0, s{S_T2}")
        A(f"s_add_u32 s{S_T}, s{S_T}, {8*ROWB}")
        dma(A, VX1, SRD_A, S_T, f"s_add_u32 m0, s{S_T2}, 1024")
        if k < 8:
            A(f"s_add_u32 s86, s86, 1"); A(f"s_cmp_eq_u32 s86, 9"); A(f"s_cselect_b32 s86, 0, s86")

def issue_w(A, vm, h3, reps, tagf, wb=WB):
    for a_ in reps:
        A(f"s_mul_i32 s{S_T}, s{S_HG}, 144")
        A(f"s_add_u32 s{S_T}, s{S_T}, {a_*64*ROWB}")
        for k in range(3 if h3 else 2):
            if k < 2:
                A(f"s_lshl_b32 s{S_T2}, s{S_H}, 11")
                dma(A, VW + k, SRD_W, S_T, f"s_add_u32 m0, s{S_T2}, {wb + (9*a_ + k)*1024}")
            else:
                dma(A, VW + 2, SRD_W, S_T, f"s_mov_b32 m0, {wb + (9*a_ + 8)*1024}")
            vm.issue(tagf(a_))

PRI = 146
def is_h03(A, skip):
    A(f"s_sub_u32 s{S_T}, s{S_H}, 1"); A(f"s_cmp_lt_u32 s{S_T}, 2"); A(f"s_cbranch_scc1 {skip}")

def init_issue(A):
    skip = A.newlabel("iissue")
    A(f"v_mov_b32 v{PRI+1}, {DBG_INIT}")
    is_h03(A, skip)
    A(f"buffer_load_dword v{PRI}, v{PRI+1}, {srd(SRD_DBG)}, 0 offen")
    A.label(skip)

def init_check(A):
    skip = A.newlabel("icheck"); lp = A.newlabel("icheckp")
    is_h03(A, skip)
    A("s_waitcnt vmcnt(0)")
    A(f"s_mov_b32 s80, 0")
    A.label(lp)
    A(f"v_readfirstlane_b32 s81, v{PRI}")
    A(f"s_cmp_ge_u32 s81, 32"); A(f"s_cbranch_scc1 {skip}")
    A("s_sleep 8")
    A(f"buffer_load_dword v{PRI}, v{PRI+1}, {srd(SRD_DBG)}, 0 offen sc1")
    A("s_waitcnt vmcnt(0)")
    A(f"s_add_u32 s80, s80, 1")
    A(f"s_cmp_lt_u32 s80, 0x40000"); A(f"s_cbranch_scc1 {lp}")
    A.label(skip)

def poll_issue(A, voff):
    t = HT
    skip = A.newlabel("pissue")
    A(f"s_cmp_lg_u32 s{S_H}, 0"); A(f"s_cbranch_scc1 {skip}")
    voff(A, t)
    A(f"buffer_load_dword v{PR0}, v{t}, {srd(SRD_WS)}, 0 offen sc1")
    A.label(skip)

def poll(A, voff, nlanes, cmpval, name, ge=False, preissued=False):
    if DUAL: return poll2(A, voff, nlanes, cmpval, name, ge, preissued)
    t = HT
    skip = A.newlabel(name + "skip"); lp = A.newlabel(name + "lp"); done = A.newlabel(name + "ok")
    chk = A.newlabel(name + "chk")
    A(f"s_cmp_lg_u32 s{S_H}, 0"); A(f"s_cbranch_scc1 {skip}")
    A(f"s_mov_b32 s80, 0")
    if preissued: A(f"s_branch {chk}")
    else: voff(A, t)
    A.label(lp)
    A(f"buffer_load_dword v{PR0}, v{t}, {srd(SRD_WS)}, 0 offen sc1")
    A.label(chk)
    A("s_waitcnt vmcnt(0)")
    A(f"v_mov_b32 v{t+2}, {cmpval}")
    A(f"v_cmp_{'le' if ge else 'eq'}_u32 vcc, v{t+2}, v{PR0}")
    A("s_nop 1")
    A(f"s_not_b64 s[82:83], vcc")
    A(f"s_cmp_eq_u64 s[82:83], 0")
    A(f"s_cbranch_scc1 {done}")
    A(f"s_sleep {PSLEEP}")
    A(f"s_add_u32 s80, s80, 1")
    A(f"s_cmp_lt_u32 s80, 0x80000"); A(f"s_cbranch_scc1 {lp}")
    A.label(done)
    A.label(skip)

def poll2(A, voff, nlanes, cmpval, name, ge=False, preissued=False):
    t = HT
    skip = A.newlabel(name + "skip"); lp = A.newlabel(name + "lp"); done = A.newlabel(name + "ok")
    A(f"s_cmp_lg_u32 s{S_H}, 0"); A(f"s_cbranch_scc1 {skip}")
    A(f"s_mov_b32 s80, 0")
    ld = lambda r: A(f"buffer_load_dword v{r}, v{t}, {srd(SRD_WS)}, 0 offen sc1")
    def check(r):
        A(f"v_cmp_{'le' if ge else 'eq'}_u32 vcc, v{t+2}, v{r}")
        A("s_nop 1")
        A(f"s_not_b64 s[82:83], vcc")
        A(f"s_cmp_eq_u64 s[82:83], 0")
        A(f"s_cbranch_scc1 {done}")
    if not preissued:
        voff(A, t)
        ld(PR0)
    A(f"v_mov_b32 v{t+2}, {cmpval}")
    if preissued:
        A("s_waitcnt vmcnt(0)"); check(PR0)
        ld(PR0)
    if STAGGER: A(f"s_sleep {STAGGER}")
    A.label(lp)
    ld(PR1)
    A("s_waitcnt vmcnt(1)"); check(PR0)
    ld(PR0)
    A("s_waitcnt vmcnt(1)"); check(PR1)
    A(f"s_add_u32 s80, s80, 1")
    A(f"s_cmp_lt_u32 s80, 0x40000"); A(f"s_cbranch_scc1 {lp}")
    A.label(done)
    A.label(skip)

KV_ST0 = 37
def issue_kv(A, first, last):
    A(f"s_lshl_b32 s{S_T2}, s{S_H}, 10")
    for u in range(first, last, 4):
        n = min(4, last - u)
        skip = None
        if n < 4:
            skip = A.newlabel("kvt")
            A(f"s_cmp_ge_u32 s{S_H}, {n}"); A(f"s_cbranch_scc1 {skip}")
        A(f"s_add_u32 s{S_T}, s{S_T2}, {u*1024}")
        dma(A, VL16, SRD_KV, S_T, f"s_mov_b32 m0, s{S_T}", sc1=not PLAIN)
        if skip: A.label(skip)

def publish_key_norm(A):
    t = HT; d = 28
    skip = A.newlabel("nopk")
    A(f"s_cmp_lg_u32 s{S_HG}, 0"); A(f"s_cbranch_scc1 {skip}")
    A(f"s_cmp_lg_u32 s{S_H}, 3"); A(f"s_cbranch_scc1 {skip}")
    A(f"v_lshrrev_b32 v{t}, 5, v{V_LANE}"); A(f"v_and_b32 v{t+1}, 31, v{V_LANE}")
    A(f"v_lshlrev_b32 v{t+2}, 10, v{t}"); A(f"v_lshl_add_u32 v{t+2}, v{t+1}, 4, v{t+2}")
    A(f"v_add_u32 v{t+2}, {STG}, v{t+2}")
    A(f"v_lshlrev_b32 v{t+3}, 3, v{t+1}"); A(f"v_lshl_add_u32 v{t+3}, v{t}, 2, v{t+3}")
    A(f"v_add_u32 v{t+3}, {STG + TB_KEXT}, v{t+3}")
    A(f"ds_read_b128 {vr(d,4)}, v{t+2}")
    A(f"ds_read_b128 {vr(d+4,4)}, v{t+2} offset:512")
    A(f"ds_read_b32 v{d+8}, v{t+3}")
    A("s_waitcnt lgkmcnt(0)")
    A(f"v_dot2_f32_bf16 v{t}, v{d}, v{d}, 0")
    for r in range(1, 9): A(f"v_dot2_f32_bf16 v{t}, v{d+r}, v{d+r}, v{t}")
    A("s_nop 2")
    for sh in (1, 2, 4, 8):
        A(f"v_max_f32_dpp v{t}, v{t}, v{t} row_ror:{sh} row_mask:0xf bank_mask:0xf")
    A(f"v_readlane_b32 s80, v{t}, 0")
    for ln in (16, 32, 48):
        A(f"v_readlane_b32 s81, v{t}, {ln}"); A(f"s_max_u32 s80, s80, s81")
    A(f"v_mov_b32 v{t}, s80")
    A(f"v_mul_f32 v{t}, {f32(1.001)}, v{t}")
    A(f"v_or_b32 v{t}, 1, v{t}")
    A(f"s_lshl_b32 s{S_T}, s{S_TB}, 2"); A(f"s_add_u32 s{S_T}, s{S_T}, {FW_FLAG + FL_KN}")
    A(f"v_lshlrev_b32 v{t+1}, 10, v{V_LANE}")
    A(f"v_cmp_gt_u32 vcc, 32, v{V_LANE}")
    A(f"s_and_saveexec_b64 s[{S_EX}:{S_EX+1}], vcc")
    A(f"buffer_store_dword v{t}, v{t+1}, {srd(SRD_WS)}, s{S_T} offen sc1")
    A(f"s_mov_b64 exec, s[{S_EX}:{S_EX+1}]")
    A.label(skip)

def key_norm(A):
    t = HT
    skip = A.newlabel("nokn"); lp = A.newlabel("knp"); done = A.newlabel("knd")
    A(f"v_and_b32 v{t}, 31, v{V_LANE}"); A(f"v_lshlrev_b32 v{t}, 2, v{t}")
    A(f"s_lshl_b32 s{S_T}, s{S_TB}, 10"); A(f"s_add_u32 s{S_T}, s{S_T}, {FW_FLAG + FL_KN}")
    A(f"v_add_u32 v{t}, s{S_T}, v{t}")
    A(f"s_cmp_lg_u32 s{S_H}, 1"); A(f"s_cbranch_scc1 {skip}")
    A(f"s_mov_b32 s80, 0")
    A.label(lp)
    A(f"buffer_load_dword v{t+1}, v{t}, {srd(SRD_WS)}, 0 offen sc1")
    A("s_waitcnt vmcnt(0)")
    A(f"v_cmp_eq_u32 vcc, 0, v{t+1}")
    A("s_nop 1")
    A(f"s_cmp_eq_u64 vcc, 0"); A(f"s_cbranch_scc1 {done}")
    A("s_sleep 4")
    A(f"s_add_u32 s80, s80, 1")
    A(f"s_cmp_lt_u32 s80, 0x40000"); A(f"s_cbranch_scc1 {lp}")
    A.label(done)
    for sh in (1, 2, 4, 8):
        A(f"v_max_f32_dpp v{t+1}, v{t+1}, v{t+1} row_ror:{sh} row_mask:0xf bank_mask:0xf")
    A(f"v_readlane_b32 s80, v{t+1}, 0"); A(f"v_readlane_b32 s81, v{t+1}, 16")
    A(f"s_max_u32 s80, s80, s81")
    A(f"v_mov_b32 v{t}, {L_KN}"); A(f"v_mov_b32 v{t+1}, s80")
    A(f"ds_write_b32 v{t}, v{t+1}")
    A.label(skip)

F_W = 24
F_X = 96
F_KEY = 148
F_A = 152
F_ACC = 160
S_M, S_KH, S_SL = 84, 85, 86

def lds_sync(A, idx, name, sleep=1):
    t = HT + 12
    A("s_waitcnt lgkmcnt(0)")
    A(f"v_mov_b32 v{t}, {L_CNT + 4*idx}")
    A(f"v_mov_b32 v{t+1}, 1")
    A(f"s_mov_b64 s[{S_EX}:{S_EX+1}], exec")
    A("s_mov_b64 exec, 1")
    A(f"ds_add_u32 v{t}, v{t+1}")
    A(f"s_mov_b64 exec, s[{S_EX}:{S_EX+1}]")
    lp = A.newlabel(name); done = A.newlabel(name + "d")
    A(f"s_mov_b32 s80, 0")
    A.label(lp)
    A(f"ds_read_b32 v{t+1}, v{t}")
    A("s_waitcnt lgkmcnt(0)")
    A(f"v_readfirstlane_b32 s81, v{t+1}")
    A(f"s_cmp_ge_u32 s81, 4"); A(f"s_cbranch_scc1 {done}")
    A(f"s_sleep {sleep}")
    A(f"s_add_u32 s80, s80, 1")
    A(f"s_cmp_lt_u32 s80, 0x100000"); A(f"s_cbranch_scc1 {lp}")
    A.label(done)

def wait_released(A):
    t = HT + 12
    lp = A.newlabel("rel"); done = A.newlabel("reld")
    A(f"v_mov_b32 v{t}, {L_CNT + 12}")
    A(f"s_mov_b32 s80, 0")
    A.label(lp)
    A(f"ds_read_b32 v{t+1}, v{t}")
    A("s_waitcnt lgkmcnt(0)")
    A(f"v_readfirstlane_b32 s81, v{t+1}")
    A(f"s_cmp_ge_u32 s81, 512"); A(f"s_cbranch_scc1 {done}")
    A("s_sleep 16")
    A(f"s_add_u32 s80, s80, 1")
    A(f"s_cmp_lt_u32 s80, 0x400000"); A(f"s_cbranch_scc1 {lp}")
    A.label(done)

def select_top2(A):
    t = HT
    nosel = A.newlabel("nosel")
    A(f"s_cmp_lg_u32 s{S_H}, 0"); A(f"s_cbranch_scc1 {nosel}")
    m1, m2 = t, t + 1
    A(f"v_max_u32 v{m1}, v{F_KEY}, v{F_KEY+1}")
    A(f"v_min_u32 v{m2}, v{F_KEY}, v{F_KEY+1}")
    for i in range(2, 4):
        A(f"v_med3_u32 v{m2}, v{m1}, v{m2}, v{F_KEY+i}")
        A(f"v_max_u32 v{m1}, v{m1}, v{F_KEY+i}")
    def wave_max(reg, sdst):
        A(f"v_mov_b32 v{t+2}, v{reg}")
        for sh in (1, 2, 4, 8):
            A(f"v_max_u32_dpp v{t+2}, v{t+2}, v{t+2} row_ror:{sh} row_mask:0xf bank_mask:0xf")
        A(f"v_readlane_b32 s{sdst}, v{t+2}, 0")
        for ln in (16, 32, 48):
            A(f"v_readlane_b32 s{S_T}, v{t+2}, {ln}")
            A(f"s_max_u32 s{sdst}, s{sdst}, s{S_T}")
    wave_max(m1, 80)
    A(f"v_cmp_eq_u32 vcc, s80, v{m1}")
    A(f"v_cndmask_b32 v{m1}, v{m1}, v{m2}, vcc")
    wave_max(m1, 81)
    A(f"v_mov_b32 v{t}, s80"); A(f"v_mov_b32 v{t+1}, s81")
    A(f"v_cmp_eq_u32 vcc, 1, v{V_LANE}")
    A(f"v_cndmask_b32 v{t}, v{t}, v{t+1}, vcc")
    A(f"v_lshrrev_b32 v{t+1}, 16, v{t}")
    A(f"v_xor_b32 v{t+2}, 0x8000, v{t+1}")
    A(f"v_xor_b32 v{t+3}, 0xffff, v{t+1}")
    A(f"v_cmp_lt_u32 vcc, 0x7fff, v{t+1}")
    A(f"v_cndmask_b32 v{t+1}, v{t+3}, v{t+2}, vcc")
    A(f"v_lshlrev_b32 v{t+1}, 16, v{t+1}")
    A(f"v_mul_f32 v{t+1}, {f32(-LOG2E)}, v{t+1}")
    A(f"v_exp_f32 v{t+1}, v{t+1}")
    A(f"v_add_f32 v{t+1}, 1.0, v{t+1}")
    A(f"v_rcp_f32 v{t+1}, v{t+1}")
    A(f"v_cvt_pk_bf16_f32 v{t+1}, v{t+1}, v{t+1}")
    A(f"v_and_b32 v{t+1}, 0xffff0000, v{t+1}")
    A(f"v_and_b32 v{t}, 0xffff, v{t}")
    A(f"v_sub_u32 v{t}, 0xffff, v{t}")
    A(f"v_min_u32 v{t}, {S_TOK-1}, v{t}")
    A(f"v_lshlrev_b32 v{t+2}, 2, v{V_LANE}")
    A(f"v_add_u32 v{t+2}, {L_SEL}, v{t+2}")
    A(f"v_cmp_gt_u32 vcc, 2, v{V_LANE}")
    A(f"s_and_saveexec_b64 s[{S_EX}:{S_EX+1}], vcc")
    A(f"ds_write_b32 v{t+2}, v{t}")
    A(f"ds_write_b32 v{t+2}, v{t+1} offset:8")
    A(f"s_mov_b64 exec, s[{S_EX}:{S_EX+1}]")
    A.label(nosel)

def read_selection(A):
    t = HT
    A(f"v_mov_b32 v{t}, {L_SEL}")
    A(f"ds_read_b64 {vr(t+2,2)}, v{t}")
    A("s_waitcnt lgkmcnt(0)")
    A(f"v_readfirstlane_b32 s{S_IDX0}, v{t+2}")
    A(f"v_readfirstlane_b32 s{S_IDX1}, v{t+3}")

def ffn(A):
    t = HT; WS = srd(SRD_WS)
    FT, FG = t + 14, t + 15
    A(f"v_and_b32 v{FT}, 15, v{V_LANE}"); A(f"v_lshrrev_b32 v{FG}, 4, v{V_LANE}")
    A(f"s_and_b32 s{S_M}, s{S_H}, 1"); A(f"s_lshr_b32 s{S_KH}, s{S_H}, 1")
    A(f"s_cmp_eq_u32 s{S_M}, 0")
    A(f"s_cselect_b32 s{SRD_E}, s{S_WG}, s{S_WU}")
    A(f"s_cselect_b32 s{SRD_E+1}, s{S_WG+1}, s{S_WU+1}")
    A(f"s_and_b32 s{SRD_E+1}, s{SRD_E+1}, 0xffff")
    A(f"s_mov_b32 s{SRD_E+2}, {D*F*2}"); A(f"s_mov_b32 s{SRD_E+3}, 0x20000")
    mk_srd(A, SRD_F, S_WD, F * ROWB)
    A(f"v_lshrrev_b32 v{t}, 2, v{V_LANE}")
    A(f"v_and_b32 v{t+1}, 3, v{V_LANE}")
    A(f"v_lshlrev_b32 v{t+1}, 4, v{t+1}")
    A(f"v_mul_u32_u24 v{t+2}, {ROWB}, v{t}")
    A(f"v_add_u32 v{t+2}, v{t+2}, v{t+1}")
    A(f"v_mul_u32_u24 v{t}, {F*2}, v{t}")
    A(f"v_add_u32 v{t}, v{t}, v{t+1}")
    A(f"s_mul_i32 s{S_T}, s{S_KH}, {9*32*F*2}")
    A(f"s_lshl_b32 s{S_T2}, s{S_SL}, 6")
    A(f"s_add_u32 s{S_T}, s{S_T}, s{S_T2}")
    for s_ in range(9):
        for hf in range(2):
            A(f"buffer_load_dwordx4 {vr(F_W+8*s_+4*hf,4)}, v{t}, {srd(SRD_E)}, s{S_T} offen")
            A(f"s_add_u32 s{S_T}, s{S_T}, {16*F*2}")
    A(f"v_mov_b32 v{t}, s{S_IDX0}"); A(f"v_mov_b32 v{t+1}, s{S_IDX1}")
    A(f"v_cmp_eq_u32 vcc, 1, v{FT}")
    A(f"v_cndmask_b32 v{t}, v{t}, v{t+1}, vcc")
    A(f"v_mul_u32_u24 v{t}, {ROWB}, v{t}")
    A(f"v_lshl_add_u32 v{t}, v{FG}, 4, v{t}")
    A(f"s_mul_i32 s{S_T}, s{S_KH}, {9*64}")
    for s_ in range(9):
        A(f"buffer_load_dwordx4 {vr(F_X+4*s_,4)}, v{t}, {srd(SRD_A)}, s{S_T} offen offset:{64*s_}")
    wr, r1 = t + 3, t + 4
    A(f"s_lshl_b32 s{S_T}, s{S_H}, 11"); A(f"s_add_u32 s{S_T}, s{S_T}, {H_STG}")
    A(f"v_add_u32 v{wr}, s{S_T}, v{VL16}")
    A(f"v_bfe_u32 v{t+5}, v{V_LANE}, 2, 2")
    A(f"v_lshl_add_u32 v{t+5}, v{FG}, 3, v{t+5}")
    A(f"v_and_b32 v{t+6}, 3, v{V_LANE}")
    A(f"v_lshlrev_b32 v{t+6}, 3, v{t+6}")
    A(f"v_lshl_add_u32 v{r1}, v{t+5}, 6, v{t+6}")
    A(f"v_add_u32 v{r1}, s{S_T}, v{r1}")
    def through_lds(src, ntile):
        A(f"ds_write_b128 v{wr}, {vr(src,4)}")
        A(f"ds_write_b128 v{wr}, {vr(src+4,4)} offset:1024")
        A("s_waitcnt lgkmcnt(0)")
        for tile in range(ntile):
            for q in range(2):
                A(f"ds_read_b64_tr_b16 {vr(F_A+4*tile+2*q,2)}, v{r1} offset:{32*tile + 256*q}")
        A("s_waitcnt lgkmcnt(0)")
    A("s_waitcnt vmcnt(0)")
    for s_ in range(9):
        through_lds(F_W + 8 * s_, 2)
        for tile in range(2):
            c = "0" if s_ == 0 else vr(F_ACC + 4 * tile, 4)
            A(f"v_mfma_f32_16x16x32_bf16 {vr(F_ACC+4*tile,4)}, {vr(F_A+4*tile,4)}, {vr(F_X+4*s_,4)}, {c}")
        if s_ == 4:
            A(f"s_mul_i32 s{S_T}, s{S_SL}, {32*ROWB}")
            A(f"s_mul_i32 s{S_T2}, s{S_H}, 288")
            A(f"s_add_u32 s{S_T}, s{S_T}, s{S_T2}")
            A(f"s_add_u32 s{S_T2}, s{S_T}, {16*ROWB}")
            for rd in range(5):
                A(f"buffer_load_dwordx4 {vr(F_W+8*rd,4)}, v{t+2}, {srd(SRD_F)}, s{S_T} offen offset:{64*rd}")
                A(f"buffer_load_dwordx4 {vr(F_W+8*rd+4,4)}, v{t+2}, {srd(SRD_F)}, s{S_T2} offen offset:{64*rd}")
    A("s_nop 7")
    A(f"v_lshlrev_b32 v{t+5}, 1, v{FG}")
    A(f"v_add_u32 v{t+5}, v{t+5}, v{FT}")
    A(f"v_lshlrev_b32 v{t+5}, 4, v{t+5}")
    A(f"v_add_u32 v{t+7}, {H_RED}, v{t+5}")
    A(f"s_lshl_b32 s{S_T}, s{S_H}, 8")
    A(f"v_add_u32 v{t+6}, s{S_T}, v{t+7}")
    A(f"v_cmp_gt_u32 vcc, 2, v{FT}")
    A(f"s_and_saveexec_b64 s[{S_EX}:{S_EX+1}], vcc")
    A(f"ds_write_b128 v{t+6}, {vr(F_ACC,4)}")
    A(f"ds_write_b128 v{t+6}, {vr(F_ACC+4,4)} offset:128")
    A(f"s_mov_b64 exec, s[{S_EX}:{S_EX+1}]")
    lds_sync(A, 0, "hs0")
    noh = A.newlabel("noh")
    A(f"s_cmp_lg_u32 s{S_H}, 3"); A(f"s_cbranch_scc1 {noh}")
    B0 = F_X
    A(f"v_lshrrev_b32 v{t+5}, 5, v{V_LANE}")
    A(f"v_bfe_u32 v{t+6}, v{V_LANE}, 4, 1")
    A(f"v_bfe_u32 v{t+7}, v{V_LANE}, 2, 2")
    A(f"v_and_b32 v{t+8}, 3, v{V_LANE}")
    A(f"v_lshl_add_u32 v{t+7}, v{t+7}, 1, v{t+5}")
    A(f"v_lshlrev_b32 v{t+7}, 4, v{t+7}")
    A(f"v_lshl_add_u32 v{t+7}, v{t+6}, 7, v{t+7}")
    A(f"v_lshl_add_u32 v{t+7}, v{t+8}, 2, v{t+7}")
    A(f"v_add_u32 v{t+7}, {H_RED}, v{t+7}")
    for w in range(4): A(f"ds_read_b32 v{B0+w}, v{t+7} offset:{256*w}")
    A(f"v_lshlrev_b32 v{t+6}, 1, v{V_LANE}")
    A(f"v_add_u32 v{t+6}, {H_H}, v{t+6}")
    A("s_waitcnt lgkmcnt(0)")
    gq, uq, e = B0, B0 + 1, B0 + 4
    A(f"v_add_f32 v{gq}, v{gq}, v{B0+2}")
    A(f"v_add_f32 v{uq}, v{uq}, v{B0+3}")
    A(f"v_cvt_pk_bf16_f32 v{gq}, v{gq}, v{uq}")
    A(f"v_and_b32 v{uq}, 0xffff0000, v{gq}")
    A(f"v_lshlrev_b32 v{gq}, 16, v{gq}")
    A(f"v_mul_f32 v{e}, {f32(-LOG2E)}, v{gq}")
    A(f"v_exp_f32 v{e}, v{e}")
    A(f"v_add_f32 v{e}, 1.0, v{e}")
    A(f"v_rcp_f32 v{e}, v{e}")
    A(f"v_mul_f32 v{gq}, v{gq}, v{e}")
    A(f"v_cvt_pk_bf16_f32 v{gq}, v{gq}, v{gq}")
    A(f"v_and_b32 v{gq}, 0xffff0000, v{gq}")
    A(f"v_mul_f32 v{gq}, v{gq}, v{uq}")
    A(f"v_cvt_pk_bf16_f32 v{gq}, v{gq}, v{gq}")
    A(f"ds_write_b16 v{t+6}, v{gq}")
    A.label(noh)
    lds_sync(A, 1, "hs1")
    HA = F_X + 16
    A(f"v_and_b32 v{t+5}, 3, v{FT}")
    A(f"v_lshrrev_b32 v{t+6}, 2, v{FT}")
    A(f"v_lshlrev_b32 v{t+7}, 6, v{t+5}")
    A(f"v_lshl_add_u32 v{t+7}, v{FG}, 4, v{t+7}")
    A(f"v_add_u32 v{t+7}, {H_H}, v{t+7}")
    A(f"v_mov_b32 v{t+8}, {OOR}")
    A(f"v_cmp_gt_u32 vcc, 2, v{t+5}")
    A(f"v_cndmask_b32 v{t+7}, v{t+8}, v{t+7}, vcc")
    for j in range(4):
        A(f"v_cmp_eq_u32 vcc, {j}, v{t+6}")
        A(f"v_cndmask_b32 v{t+5}, v{t+8}, v{t+7}, vcc")
        A(f"ds_read_b128 {vr(HA+4*j,4)}, v{t+5}")
    A("s_waitcnt vmcnt(0)")
    DY = F_X
    for rd in range(5):
        nt = 2 if rd < 4 else 1
        through_lds(F_W + 8 * rd, nt)
        for tile in range(nt):
            u, j = divmod(2 * rd + tile, 4)
            c = "0" if j == 0 else vr(DY + 4 * u, 4)
            A(f"v_mfma_f32_16x16x32_bf16 {vr(DY+4*u,4)}, {vr(HA+4*j,4)}, {vr(F_A+4*tile,4)}, {c}")
    A("s_nop 7")
    A(f"s_and_b32 s{S_T}, s2, {Y_REP-1}")
    A(f"s_mul_i32 s{S_T}, s{S_T}, {2*D*4}")
    A(f"s_mul_i32 s{S_T2}, s{S_H}, {144*4}")
    A(f"s_add_u32 s{S_T}, s{S_T}, s{S_T2}")
    A(f"s_add_u32 s{S_T}, s{S_T}, {FW_YACC}")
    A(f"s_add_u32 s{S_T2}, s{S_T}, {D*4}")
    A(f"v_lshlrev_b32 v{t+5}, 2, v{V_LANE}")
    for u in range(3):
        if u == 2: A("s_mov_b64 exec, 0xffff")
        A(f"buffer_atomic_add_f32 v{DY+4*u}, v{t+5}, {WS}, s{S_T} offen offset:{256*u}")
        A(f"buffer_atomic_add_f32 v{DY+4*u+1}, v{t+5}, {WS}, s{S_T2} offen offset:{256*u}")
    A("s_mov_b64 exec, -1")
    A("s_waitcnt vmcnt(0)")
    lds_sync(A, 2, "hs2")
    nof = A.newlabel("nof")
    A(f"s_cmp_lg_u32 s{S_H}, 0"); A(f"s_cbranch_scc1 {nof}")
    A(f"v_mov_b32 v{t}, {FW_FFNC}"); A(f"v_mov_b32 v{t+1}, 1")
    A("s_mov_b64 exec, 1")
    A(f"buffer_atomic_add v{t+1}, v{t}, {WS}, 0 offen sc1")
    A("s_mov_b64 exec, -1")
    A.label(nof)

def routed_update(A):
    t = HT; WS = srd(SRD_WS)
    skip = A.newlabel("noupd")
    A(f"s_cmp_lg_u32 s{S_H}, 1"); A(f"s_cbranch_scc1 {skip}")
    A(f"s_sub_u32 s84, s{S_IDX0}, s{S_ROW0}"); A(f"s_sub_u32 s85, s{S_IDX1}, s{S_ROW0}")
    A(f"s_min_u32 s86, s84, s85")
    A(f"s_cmp_lt_u32 s86, 64"); A(f"s_cbranch_scc0 {skip}")
    lp = A.newlabel("ypoll"); done = A.newlabel("ydone")
    A(f"s_mov_b32 s80, 0")
    A(f"v_mov_b32 v{t}, {FW_FFNC}")
    A.label(lp)
    A(f"buffer_load_dword v{t+1}, v{t}, {WS}, 0 offen sc1")
    A("s_waitcnt vmcnt(0)")
    A(f"v_readfirstlane_b32 s81, v{t+1}")
    A(f"s_cmp_ge_u32 s81, 144"); A(f"s_cbranch_scc1 {done}")
    A("s_sleep 8")
    A(f"s_add_u32 s80, s80, 1")
    A(f"s_cmp_lt_u32 s80, 0x40000"); A(f"s_cbranch_scc1 {lp}")
    A.label(done)
    Y = F_W
    A(f"v_lshlrev_b32 v{t}, 3, v{V_LANE}")
    A(f"s_mul_i32 s{S_T}, s{S_HG}, 288"); A(f"s_add_u32 s{S_T}, s{S_T}, {FW_YACC}")
    A(f"v_mov_b32 v{t+2}, {L_SEL+8}")
    A(f"ds_read_b64 {vr(t+4,2)}, v{t+2}")
    A(f"v_cmp_gt_u32 vcc, 36, v{V_LANE}")
    A(f"s_and_saveexec_b64 s[{S_EX}:{S_EX+1}], vcc")
    for j in range(2):
        for rp in range(Y_REP):
            A(f"s_add_u32 s{S_T2}, s{S_T}, {rp*2*D*4 + j*D*4}")
            A(f"buffer_load_dwordx2 {vr(Y+16*j+2*rp,2)}, v{t}, {WS}, s{S_T2} offen sc1")
    A("s_waitcnt vmcnt(0) lgkmcnt(0)")
    for j in range(2):
        b = Y + 16 * j
        for rp in range(1, Y_REP):
            A(f"v_add_f32 v{b}, v{b}, v{b+2*rp}"); A(f"v_add_f32 v{b+1}, v{b+1}, v{b+2*rp+1}")
        for e in range(2):
            y = b + e
            A(f"v_cvt_pk_bf16_f32 v{y}, v{y}, v{y}")
            A(f"v_and_b32 v{y}, 0xffff0000, v{y}")
            A(f"v_mul_f32 v{y}, v{t+4+j}, v{y}")
            A(f"v_cvt_pk_bf16_f32 v{y}, v{y}, v{y}")
            A(f"v_and_b32 v{y}, 0xffff0000, v{y}")
        A(f"v_add_u32 v{t+2}, {L_UPD + 288*j}, v{t}")
        A(f"ds_write_b64 v{t+2}, {vr(b,2)}")
    A("s_mov_b64 exec, -1")
    A("s_waitcnt lgkmcnt(0)")
    A.label(skip)

def xcc_publish(A):
    t = HT
    skip = A.newlabel("noxp")
    A(f"s_cmp_lg_u32 s{S_H}, 2"); A(f"s_cbranch_scc1 {skip}")
    A(f"s_getreg_b32 s{S_T}, hwreg(HW_REG_XCC_ID, 0, 4)")
    A(f"s_add_u32 s{S_T}, s{S_T}, 1")
    A(f"s_lshl_b32 s{S_T2}, s{S_TB}, 10"); A(f"s_add_u32 s{S_T2}, s{S_T2}, s{S_HG}"); A(f"s_add_u32 s{S_T2}, s{S_T2}, {FW_FLAG + FL_XCC}")
    A(f"v_mov_b32 v{t}, s{S_T2}"); A(f"v_mov_b32 v{t+1}, s{S_T}")
    A("s_mov_b64 exec, 1")
    A(f"buffer_store_byte v{t+1}, v{t}, {srd(SRD_WS)}, 0 offen sc1")
    A("s_mov_b64 exec, -1")
    A.label(skip)

def xcc_compare(A):
    t = HT
    skip = A.newlabel("noxc"); lp = A.newlabel("xcp"); done = A.newlabel("xcd")
    A(f"s_lshl_b32 s{S_T2}, s{S_TB}, 10"); A(f"s_add_u32 s{S_T2}, s{S_T2}, {FW_FLAG + FL_XCC}")
    A(f"v_mov_b32 v{t}, s{S_T2}")
    A(f"s_cmp_lg_u32 s{S_H}, 2"); A(f"s_cbranch_scc1 {skip}")
    A(f"s_mov_b32 s80, 0"); A(f"s_mov_b32 s83, 0")
    A.label(lp)
    A(f"buffer_load_dwordx2 {vr(t+2,2)}, v{t}, {srd(SRD_WS)}, 0 offen sc1")
    A("s_waitcnt vmcnt(0)")
    A(f"v_readfirstlane_b32 s81, v{t+2}"); A(f"v_readfirstlane_b32 s82, v{t+3}")
    A(f"s_sub_u32 s84, s81, 0x01010101"); A(f"s_andn2_b32 s84, s84, s81")
    A(f"s_sub_u32 s85, s82, 0x01010101"); A(f"s_andn2_b32 s85, s85, s82")
    A(f"s_or_b32 s84, s84, s85"); A(f"s_and_b32 s84, s84, 0x80808080")
    A(f"s_cmp_eq_u32 s84, 0"); A(f"s_cbranch_scc1 {done}")
    A("s_sleep 8")
    A(f"s_add_u32 s80, s80, 1")
    A(f"s_cmp_lt_u32 s80, 0x40000"); A(f"s_cbranch_scc1 {lp}")
    A(f"s_mov_b32 s81, 1"); A(f"s_mov_b32 s82, 2")
    A.label(done)
    A(f"s_and_b32 s84, s81, 0xff"); A(f"s_mul_i32 s84, s84, 0x01010101")
    A(f"s_cmp_eq_u32 s84, s81"); A(f"s_cselect_b32 s83, 1, 0")
    A(f"s_cmp_eq_u32 s84, s82"); A(f"s_cselect_b32 s83, s83, 0")
    A(f"v_mov_b32 v{t}, {L_SAME}"); A(f"v_mov_b32 v{t+1}, s83")
    A(f"ds_write_b32 v{t}, v{t+1}")
    A("s_waitcnt lgkmcnt(0)")
    A.label(skip)
```

```python
from fcommon import *
import sys
import f_gemm as G, f_attn as AT, f_out as FO, f_help as HP

NWAVES = 12
RA1 = int(os.environ.get('RA1', '4'))
SAMEXCD = os.environ.get('SAMEXCD', '1') == '1'
LA1 = int(os.environ.get('LA1', '2'))
XFIRST = os.environ.get('XFIRST', '0') == '1'
FLAG_STAGE = int(os.environ.get('FLAG_STAGE', '2'))

def busy_delay(A, env):
    n = int(os.environ.get(env, "0"))
    if not n: return
    l = A.newlabel("dly")
    A(f"s_mov_b32 s88, {n}")
    A.label(l)
    A("s_sub_u32 s88, s88, 1"); A("s_cmp_lg_u32 s88, 0"); A(f"s_cbranch_scc1 {l}")

def stop_here(A, name):
    if STOP == name:
        A("s_waitcnt vmcnt(0) lgkmcnt(0)")
        A("s_endpgm")
        return True
    return False

S_RAISED = 87
S_OUTOFF, S_OOFF = 42, 43
def try_raise(A, duty, blocking):
    nf = A.newlabel("noflag")
    A(f"s_cmp_lg_u32 s{S_WAVE}, 0"); A(f"s_cbranch_scc1 {nf}")
    A(f"s_cmp_lg_u32 s{S_RAISED}, 0"); A(f"s_cbranch_scc1 {nf}")
    if not blocking:
        A(f"s_getreg_b32 s{S_T}, hwreg(HW_REG_IB_STS, 0, 4)")
        A(f"s_cmp_lg_u32 s{S_T}, 0"); A(f"s_cbranch_scc1 {nf}")
    pstamp(A, 3, "p1")
    G.raise_flag(A, duty)
    pstamp(A, 4, "p1")
    A(f"s_mov_b32 s{S_RAISED}, 1")
    A.label(nf)

def compute_p1(A, R, duty):
    if duty:
        if duty in ("k", "v"):
            mk_srd(A, SRD_E, S_WK if duty == "k" else S_WV, 576 * 36)
        else:
            mk_srd(A, SRD_E, S_GW, ROWB); mk_srd(A, SRD_F, S_WR, ROWB)
        G.duty_loads(A, duty)
        pstamp(A, 0, "e")
    G.gemm_addresses(A)
    if duty:
        G.duty_addresses(A)
        G.duty_stage_addresses(A, duty)
        G.duty_writes(A, duty)
    A("s_waitcnt lgkmcnt(0)")
    pstamp(A, 2, "e")
    R.bar("b1")
    pstamp(A, 1, "p1")
    if duty:
        {"k": G.k_stage, "v": G.v_stage, "g": G.g_stage}[duty](A)
        A("s_waitcnt lgkmcnt(0)")
        R.bar("b2")
        pstamp(A, 2, "p1")
        np_ = A.newlabel("nopub")
        A(f"s_cmp_lg_u32 s{S_WAVE}, 0"); A(f"s_cbranch_scc1 {np_}")
        G.publish(A, duty)
        G.init_probe(A)
        A(f"s_mov_b32 s{S_RAISED}, 0")
        A.label(np_)
    lf = A.newlabel("p1f1"); le = A.newlabel("p1e")
    bars0 = list(R.bars)
    A(f"s_cmp_eq_u32 s{S_FH}, 0"); A(f"s_cbranch_scc0 {lf}")
    if duty: stages = [("bW2", list(range(0, 12))), ("bW3", list(range(12, 18)))]
    else: stages = [(f"bW{q}", list(range(4 * q, 4 * q + 4))) for q in range(3)] + [("bW3", list(range(12, 18)))]
    for nt in (3, 2):
        if nt == 2:
            A.label(lf); R.bars = list(bars0)
        gm = G.Gemm(A, nt, RA1)
        for name, steps in stages:
            if name == "bW3":
                if os.environ.get("RESX", "q") == "w3": G.residual_x(A)
                if duty and nt == 3: try_raise(A, duty, False)
                pstamp(A, 9, "w")
            R.bar(name)
            if name == "bW3": pstamp(A, 5, "p1")
            else: pstamp(A, int(name[2]), "w")
            if duty and name == "bW2":
                for part in (steps[:5], steps[5:9], steps[9:]):
                    gm.steps(part, 12, 18, la_a=LA1, burst=True)
                    if nt == 3 and part is not None and part[-1] != 11: try_raise(A, duty, False)
            else:
                gm.steps(steps, steps[-1] + 1, 18, la_a=LA1, burst=True)
        A("s_nop 7")
        G.q_epilogue(A, nt)
        if duty and nt == 3: try_raise(A, duty, True)
        if nt == 3: A(f"s_branch {le}")
    A.label(le)
    A("s_waitcnt lgkmcnt(0)")
    R.bar("bQ")
    if os.environ.get("RESX", "q") == "q": G.residual_x(A)

def compute_role(A):
    R = Role(A)
    A(f"s_and_b32 s{S_TG}, s{S_WAVE}, 3"); A(f"s_lshr_b32 s{S_FH}, s{S_WAVE}, 2")
    G.lane_setup(A)
    A(f"v_mov_b32 v{G.GT}, {L_CNT}"); A(f"v_mov_b32 v{G.GT+2}, 0"); A(f"v_mov_b32 v{G.GT+3}, 0")
    A(f"v_mov_b32 v{G.GT+4}, 0"); A(f"v_mov_b32 v{G.GT+5}, 0")
    A(f"ds_write_b128 v{G.GT}, {vr(G.GT+2,4)}")
    A(f"ds_write_b128 v{G.GT}, {vr(G.GT+2,4)} offset:16")
    G.clear_flag_lines(A)
    lk = A.newlabel("dk"); lv = A.newlabel("dv"); lg = A.newlabel("dg"); lj = A.newlabel("dj")
    A(f"s_cmp_eq_u32 s{S_HG}, 0"); A(f"s_cbranch_scc1 {lk}")
    A(f"s_cmp_eq_u32 s{S_HG}, 1"); A(f"s_cbranch_scc1 {lv}")
    A(f"s_cmp_eq_u32 s{S_HG}, 2"); A(f"s_cbranch_scc1 {lg}")
    seqs = {}
    for duty, lab in ((None, None), ("k", lk), ("v", lv), ("g", lg)):
        if lab: A.label(lab)
        R.bars = []
        compute_p1(A, R, duty)
        seqs[duty] = list(R.bars)
        if duty != "g": A(f"s_branch {lj}")
    A.label(lj)
    R.bars = []
    pstamp(A, 1)
    AT.q_fragments(A)
    if os.environ.get("LDSA", "pre") == "pre": AT.lds_addresses(A)
    pstamp(A, 6, "p1")
    A("s_waitcnt lgkmcnt(0)")
    R.bar("bKV")
    pstamp(A, 7, "p1")
    t = AT.T
    if os.environ.get("LDSA", "pre") != "pre": AT.lds_addresses(A)
    AT.q_norm(A)
    AT.gate_address(A)
    AT.tail_addresses(A)
    A(f"s_mul_i32 s{S_OUTOFF}, s{S_ROW0}, {ROWB}"); A(f"s_mul_i32 s{S_T}, s{S_HG}, 144")
    A(f"s_add_u32 s{S_OUTOFF}, s{S_OUTOFF}, s{S_T}"); A(f"s_add_u32 s{S_OOFF}, s{S_OUTOFF}, {FW_O}")
    busy_delay(A, "DELAY0")
    R.bar("B0")
    pstamp(A, 2)
    lf = A.newlabel("fallback"); le = A.newlabel("attdone")
    AT.fast_path(A, R, lf)
    A(f"s_branch {le}")
    A.label(lf)
    AT.fallback_path(A, R)
    A.label(le)
    busy_delay(A, "DELAY1")
    AT.finish(A, R)
    AT.store_rows(A, SRD_WS, S_OOFF, "sc1")
    A("s_waitcnt vmcnt(0)")
    pstamp(A, 1, "t")
    R.bar("B5")
    nf = A.newlabel("nogrp")
    A(f"s_cmp_lg_u32 s{S_WAVE}, 0"); A(f"s_cbranch_scc1 {nf}")
    A(f"s_lshl_b32 s{S_T}, s{S_TB}, 10"); A(f"s_add_u32 s{S_T}, s{S_T}, {FW_FLAG + FL_GRP}")
    A(f"v_mov_b32 v{t}, s{S_T}"); A(f"v_mov_b32 v{t+1}, 1")
    A("s_mov_b64 exec, 1")
    A(f"buffer_atomic_add v{t+1}, v{t}, {srd(SRD_WS)}, 0 offen sc1")
    A("s_mov_b64 exec, -1")
    A.label(nf)
    busy_delay(A, "DELAY2")
    FO.out_phase(A, R)
    if STAMPS: A("s_waitcnt vmcnt(0)")
    pstamp(A, 7)
    if os.environ.get("DBGSTAMP"):
        nd = A.newlabel("nodbg")
        A(f"s_cmp_lg_u32 s2, {int(os.environ['DBGSTAMP'])}"); A(f"s_cbranch_scc1 {nd}")
        A(f"s_cmp_lg_u32 s{S_WAVE}, 4"); A(f"s_cbranch_scc1 {nd}")
        A(f"v_mbcnt_lo_u32_b32 v{AT.T}, -1, 0")
        A(f"v_lshlrev_b32 v{AT.T}, 2, v{AT.T}")
        A(f"v_add_u32 v{AT.T}, 32, v{AT.T}")
        A("s_mov_b64 exec, 0xff")
        A(f"buffer_store_dword v{V_ST}, v{AT.T}, {srd(SRD_DBG)}, 0 offen")
        A.label(nd)
    else:
        pstamp_flush(A, S_WAVE, S_WS, WS_STAMP, AT.T)
    A("s_endpgm")
    return seqs, R.bars

def flag_off(A, t):
    A(f"v_min_u32 v{t}, 23, v{HP.V_LANE}")
    A(f"v_and_b32 v{t+1}, 3, v{t}"); A(f"v_lshrrev_b32 v{t}, 2, v{t}")
    A(f"v_lshlrev_b32 v{t}, 7, v{t}"); A(f"v_lshl_add_u32 v{t}, v{t+1}, 2, v{t}")
    A(f"s_lshl_b32 s{S_T}, s{S_TB}, 10"); A(f"s_add_u32 s{S_T}, s{S_T}, {FW_FLAG}")
    A(f"v_add_u32 v{t}, s{S_T}, v{t}")

def flag0_off(A, t):
    A(f"v_and_b32 v{t}, 1, v{HP.V_LANE}"); A(f"v_lshlrev_b32 v{t}, 2, v{t}")
    A(f"v_and_b32 v{t+1}, 2, v{HP.V_LANE}"); A(f"v_lshl_add_u32 v{t}, v{t+1}, 7, v{t}")
    A(f"s_lshl_b32 s{S_T}, s{S_TB}, 10"); A(f"s_add_u32 s{S_T}, s{S_T}, {FW_FLAG}")
    A(f"v_add_u32 v{t}, s{S_T}, v{t}")

def helper_p1(A, R, duty, h3):
    vm = VmTrack()
    vm.issue("x", 18)
    HP.issue_w(A, vm, h3, range(6), lambda a_: f"w{a_//2}")
    if not duty: HP.issue_w(A, vm, h3, range(6, 9), lambda a_: "w3")
    A(f"s_waitcnt vmcnt({vm.after('x')})")
    R.bar("b1")
    if duty:
        R.bar("b2")
        if os.environ.get("B2SLEEP"): A(f"s_sleep {os.environ['B2SLEEP']}")
        HP.issue_w(A, vm, h3, range(6, 9), lambda a_: "w3")
    for q in range(4):
        if duty and q < 2: continue
        A(f"s_waitcnt vmcnt({vm.after(f'w{q}')})")
        R.bar(f"bW{q}")
        if q == 2: HP.init_issue(A)
    HP.init_check(A)
    if duty: HP.publish_key_norm(A)
    HP.poll_issue(A, flag0_off)
    R.bar("bQ")

def helper_rest(A, R, h3):
    pstamp(A, 1)
    HP.poll(A, flag0_off, 4, "0x01010101", "kv0", preissued=True)
    pstamp(A, 2)
    R.bar("bKV")
    HP.issue_kv(A, 0, HP.KV_ST0)
    A("s_waitcnt vmcnt(0)")
    R.bar("B0")
    HP.poll(A, flag_off, 24, "0x01010101", "kvp")
    HP.lds_sync(A, 4, "hsall", sleep=4)
    A(f"s_mov_b32 s{S_T}, {FW_KEYS}")
    A(f"buffer_load_dwordx4 {vr(HP.F_KEY,4)}, v{HP.VL16}, {srd(SRD_WS)}, s{S_T} offen{HSC}")
    HP.issue_kv(A, HP.KV_ST0, 148)
    HP.key_norm(A)
    A("s_waitcnt vmcnt(0)")
    HP.select_top2(A)
    A("s_waitcnt vmcnt(0) lgkmcnt(0)")
    R.bar("B1")
    HP.read_selection(A)
    nof = A.newlabel("noffn")
    A(f"s_cmp_lt_u32 s{S_HG}, 3"); A(f"s_cbranch_scc1 {nof}")
    A(f"s_lshr_b32 s{S_T}, s2, 6"); A(f"s_mul_i32 s{S_T}, s{S_T}, 5")
    A(f"s_add_u32 s{S_T}, s{S_T}, s{S_HG}"); A(f"s_sub_u32 s{S_T}, s{S_T}, 3")
    A(f"s_cmp_ge_u32 s{S_T}, 18"); A(f"s_cbranch_scc1 {nof}")
    A(f"s_and_b32 s{S_T2}, s2, 7"); A(f"s_mul_i32 s{S_T2}, s{S_T2}, 18")
    A(f"s_add_u32 s{HP.S_SL}, s{S_T2}, s{S_T}")
    pstamp(A, 3)
    if not os.environ.get("NOFFN"): HP.ffn(A)
    else:
        nf2 = A.newlabel("nof2")
        A(f"s_cmp_lg_u32 s{HP.S_H}, 0"); A(f"s_cbranch_scc1 {nf2}")
        A(f"v_mov_b32 v8, {FW_FFNC}"); A(f"v_mov_b32 v9, 1")
        A("s_mov_b64 exec, 1")
        A(f"buffer_atomic_add v9, v8, {srd(SRD_WS)}, 0 offen sc1")
        A("s_mov_b64 exec, -1")
        A.label(nf2)
    A.label(nof)
    pstamp(A, 4)
    mk_srd(A, SRD_W, S_WO, D * ROWB)
    mk_srd(A, SRD_A, S_WS, S_TOK * ROWB, add=FW_O)
    vm = VmTrack()
    HP.wait_released(A)
    HP.issue_w(A, vm, h3, range(9), lambda a_: "w", wb=WB3)
    HP.routed_update(A)
    A("s_waitcnt vmcnt(0)")
    AT.row_store_addresses(A, HP.V_LANE, 512, 24, 25, 26)
    A(f"s_mul_i32 s84, s{S_ROW0}, {ROWB}"); A(f"s_mul_i32 s{S_T}, s{S_HG}, 144")
    A(f"s_add_u32 s84, s84, s{S_T}"); A(f"s_add_u32 s85, s84, {FW_O}")
    R.bar("B2"); R.bar("B3"); R.bar("B4")
    n8 = A.newlabel("no8")
    A(f"s_cmp_lg_u32 s{HP.S_H}, 1"); A(f"s_cbranch_scc1 {n8}")
    AT.store_rows(A, SRD_WS, 85, "sc1", vl=24, vg=25, d=28)
    A("s_waitcnt vmcnt(0)")
    A.label(n8)
    R.bar("B5")
    def grp_off(A, t):
        A(f"s_lshl_b32 s{S_T}, s{S_TB}, 10"); A(f"s_add_u32 s{S_T}, s{S_T}, {FW_FLAG + FL_GRP}")
        A(f"v_mov_b32 v{t}, s{S_T}")
    pstamp(A, 5)
    HP.poll(A, grp_off, 1, "8", "grp", ge=True)
    pstamp(A, 6)
    R.bar("B6")
    if stop_here(A, "attn"): return
    vm = VmTrack()
    A(f"s_mul_i32 s{S_T3}, s{S_ROW0}, {ROWB}")
    stage_of = {cc: q for q, ccs in enumerate(FO.X_STAGES) for cc in ccs}
    HP.issue_x(A, vm, range(9), not PLAIN, lambda cc: f"x{stage_of[cc]}", xb=XB3)
    for q in range(len(FO.X_STAGES)):
        A(f"s_waitcnt vmcnt({vm.after(f'x{q}')})")
        R.bar(f"bX{q}")
    R.bar("B7")
    n9 = A.newlabel("no9")
    A(f"s_cmp_lg_u32 s{HP.S_H}, 1"); A(f"s_cbranch_scc1 {n9}")
    A(f"v_subrev_u32 v24, {OSTG - OUTSTG}, v24")
    AT.store_rows(A, SRD_OUT, 84, "", vl=24, vg=25, d=28)
    A.label(n9)
    pstamp(A, 7)
    if not os.environ.get("DBGSTAMP"): pstamp_flush(A, S_WAVE, S_WS, WS_STAMP, HP.HT)
    A("s_endpgm")

def helper_role(A):
    R = Role(A)
    A(f"s_setprio {os.environ.get('HPRIO', '3')}")
    A(f"s_sub_u32 s{HP.S_H}, s{S_WAVE}, 8")
    A(f"v_and_b32 v{HP.V_LANE}, 63, v0")
    HP.setup_x(A)
    if not XFIRST: HP.setup_w(A)
    A(f"s_mul_i32 s{S_T3}, s{S_ROW0}, {ROWB}")
    vmx = VmTrack()
    if os.environ.get("XROT", "1") == "1": HP.issue_x_rotated(A)
    else: HP.issue_x(A, vmx, range(9), False, lambda cc: "x")
    if XFIRST: HP.setup_w(A)
    l3 = A.newlabel("h3")
    A(f"s_cmp_eq_u32 s{HP.S_H}, 3"); A(f"s_cbranch_scc1 {l3}")
    seqs = {}
    for h3 in (False, True):
        if h3: A.label(l3)
        ld = A.newlabel("hduty"); lj = A.newlabel("hj")
        A(f"s_cmp_lt_u32 s{S_HG}, 3"); A(f"s_cbranch_scc1 {ld}")
        R.bars = []; helper_p1(A, R, False, h3); seqs[None] = list(R.bars)
        A(f"s_branch {lj}")
        A.label(ld)
        R.bars = []; helper_p1(A, R, True, h3); seqs["d"] = list(R.bars)
        A.label(lj)
        R.bars = []
        helper_rest(A, R, h3)
    return seqs, R.bars

def gen(name):
    A = Asm()
    end = "L_end"
    A("s_cmp_ge_u32 s2, 256"); A(f"s_cbranch_scc1 {end}")
    pstamp_init(A); pstamp(A, 0)
    load_kernargs(A)
    A(f"v_lshrrev_b32 v1, 6, v0")
    A(f"v_and_b32 v{G.V_LANE}, 63, v0")
    A(f"v_readfirstlane_b32 s{S_WAVE}, v1")
    A(f"s_and_b32 s{S_T}, s2, 7"); A(f"s_lshr_b32 s{S_T2}, s2, 3")
    A(f"s_and_b32 s{S_HG}, s{S_T2}, 7"); A(f"s_lshr_b32 s{S_T2}, s{S_T2}, 3")
    A(f"s_lshl_b32 s{S_T}, s{S_T}, 2"); A(f"s_add_u32 s{S_TB}, s{S_T}, s{S_T2}")
    A(f"s_lshl_b32 s{S_ROW0}, s{S_TB}, 6")
    A("s_waitcnt lgkmcnt(0)")
    mk_srd(A, SRD_A, S_X, S_TOK * ROWB)
    mk_srd(A, SRD_W, S_WQ, D * ROWB)
    mk_srd(A, SRD_WS, S_WS, FW_SIZE)
    mk_srd(A, SRD_KV, S_WS, KV_IMG, add=FW_KV)
    mk_srd(A, SRD_OUT, S_OUT, S_TOK * ROWB)
    mk_srd(A, SRD_DBG, S_DBG, 256)
    lh = A.newlabel("helper")
    A(f"s_cmp_ge_u32 s{S_WAVE}, 8"); A(f"s_cbranch_scc1 {lh}")
    cs, cb = compute_role(A)
    A.label(lh)
    hs, hb = helper_role(A)
    assert cs[None] == hs[None], (cs[None], hs[None])
    for d in "kvg": assert cs[d] == hs["d"], (cs[d], hs["d"])
    assert cb == hb, (cb, hb)
    A.label(end); A("s_endpgm")
    return A, 168, LDS_BYTES, 64 * NWAVES

DOC = """\
;
"""

def build(out):
    n = NAME + "_kernel"
    A, nv, lds, blk = gen(n)
    hdr = open("cdna_kernels/" + NAME + ".s.ref").read().split("; Override launch")[0]
    txt = hdr + f"; @launch grid=(256,1,1) block=({blk},1,1) lds={lds}\n" + DOC
    txt += '.amdgcn_target "amdgcn-amd-amdhsa--gfx950"\n'
    rep = []
    body = A.finish(rep)
    if "-v" in sys.argv:
        print(len(rep), "nop insertions")
        for r in rep: print("   ", r)
    txt += kernel_header(n) + body + kernel_desc(n, nv, nsgpr=102)
    open(out, "w").write(txt)
    print("wrote", out, len(txt), "bytes")

if __name__ == "__main__":
    import sys
    build(sys.argv[1])
```
